```python
import torch

def _softmax(x, axis=-1):
    return torch.softmax(x, dim=axis)
def _gelu(x):
    return torch.nn.functional.gelu(x, approximate="tanh")
def _silu(x):
    return torch.nn.functional.silu(x)
def _sigmoid(x):
    return torch.sigmoid(x)
def _layernorm(x, axis=-1, eps=1e-5):
    m = x.mean(dim=axis, keepdim=True)
    v = x.var(dim=axis, keepdim=True, unbiased=False)
    return (x - m) / torch.sqrt(v + eps)
def _scatter_add(tgt, idx, src, axis=0):
    return tgt.clone().index_add_(axis, idx, src)
def _segment_sum(src, seg, n):
    out = torch.zeros((n,) + src.shape[1:], dtype=src.dtype)
    return out.index_add_(0, seg, src)
def _pad(x, pw):
    flat = tuple(v for pair in reversed(pw) for v in pair)
    return torch.nn.functional.pad(x, flat)

kernel_name = 'gated_mix__spectral_gfnet__mixer_token_mlp__prompt'

def setup_inputs():

    _w = (lambda a: (lambda t: t.to(torch.bfloat16) if t.is_floating_point() else t)(torch.as_tensor(a)))
    def _A_setup():
        B, S, D = 1, 2048, 512
        Df = D // 2 + 1
        return {
            "x": _w((lambda *s: torch.randn(*s, dtype=torch.bfloat16) * 0.05)(B, S, D)),
            "w_r": _w((lambda *s: torch.randn(*s, dtype=torch.bfloat16) * 0.8)(S, Df) * 0.02),
            "w_i": _w((lambda *s: torch.randn(*s, dtype=torch.bfloat16) * 1.6)(S, Df) * 0.02),
        }
    _A_in = _A_setup()

    def _B_setup():
        B, S, D, F = 1, 2048, 512, 1792
        return {
            "x": _w((lambda *s: torch.randn(*s, dtype=torch.bfloat16) * 0.05)(B, S, D)),
            "w1": _w((lambda *s: torch.randn(*s, dtype=torch.bfloat16) * 0.2)(S, F) * (S ** -0.5)),
            "b1": _w((lambda *s: torch.randn(*s, dtype=torch.bfloat16) * 3.2)(F) * 0.02),
            "w2": _w((lambda *s: torch.randn(*s, dtype=torch.bfloat16) * 0.05)(F, S) * (F ** -0.5)),
            "b2": _w((lambda *s: torch.randn(*s, dtype=torch.bfloat16) * 0.1)(S) * 0.02),
        }
    _B_in = _B_setup()

    return {
        "A_x": _A_in["x"],
        "A_w_r": _A_in["w_r"],
        "A_w_i": _A_in["w_i"],
        "B_x": _B_in["x"],
        "B_w1": _B_in["w1"],
        "B_b1": _B_in["b1"],
        "B_w2": _B_in["w2"],
        "B_b2": _B_in["b2"],
        "gate_w": _w((lambda *s: torch.randn(*s, dtype=torch.bfloat16) * 0.05)(512) * 16.0),
    }

def reference(A_x, A_w_r, A_w_i, B_x, B_w1, B_b1, B_w2, B_b2, gate_w):
    def _A_ref(x, w_r, w_i):
        B, S, D = x.shape
        X = (lambda x, axes=(-2,-1): torch.fft.rfft2(x.float(), dim=axes))(x, axes=(-2, -1))
        W = w_r + 1j * w_i
        X = X * W
        y = (lambda x, s, axes=(-2,-1): torch.fft.irfft2(x, s=s, dim=axes).to(torch.bfloat16))(X, (S, D), axes=(-2, -1))
        return y

    def _B_ref(x, w1, b1, w2, b2):
        B, S, D = x.shape
        h = _layernorm(x, axis=-1)
        u = torch.einsum("bsd,sf->bdf", h, w1) + b1
        u = _gelu(u)
        y = torch.einsum("bdf,fs->bds", u, w2) + b2
        return (lambda x, *d: x.permute(*d))(y, 0, 2, 1)

    x = A_x
    g = _sigmoid((x * gate_w).sum(-1, keepdims=True))
    a = _A_ref(x, A_w_r, A_w_i)
    b = _B_ref(x, B_w1, B_b1, B_w2, B_b2)
    return g * a + (1 - g) * b
```

```python
import re

_REG = re.compile(r'(?<![\w.])([vas])(\d+)(?![\w\[])|(?<![\w.])([vas])\[(\d+):(\d+)\]')
def regs_of(op):
    out = set()
    op = op.strip()
    for m in _REG.finditer(op):
        if m.group(1):
            out.add((m.group(1), int(m.group(2))))
        else:
            for i in range(int(m.group(4)), int(m.group(5)) + 1):
                out.add((m.group(3), i))
    if re.search(r'\bvcc\b', op): out |= {('s', 106), ('s', 107)}
    if re.search(r'\bvcc_lo\b', op): out |= {('s', 106)}
    if re.search(r'\bvcc_hi\b', op): out |= {('s', 107)}
    if re.search(r'\bexec\b', op): out |= {('s', 126), ('s', 127)}
    if re.search(r'\bexec_lo\b', op): out |= {('s', 126)}
    if re.search(r'\bexec_hi\b', op): out |= {('s', 127)}
    if re.search(r'\bm0\b', op): out |= {('s', 124)}
    return out

def split_ops(s):
    ops, depth, cur = [], 0, ""
    for ch in s:
        if ch == '[': depth += 1
        if ch == ']': depth -= 1
        if ch == ',' and depth == 0:
            ops.append(cur.strip()); cur = ""
        else:
            cur += ch
    if cur.strip(): ops.append(cur.strip())
    return ops

TRANS = ('v_exp_f32', 'v_log_f32', 'v_rcp_f32', 'v_rsq_f32', 'v_sqrt_f32', 'v_sin_f32', 'v_cos_f32', 'v_rcp_iflag_f32')

class Ins:
    __slots__ = ('text', 'mn', 'cls', 'defs', 'uses', 'passes', 'srcc', 'srcab', 'dpp', 'lds_dma', 'wide_store', 'tok', 'states')
    def __init__(self, text):
        self.text = text
        t = text.split(';')[0].strip()
        parts = t.split(None, 1)
        mn = parts[0]; rest = parts[1] if len(parts) > 1 else ""
        self.mn = mn; self.passes = 0; self.srcc = set(); self.srcab = set(); self.dpp = False
        self.lds_dma = False; self.wide_store = set(); self.tok = None; self.states = 1
        ops = split_ops(rest)
        mods = ""
        if ops:
            last = ops[-1]
            m = re.match(r'^(\S+(?:\s*\[[^\]]*\])?)\s+(.*)$', last)
            if m and not last.startswith('vmcnt') and not last.startswith('lgkmcnt'):
                ops[-1] = m.group(1); mods = m.group(2)
        defs, uses = set(), set()
        R = [regs_of(o) for o in ops]
        if mn.startswith('v_mfma'):
            self.cls = 'mfma'
            defs = R[0]; self.srcab = R[1] | R[2]; self.srcc = R[3]; uses = self.srcab | self.srcc
            self.passes = 8 if '32x32' in mn else 4
        elif mn.startswith('v_cmp'):
            self.cls = 'valu'; defs = set(R[0]); uses = set().union(*R[1:])
            if mn.startswith('v_cmpx'): defs |= {('s', 126), ('s', 127)}
        elif mn in ('v_readfirstlane_b32', 'v_readlane_b32'):
            self.cls = 'valu'; defs = R[0]; uses = set().union(*R[1:])
        elif mn.startswith('v_permlane') and 'swap' in mn:
            self.cls = 'valu'; defs = R[0] | R[1]; uses = R[0] | R[1]
        elif mn.startswith('v_'):
            self.cls = 'valu'
            defs = set(R[0]); uses = set().union(*R[1:]) if len(R) > 1 else set()
            if mn.startswith(('v_add_co', 'v_sub_co', 'v_subrev_co', 'v_addc_co', 'v_subb_co', 'v_div_scale', 'v_mad_u64')):
                defs |= R[1]; uses = set().union(*R[2:])
            if mn.startswith(('v_fmac', 'v_writelane', 'v_pk_fmac')) or 'dpp' in mn or 'row_' in mods or 'quad_perm' in mods:
                uses |= R[0]
            if mn == 'v_cndmask_b32' and len(ops) == 3: uses |= {('s', 106), ('s', 107)}
            if 'row_' in mods or 'quad_perm' in mods or 'wave_' in mods: self.dpp = True
        elif mn.startswith(('buffer_load', 'global_load')):
            self.cls = 'vmem'
            if re.search(r'\blds\b', mods) or 'load_lds' in mn:
                self.lds_dma = True; uses = set().union(*R) | {('s', 124)}
            else:
                defs = R[0]; uses = set().union(*R[1:])
        elif mn.startswith(('buffer_store', 'global_store', 'buffer_atomic', 'global_atomic')):
            self.cls = 'vmem'; uses = set().union(*R)
            if 'x4' in mn or 'x3' in mn:
                self.wide_store = R[0] if mn.startswith('buffer') else R[1]
            if 'atomic' in mn and re.search(r'\bsc0\b', mods): defs = R[0]
        elif mn.startswith(('buffer_wbl2', 'buffer_inv')):
            self.cls = 'vmem'
        elif mn.startswith('ds_'):
            self.cls = 'lds'
            if mn.startswith(('ds_read', 'ds_bpermute', 'ds_permute', 'ds_swizzle')) or '_rtn' in mn:
                defs = R[0]; uses = set().union(*R[1:])
            else:
                uses = set().union(*R)
        elif mn.startswith(('s_load', 's_buffer_load', 's_memtime', 's_memrealtime', 's_atomic')):
            self.cls = 'smem'; defs = R[0]; uses = set().union(*R[1:]) if len(R) > 1 else set()
        elif mn == 's_nop':
            self.cls = 'nop'; self.states = int(ops[0], 0) + 1
        elif mn in ('s_waitcnt', 's_barrier', 's_endpgm', 's_setprio', 's_sleep', 's_branch') or mn.startswith('s_cbranch'):
            self.cls = 'ctrl'
        elif mn.startswith('s_cmp') or mn.startswith('s_bitcmp'):
            self.cls = 'salu'; uses = set().union(*R)
        elif mn.startswith('s_'):
            self.cls = 'salu'; defs = set(R[0]) if R else set(); uses = set().union(*R[1:]) if len(R) > 1 else set()
            if 'saveexec' in mn: defs |= {('s', 126), ('s', 127)}; uses |= {('s', 126), ('s', 127)}
            if mn in ('s_addk_i32', 's_mulk_i32', 's_cmov_b32', 's_cmov_b64'): uses |= R[0]
        else:
            raise ValueError("unknown instr: " + text)
        self.defs = defs; self.uses = uses

class Asm:
    def __init__(self):
        self.lines = []
        self.hist = []
        self.pos = 0
        self.vm = []
        self.lg = []
        self.nvm = 0
        self.auto_wait = True
        self.stats = {}
    def raw(self, text): self.lines.append(text)
    def comment(self, t): self.lines.append("    ; " + t)
    def _wait(self, vm=None, lg=None):
        t = []
        if vm is not None:
            vm = min(vm, 63)
            if vm < len(self.vm): t.append(f"vmcnt({vm})"); self.vm = self.vm[len(self.vm) - vm:] if vm else []
        if lg is not None:
            lg = min(lg, 15)
            if lg < len(self.lg):
                if any(i.cls == 'smem' for i in self.lg): lg = 0
                t.append(f"lgkmcnt({lg})"); self.lg = self.lg[len(self.lg) - lg:] if lg else []
        if t: self._put(Ins("s_waitcnt " + " ".join(t)))
    def wait_tok(self, *toks):
        vm = lg = None
        for tk in toks:
            if tk is None: continue
            if tk in self.vm:
                n = len(self.vm) - 1 - self.vm.index(tk); vm = n if vm is None else min(vm, n)
            if tk in self.lg:
                n = len(self.lg) - 1 - self.lg.index(tk); lg = n if lg is None else min(lg, n)
        self._wait(vm, lg)
    def wait_all(self, vm=True, lg=True): self._wait(0 if vm else None, 0 if lg else None)
    def _auto(self, ins):
        touched = ins.uses | ins.defs
        vm = lg = None
        for k, o in enumerate(self.vm):
            if o.defs & touched: n = len(self.vm) - 1 - k; vm = n if vm is None else min(vm, n)
        for k, o in enumerate(self.lg):
            if o.defs & touched: n = len(self.lg) - 1 - k; lg = n if lg is None else min(lg, n)
        self._wait(vm, lg)
    def _need(self, ins):
        need = 0
        for (p, o) in reversed(self.hist):
            dist = self.pos - p
            if dist > 24: break
            req = 0
            vdefs = {r for r in o.defs if r[0] in 'va'}
            sdefs = {r for r in o.defs if r[0] == 's'}
            if o.cls == 'valu':
                if ins.cls == 'mfma' and vdefs & ins.uses: req = max(req, 2)
                if ins.cls == 'mfma' and sdefs & {('s', 126), ('s', 127)}: req = max(req, 4)
                if o.mn in TRANS and ins.cls in ('valu', 'mfma') and ins.mn not in TRANS and vdefs & ins.uses: req = max(req, 1)
                if o.mn in TRANS and ins.cls in ('vmem', 'lds') and vdefs & ins.uses: req = max(req, 1)
                if ins.dpp and vdefs & ins.uses: req = max(req, 2)
                if ins.dpp and sdefs & {('s', 126), ('s', 127)}: req = max(req, 5)
                if ins.mn in ('v_readlane_b32', 'v_readfirstlane_b32') and vdefs & ins.uses: req = max(req, 1)
                if ins.mn.startswith('v_permlane') and vdefs & ins.uses: req = max(req, 2)
                if sdefs and ins.cls == 'vmem' and sdefs & ins.uses: req = max(req, 5)
                if sdefs and ins.cls == 'valu' and sdefs & ins.uses:
                    req = max(req, 4 if ins.mn in ('v_readlane_b32', 'v_writelane_b32') else 2)
                if sdefs & {('s', 126), ('s', 127)} and ins.mn in ('v_readlane_b32', 'v_readfirstlane_b32', 'v_writelane_b32'): req = max(req, 4)
                if sdefs and ins.cls == 'salu' and sdefs & ins.uses: req = max(req, 1)
                if 'sdwa' in o.text or 'op_sel' in o.text and o.mn.startswith('v_cvt'):
                    if ins.cls == 'valu' and vdefs & (ins.uses | ins.defs): req = max(req, 1)
            elif o.cls == 'mfma':
                P = o.passes
                if ins.cls == 'mfma':
                    if o.defs & ins.srcab: req = max(req, 12 if P == 8 else 8)
                    if o.defs & ins.srcc and not (o.defs == ins.srcc and ins.passes == P): req = max(req, 10 if P == 8 else 6)
                    if o.defs & ins.defs and not (o.defs == ins.srcc): req = max(req, 12 if P == 8 else 8)
                elif ins.cls in ('valu', 'vmem', 'lds'):
                    if o.defs & (ins.uses | ins.defs): req = max(req, 12 if P == 8 else 8)
                    if ins.cls == 'valu' and o.srcc & ins.defs: req = max(req, 7 if P == 8 else 3)
            elif o.cls == 'salu':
                if ('s', 124) in o.defs and (ins.lds_dma or 'addtid' in ins.mn): req = max(req, 1)
            elif o.cls == 'vmem':
                if o.wide_store and o.wide_store & ins.defs: req = max(req, 2 if ins.cls == 'valu' else 1)
            need = max(need, req - dist)
        return need
    def _put(self, ins):
        n = self._need(ins)
        while n > 0:
            k = min(n, 16)
            nop = Ins(f"s_nop {k-1}")
            self.lines.append("    " + nop.text); self.pos += k; n -= k
            self.stats['nopstates'] = self.stats.get('nopstates', 0) + k
        self.lines.append("    " + ins.text)
        self.pos += ins.states
        self.hist.append((self.pos, ins))
        if len(self.hist) > 64: self.hist = self.hist[-40:]
        self.stats[ins.cls] = self.stats.get(ins.cls, 0) + 1
    def __call__(self, text):
        last = None
        for line in text.strip().split('\n'):
            line = line.strip()
            if not line or line.startswith(';'):
                continue
            ins = Ins(line)
            if ins.mn == 's_waitcnt':
                m = re.search(r'vmcnt\((\d+)\)', line); v = int(m.group(1)) if m else None
                m = re.search(r'lgkmcnt\((\d+)\)', line); l = int(m.group(1)) if m else None
                if v is not None and v < len(self.vm): self.vm = self.vm[len(self.vm) - v:] if v else []
                if l is not None and l < len(self.lg): self.lg = self.lg[len(self.lg) - l:] if l else []
                self._put(ins); last = ins; continue
            if self.auto_wait: self._auto(ins)
            self._put(ins)
            if ins.cls == 'vmem':
                self.vm.append(ins)
                if len(self.vm) > 63: self.vm = self.vm[-63:]
            elif ins.cls in ('lds', 'smem'):
                self.lg.append(ins)
                if ins.cls == 'smem': self.lg.append(ins)
            last = ins
        return last
    def label(self, name, clean=True):
        self.lines.append(name + ":")
    def fence(self, states=12):
        worst = 0
        for (p, o) in reversed(self.hist):
            dist = self.pos - p
            if dist > 24: break
            r = 0
            if o.cls == 'mfma': r = 12 if o.passes == 8 else 8
            elif o.cls == 'valu': r = 5
            elif o.cls == 'salu': r = 1
            elif o.cls == 'vmem' and o.wide_store: r = 2
            worst = max(worst, r - dist)
        if worst > 0:
            self._put(Ins(f"s_nop {worst-1}"))
    def reset_state(self):
        self.hist = []; self.vm = []; self.lg = []
    def snapshot(self): return (list(self.hist), self.pos, list(self.vm), list(self.lg))
    def restore(self, s): self.hist, self.pos, self.vm, self.lg = list(s[0]), s[1], list(s[2]), list(s[3])
    def text(self): return "\n".join(self.lines) + "\n"

def vr(base, n=1):
    return f"v{base}" if n == 1 else f"v[{base}:{base+n-1}]"
def sr(base, n=1):
    return f"s{base}" if n == 1 else f"s[{base}:{base+n-1}]"

def interleave(a, b, ratio=None):
    out = []
    na, nb = len(a), len(b)
    ia = ib = 0
    while ia < na or ib < nb:
        if ib >= nb or (ia < na and ia * nb <= ib * na):
            out.append(a[ia]); ia += 1
        else:
            out.append(b[ib]); ib += 1
    return out
```

```python
import numpy as np
S, D, F = 2048, 512, 1792
WS_HT = 0x000000
WS_Z  = 0x200000
WS_WT = 0x400000
WS_UT = 0x700000
WS_Y1 = 0x900000
WS_G  = 0xB00000

def bf16_bits(f):
    u = np.ascontiguousarray(f, dtype=np.float32).view(np.uint32)
    return ((u + 0x7FFF + ((u >> 16) & 1)) >> 16).astype(np.uint16)
def bf16_val(b): return (b.astype(np.uint32) << 16).view(np.float32)
def bf16r(f): return bf16_val(bf16_bits(f))

L = np.arange(64)
E8 = np.arange(8)
def cs(num, den):
    ang = 2 * np.pi * (np.asarray(num) % den) / den
    return np.cos(ang), np.sin(ang)

def mfma32(A, B, C=None):
    Am = np.zeros((32, 16)); Bm = np.zeros((16, 32))
    for e in range(8):
        Am[L & 31, 8 * (L >> 5) + e] = A[:, e]; Bm[8 * (L >> 5) + e, L & 31] = B[:, e]
    Dm = Am @ Bm
    out = np.zeros((64, 16))
    for i in range(16):
        out[:, i] = Dm[8 * (i >> 2) + 4 * (L >> 5) + (i & 3), L & 31]
    return out if C is None else out + C
def mfma16(A, B, C=None):
    Am = np.zeros((16, 32)); Bm = np.zeros((32, 16))
    for e in range(8):
        Am[L & 15, 8 * (L >> 4) + e] = A[:, e]; Bm[8 * (L >> 4) + e, L & 15] = B[:, e]
    Dm = Am @ Bm
    out = np.zeros((64, 4))
    for i in range(4):
        out[:, i] = Dm[4 * (L >> 4) + i, L & 15]
    return out if C is None else out + C

def k1_tables():
    jbp = (L & 15)[:, None]; g = (L >> 4)[:, None]; e = E8[None, :]
    fr = {}
    for jh in range(2):
        c, s = cs((8 * g + e) * (jbp + 16 * jh), 32)
        fr[f'COS{jh}'] = c; fr[f'SIN{jh}'] = s; fr[f'NSIN{jh}'] = -s
    a = 4 * g + (e & 3)
    c, s = cs(a * jbp, 16)
    fr['ARE'] = np.where(e < 4, c, s); fr['AIM'] = np.where(e < 4, -s, c)
    tw = {}
    for jh in range(2):
        i = np.arange(4)[None, :]
        c, s = cs((4 * g + i) * (jbp + 16 * jh), 512)
        tw[f'TW{jh}'] = (c, s)
    return fr, tw
K1_FRAGS = ['COS0', 'COS1', 'SIN0', 'SIN1', 'NSIN0', 'NSIN1', 'ARE', 'AIM']
K1_TWS = ['TW0', 'TW1']

def pat(u, h, e):
    return 16 * u + 8 * (e >> 2) + 4 * h + (e & 3)
def dpat(h, i): return 8 * (i >> 2) + 4 * h + (i & 3)
def k2_tables():
    n = (L & 31)[:, None]; h = (L >> 5)[:, None]; e = E8[None, :]
    fr = {}
    for c in range(4):
        mu = e >> 1; reim = e & 1
        m = 4 * c + mu
        c0, s0 = cs(2 * m * n, 32); c1, s1 = cs((2 * m + 1) * n, 32)
        Ar_re, Ai_re, Br_re, Bi_re = c0 - s1, s0 + c1, c0 + s1, -s0 + c1
        Ar_im, Ai_im, Br_im, Bi_im = -s0 - c1, c0 - s1, -s0 + c1, -c0 - s1
        re = np.where(h == 0, np.where(reim == 0, Ar_re, Ai_re), np.where(reim == 0, Br_re, Bi_re)) / 2
        im = np.where(h == 0, np.where(reim == 0, Ar_im, Ai_im), np.where(reim == 0, Br_im, Bi_im)) / 2
        fr[f'S1re{c}'] = re; fr[f'S1im{c}'] = im
    for u in range(2):
        kk = pat(u, h, e)
        c, s = cs(n * kk, 32);            fr[f'Ec{u}'] = c;  fr[f'Es{u}'] = s;  fr[f'En{u}'] = -s
        c, s = cs(kk * (2 * n + 1), 64);  fr[f'OFc{u}'] = c; fr[f'OFs{u}'] = s; fr[f'OFn{u}'] = -s
        c, s = cs(n * (2 * kk + 1), 64);  fr[f'OIc{u}'] = c; fr[f'OIs{u}'] = s; fr[f'OIn{u}'] = -s
    tw = {}
    for mt in range(2):
        for q in range(4):
            i = 4 * q + np.arange(4)[None, :]
            n2 = 32 * mt + dpat(h, i)
            tw[f'T1_{mt}_{q}'] = cs(n2 * n, 2048)
    for q in range(4):
        i = 4 * q + np.arange(4)[None, :]
        k1 = dpat(h, i)
        tw[f'T2_{q}'] = cs(n * k1, 2048)
    return fr, tw
K2_FRAGS = [f'S1re{c}' for c in range(4)] + [f'S1im{c}' for c in range(4)] + \
    [f'{t}{x}{u}' for t in ('E', 'OF', 'OI') for x in 'csn' for u in range(2)]
K2_TWS = [f'T1_{mt}_{q}' for mt in range(2) for q in range(4)] + [f'T2_{q}' for q in range(4)]

def frag_bytes(f):
    b = bf16_bits(f.astype(np.float32)).astype(np.uint32)
    return (b[:, 0::2] | (b[:, 1::2] << 16)).reshape(-1)
def tw_bytes(cs_):
    c = cs_[0].astype(np.float16).view(np.uint16).astype(np.uint32)
    s = cs_[1].astype(np.float16).view(np.uint16).astype(np.uint32)
    return (c | (s << 16)).reshape(-1)
def table_dwords(which):
    fr, tw = (k1_tables() if which == 1 else k2_tables())
    names_f, names_t = (K1_FRAGS, K1_TWS) if which == 1 else (K2_FRAGS, K2_TWS)
    blocks = [frag_bytes(fr[n]) for n in names_f] + [tw_bytes(tw[n]) for n in names_t]
    idx = {n: i for i, n in enumerate(names_f + names_t)}
    return np.concatenate(blocks).astype(np.uint32), idx

def f16r(x): return x.astype(np.float16).astype(np.float64)
def emu_k1_pair(x0, x1):
    fr, tw = k1_tables(); fr = {k: bf16r(v) for k, v in fr.items()}
    a = (L & 15)[:, None]; g = (L >> 4)[:, None]; e = E8[None, :]
    A0 = x0[a + 16 * (8 * g + e)]; A1 = x1[a + 16 * (8 * g + e)]
    Z = np.zeros(512, complex)
    for jh in range(2):
        Tre = mfma16(A1, fr[f'SIN{jh}'], mfma16(A0, fr[f'COS{jh}']))
        Tim = mfma16(A1, fr[f'COS{jh}'], mfma16(A0, fr[f'NSIN{jh}']))
        c, s = map(f16r, tw[f'TW{jh}'])
        re = Tre * c + Tim * s; im = Tim * c - Tre * s
        B = bf16r(np.concatenate([re, im], axis=1))
        Zre = mfma16(fr['ARE'], B); Zim = mfma16(fr['AIM'], B)
        for i in range(4):
            k = (L & 15) + 16 * jh + 32 * (4 * (L >> 4) + i)
            Z[k] = bf16r(Zre[:, i]) + 1j * bf16r(Zim[:, i])
    return Z

def emu_k2_fwd(ZA, ZB):
    fr, tw = k2_tables(); fr = {k: bf16r(v) for k, v in fr.items()}
    n = L & 31; h = L >> 5
    D1 = {}
    for mt in range(2):
        for nt in ('re', 'im'):
            acc = None
            for c in range(4):
                A = np.where((h == 0)[:, None], ZA[c, 32 * mt + n], ZB[c, 32 * mt + n])
                acc = mfma32(A, fr[f'S1{nt}{c}'], acc)
            D1[mt, nt] = acc
    def twf(mt):
        c = np.concatenate([f16r(tw[f'T1_{mt}_{q}'][0]) for q in range(4)], axis=1)
        s = np.concatenate([f16r(tw[f'T1_{mt}_{q}'][1]) for q in range(4)], axis=1)
        return c, s
    c0, s0 = twf(0); c1, s1 = twf(1)
    a_re = D1[0, 're'] * c0 + D1[0, 'im'] * s0; a_im = D1[0, 'im'] * c0 - D1[0, 're'] * s0
    b_re = D1[1, 're'] * c1 + D1[1, 'im'] * s1; b_im = D1[1, 'im'] * c1 - D1[1, 're'] * s1
    U = {(0, 're'): bf16r(a_re + b_re), (0, 'im'): bf16r(a_im + b_im), (1, 're'): bf16r(a_re - b_re), (1, 'im'): bf16r(a_im - b_im)}
    X = {}
    for p in range(2):
        t = 'E' if p == 0 else 'OF'
        xr = xi = None
        for u in range(2):
            ur = U[p, 're'][:, 8 * u:8 * u + 8]; ui = U[p, 'im'][:, 8 * u:8 * u + 8]
            xr = mfma32(fr[f'{t}c{u}'], ur, xr); xr = mfma32(fr[f'{t}s{u}'], ui, xr)
            xi = mfma32(fr[f'{t}n{u}'], ur, xi); xi = mfma32(fr[f'{t}c{u}'], ui, xi)
        X[p] = xr + 1j * xi
    return X
def j_of(p):
    i = np.arange(16)[None, :]
    return (L & 31)[:, None] + 32 * p + 64 * dpat((L >> 5)[:, None], i)
def emu_k2_inv(V):
    fr, tw = k2_tables(); fr = {k: bf16r(v) for k, v in fr.items()}
    Up = {}
    for p in range(2):
        t = 'E' if p == 0 else 'OI'
        vr_, vi_ = bf16r(V[p].real), bf16r(V[p].imag)
        r = im = None
        for u in range(2):
            ar = vr_[:, 8 * u:8 * u + 8]; ai = vi_[:, 8 * u:8 * u + 8]
            r = mfma32(ar, fr[f'{t}c{u}'], r); r = mfma32(ai, fr[f'{t}n{u}'], r)
            im = mfma32(ar, fr[f'{t}s{u}'], im); im = mfma32(ai, fr[f'{t}c{u}'], im)
        Up[p] = r + 1j * im
    c = np.concatenate([f16r(tw[f'T2_{q}'][0]) for q in range(4)], axis=1)
    s = np.concatenate([f16r(tw[f'T2_{q}'][1]) for q in range(4)], axis=1)
    w = c + 1j * s
    R = {0: (Up[0] + Up[1]) * w, 1: (Up[0] - Up[1]) * w}
    Y = np.zeros(2048, complex)
    for nt in range(2):
        t = 'E' if nt == 0 else 'OF'
        rr, ri = bf16r(R[nt].real), bf16r(R[nt].imag)
        yr = yi = None
        for u in range(2):
            br = rr[:, 8 * u:8 * u + 8]; bi = ri[:, 8 * u:8 * u + 8]
            yr = mfma32(fr[f'{t}c{u}'], br, yr); yr = mfma32(fr[f'{t}n{u}'], bi, yr)
            yi = mfma32(fr[f'{t}s{u}'], br, yi); yi = mfma32(fr[f'{t}c{u}'], bi, yi)
        for i in range(16):
            s_ = 64 * dpat(L >> 5, i) + 32 * nt + (L & 31)
            Y[s_] = bf16r(yr[:, i]) + 1j * bf16r(yi[:, i])
    return Y

def rows_of(c, n2): return 512 * c + 64 * np.arange(8) + n2

if __name__ == "__main__":
    rng = np.random.default_rng(0)
    x = bf16r(rng.standard_normal((S, D)) * 0.05).astype(np.float64)
    wr = bf16r(rng.standard_normal((S, 257)) * 0.016); wi = bf16r(rng.standard_normal((S, 257)) * 0.032)
    z = emu_k1_pair(x[0], x[64]); zr = np.fft.fft(x[0] + 1j * x[64])
    print("k1 rel err", np.abs(z - zr).std() / np.abs(zr).std())
    def zcol(k):
        out = np.zeros((4, 64, 8))
        for c in range(4):
            for n2 in range(64):
                r = rows_of(c, n2)
                for mu in range(4):
                    v = np.sum((x[r[2 * mu]] + 1j * x[r[2 * mu + 1]]) * np.exp(-2j * np.pi * k * np.arange(D) / D))
                    out[c, n2, 2 * mu] = v.real; out[c, n2, 2 * mu + 1] = v.imag
        return bf16r(out)
    X2 = np.fft.rfft2(x)
    for k in (5, 0, 256, 255):
        X = emu_k2_fwd(zcol(k), zcol((512 - k) % 512))
        err = max(np.abs(X[p] - X2[j_of(p), k]).std() / np.abs(X2[:, k]).std() for p in range(2))
        W = wr[:, k] + 1j * wi[:, k]
        V = {p: X[p] * W[j_of(p)] for p in range(2)}
        Y = emu_k2_inv(V)
        Yr = np.fft.ifft(X2[:, k] * W) * S
        print("k", k, "fwd rel err", err, "full rel err", np.abs(Y - Yr).std() / np.abs(Yr).std())
```

```python
import sys
sys.path.insert(0, "work")
from asmlib import *
from design import *

HEADER = open("gated_mix__spectral_gfnet__mixer_token_mlp__prompt.s.ref").read().split("; Override launch geometry")[0]

def srd(a, d, base, nbytes):
    a(f"s_mov_b32 s{d}, s{base}")
    a(f"s_and_b32 s{d+1}, s{base+1}, 0xffff")
    a(f"s_mov_b32 s{d+2}, {nbytes}")
    a(f"s_mov_b32 s{d+3}, 0x00020000")

def table_srd(a, d, label, nbytes, uniq):
    a(f"s_getpc_b64 s[{d}:{d+1}]")
    a.raw(f"Lpc_{uniq}:")
    a(f"s_add_u32 s{d}, s{d}, {label}-Lpc_{uniq}")
    a(f"s_addc_u32 s{d+1}, s{d+1}, 0")
    a(f"s_and_b32 s{d+1}, s{d+1}, 0xffff")
    a(f"s_mov_b32 s{d+2}, {nbytes}")
    a(f"s_mov_b32 s{d+3}, 0x00020000")

MIXC = "op_sel_hi:[0,1,0]"
MIXS = "op_sel:[0,1,0] op_sel_hi:[0,1,0]"
WS_BYTES = 0x10000000

def dpp_reduce(a, regs):
    for mod in ("quad_perm:[1,0,3,2] row_mask:0xf bank_mask:0xf", "quad_perm:[2,3,0,1] row_mask:0xf bank_mask:0xf",
                "row_half_mirror row_mask:0xf bank_mask:0xf", "row_mirror row_mask:0xf bank_mask:0xf",
                "row_bcast:15 row_mask:0xa bank_mask:0xf", "row_bcast:31 row_mask:0xc bank_mask:0xf"):
        for r in regs:
            a(f"v_add_f32_dpp v{r}, v{r}, v{r} {mod}")

def unpack(a, lo, hi, src):
    a(f"v_lshlrev_b32 v{lo}, 16, v{src}")
    a(f"v_and_b32 v{hi}, 0xffff0000, v{src}")

K1_XR, K1_ZX, K1_HX = 0, 8192, 16384
def gen_k1(a, name):
    tb, ti = table_dwords(1)
    a.raw(f".p2align 8\n.type {name},@function\n{name}:")
    a.reset_state()
    a("s_cmp_ge_u32 s2, 256")
    a(f"s_cbranch_scc1 L_{name}_end")
    a("s_load_dwordx4 s[32:35], s[0:1], 0")
    a("s_load_dwordx2 s[36:37], s[0:1], 16")
    a("s_load_dwordx2 s[38:39], s[0:1], 64")
    a("s_load_dwordx2 s[40:41], s[0:1], 88")
    table_srd(a, 28, "K1_TABLE", len(tb) * 4, name)
    a("v_lshrrev_b32 v1, 6, v0")
    a("v_and_b32 v2, 63, v0")
    a("v_readfirstlane_b32 s42, v1")
    a("s_and_b32 s43, s2, 7")
    a("s_lshl_b32 s43, s43, 3")
    a("s_bfe_u32 s44, s2, 0x30003")
    a("s_add_u32 s43, s43, s44")
    a("s_lshr_b32 s44, s2, 6")
    a("s_lshl_b32 s45, s44, 9")
    a("s_add_u32 s45, s45, s43")
    a("s_and_b32 s46, s42, 3")
    a("s_lshl_b32 s47, s46, 7")
    a("s_add_u32 s47, s47, s45")
    a("s_lshl_b32 s48, s47, 10")
    a("s_add_u32 s49, s48, 65536")
    a("v_lshlrev_b32 v3, 4, v2")
    srd(a, 8, 32, S * D * 2)
    srd(a, 12, 34, S * 514)
    srd(a, 16, 36, S * 514)
    srd(a, 20, 38, 1024)
    srd(a, 24, 40, WS_BYTES)
    a("s_cmp_ge_u32 s42, 4")
    a.fence()
    a(f"s_cbranch_scc1 L_{name}_ln")
    snap = a.snapshot()
    a("s_lshl_b32 s50, s46, 11")
    a(f"s_add_u32 m0, s50, {K1_XR}")
    d0 = a("buffer_load_dwordx4 v3, s[8:11], s48 offen lds")
    a(f"s_add_u32 m0, s50, {K1_XR + 1024}")
    d1 = a("buffer_load_dwordx4 v3, s[8:11], s49 offen lds")
    a("s_movk_i32 s51, 4096")
    a("s_movk_i32 s52, 8192")
    T = {}
    for n, idx in ti.items():
        r = 16 + 4 * idx; T[n] = r
        so = ["0", "s51", "s52"][idx // 4]
        a(f"buffer_load_dwordx4 {vr(r,4)}, v3, s[28:31], {so} offen offset:{(idx % 4) * 1024}")
    a("v_lshrrev_b32 v4, 4, v2")
    a("v_lshlrev_b32 v5, 9, v4")
    a("v_lshlrev_b32 v4, 8, v4")
    a("v_and_b32 v6, 15, v2")
    a("v_lshl_add_u32 v4, v6, 3, v4")
    a("v_add_u32 v4, s50, v4")
    a("v_lshl_add_u32 v5, v6, 2, v5")
    a("v_add_u32 v5, s50, v5")
    a.wait_tok(d0, d1)
    A0, A1 = 60, 64
    a(f"ds_read_b64_tr_b16 {vr(A0,2)}, v4 offset:{K1_XR}")
    a(f"ds_read_b64_tr_b16 {vr(A0+2,2)}, v4 offset:{K1_XR+128}")
    a(f"ds_read_b64_tr_b16 {vr(A1,2)}, v4 offset:{K1_XR+1024}")
    a(f"ds_read_b64_tr_b16 {vr(A1+2,2)}, v4 offset:{K1_XR+1024+128}")
    TR = {(jh, x): 68 + 8 * jh + (0 if x == 're' else 4) for jh in range(2) for x in ('re', 'im')}
    M = "v_mfma_f32_16x16x32_bf16"
    for jh in range(2):
        a(f"{M} {vr(TR[jh,'re'],4)}, {vr(A0,4)}, {vr(T[f'COS{jh}'],4)}, 0")
        a(f"{M} {vr(TR[jh,'im'],4)}, {vr(A0,4)}, {vr(T[f'NSIN{jh}'],4)}, 0")
    for jh in range(2):
        a(f"{M} {vr(TR[jh,'re'],4)}, {vr(A1,4)}, {vr(T[f'SIN{jh}'],4)}, {vr(TR[jh,'re'],4)}")
        a(f"{M} {vr(TR[jh,'im'],4)}, {vr(A1,4)}, {vr(T[f'COS{jh}'],4)}, {vr(TR[jh,'im'],4)}")
    for jh in range(2):
        o = 100 + 8 * jh
        for i in range(4):
            tw = T[f'TW{jh}'] + i; re = TR[jh, 're'] + i; im = TR[jh, 'im'] + i
            a(f"v_fma_mix_f32 v{o+i}, v{re}, v{tw}, 0 {MIXC}")
            a(f"v_fma_mix_f32 v{o+4+i}, v{im}, v{tw}, 0 {MIXC}")
            a(f"v_fma_mix_f32 v{o+i}, v{im}, v{tw}, v{o+i} {MIXS}")
            a(f"v_fma_mix_f32 v{o+4+i}, -v{re}, v{tw}, v{o+4+i} {MIXS}")
        B = 84 + 4 * jh
        for q in range(4):
            a(f"v_cvt_pk_bf16_f32 v{B+q}, v{o+2*q}, v{o+2*q+1}")
        a(f"{M} {vr(TR[jh,'re'],4)}, {vr(T['ARE'],4)}, {vr(B,4)}, 0")
        a(f"{M} {vr(TR[jh,'im'],4)}, {vr(T['AIM'],4)}, {vr(B,4)}, 0")
    for jh in range(2):
        for i in range(4):
            r = 92 + 4 * jh + i
            a(f"v_cvt_pk_bf16_f32 v{r}, v{TR[jh,'re']+i}, v{TR[jh,'im']+i}")
            a(f"ds_write_b32 v5, v{r} offset:{K1_ZX + (16*jh + 32*i) * 4}")
    a.wait_all()
    a.fence()
    a(f"s_branch L_{name}_join")
    a.restore(snap)
    a.label(f"L_{name}_ln")
    X0, X1, GW = 16, 20, 24
    a(f"buffer_load_dwordx4 {vr(X0,4)}, v3, s[8:11], s48 offen")
    a(f"buffer_load_dwordx4 {vr(X1,4)}, v3, s[8:11], s49 offen")
    a(f"buffer_load_dwordx4 {vr(GW,4)}, v3, s[20:23], 0 offen")
    a("v_and_b32 v4, 255, v0")
    a("v_lshlrev_b32 v5, 1, v4")
    WR, WI = 100, 108
    for i in range(8): a(f"v_mov_b32 v{WI+i}, 0")
    a("s_mul_i32 s50, s45, 514")
    for i in range(8):
        if i: a(f"s_add_u32 s{50+i}, s{50+i-1}, {64*514}")
        a(f"buffer_load_ushort v{WR+i}, v5, s[12:15], s{50+i} offen")
        a(f"buffer_load_short_d16_hi v{WI+i}, v5, s[16:19], s{50+i} offen")
    a("v_and_b32 v6, 7, v2")
    a("v_lshlrev_b32 v7, 6, v6")
    a("v_add_u32 v7, s45, v7")
    a("v_sub_u32 v8, 2048, v7")
    a("v_and_b32 v8, 2047, v8")
    a("v_bfe_u32 v9, v2, 3, 1")
    a("v_lshlrev_b32 v10, 9, v9")
    a("s_movk_i32 s58, 514")
    a("v_mad_u32_u24 v7, v7, s58, v10")
    a("v_mad_u32_u24 v8, v8, s58, v10")
    SP = 116
    for i in range(4): a(f"v_mov_b32 v{SP+i}, 0")
    a(f"buffer_load_short_d16_hi v{SP}, v7, s[12:15], 0 offen")
    a(f"buffer_load_short_d16_hi v{SP+1}, v7, s[16:19], 0 offen")
    a(f"buffer_load_short_d16_hi v{SP+2}, v8, s[12:15], 0 offen")
    a(f"buffer_load_short_d16_hi v{SP+3}, v8, s[16:19], 0 offen")
    F0, F1, G = 32, 40, 48
    for q in range(4):
        unpack(a, F0 + 2*q, F0 + 2*q + 1, X0 + q)
        unpack(a, F1 + 2*q, F1 + 2*q + 1, X1 + q)
        unpack(a, G + 2*q, G + 2*q + 1, GW + q)
    P = 56
    for e in range(8):
        a(f"v_mul_f32 v{P+e}, v{F0+e}, v{G+e}")
        a(f"v_mul_f32 v{P+8+e}, v{F1+e}, v{G+e}")
    S0, S1, G0, G1 = 72, 73, 74, 75
    a(f"v_add_f32 v{S0}, v{F0}, v{F0+1}")
    a(f"v_add_f32 v{S1}, v{F1}, v{F1+1}")
    for e in range(2, 8):
        a(f"v_add_f32 v{S0}, v{S0}, v{F0+e}")
        a(f"v_add_f32 v{S1}, v{S1}, v{F1+e}")
    for e in range(8):
        a(f"v_cvt_pk_bf16_f32 v{76+e}, v{P+e}, v{P+8+e}")
    for e in range(8):
        unpack(a, P + e, P + 8 + e, 76 + e)
    a(f"v_add_f32 v{G0}, v{P}, v{P+1}")
    a(f"v_add_f32 v{G1}, v{P+8}, v{P+9}")
    for e in range(2, 8):
        a(f"v_add_f32 v{G0}, v{G0}, v{P+e}")
        a(f"v_add_f32 v{G1}, v{G1}, v{P+8+e}")
    dpp_reduce(a, [S0, S1, G0, G1])
    for i, r in enumerate([S0, S1, G0, G1]): a(f"v_readlane_b32 s{60+i}, v{r}, 63")
    M0_, M1_ = 76, 77
    a("v_mov_b32 v78, 0x3b000000")
    a(f"v_mul_f32 v{M0_}, s60, v78")
    a(f"v_mul_f32 v{M1_}, s61, v78")
    Q0, Q1 = 72, 73
    for e in range(8):
        a(f"v_sub_f32 v{P+e}, v{F0+e}, v{M0_}")
        a(f"v_sub_f32 v{P+8+e}, v{F1+e}, v{M1_}")
    a(f"v_mul_f32 v{Q0}, v{P}, v{P}")
    a(f"v_mul_f32 v{Q1}, v{P+8}, v{P+8}")
    for e in range(1, 8):
        a(f"v_fmac_f32 v{Q0}, v{P+e}, v{P+e}")
        a(f"v_fmac_f32 v{Q1}, v{P+8+e}, v{P+8+e}")
    a("v_mov_b32 v80, s62")
    a("v_mov_b32 v81, s63")
    a("v_cvt_pk_bf16_f32 v80, v80, v81")
    unpack(a, 81, 82, 80)
    a("v_mul_f32 v81, 0xbfb8aa3b, v81")
    a("v_mul_f32 v82, 0xbfb8aa3b, v82")
    a("v_exp_f32 v81, v81")
    a("v_exp_f32 v82, v82")
    dpp_reduce(a, [Q0, Q1])
    a("v_add_f32 v81, 1.0, v81")
    a("v_add_f32 v82, 1.0, v82")
    a("v_rcp_f32 v81, v81")
    a("v_rcp_f32 v82, v82")
    a(f"v_readlane_b32 s64, v{Q0}, 63")
    a(f"v_readlane_b32 s65, v{Q1}, 63")
    a(f"v_cvt_pk_bf16_f32 v79, v{M0_}, v{M1_}")
    unpack(a, M0_, M1_, 79)
    a("v_cvt_pk_bf16_f32 v80, v81, v82")
    unpack(a, 81, 82, 80)
    a("v_mul_f32 v83, s64, v78")
    a("v_mul_f32 v84, s65, v78")
    a("v_cvt_pk_bf16_f32 v83, v83, v84")
    unpack(a, 84, 85, 83)
    a("v_add_f32 v84, 0x3727c5ac, v84")
    a("v_add_f32 v85, 0x3727c5ac, v85")
    a("v_cvt_pk_bf16_f32 v83, v84, v85")
    unpack(a, 84, 85, 83)
    a("v_sqrt_f32 v84, v84")
    a("v_sqrt_f32 v85, v85")
    for e in range(8):
        a(f"v_sub_f32 v{P+e}, v{F0+e}, v{M0_}")
        a(f"v_sub_f32 v{P+8+e}, v{F1+e}, v{M1_}")
    a("v_cvt_pk_bf16_f32 v83, v84, v85")
    unpack(a, 84, 85, 83)
    a("v_rcp_f32 v84, v84")
    a("v_rcp_f32 v85, v85")
    for e in range(8):
        a(f"v_cvt_pk_bf16_f32 v{88+e}, v{P+e}, v{P+8+e}")
    for e in range(8):
        unpack(a, P + e, P + 8 + e, 88 + e)
    for e in range(8):
        a(f"v_mul_f32 v{P+e}, v{P+e}, v84")
        a(f"v_mul_f32 v{P+8+e}, v{P+8+e}, v85")
    for e in range(8):
        a(f"v_cvt_pk_bf16_f32 v{88+e}, v{P+e}, v{P+8+e}")
    a("s_lshl_b32 s66, s46, 11")
    a("v_lshlrev_b32 v11, 5, v2")
    a("v_add_u32 v11, s66, v11")
    a(f"ds_write_b128 v11, v[88:91] offset:{K1_HX}")
    a(f"ds_write_b128 v11, v[92:95] offset:{K1_HX+16}")
    a("v_cmp_eq_u32 vcc, 1, v2")
    a("v_cndmask_b32 v81, v81, v82, vcc")
    a("v_lshlrev_b32 v12, 8, v2")
    a("s_lshl_b32 s67, s47, 2")
    a(f"s_add_u32 s67, s67, {WS_G}")
    a("s_mov_b64 exec, 3")
    a("buffer_store_dword v81, v12, s[24:27], s67 offen")
    a("s_mov_b64 exec, -1")
    for i in range(8): a(f"v_or_b32 v{WR+i}, v{WR+i}, v{WI+i}")
    a("v_lshlrev_b32 v13, 13, v4")
    a("s_lshl_b32 s68, s44, 11")
    a("s_lshl_b32 s69, s43, 4")
    a("s_add_u32 s68, s68, s69")
    a(f"s_add_u32 s68, s68, {WS_WT}")
    a("v_cmp_ne_u32 vcc, 0, v4")
    a("s_and_saveexec_b64 s[70:71], vcc")
    a(f"buffer_store_dwordx4 {vr(WR,4)}, v13, s[24:27], s68 offen")
    a(f"buffer_store_dwordx4 {vr(WR+4,4)}, v13, s[24:27], s68 offen offset:1024")
    a("s_mov_b64 exec, s[70:71]")
    a(f"v_add_f32 v{SP}, v{SP}, v{SP+2}")
    a(f"v_sub_f32 v{SP+1}, v{SP+1}, v{SP+3}")
    a(f"v_mul_f32 v{SP}, 0.5, v{SP}")
    a(f"v_mul_f32 v{SP+1}, 0.5, v{SP+1}")
    a(f"v_cvt_pk_bf16_f32 v{SP+2}, v{SP}, v{SP+1}")
    a(f"v_cvt_pk_bf16_f32 v{SP+3}, -v{SP+1}, v{SP}")
    a("v_cmp_eq_u32 vcc, 1, v9")
    a(f"v_cndmask_b32 v{SP+2}, v{SP+2}, v{SP+3}, vcc")
    a("v_lshlrev_b32 v14, 21, v9")
    a("v_lshrrev_b32 v15, 2, v6")
    a("v_lshl_add_u32 v14, v15, 10, v14")
    a("v_and_b32 v15, 3, v6")
    a("v_lshl_add_u32 v14, v15, 2, v14")
    a("v_cmp_gt_u32 vcc, 16, v4")
    a("s_and_saveexec_b64 s[70:71], vcc")
    a.fence()
    a(f"s_cbranch_execz L_{name}_nosp")
    a(f"buffer_store_dword v{SP+2}, v14, s[24:27], s68 offen")
    a.label(f"L_{name}_nosp")
    a("s_mov_b64 exec, s[70:71]")
    a.wait_all(vm=False)
    a.fence()
    a.label(f"L_{name}_join")
    a.reset_state()
    a("s_barrier")
    a("v_lshlrev_b32 v4, 2, v0")
    a(f"ds_read2st64_b32 v[16:17], v4 offset0:{K1_ZX//256} offset1:{K1_ZX//256+8}")
    a(f"ds_read2st64_b32 v[18:19], v4 offset0:{K1_ZX//256+16} offset1:{K1_ZX//256+24}")
    a(f"ds_read2st64_b32 v[20:21], v4 offset0:{K1_HX//256} offset1:{K1_HX//256+8}")
    a(f"ds_read2st64_b32 v[22:23], v4 offset0:{K1_HX//256+16} offset1:{K1_HX//256+24}")
    a("v_lshlrev_b32 v5, 12, v0")
    a("s_lshl_b32 s50, s44, 10")
    a("s_lshl_b32 s51, s43, 4")
    a("s_add_u32 s50, s50, s51")
    a(f"s_add_u32 s50, s50, {WS_Z}")
    a("s_lshl_b32 s52, s44, 6")
    a("s_add_u32 s52, s52, s43")
    a("s_lshl_b32 s52, s52, 10")
    a("s_lshl_b32 s53, s42, 18")
    a("s_add_u32 s52, s52, s53")
    if WS_HT: a(f"s_add_u32 s52, s52, {WS_HT}")
    a("buffer_store_dwordx4 v[16:19], v5, s[24:27], s50 offen")
    a("buffer_store_dwordx4 v[20:23], v3, s[24:27], s52 offen")
    a.label(f"L_{name}_end")
    a("s_endpgm")
    return 128

def gemm_loop(a, nslab, P, w_is_A, vW, vA, vT0, vT1, sW, wsteps, sA, srdW, srdA, ringbase_s, ACC, WF, AF):
    M = "v_mfma_f32_32x32x16_bf16"
    toks = {}
    def issue(sig):
        ops = []
        slot = sig % P
        for jj in range(4):
            ops.append([f"s_add_u32 m0, s{ringbase_s}, {slot*4096 + jj*1024}",
                        f"buffer_load_dwordx4 v{vW}, {sr(srdW,4)}, s{sW} offen lds",
                        f"s_add_u32 s{sW}, s{sW}, {wsteps(sig, jj)}"])
        for ks in range(2):
            for mt in range(2):
                r = AF + slot * 16 + (ks * 2 + mt) * 4
                o = [f"buffer_load_dwordx4 {vr(r,4)}, v{vA}, {sr(srdA,4)}, s{sA} offen offset:{ks*2048 + mt*512}"]
                if ks == 1 and mt == 1: o.append(f"s_add_u32 s{sA}, s{sA}, 4096")
                ops.append(o)
        return ops
    def emit_ops(sig, ops):
        for o in ops:
            for line in o:
                ins = a(line)
                if 'lds' in line and 'buffer' in line: toks.setdefault(sig, []).append(ins)
    def trreads(sig):
        slot = sig % P; st = sig & 1
        out = []
        for ks in range(2):
            for t in range(2):
                for u in range(2):
                    r = WF + st * 16 + (ks * 2 + t) * 4 + 2 * u
                    out.append(f"ds_read_b64_tr_b16 {vr(r,2)}, v{vT0 if t == 0 else vT1} offset:{slot*4096 + ks*2048 + u*512}")
        return out
    for sig in range(min(P, nslab)):
        emit_ops(sig, issue(sig))
    a.wait_tok(*toks[0])
    rt = {0: [a(l) for l in trreads(0)]}
    for sig in range(nslab):
        slot = sig % P; st = sig & 1
        if sig + 1 < nslab:
            a.wait_tok(*toks[sig + 1])
            rt[sig + 1] = [a(l) for l in trreads(sig + 1)]
        a.wait_tok(*rt[sig])
        nxt = issue(sig + P) if sig + P < nslab else []
        k = 0
        for ks in range(2):
            for t in range(2):
                for mt in range(2):
                    wf = vr(WF + st * 16 + (ks * 2 + t) * 4, 4); af = vr(AF + slot * 16 + (ks * 2 + mt) * 4, 4)
                    if w_is_A: acc = vr(ACC + (t * 2 + mt) * 16, 16); A_, B_ = wf, af
                    else:      acc = vr(ACC + (mt * 2 + t) * 16, 16); A_, B_ = af, wf
                    c = "0" if (sig == 0 and ks == 0) else acc
                    a(f"{M} {acc}, {A_}, {B_}, {c}")
                    if nxt and k < 4: emit_ops(sig + P, [nxt[k]])
                    k += 1
            if nxt: emit_ops(sig + P, nxt[4 + 2 * ks: 6 + 2 * ks])

def lane_consts_gemm(a, vW, vA, vT0, vT1, rowstride, ringbase_s, lane, tmp):
    t0, t1 = tmp, tmp + 1
    a(f"v_lshrrev_b32 v{t0}, 3, v{lane}")
    a(f"s_mov_b32 s99, {rowstride}")
    a(f"v_mul_lo_u32 v{vW}, v{t0}, s99")
    a(f"v_lshrrev_b32 v{t0}, 2, v{lane}")
    a(f"v_lshrrev_b32 v{t1}, 4, v{lane}")
    a(f"v_xor_b32 v{t0}, v{t0}, v{t1}")
    a(f"v_and_b32 v{t0}, 1, v{t0}")
    a(f"v_lshl_add_u32 v{vW}, v{t0}, 6, v{vW}")
    a(f"v_and_b32 v{t0}, 3, v{lane}")
    a(f"v_lshl_add_u32 v{vW}, v{t0}, 4, v{vW}")
    a(f"v_lshrrev_b32 v{t1}, 5, v{lane}")
    a(f"v_lshlrev_b32 v{vA}, 10, v{t1}")
    a(f"v_and_b32 v{t0}, 31, v{lane}")
    a(f"v_lshl_add_u32 v{vA}, v{t0}, 4, v{vA}")
    a(f"v_lshlrev_b32 v{vT0}, 10, v{t1}")
    a(f"v_bfe_u32 v{t0}, v{lane}, 2, 2")
    a(f"v_lshl_add_u32 v{vT0}, v{t0}, 7, v{vT0}")
    a(f"v_bfe_u32 v{t0}, v{lane}, 3, 1")
    a(f"v_lshl_add_u32 v{vT0}, v{t0}, 6, v{vT0}")
    a(f"v_bfe_u32 v{t0}, v{lane}, 4, 1")
    a(f"v_lshl_add_u32 v{vT0}, v{t0}, 5, v{vT0}")
    a(f"v_and_b32 v{t0}, 3, v{lane}")
    a(f"v_lshl_add_u32 v{vT0}, v{t0}, 3, v{vT0}")
    a(f"v_add_u32 v{vT0}, s{ringbase_s}, v{vT0}")
    a(f"v_xor_b32 v{vT1}, 64, v{vT0}")

K2_P = 6
K2_OX, K2_TB, K2_SV = 0, 65536, 65536 + 40960
K2_LDS = K2_SV + 16384
def gen_k2(a, name):
    tb, ti = table_dwords(2)
    a.raw(f".p2align 8\n.type {name},@function\n{name}:")
    a.reset_state()
    a("s_cmp_ge_u32 s2, 256")
    a(f"s_cbranch_scc1 L_{name}_end")
    a("s_load_dwordx4 s[32:35], s[0:1], 32")
    a("s_load_dwordx2 s[40:41], s[0:1], 88")
    table_srd(a, 28, "K2_TABLE", len(tb) * 4, name)
    a("v_lshrrev_b32 v1, 6, v0")
    a("v_and_b32 v2, 63, v0")
    a("v_readfirstlane_b32 s42, v1")
    a("s_and_b32 s43, s2, 7")
    a("s_lshr_b32 s44, s2, 3")
    srd(a, 8, 32, S * F * 2)
    srd(a, 24, 40, WS_BYTES)
    a("s_cmp_lt_u32 s44, 4")
    a.fence()
    a(f"s_cbranch_scc1 L_{name}_fft")
    snap0 = a.snapshot()
    a("s_sub_u32 s44, s44, 4")
    a("s_mul_i32 s45, s44, 37")
    a("s_lshr_b32 s45, s45, 8")
    a("s_mul_i32 s46, s45, 7")
    a("s_sub_u32 s46, s44, s46")
    a("s_and_b32 s47, s43, 1")
    a("s_lshl_b32 s47, s47, 2")
    a("s_add_u32 s45, s45, s47")
    a("s_lshr_b32 s47, s43, 1")
    a("s_mul_i32 s47, s47, 7")
    a("s_add_u32 s46, s46, s47")
    a("s_lshl_b32 s47, s46, 7")
    a("s_lshl_b32 s48, s42, 4")
    a("s_add_u32 s47, s47, s48")
    a("s_add_u32 s34, s34, s47")
    a("s_addc_u32 s35, s35, 0")
    a("s_load_dwordx4 s[60:63], s[34:35], 0")
    a("s_cmp_ge_u32 s42, 4")
    a.fence()
    a(f"s_cbranch_scc1 L_{name}_red")
    snap1 = a.snapshot()
    a(f"s_mul_i32 s50, s42, {K2_P*4096}")
    a(f"s_mul_i32 s51, s42, {512*3584}")
    a("s_lshl_b32 s52, s46, 7")
    a("s_add_u32 s51, s51, s52")
    a("s_lshl_b32 s52, s45, 18")
    a("s_lshl_b32 s53, s42, 16")
    a("s_add_u32 s52, s52, s53")
    if WS_HT: a(f"s_add_u32 s52, s52, {WS_HT}")
    vW, vA, vT0, vT1 = 4, 5, 6, 7
    lane_consts_gemm(a, vW, vA, vT0, vT1, 64 * 3584, 50, 2, 8)
    ACC, WF, AF = 16, 80, 112
    gemm_loop(a, 16, K2_P, True, vW, vA, vT0, vT1, 51, lambda sg, jj: 3584, 52, 8, 24, 50, ACC, WF, AF)
    a("v_lshlrev_b32 v8, 4, v2")
    a("v_add_u32 v8, s50, v8")
    for blk in range(16):
        a(f"ds_write_b128 v8, {vr(ACC + blk*4, 4)} offset:{blk*1024}")
    a.wait_all()
    a.fence()
    a.label(f"L_{name}_red")
    a.reset_state()
    a("s_waitcnt lgkmcnt(0)")
    a("s_barrier")
    a("s_lshr_b32 s50, s42, 2")
    a("s_lshl_b32 s50, s50, 13")
    a("s_and_b32 s51, s42, 3")
    a("s_lshl_b32 s51, s51, 10")
    a("s_add_u32 s50, s50, s51")
    a("v_lshrrev_b32 v8, 5, v2")
    a("v_lshlrev_b32 v8, 12, v8")
    a("v_and_b32 v9, 31, v2")
    a("v_lshl_add_u32 v8, v9, 4, v8")
    a("v_add_u32 v8, s50, v8")
    a(f"v_add_u32 v9, {2*K2_P*4096}, v8")
    for w in range(4):
        for hh in range(2):
            base = "v8" if w < 2 else "v9"
            a(f"ds_read_b128 {vr(16 + w*8 + hh*4, 4)}, {base} offset:{(w & 1)*K2_P*4096 + hh*512}")
    for e in range(4):
        a(f"s_lshl_b32 s{64+2*e}, s{60+e}, 16")
        a(f"s_and_b32 s{65+2*e}, s{60+e}, 0xffff0000")
    for e in range(8): a(f"v_add_f32 v{16+e}, v{16+e}, v{24+e}")
    for e in range(8): a(f"v_add_f32 v{32+e}, v{32+e}, v{40+e}")
    for e in range(8): a(f"v_add_f32 v{16+e}, v{16+e}, v{32+e}")
    for q in range(4): a(f"v_cvt_pk_bf16_f32 v{24+q}, v{16+2*q}, v{17+2*q}")
    for q in range(4): unpack(a, 16 + 2*q, 17 + 2*q, 24 + q)
    for e in range(8): a(f"v_add_f32 v{16+e}, s{64+e}, v{16+e}")
    for q in range(4): a(f"v_cvt_pk_bf16_f32 v{24+q}, v{16+2*q}, v{17+2*q}")
    for q in range(4): unpack(a, 16 + 2*q, 17 + 2*q, 24 + q)
    import math, struct
    f2u = lambda f: struct.unpack("<I", struct.pack("<f", f))[0]
    c0 = -2.0 * math.log2(math.e) * math.sqrt(2.0 / math.pi); c1 = c0 * 0.044715
    a(f"v_mov_b32 v40, 0x{f2u(c0):08x}")
    a(f"s_mov_b32 s72, 0x{f2u(c1):08x}")
    for e in range(8): a(f"v_mul_f32 v{24+e}, v{16+e}, v{16+e}")
    for e in range(8): a(f"v_fma_f32 v{24+e}, v{24+e}, s72, v40")
    for e in range(8): a(f"v_mul_f32 v{24+e}, v{24+e}, v{16+e}")
    for e in range(8): a(f"v_exp_f32 v{24+e}, v{24+e}")
    for e in range(8): a(f"v_add_f32 v{24+e}, 1.0, v{24+e}")
    for e in range(8): a(f"v_rcp_f32 v{24+e}, v{24+e}")
    for e in range(8): a(f"v_mul_f32 v{16+e}, v{16+e}, v{24+e}")
    for q in range(4): a(f"v_cvt_pk_bf16_f32 v{24+q}, v{16+2*q}, v{17+2*q}")
    a(f"s_mul_i32 s50, s45, {224*1024}")
    a("s_lshl_b32 s51, s46, 3")
    a("s_add_u32 s51, s51, s42")
    a("s_lshl_b32 s51, s51, 10")
    a("s_add_u32 s50, s50, s51")
    a(f"s_add_u32 s50, s50, {WS_UT}")
    a("v_lshlrev_b32 v8, 4, v2")
    a("buffer_store_dwordx4 v[24:27], v8, s[24:27], s50 offen")
    a("s_endpgm")
    a.restore(snap0)
    a.label(f"L_{name}_fft")
    gen_k2_fft(a, name, ti, len(tb) * 4)
    a.label(f"L_{name}_end")
    a("s_endpgm")
    return 256

def gen_k2_fft(a, name, ti, tbytes):
    M = "v_mfma_f32_32x32x16_bf16"
    a("s_lshl_b32 s45, s43, 2")
    a("s_add_u32 s45, s45, s44")
    a("s_lshl_b32 s46, s45, 3")
    a("s_add_u32 s46, s46, s42")
    a("s_sub_u32 s47, 512, s46")
    a("s_and_b32 s47, s47, 511")
    a("v_lshlrev_b32 v3, 4, v2")
    a("s_lshl_b32 s50, s42, 10")
    dm = []
    for j in range(5):
        a(f"s_add_u32 m0, s50, {K2_TB + j*8192}")
        a(f"s_add_u32 s51, s50, {j*8192}")
        dm.append(a("buffer_load_dwordx4 v3, s[28:31], s51 offen lds"))
    PK, VD, VW, VT, VE, VO, TMP = 32, 64, 128, 160, 192, 216, 240
    VS1 = 192
    a("v_and_b32 v4, 31, v2")
    a("v_lshrrev_b32 v5, 5, v2")
    a("v_lshlrev_b32 v6, 4, v4")
    a("v_lshl_add_u32 v7, v5, 10, v6")
    a("v_cmp_eq_u32 vcc, 0, v5")
    a("s_cmp_eq_u32 s46, 0")
    a("s_cselect_b32 s48, 1, 0")
    def issue_loads():
        a("s_lshl_b32 s52, s46, 12")
        a("s_lshl_b32 s53, s47, 12")
        a("v_mov_b32 v8, s53")
        a("v_mov_b32 v9, s52")
        a("v_cndmask_b32 v8, v8, v9, vcc")
        a("v_add_u32 v8, v8, v6")
        a("s_lshl_b32 s54, s46, 13")
        a(f"s_add_u32 s54, s54, {WS_WT}")
        a("s_add_u32 s55, s54, 4096")
        a(f"s_mov_b32 s56, {WS_Z}")
        for p in range(2):
            for q in range(4):
                a(f"buffer_load_dwordx4 {vr(VW + (p*4+q)*4, 4)}, v7, s[24:27], s{54 + (q >> 1)} offen offset:{(q & 1)*2048 + p*512}")
        for c in range(4):
            for mt in range(2):
                a(f"buffer_load_dwordx4 {vr(PK + (mt*4+c)*4, 4)}, v8, s[24:27], s56 offen offset:{c*1024 + mt*512}")
    issue_loads()
    a(f"v_add_u32 v10, {K2_TB}, v3")
    a.wait_tok(*dm)
    a("s_barrier")
    def lds_tab(reg, nm): return a(f"ds_read_b128 {vr(reg,4)}, v10 offset:{ti[nm]*1024}")
    def load_s1():
        for c in range(4):
            lds_tab(VS1 + c * 4, f'S1re{c}'); lds_tab(VS1 + 16 + c * 4, f'S1im{c}')
    load_s1()
    for mt in range(2):
        for q in range(4): lds_tab(VT + (mt * 4 + q) * 4, f'T1_{mt}_{q}')
    a.wait_all()
    a.fence()
    a.label(f"L_{name}_fwd")
    a.reset_state()
    D = lambda x, ri: VD + (x * 2 + ri) * 16
    for c in range(4):
        for mt in range(2):
            for ri in range(2):
                acc = vr(D(mt, ri), 16)
                a(f"{M} {acc}, {vr(PK + (mt*4+c)*4, 4)}, {vr(VS1 + ri*16 + c*4, 4)}, {'0' if c == 0 else acc}")
    EC = lambda x, u: VE + ('csn'.index(x) * 2 + u) * 4
    OC = lambda x, u: VO + ('csn'.index(x) * 2 + u) * 4
    def load_set(fn, t):
        for x in 'csn':
            for u in range(2): lds_tab(fn(x, u), f'{t}{x}{u}')
    load_set(EC, 'E'); load_set(OC, 'OF')
    PKR = lambda x, ri, u: PK + ((x * 2 + ri) * 2 + u) * 4
    def pack_all():
        for x in range(2):
            for ri in range(2):
                for q in range(8):
                    a(f"v_cvt_pk_bf16_f32 v{PKR(x, ri, 0) + q}, v{D(x, ri) + 2*q}, v{D(x, ri) + 2*q + 1}")
    for i in range(16):
        t0r, t0i, t1r, t1i = D(0, 0) + i, D(0, 1) + i, D(1, 0) + i, D(1, 1) + i
        w0, w1 = VT + i, VT + 16 + i
        A, B = TMP + 2 * (i & 3), TMP + 2 * (i & 3) + 1
        a(f"v_fma_mix_f32 v{A}, v{t0r}, v{w0}, 0 {MIXC}")
        a(f"v_fma_mix_f32 v{B}, v{t0i}, v{w0}, 0 {MIXC}")
        a(f"v_fma_mix_f32 v{A}, v{t0i}, v{w0}, v{A} {MIXS}")
        a(f"v_fma_mix_f32 v{B}, -v{t0r}, v{w0}, v{B} {MIXS}")
        a(f"v_fma_mix_f32 v{t0r}, v{t1r}, v{w1}, v{A} {MIXC}")
        a(f"v_fma_mix_f32 v{t0i}, v{t1i}, v{w1}, v{B} {MIXC}")
        a(f"v_fma_mix_f32 v{t0r}, v{t1i}, v{w1}, v{t0r} {MIXS}")
        a(f"v_fma_mix_f32 v{t0i}, -v{t1r}, v{w1}, v{t0i} {MIXS}")
        a(f"v_fma_f32 v{t1r}, v{A}, 2.0, -v{t0r}")
        a(f"v_fma_f32 v{t1i}, v{B}, 2.0, -v{t0i}")
    pack_all()
    def cstage(data_is_A, sets, inverse):
        for x in range(2):
            fn = sets[x]
            for u in range(2):
                for (ro, terms) in ((0, (('c', 0), ('n' if inverse else 's', 1))), (1, (('s' if inverse else 'n', 0), ('c', 1)))):
                    for ti_, (cx, ri) in enumerate(terms):
                        acc = vr(D(x, ro), 16)
                        dat = vr(PKR(x, ri, u), 4); con = vr(fn(cx, u), 4)
                        A_, B_ = (dat, con) if data_is_A else (con, dat)
                        c = '0' if (u == 0 and ti_ == 0) else acc
                        a(f"{M} {acc}, {A_}, {B_}, {c}")
    cstage(False, [EC, OC], False)
    load_set(OC, 'OI')
    for p in range(2):
        for i in range(16):
            xr, xi, w = D(p, 0) + i, D(p, 1) + i, VW + p * 16 + i
            wr, wi, t = TMP + 3 * (i & 3), TMP + 3 * (i & 3) + 1, TMP + 3 * (i & 3) + 2
            unpack(a, wr, wi, w)
            a(f"v_mul_f32 v{t}, v{xr}, v{wi}")
            a(f"v_mul_f32 v{xr}, v{xr}, v{wr}")
            a(f"v_fma_f32 v{xr}, -v{xi}, v{wi}, v{xr}")
            a(f"v_fma_f32 v{xi}, v{xi}, v{wr}, v{t}")
    a.wait_all()
    a("s_cmp_eq_u32 s48, 0")
    a.fence()
    a(f"s_cbranch_scc1 L_{name}_inv")
    a(f"v_add_u32 v11, {K2_SV}, v3")
    a("s_cmp_eq_u32 s48, 2")
    a(f"s_cbranch_scc1 L_{name}_add")
    snap = a.snapshot()
    for blk in range(16): a(f"ds_write_b128 v11, {vr(VD + blk*4, 4)} offset:{blk*1024}")
    a("s_movk_i32 s46, 256")
    a("s_movk_i32 s47, 256")
    a("s_mov_b32 s48, 2")
    issue_loads()
    load_s1()
    a.wait_all()
    a.fence()
    a(f"s_branch L_{name}_fwd")
    a.restore(snap)
    a.label(f"L_{name}_add")
    for half in range(2):
        for blk in range(8): a(f"ds_read_b128 {vr(VW + blk*4, 4)}, v11 offset:{(half*8+blk)*1024}")
        for r in range(32): a(f"v_add_f32 v{VD + half*32 + r}, v{VD + half*32 + r}, v{VW + r}")
    a("s_movk_i32 s46, 0")
    a.wait_all()
    a.fence()
    a.label(f"L_{name}_inv")
    a.reset_state()
    for q in range(4): lds_tab(VT + q * 4, f'T2_{q}')
    pack_all()
    cstage(True, [EC, OC], True)
    load_set(OC, 'OF')
    for i in range(16):
        u0r, u0i, u1r, u1i = D(0, 0) + i, D(0, 1) + i, D(1, 0) + i, D(1, 1) + i
        w = VT + i
        A, B = TMP + 2 * (i & 3), TMP + 2 * (i & 3) + 1
        a(f"v_fma_mix_f32 v{A}, v{u0r}, v{w}, 0 {MIXC}")
        a(f"v_fma_mix_f32 v{B}, v{u0i}, v{w}, 0 {MIXC}")
        a(f"v_fma_mix_f32 v{A}, -v{u0i}, v{w}, v{A} {MIXS}")
        a(f"v_fma_mix_f32 v{B}, v{u0r}, v{w}, v{B} {MIXS}")
        a(f"v_fma_mix_f32 v{u0r}, v{u1r}, v{w}, v{A} {MIXC}")
        a(f"v_fma_mix_f32 v{u0i}, v{u1i}, v{w}, v{B} {MIXC}")
        a(f"v_fma_mix_f32 v{u0r}, -v{u1i}, v{w}, v{u0r} {MIXS}")
        a(f"v_fma_mix_f32 v{u0i}, v{u1r}, v{w}, v{u0i} {MIXS}")
        a(f"v_fma_f32 v{u1r}, v{A}, 2.0, -v{u0r}")
        a(f"v_fma_f32 v{u1i}, v{B}, 2.0, -v{u0i}")
    pack_all()
    cstage(False, [EC, OC], True)
    a("s_lshl_b32 s50, s42, 13")
    a("v_lshlrev_b32 v11, 10, v5")
    a("v_lshl_add_u32 v11, v4, 2, v11")
    a("v_add_u32 v11, s50, v11")
    for nt in range(2):
        for i in range(16):
            r = PK + nt * 16 + i
            a(f"v_cvt_pk_bf16_f32 v{r}, v{D(nt,0)+i}, v{D(nt,1)+i}")
            a(f"ds_write_b32 v11, v{r} offset:{K2_OX + (64*(8*(i>>2) + (i&3)) + 32*nt)*4}")
    a.wait_all()
    a("s_barrier")
    a("v_lshlrev_b32 v12, 2, v0")
    a("v_lshlrev_b32 v13, 4, v0")
    a("s_lshl_b32 s50, s45, 16")
    a(f"s_add_u32 s50, s50, {WS_Y1}")
    for z in range(8):
        o = K2_OX // 256 + (z >> 2) * 128 + (z & 3) * 8
        a(f"ds_read2st64_b32 {vr(64 + z*4, 2)}, v12 offset0:{o} offset1:{o+32}")
        a(f"ds_read2st64_b32 {vr(66 + z*4, 2)}, v12 offset0:{o+64} offset1:{o+96}")
    for z in range(8):
        a(f"buffer_store_dwordx4 {vr(64 + z*4, 4)}, v13, s[24:27], s50 offen")
        if z < 7: a("s_add_u32 s50, s50, 8192")

K3_P = 5
K3_BLK = 1088
K3_PART = 16 * K3_BLK
K3_AP = 4 * K3_P * 4096
K3_LDS = K3_AP + 4 * K3_PART
def gen_k3(a, name):
    M = "v_mfma_f32_32x32x16_bf16"
    a.raw(f".p2align 8\n.type {name},@function\n{name}:")
    a.reset_state()
    a("s_cmp_ge_u32 s2, 256")
    a(f"s_cbranch_scc1 L_{name}_end")
    a("s_load_dwordx4 s[32:35], s[0:1], 48")
    a("s_load_dwordx2 s[36:37], s[0:1], 72")
    a("s_load_dwordx2 s[40:41], s[0:1], 88")
    a("v_lshrrev_b32 v1, 6, v0")
    a("v_and_b32 v2, 63, v0")
    a("v_readfirstlane_b32 s42, v1")
    a("s_and_b32 s43, s2, 7")
    a("s_lshr_b32 s44, s2, 3")
    a("s_and_b32 s45, s43, 1")
    a("s_lshl_b32 s45, s45, 2")
    a("s_lshr_b32 s46, s44, 3")
    a("s_add_u32 s45, s45, s46")
    a("s_lshr_b32 s46, s43, 1")
    a("s_lshl_b32 s46, s46, 3")
    a("s_and_b32 s47, s44, 7")
    a("s_add_u32 s46, s46, s47")
    a("s_and_b32 s47, s42, 3")
    srd(a, 8, 32, F * S * 2)
    srd(a, 12, 34, S * 2)
    srd(a, 16, 36, S * D * 2)
    srd(a, 24, 40, WS_BYTES)
    a("v_lshlrev_b32 v3, 4, v2")
    a("s_cmp_ge_u32 s42, 4")
    a.fence()
    a(f"s_cbranch_scc1 L_{name}_dft")
    snap = a.snapshot()
    a(f"s_mul_i32 s50, s42, {K3_P*4096}")
    a(f"s_mul_i32 s51, s42, {448*4096}")
    a("s_lshl_b32 s52, s46, 7")
    a("s_add_u32 s51, s51, s52")
    a(f"s_mul_i32 s52, s45, {224*1024}")
    a(f"s_mul_i32 s53, s42, {56*1024}")
    a("s_add_u32 s52, s52, s53")
    a(f"s_add_u32 s52, s52, {WS_UT}")
    vW, vA, vT0, vT1 = 4, 5, 6, 7
    lane_consts_gemm(a, vW, vA, vT0, vT1, 4096, 50, 2, 8)
    ACC, WF, AF = 16, 80, 112
    gemm_loop(a, 14, K3_P, False, vW, vA, vT0, vT1, 51, lambda sg, jj: 8 * 4096, 52, 8, 24, 50, ACC, WF, AF)
    a("v_add_u32 v8, s50, v3")
    for blk in range(16):
        a(f"ds_write_b128 v8, {vr(ACC + blk*4, 4)} offset:{blk*K3_BLK}")
    a.wait_all()
    a.fence()
    a(f"s_branch L_{name}_red")
    a.restore(snap)
    a.label(f"L_{name}_dft")
    YF, GF = 80, 144
    a("v_and_b32 v4, 31, v2")
    a("v_lshrrev_b32 v5, 5, v2")
    a("v_lshlrev_b32 v6, 15, v5")
    a("v_lshl_add_u32 v6, v4, 4, v6")
    a("s_lshl_b32 s50, s47, 19")
    a("s_lshl_b32 s51, s46, 10")
    a("s_add_u32 s50, s50, s51")
    a(f"s_add_u32 s50, s50, {WS_Y1}")
    for ks in range(8):
        for t in range(2):
            a(f"buffer_load_dwordx4 {vr(YF + (ks*2+t)*4, 4)}, v6, s[24:27], s50 offen offset:{t*512}")
        if ks < 7: a("s_add_u32 s50, s50, 65536")
    a("s_lshl_b32 s51, s45, 6")
    a("v_add_u32 v7, s51, v4")
    a("v_cvt_f32_u32 v8, v7")
    a("v_mul_f32 v8, 0x3b000000, v8")
    a("v_add_f32 v9, 0x3d800000, v8")
    a("s_lshl_b32 s52, s47, 6")
    a("v_lshlrev_b32 v10, 2, v5")
    a("v_add_u32 v10, s52, v10")
    a("v_cvt_f32_u32 v10, v10")
    a("v_mul_f32 v11, v8, v10")
    a("v_mul_f32 v12, v9, v10")
    a("v_mul_f32 v13, 0x40a00000, v8")
    a("v_mul_f32 v14, 0x40a00000, v9")
    ACC = 16
    for ks in range(8):
        for e in range(4):
            for mt in range(2):
                ang = 11 + mt; t0 = 208 + 2 * mt + 4 * (e & 1)
                a(f"v_cos_f32 v{t0}, v{ang}")
                a(f"v_sin_f32 v{t0+1}, v{ang}")
                if not (ks == 7 and e == 3):
                    a(f"v_add_f32 v{ang}, v{ang}, v{(13 if e == 3 else 8) + mt}")
            for mt in range(2):
                t0 = 208 + 2 * mt + 4 * (e & 1)
                a(f"v_cvt_pk_bf16_f32 v{GF + (ks*2+mt)*4 + e}, v{t0}, -v{t0+1}")
        if ks == 0:
            a("v_and_b32 v15, 1, v2")
            a("v_lshlrev_b32 v15, 31, v15")
            a("v_or_b32 v15, 0x3f003f00, v15")
            a("s_cmp_eq_u32 s47, 0")
            a("s_cselect_b32 s54, -1, 0")
            a("s_mov_b32 s55, 0")
            for mt in range(2): a(f"v_cndmask_b32 v{GF + mt*4}, v{GF + mt*4}, v15, s[54:55]")
        for mt in range(2):
            for t in range(2):
                acc = vr(ACC + (mt*2+t)*16, 16)
                a(f"{M} {acc}, {vr(GF + (ks*2+mt)*4, 4)}, {vr(YF + (ks*2+t)*4, 4)}, {'0' if ks == 0 else acc}")
    a(f"s_mul_i32 s50, s47, {K3_PART}")
    a(f"s_add_u32 s50, s50, {K3_AP}")
    a("v_add_u32 v8, s50, v3")
    for blk in range(16):
        a(f"ds_write_b128 v8, {vr(ACC + blk*4, 4)} offset:{blk*K3_BLK}")
    a.wait_all()
    a.fence()
    a.label(f"L_{name}_red")
    a.reset_state()
    a("v_lshrrev_b32 v4, 3, v0")
    a("s_lshl_b32 s50, s46, 6")
    a("v_add_u32 v5, s50, v4")
    a("v_lshlrev_b32 v6, 2, v5")
    a(f"s_mov_b32 s51, {WS_G}")
    a("buffer_load_dword v10, v6, s[24:27], s51 offen")
    a("v_mov_b32 v11, 0")
    a("v_lshlrev_b32 v6, 1, v5")
    a("buffer_load_short_d16_hi v11, v6, s[12:15], 0 offen")
    a("v_and_b32 v6, 7, v0")
    a("v_lshrrev_b32 v7, 2, v6")
    a("v_lshlrev_b32 v7, 3, v7")
    a("v_and_b32 v8, 3, v6")
    a("v_add_u32 v7, v7, v8")
    a("v_lshrrev_b32 v8, 5, v4")
    a("v_lshl_add_u32 v7, v8, 2, v7")
    a(f"v_mul_u32_u24 v7, {K3_BLK}, v7")
    a("v_and_b32 v8, 31, v4")
    a("v_lshl_add_u32 v7, v8, 4, v7")
    a(f"v_add_u32 v8, {K3_AP}, v7")
    a("v_lshlrev_b32 v9, 10, v5")
    a("v_lshl_add_u32 v9, v6, 4, v9")
    a("s_lshl_b32 s52, s45, 7")
    a("s_barrier")
    B_, A_ = 16, 48
    for w in range(4):
        for hh in range(2):
            a(f"ds_read_b128 {vr(B_ + w*8 + hh*4, 4)}, v7 offset:{w*K3_P*4096 + hh*512}")
    for w in range(4):
        for hh in range(2):
            a(f"ds_read_b128 {vr(A_ + w*8 + hh*4, 4)}, v8 offset:{w*K3_PART + hh*512}")
    for X in (B_, A_):
        for e in range(8): a(f"v_add_f32 v{X+e}, v{X+e}, v{X+8+e}")
        for e in range(8): a(f"v_add_f32 v{X+16+e}, v{X+16+e}, v{X+24+e}")
        for e in range(8): a(f"v_add_f32 v{X+e}, v{X+e}, v{X+16+e}")
    def rnd(X, T):
        for q in range(4): a(f"v_cvt_pk_bf16_f32 v{T+q}, v{X+2*q}, v{X+2*q+1}")
        for q in range(4): unpack(a, X + 2*q, X + 2*q + 1, T + q)
    rnd(B_, B_ + 8)
    for e in range(8): a(f"v_mul_f32 v{A_+e}, 0x36000000, v{A_+e}")
    for e in range(8): a(f"v_add_f32 v{B_+e}, v{B_+e}, v11")
    rnd(A_, A_ + 8)
    rnd(B_, B_ + 8)
    a("v_sub_f32 v12, 1.0, v10")
    a("v_cvt_pk_bf16_f32 v12, v12, v12")
    a("v_lshlrev_b32 v12, 16, v12")
    for e in range(8): a(f"v_mul_f32 v{A_+e}, v{A_+e}, v10")
    for e in range(8): a(f"v_mul_f32 v{B_+e}, v{B_+e}, v12")
    rnd(A_, A_ + 8)
    rnd(B_, B_ + 8)
    for e in range(8): a(f"v_add_f32 v{A_+e}, v{A_+e}, v{B_+e}")
    for q in range(4): a(f"v_cvt_pk_bf16_f32 v{B_+q}, v{A_+2*q}, v{A_+2*q+1}")
    a(f"buffer_store_dwordx4 {vr(B_,4)}, v9, s[16:19], s52 offen")
    a.label(f"L_{name}_end")
    a("s_endpgm")
    return 216

def desc(name, vg):
    acc = (vg + 3) // 4 * 4
    return f""".p2align 6
.amdhsa_kernel {name}
  .amdhsa_next_free_vgpr {vg}
  .amdhsa_next_free_sgpr 100
  .amdhsa_accum_offset {acc}
  .amdhsa_group_segment_fixed_size 0
  .amdhsa_kernarg_size 96
  .amdhsa_user_sgpr_count 2
  .amdhsa_user_sgpr_kernarg_segment_ptr 1
  .amdhsa_system_sgpr_workgroup_id_x 1
.end_amdhsa_kernel
"""
def table_text(label, dw, pad_to=None):
    s = f".p2align 8\n{label}:\n"
    for i in range(0, len(dw), 8):
        s += ".long " + ",".join(f"0x{x:x}" for x in dw[i:i+8]) + "\n"
    return s

def build(extra_empty=0):
    a = Asm()
    ks = [("k1_kernel", gen_k1, 98304), ("k2_kernel", gen_k2, K2_LDS), ("k3_kernel", gen_k3, K3_LDS)]
    head = HEADER
    for n, _, lds in ks:
        head += f"; @launch kernel={n} grid=(256,1,1) block=(512,1,1) lds={lds}\n"
    for i in range(extra_empty):
        head += f"; @launch kernel=kempty_kernel grid=(256,1,1) block=(64,1,1) lds=0\n"
    head += '.amdgcn_target "amdgcn-amd-amdhsa--gfx950"\n.text\n'
    vg = {}
    for n, fn, _ in ks:
        vg[n] = fn(a, n)
    if extra_empty:
        a.raw(".p2align 8\n.type kempty_kernel,@function\nkempty_kernel:\n    s_endpgm"); vg["kempty_kernel"] = 8
    body = a.text()
    body += table_text("K1_TABLE", table_dwords(1)[0]) + table_text("K2_TABLE", table_dwords(2)[0])
    body += '.section .rodata,"a"\n' + "".join(desc(n, v) for n, v in vg.items())
    return head + body, a.stats

if __name__ == "__main__":
    out = sys.argv[1] if len(sys.argv) > 1 else "gated_mix__spectral_gfnet__mixer_token_mlp__prompt.s"
    extra = int(sys.argv[2]) if len(sys.argv) > 2 else 0
    t, st = build(extra)
    open(out, "w").write(t)
    print(len(t), "bytes", st)
```

```python
import sys, os
sys.path.insert(0, "work")
from asmlib import *
from design import *

HEADER = open("gated_mix__spectral_gfnet__mixer_token_mlp__prompt.s.ref").read().split("; Override launch geometry")[0]

def srd(a, d, base, nbytes):
    a(f"s_mov_b32 s{d}, s{base}")
    a(f"s_and_b32 s{d+1}, s{base+1}, 0xffff")
    a(f"s_mov_b32 s{d+2}, {nbytes}")
    a(f"s_mov_b32 s{d+3}, 0x00020000")

def table_srd(a, d, label, nbytes, uniq):
    a(f"s_getpc_b64 s[{d}:{d+1}]")
    a.raw(f"Lpc_{uniq}:")
    a(f"s_add_u32 s{d}, s{d}, {label}-Lpc_{uniq}")
    a(f"s_addc_u32 s{d+1}, s{d+1}, 0")
    a(f"s_and_b32 s{d+1}, s{d+1}, 0xffff")
    a(f"s_mov_b32 s{d+2}, {nbytes}")
    a(f"s_mov_b32 s{d+3}, 0x00020000")

MIXC = "op_sel_hi:[0,1,0]"
MIXS = "op_sel:[0,1,0] op_sel_hi:[0,1,0]"
WS_BYTES = 0x10000000

WS_DBG = 0x8000000
STAMPS = False
COOP = int(os.environ.get('COOP', 1))
PF_W1 = int(os.environ.get('PF_W1', 1))
PF_W2 = int(os.environ.get('PF_W2', 1))
PFMOD = os.environ.get('PFMOD', 'nt')
PF_W2_SLEEP = 0
DBGST = False
def stamp(a, i):
    if STAMPS:
        a(f"s_memrealtime s[{80+2*i}:{81+2*i}]")
        if i == 2: a("s_memtime s[100:101]")
        if i == 3: a("s_memtime s[74:75]")
def stamp_init(a):
    if STAMPS:
        for i in range(8): a(f"s_mov_b64 s[{80+2*i}:{81+2*i}], 0")
        stamp(a, 0)
def stamp_flush(a, kidx, last):
    if not STAMPS: return
    a("s_waitcnt vmcnt(0)")
    stamp(a, last)
    a("s_waitcnt lgkmcnt(0)")
    for i in range(8): a(f"v_mov_b32 v{248+i}, s{80+2*i}")
    a("s_lshl_b32 s98, s2, 3")
    a("s_add_u32 s98, s98, s42")
    a("s_lshl_b32 s98, s98, 5")
    a(f"s_add_u32 s98, s98, {WS_DBG + kidx*65536}")
    a("v_mov_b32 v247, 0")
    a("s_mov_b64 exec, 1")
    a("buffer_store_dwordx4 v[248:251], v247, s[24:27], s98 offen")
    a("buffer_store_dwordx4 v[252:255], v247, s[24:27], s98 offen offset:16")
    a("s_getreg_b32 s97, hwreg(HW_REG_XCC_ID)")
    a("s_getreg_b32 s96, hwreg(HW_REG_HW_ID)")
    a("v_mov_b32 v246, s97")
    a("v_mov_b32 v245, s96")
    a("s_add_u32 s98, s98, 0x100000")
    a("buffer_store_dword v246, v247, s[24:27], s98 offen")
    a("buffer_store_dword v245, v247, s[24:27], s98 offen offset:4")
    a("s_sub_u32 s74, s74, s100")
    a("v_mov_b32 v244, s74")
    a("buffer_store_dword v244, v247, s[24:27], s98 offen offset:8")
    a("s_mov_b64 exec, -1")
    if DBGST:
        a("s_load_dwordx2 s[96:97], s[0:1], 80")
        a("s_waitcnt lgkmcnt(0)")
        a(f"s_sub_u32 s76, s96, {512*kidx}")
        a("s_subb_u32 s77, s97, 0")
        a("s_and_b32 s77, s77, 0xffff")
        a("s_mov_b32 s78, 256")
        a("s_mov_b32 s79, 0x00020000")
        a("v_not_b32 v248, v248")
        a(f"v_mov_b32 v249, s{80+2*last}")
        a("s_mov_b64 exec, 1")
        a(f"buffer_atomic_umax v248, v247, s[76:79], 0 offen offset:{kidx*8}")
        a(f"buffer_atomic_umax v249, v247, s[76:79], 0 offen offset:{kidx*8+4}")
        a("s_mov_b64 exec, -1")

def dpp_reduce(a, regs):
    for mod in ("quad_perm:[1,0,3,2] row_mask:0xf bank_mask:0xf", "quad_perm:[2,3,0,1] row_mask:0xf bank_mask:0xf",
                "row_half_mirror row_mask:0xf bank_mask:0xf", "row_mirror row_mask:0xf bank_mask:0xf",
                "row_bcast:15 row_mask:0xa bank_mask:0xf", "row_bcast:31 row_mask:0xc bank_mask:0xf"):
        for r in regs:
            a(f"v_add_f32_dpp v{r}, v{r}, v{r} {mod}")

def unpack(a, lo, hi, src):
    a(f"v_lshlrev_b32 v{lo}, 16, v{src}")
    a(f"v_and_b32 v{hi}, 0xffff0000, v{src}")

K1_XR, K1_ZX, K1_HX = 0, 8192, 16384
def gen_k1(a, name):
    tb, ti = table_dwords(1)
    a.raw(f".p2align 8\n.type {name},@function\n{name}:")
    a.reset_state()
    a("s_cmp_ge_u32 s2, 256")
    a(f"s_cbranch_scc1 L_{name}_end")
    stamp_init(a)
    a("s_load_dwordx4 s[32:35], s[0:1], 0")
    a("s_load_dwordx2 s[36:37], s[0:1], 16")
    a("s_load_dwordx2 s[38:39], s[0:1], 64")
    a("s_load_dwordx2 s[40:41], s[0:1], 88")
    a("s_load_dwordx2 s[72:73], s[0:1], 32")
    table_srd(a, 28, "K1_TABLE", len(tb) * 4, name)
    a("v_lshrrev_b32 v1, 6, v0")
    a("v_and_b32 v2, 63, v0")
    a("v_readfirstlane_b32 s42, v1")
    a("s_and_b32 s43, s2, 7")
    a("s_lshl_b32 s43, s43, 3")
    a("s_bfe_u32 s44, s2, 0x30003")
    a("s_add_u32 s43, s43, s44")
    a("s_lshr_b32 s44, s2, 6")
    a("s_lshl_b32 s45, s44, 9")
    a("s_add_u32 s45, s45, s43")
    a("s_and_b32 s46, s42, 3")
    a("s_lshl_b32 s47, s46, 7")
    a("s_add_u32 s47, s47, s45")
    a("s_lshl_b32 s48, s47, 10")
    a("s_add_u32 s49, s48, 65536")
    a("v_lshlrev_b32 v3, 4, v2")
    srd(a, 8, 32, S * D * 2)
    srd(a, 12, 34, S * 514)
    srd(a, 16, 36, S * 514)
    srd(a, 20, 38, 1024)
    srd(a, 24, 40, WS_BYTES)
    a("s_cmp_ge_u32 s42, 4")
    a.fence()
    a(f"s_cbranch_scc1 L_{name}_ln")
    snap = a.snapshot()
    a("s_lshl_b32 s50, s46, 11")
    a(f"s_add_u32 m0, s50, {K1_XR}")
    d0 = a("buffer_load_dwordx4 v3, s[8:11], s48 offen nt lds")
    a(f"s_add_u32 m0, s50, {K1_XR + 1024}")
    d1 = a("buffer_load_dwordx4 v3, s[8:11], s49 offen nt lds")
    a("s_movk_i32 s51, 4096")
    a("s_movk_i32 s52, 8192")
    T = {}
    for n, idx in ti.items():
        r = 16 + 4 * idx; T[n] = r
        so = ["0", "s51", "s52"][idx // 4]
        a(f"buffer_load_dwordx4 {vr(r,4)}, v3, s[28:31], {so} offen offset:{(idx % 4) * 1024}")
    a("v_lshrrev_b32 v4, 4, v2")
    a("v_lshlrev_b32 v5, 9, v4")
    a("v_lshlrev_b32 v4, 8, v4")
    a("v_and_b32 v6, 15, v2")
    a("v_lshl_add_u32 v4, v6, 3, v4")
    a("v_add_u32 v4, s50, v4")
    a("v_lshl_add_u32 v5, v6, 2, v5")
    a("v_add_u32 v5, s50, v5")
    stamp(a, 1)
    a.wait_tok(d0, d1)
    stamp(a, 2)
    A0, A1 = 60, 64
    a(f"ds_read_b64_tr_b16 {vr(A0,2)}, v4 offset:{K1_XR}")
    a(f"ds_read_b64_tr_b16 {vr(A0+2,2)}, v4 offset:{K1_XR+128}")
    a(f"ds_read_b64_tr_b16 {vr(A1,2)}, v4 offset:{K1_XR+1024}")
    a(f"ds_read_b64_tr_b16 {vr(A1+2,2)}, v4 offset:{K1_XR+1024+128}")
    TR = {(jh, x): 68 + 8 * jh + (0 if x == 're' else 4) for jh in range(2) for x in ('re', 'im')}
    M = "v_mfma_f32_16x16x32_bf16"
    for jh in range(2):
        a(f"{M} {vr(TR[jh,'re'],4)}, {vr(A0,4)}, {vr(T[f'COS{jh}'],4)}, 0")
        a(f"{M} {vr(TR[jh,'im'],4)}, {vr(A0,4)}, {vr(T[f'NSIN{jh}'],4)}, 0")
    for jh in range(2):
        a(f"{M} {vr(TR[jh,'re'],4)}, {vr(A1,4)}, {vr(T[f'SIN{jh}'],4)}, {vr(TR[jh,'re'],4)}")
        a(f"{M} {vr(TR[jh,'im'],4)}, {vr(A1,4)}, {vr(T[f'COS{jh}'],4)}, {vr(TR[jh,'im'],4)}")
    for jh in range(2):
        o = 100 + 8 * jh
        for i in range(4):
            tw = T[f'TW{jh}'] + i; re = TR[jh, 're'] + i; im = TR[jh, 'im'] + i
            a(f"v_fma_mix_f32 v{o+i}, v{re}, v{tw}, 0 {MIXC}")
            a(f"v_fma_mix_f32 v{o+4+i}, v{im}, v{tw}, 0 {MIXC}")
            a(f"v_fma_mix_f32 v{o+i}, v{im}, v{tw}, v{o+i} {MIXS}")
            a(f"v_fma_mix_f32 v{o+4+i}, -v{re}, v{tw}, v{o+4+i} {MIXS}")
        B = 84 + 4 * jh
        for q in range(4):
            a(f"v_cvt_pk_bf16_f32 v{B+q}, v{o+2*q}, v{o+2*q+1}")
        a(f"{M} {vr(TR[jh,'re'],4)}, {vr(T['ARE'],4)}, {vr(B,4)}, 0")
        a(f"{M} {vr(TR[jh,'im'],4)}, {vr(T['AIM'],4)}, {vr(B,4)}, 0")
    for jh in range(2):
        for i in range(4):
            r = 92 + 4 * jh + i
            a(f"v_cvt_pk_bf16_f32 v{r}, v{TR[jh,'re']+i}, v{TR[jh,'im']+i}")
            a(f"ds_write_b32 v5, v{r} offset:{K1_ZX + (16*jh + 32*i) * 4}")
    if PF_W1:
        srd(a, 76, 72, S * F * 2)
        a("s_lshr_b32 s53, s2, 3")
        a(f"s_mul_i32 s53, s53, {64*3584}")
        a("s_bfe_u32 s54, s2, 0x20001")
        a("s_mul_i32 s54, s54, 896")
        a("s_add_u32 s53, s53, s54")
        a("s_lshl_b32 s54, s46, 8")
        a("s_add_u32 s53, s53, s54")
        a("v_mul_u32_u24 v7, 3584, v2")
        a("buffer_load_dword v120, v7, s[76:79], s53 offen " + PFMOD)
        a("s_cmp_eq_u32 s46, 3")
        a("s_cselect_b32 s54, 0, 128")
        a("s_add_u32 s53, s53, s54")
        a("buffer_load_dword v121, v7, s[76:79], s53 offen " + PFMOD)
    a.wait_all(vm=False)
    a.fence()
    a(f"s_branch L_{name}_join")
    a.restore(snap)
    a.label(f"L_{name}_ln")
    X0, X1, GW = 16, 20, 24
    a(f"buffer_load_dwordx4 {vr(X0,4)}, v3, s[8:11], s48 offen nt")
    a(f"buffer_load_dwordx4 {vr(X1,4)}, v3, s[8:11], s49 offen nt")
    a(f"buffer_load_dwordx4 {vr(GW,4)}, v3, s[20:23], 0 offen")
    a("v_and_b32 v4, 255, v0")
    a("v_lshlrev_b32 v5, 1, v4")
    WR, WI = 100, 108
    for i in range(8): a(f"v_mov_b32 v{WI+i}, 0")
    a("s_mul_i32 s50, s45, 514")
    for i in range(8):
        if i: a(f"s_add_u32 s{50+i}, s{50+i-1}, {64*514}")
        a(f"buffer_load_ushort v{WR+i}, v5, s[12:15], s{50+i} offen nt")
        a(f"buffer_load_short_d16_hi v{WI+i}, v5, s[16:19], s{50+i} offen nt")
    a("v_and_b32 v6, 7, v2")
    a("v_lshlrev_b32 v7, 6, v6")
    a("v_add_u32 v7, s45, v7")
    a("v_sub_u32 v8, 2048, v7")
    a("v_and_b32 v8, 2047, v8")
    a("v_bfe_u32 v9, v2, 3, 1")
    a("v_lshlrev_b32 v10, 9, v9")
    a("s_movk_i32 s58, 514")
    a("v_mad_u32_u24 v7, v7, s58, v10")
    a("v_mad_u32_u24 v8, v8, s58, v10")
    SP = 116
    for i in range(4): a(f"v_mov_b32 v{SP+i}, 0")
    a(f"buffer_load_short_d16_hi v{SP}, v7, s[12:15], 0 offen")
    a(f"buffer_load_short_d16_hi v{SP+1}, v7, s[16:19], 0 offen")
    a(f"buffer_load_short_d16_hi v{SP+2}, v8, s[12:15], 0 offen")
    a(f"buffer_load_short_d16_hi v{SP+3}, v8, s[16:19], 0 offen")
    stamp(a, 1)
    a(f"v_mov_b32 v{X0}, v{X0}")
    a(f"v_mov_b32 v{X1}, v{X1}")
    stamp(a, 2)
    F0, F1, G = 32, 40, 48
    for q in range(4):
        unpack(a, F0 + 2*q, F0 + 2*q + 1, X0 + q)
        unpack(a, F1 + 2*q, F1 + 2*q + 1, X1 + q)
        unpack(a, G + 2*q, G + 2*q + 1, GW + q)
    P = 56
    for e in range(8):
        a(f"v_mul_f32 v{P+e}, v{F0+e}, v{G+e}")
        a(f"v_mul_f32 v{P+8+e}, v{F1+e}, v{G+e}")
    S0, S1, G0, G1 = 72, 73, 74, 75
    a(f"v_add_f32 v{S0}, v{F0}, v{F0+1}")
    a(f"v_add_f32 v{S1}, v{F1}, v{F1+1}")
    for e in range(2, 8):
        a(f"v_add_f32 v{S0}, v{S0}, v{F0+e}")
        a(f"v_add_f32 v{S1}, v{S1}, v{F1+e}")
    for e in range(8):
        a(f"v_cvt_pk_bf16_f32 v{76+e}, v{P+e}, v{P+8+e}")
    for e in range(8):
        unpack(a, P + e, P + 8 + e, 76 + e)
    a(f"v_add_f32 v{G0}, v{P}, v{P+1}")
    a(f"v_add_f32 v{G1}, v{P+8}, v{P+9}")
    for e in range(2, 8):
        a(f"v_add_f32 v{G0}, v{G0}, v{P+e}")
        a(f"v_add_f32 v{G1}, v{G1}, v{P+8+e}")
    dpp_reduce(a, [S0, S1, G0, G1])
    for i, r in enumerate([S0, S1, G0, G1]): a(f"v_readlane_b32 s{60+i}, v{r}, 63")
    M0_, M1_ = 76, 77
    a("v_mov_b32 v78, 0x3b000000")
    a(f"v_mul_f32 v{M0_}, s60, v78")
    a(f"v_mul_f32 v{M1_}, s61, v78")
    Q0, Q1 = 72, 73
    for e in range(8):
        a(f"v_sub_f32 v{P+e}, v{F0+e}, v{M0_}")
        a(f"v_sub_f32 v{P+8+e}, v{F1+e}, v{M1_}")
    a(f"v_mul_f32 v{Q0}, v{P}, v{P}")
    a(f"v_mul_f32 v{Q1}, v{P+8}, v{P+8}")
    for e in range(1, 8):
        a(f"v_fmac_f32 v{Q0}, v{P+e}, v{P+e}")
        a(f"v_fmac_f32 v{Q1}, v{P+8+e}, v{P+8+e}")
    a("v_mov_b32 v80, s62")
    a("v_mov_b32 v81, s63")
    a("v_cvt_pk_bf16_f32 v80, v80, v81")
    unpack(a, 81, 82, 80)
    a("v_mul_f32 v81, 0xbfb8aa3b, v81")
    a("v_mul_f32 v82, 0xbfb8aa3b, v82")
    a("v_exp_f32 v81, v81")
    a("v_exp_f32 v82, v82")
    dpp_reduce(a, [Q0, Q1])
    a("v_add_f32 v81, 1.0, v81")
    a("v_add_f32 v82, 1.0, v82")
    a("v_rcp_f32 v81, v81")
    a("v_rcp_f32 v82, v82")
    a(f"v_readlane_b32 s64, v{Q0}, 63")
    a(f"v_readlane_b32 s65, v{Q1}, 63")
    a(f"v_cvt_pk_bf16_f32 v79, v{M0_}, v{M1_}")
    unpack(a, M0_, M1_, 79)
    a("v_cvt_pk_bf16_f32 v80, v81, v82")
    unpack(a, 81, 82, 80)
    a("v_mul_f32 v83, s64, v78")
    a("v_mul_f32 v84, s65, v78")
    a("v_cvt_pk_bf16_f32 v83, v83, v84")
    unpack(a, 84, 85, 83)
    a("v_add_f32 v84, 0x3727c5ac, v84")
    a("v_add_f32 v85, 0x3727c5ac, v85")
    a("v_cvt_pk_bf16_f32 v83, v84, v85")
    unpack(a, 84, 85, 83)
    a("v_sqrt_f32 v84, v84")
    a("v_sqrt_f32 v85, v85")
    for e in range(8):
        a(f"v_sub_f32 v{P+e}, v{F0+e}, v{M0_}")
        a(f"v_sub_f32 v{P+8+e}, v{F1+e}, v{M1_}")
    a("v_cvt_pk_bf16_f32 v83, v84, v85")
    unpack(a, 84, 85, 83)
    a("v_rcp_f32 v84, v84")
    a("v_rcp_f32 v85, v85")
    for e in range(8):
        a(f"v_cvt_pk_bf16_f32 v{88+e}, v{P+e}, v{P+8+e}")
    for e in range(8):
        unpack(a, P + e, P + 8 + e, 88 + e)
    for e in range(8):
        a(f"v_mul_f32 v{P+e}, v{P+e}, v84")
        a(f"v_mul_f32 v{P+8+e}, v{P+8+e}, v85")
    for e in range(8):
        a(f"v_cvt_pk_bf16_f32 v{88+e}, v{P+e}, v{P+8+e}")
    a("s_lshl_b32 s66, s46, 11")
    a("v_lshlrev_b32 v11, 5, v2")
    a("v_add_u32 v11, s66, v11")
    a(f"ds_write_b128 v11, v[88:91] offset:{K1_HX}")
    a(f"ds_write_b128 v11, v[92:95] offset:{K1_HX+16}")
    a("v_cmp_eq_u32 vcc, 1, v2")
    a("v_cndmask_b32 v81, v81, v82, vcc")
    a("v_lshlrev_b32 v12, 8, v2")
    a("s_lshl_b32 s67, s47, 2")
    a(f"s_add_u32 s67, s67, {WS_G}")
    a("s_mov_b64 exec, 3")
    a("buffer_store_dword v81, v12, s[24:27], s67 offen")
    a("s_mov_b64 exec, -1")
    for i in range(8): a(f"v_or_b32 v{WR+i}, v{WR+i}, v{WI+i}")
    a("v_lshlrev_b32 v13, 13, v4")
    a("s_lshl_b32 s68, s44, 11")
    a("s_lshl_b32 s69, s43, 4")
    a("s_add_u32 s68, s68, s69")
    a(f"s_add_u32 s68, s68, {WS_WT}")
    a("v_cmp_ne_u32 vcc, 0, v4")
    a("s_and_saveexec_b64 s[70:71], vcc")
    a(f"buffer_store_dwordx4 {vr(WR,4)}, v13, s[24:27], s68 offen")
    a(f"buffer_store_dwordx4 {vr(WR+4,4)}, v13, s[24:27], s68 offen offset:1024")
    a("s_mov_b64 exec, s[70:71]")
    a(f"v_add_f32 v{SP}, v{SP}, v{SP+2}")
    a(f"v_sub_f32 v{SP+1}, v{SP+1}, v{SP+3}")
    a(f"v_mul_f32 v{SP}, 0.5, v{SP}")
    a(f"v_mul_f32 v{SP+1}, 0.5, v{SP+1}")
    a(f"v_cvt_pk_bf16_f32 v{SP+2}, v{SP}, v{SP+1}")
    a(f"v_cvt_pk_bf16_f32 v{SP+3}, -v{SP+1}, v{SP}")
    a("v_cmp_eq_u32 vcc, 1, v9")
    a(f"v_cndmask_b32 v{SP+2}, v{SP+2}, v{SP+3}, vcc")
    a("v_lshlrev_b32 v14, 21, v9")
    a("v_lshrrev_b32 v15, 2, v6")
    a("v_lshl_add_u32 v14, v15, 10, v14")
    a("v_and_b32 v15, 3, v6")
    a("v_lshl_add_u32 v14, v15, 2, v14")
    a("v_cmp_gt_u32 vcc, 16, v4")
    a("s_and_saveexec_b64 s[70:71], vcc")
    a.fence()
    a(f"s_cbranch_execz L_{name}_nosp")
    a(f"buffer_store_dword v{SP+2}, v14, s[24:27], s68 offen")
    a.label(f"L_{name}_nosp")
    a("s_mov_b64 exec, s[70:71]")
    a.wait_all(vm=False)
    a.fence()
    a.label(f"L_{name}_join")
    a.reset_state()
    stamp(a, 3)
    a("s_barrier")
    stamp(a, 4)
    a("v_lshlrev_b32 v4, 2, v0")
    a(f"ds_read2st64_b32 v[16:17], v4 offset0:{K1_ZX//256} offset1:{K1_ZX//256+8}")
    a(f"ds_read2st64_b32 v[18:19], v4 offset0:{K1_ZX//256+16} offset1:{K1_ZX//256+24}")
    a(f"ds_read2st64_b32 v[20:21], v4 offset0:{K1_HX//256} offset1:{K1_HX//256+8}")
    a(f"ds_read2st64_b32 v[22:23], v4 offset0:{K1_HX//256+16} offset1:{K1_HX//256+24}")
    a("v_lshlrev_b32 v5, 12, v0")
    a("s_lshl_b32 s50, s44, 10")
    a("s_lshl_b32 s51, s43, 4")
    a("s_add_u32 s50, s50, s51")
    a(f"s_add_u32 s50, s50, {WS_Z}")
    a("s_lshl_b32 s52, s44, 6")
    a("s_add_u32 s52, s52, s43")
    a("s_lshl_b32 s52, s52, 10")
    a("s_lshl_b32 s53, s42, 18")
    a("s_add_u32 s52, s52, s53")
    if WS_HT: a(f"s_add_u32 s52, s52, {WS_HT}")
    a("buffer_store_dwordx4 v[16:19], v5, s[24:27], s50 offen")
    a("buffer_store_dwordx4 v[20:23], v3, s[24:27], s52 offen")
    stamp(a, 5)
    stamp_flush(a, 0, 6)
    a.label(f"L_{name}_end")
    a("s_endpgm")
    return 256 if STAMPS else 128

def gemm_loop(a, nslab, P, w_is_A, vW, vA, vT0, vT1, sW, wsteps, sA, srdW, srdA, ringbase_s, ACC, WF, AF, tail_cb=None):
    M = "v_mfma_f32_32x32x16_bf16"
    toks = {}
    def issue(sig):
        ops = []
        slot = sig % P
        for jj in range(4):
            ops.append([f"s_add_u32 m0, s{ringbase_s}, {slot*4096 + jj*1024}",
                        f"buffer_load_dwordx4 v{vW}, {sr(srdW,4)}, s{sW} offen lds",
                        f"s_add_u32 s{sW}, s{sW}, {wsteps(sig, jj)}"])
        for ks in range(2):
            for mt in range(2):
                r = AF + slot * 16 + (ks * 2 + mt) * 4
                o = [f"buffer_load_dwordx4 {vr(r,4)}, v{vA}, {sr(srdA,4)}, s{sA} offen offset:{ks*2048 + mt*512}"]
                if ks == 1 and mt == 1: o.append(f"s_add_u32 s{sA}, s{sA}, 4096")
                ops.append(o)
        return ops
    def emit_ops(sig, ops):
        for o in ops:
            for line in o:
                if 'buffer' in line and 'lds' not in line and os.environ.get("NO_ACT") and sig >= P: continue
                if 'buffer' in line and 'lds' in line and os.environ.get("NO_W") and sig >= 1:
                    toks.setdefault(sig, []); continue
                ins = a(line)
                if 'lds' in line and 'buffer' in line: toks.setdefault(sig, []).append(ins)
    def trreads(sig):
        slot = sig % P; st = sig & 1
        out = []
        for ks in range(2):
            for t in range(2):
                for u in range(2):
                    r = WF + st * 16 + (ks * 2 + t) * 4 + 2 * u
                    out.append(f"ds_read_b64_tr_b16 {vr(r,2)}, v{vT0 if t == 0 else vT1} offset:{slot*4096 + ks*2048 + u*512}")
        return out
    for sig in range(min(P, nslab)):
        emit_ops(sig, issue(sig))
    stamp(a, 1)
    a.wait_tok(*toks[0])
    stamp(a, 2)
    rt = {0: [a(l) for l in trreads(0)]}
    for sig in range(nslab):
        slot = sig % P; st = sig & 1
        nxt = issue(sig + P) if sig + P < nslab else []
        trn = trreads(sig + 1) if sig + 1 < nslab else []
        rt[sig + 1] = []
        if nxt: a.wait_tok(*rt[sig])
        k = 0
        for ks in range(2):
            for t in range(2):
                for mt in range(2):
                    wf = vr(WF + st * 16 + (ks * 2 + t) * 4, 4); af = vr(AF + slot * 16 + (ks * 2 + mt) * 4, 4)
                    if w_is_A: acc = vr(ACC + (t * 2 + mt) * 16, 16); A_, B_ = wf, af
                    else:      acc = vr(ACC + (mt * 2 + t) * 16, 16); A_, B_ = af, wf
                    c = "0" if (sig == 0 and ks == 0) else acc
                    if os.environ.get("MF16"):
                        ab = int(acc[2:].split(':')[0]) + 8 * ks
                        for hh in range(2):
                            a4 = vr(ab + 4 * hh, 4)
                            a(f"v_mfma_f32_16x16x32_bf16 {a4}, {A_}, {B_}, {'0' if sig == 0 else a4}")
                    else:
                        a(f"{M} {acc}, {A_}, {B_}, {c}")
                    if k >= 4 and trn:
                        if k == 4: a.wait_tok(*toks[sig + 1])
                        rt[sig + 1] += [a(l) for l in trn[2 * (k - 4): 2 * (k - 4) + 2]]
                    if nxt: emit_ops(sig + P, [nxt[k]])
                    elif tail_cb: tail_cb(sig, k)
                    k += 1

def lane_consts_gemm(a, vW, vA, vT0, vT1, rowstride, ringbase_s, lane, tmp):
    t0, t1 = tmp, tmp + 1
    a(f"v_lshrrev_b32 v{t0}, 3, v{lane}")
    a(f"s_mov_b32 s99, {rowstride}")
    a(f"v_mul_lo_u32 v{vW}, v{t0}, s99")
    a(f"v_lshrrev_b32 v{t0}, 2, v{lane}")
    a(f"v_lshrrev_b32 v{t1}, 4, v{lane}")
    a(f"v_xor_b32 v{t0}, v{t0}, v{t1}")
    a(f"v_and_b32 v{t0}, 1, v{t0}")
    a(f"v_lshl_add_u32 v{vW}, v{t0}, 6, v{vW}")
    a(f"v_and_b32 v{t0}, 3, v{lane}")
    a(f"v_lshl_add_u32 v{vW}, v{t0}, 4, v{vW}")
    a(f"v_lshrrev_b32 v{t1}, 5, v{lane}")
    a(f"v_lshlrev_b32 v{vA}, 10, v{t1}")
    a(f"v_and_b32 v{t0}, 31, v{lane}")
    a(f"v_lshl_add_u32 v{vA}, v{t0}, 4, v{vA}")
    a(f"v_lshlrev_b32 v{vT0}, 10, v{t1}")
    a(f"v_bfe_u32 v{t0}, v{lane}, 2, 2")
    a(f"v_lshl_add_u32 v{vT0}, v{t0}, 7, v{vT0}")
    a(f"v_bfe_u32 v{t0}, v{lane}, 3, 1")
    a(f"v_lshl_add_u32 v{vT0}, v{t0}, 6, v{vT0}")
    a(f"v_bfe_u32 v{t0}, v{lane}, 4, 1")
    a(f"v_lshl_add_u32 v{vT0}, v{t0}, 5, v{vT0}")
    a(f"v_and_b32 v{t0}, 3, v{lane}")
    a(f"v_lshl_add_u32 v{vT0}, v{t0}, 3, v{vT0}")
    a(f"v_add_u32 v{vT0}, s{ringbase_s}, v{vT0}")
    a(f"v_xor_b32 v{vT1}, 64, v{vT0}")

K2_P = int(os.environ.get('K2_P', 4))
K2_RS = max(K2_P * 4096, 16384)
K2_OX, K2_TB, K2_SV = 0, 65536, 65536 + 40960
K2_LDS = K2_SV + 16384
def gen_k2(a, name):
    tb, ti = table_dwords(2)
    a.raw(f".p2align 8\n.type {name},@function\n{name}:")
    a.reset_state()
    a("s_cmp_ge_u32 s2, 256")
    a(f"s_cbranch_scc1 L_{name}_end")
    stamp_init(a)
    a("s_load_dwordx4 s[32:35], s[0:1], 32")
    a("s_load_dwordx2 s[40:41], s[0:1], 88")
    a("s_load_dwordx2 s[72:73], s[0:1], 48")
    table_srd(a, 28, "K2_TABLE", len(tb) * 4, name)
    a("v_lshrrev_b32 v1, 6, v0")
    a("v_and_b32 v2, 63, v0")
    a("v_readfirstlane_b32 s42, v1")
    a("s_and_b32 s43, s2, 7")
    a("s_lshr_b32 s44, s2, 3")
    srd(a, 8, 32, S * F * 2)
    srd(a, 24, 40, WS_BYTES)
    if COOP:
        a("s_cmp_lt_u32 s42, 4")
        a(f"s_cbranch_scc1 L_{name}_nocoop")
        a("s_and_b32 s45, s43, 1")
        a("s_lshl_b32 s45, s45, 20")
        a("s_lshl_b32 s46, s44, 15")
        a("s_add_u32 s45, s45, s46")
        a("s_and_b32 s46, s42, 3")
        a("s_lshl_b32 s46, s46, 13")
        a("s_add_u32 s45, s45, s46")
        a("v_lshlrev_b32 v9, 7, v2")
        a("buffer_load_dword v122, v9, s[24:27], s45 offen")
        a.fence()
        a.label(f"L_{name}_nocoop")
        a.reset_state()
    a("s_cmp_lt_u32 s44, 4")
    a.fence()
    a(f"s_cbranch_scc1 L_{name}_fft")
    snap0 = a.snapshot()
    a("s_sub_u32 s44, s44, 4")
    a("s_mul_i32 s45, s44, 37")
    a("s_lshr_b32 s45, s45, 8")
    a("s_mul_i32 s46, s45, 7")
    a("s_sub_u32 s46, s44, s46")
    a("s_and_b32 s47, s43, 1")
    a("s_lshl_b32 s47, s47, 2")
    a("s_add_u32 s45, s45, s47")
    a("s_lshr_b32 s47, s43, 1")
    a("s_mul_i32 s47, s47, 7")
    a("s_add_u32 s46, s46, s47")
    a("s_lshl_b32 s47, s46, 7")
    a("s_lshl_b32 s48, s42, 4")
    a("s_add_u32 s47, s47, s48")
    a("s_add_u32 s34, s34, s47")
    a("s_addc_u32 s35, s35, 0")
    a("s_load_dwordx4 s[60:63], s[34:35], 0")
    a("s_cmp_ge_u32 s42, 4")
    a.fence()
    a(f"s_cbranch_scc1 L_{name}_help")
    snap1 = a.snapshot()
    a(f"s_mul_i32 s50, s42, {K2_RS}")
    a(f"s_mul_i32 s51, s42, {512*3584}")
    a("s_lshl_b32 s52, s46, 7")
    a("s_add_u32 s51, s51, s52")
    a("s_lshl_b32 s52, s45, 18")
    a("s_lshl_b32 s53, s42, 16")
    a("s_add_u32 s52, s52, s53")
    if WS_HT: a(f"s_add_u32 s52, s52, {WS_HT}")
    vW, vA, vT0, vT1 = 4, 5, 6, 7
    lane_consts_gemm(a, vW, vA, vT0, vT1, 64 * 3584, 50, 2, 8)
    ACC, WF, AF = 16, 80, 112
    gemm_loop(a, 16, K2_P, True, vW, vA, vT0, vT1, 51, lambda sg, jj: 3584, 52, 8, 24, 50, ACC, WF, AF)
    stamp(a, 3)
    a("v_lshlrev_b32 v8, 4, v2")
    a("v_add_u32 v8, s50, v8")
    for blk in range(16):
        a(f"ds_write_b128 v8, {vr(ACC + blk*4, 4)} offset:{blk*1024}")
    a.wait_all()
    a.fence()
    a(f"s_branch L_{name}_red")
    a.restore(snap1)
    a.label(f"L_{name}_help")
    if PF_W2:
        srd(a, 76, 72, S * F * 2)
        a(f"s_lshl_b32 s53, s44, 18")
        a("s_lshr_b32 s54, s43, 1")
        a("s_lshl_b32 s54, s54, 10")
        a("s_add_u32 s53, s53, s54")
        a("s_and_b32 s54, s42, 3")
        a("s_lshl_b32 s54, s54, 8")
        a("s_add_u32 s53, s53, s54")
        a("v_lshlrev_b32 v7, 12, v2")
        if PF_W2_SLEEP: a(f"s_sleep {PF_W2_SLEEP}")
        a("buffer_load_dword v120, v7, s[76:79], s53 offen " + PFMOD)
        a("buffer_load_dword v121, v7, s[76:79], s53 offen offset:128 " + PFMOD)
    a.fence()
    a.label(f"L_{name}_red")
    a.reset_state()
    stamp(a, 4)
    a("s_waitcnt lgkmcnt(0)")
    a("s_barrier")
    stamp(a, 5)
    a("s_lshr_b32 s50, s42, 2")
    a("s_lshl_b32 s50, s50, 13")
    a("s_and_b32 s51, s42, 3")
    a("s_lshl_b32 s51, s51, 10")
    a("s_add_u32 s50, s50, s51")
    a("v_lshrrev_b32 v8, 5, v2")
    a("v_lshlrev_b32 v8, 12, v8")
    a("v_and_b32 v9, 31, v2")
    a("v_lshl_add_u32 v8, v9, 4, v8")
    a("v_add_u32 v8, s50, v8")
    a(f"v_add_u32 v9, {2*K2_RS}, v8")
    for w in range(4):
        for hh in range(2):
            base = "v8" if w < 2 else "v9"
            a(f"ds_read_b128 {vr(16 + w*8 + hh*4, 4)}, {base} offset:{(w & 1)*K2_RS + hh*512}")
    for e in range(4):
        a(f"s_lshl_b32 s{64+2*e}, s{60+e}, 16")
        a(f"s_and_b32 s{65+2*e}, s{60+e}, 0xffff0000")
    for e in range(8): a(f"v_add_f32 v{16+e}, v{16+e}, v{24+e}")
    for e in range(8): a(f"v_add_f32 v{32+e}, v{32+e}, v{40+e}")
    for e in range(8): a(f"v_add_f32 v{16+e}, v{16+e}, v{32+e}")
    for q in range(4): a(f"v_cvt_pk_bf16_f32 v{24+q}, v{16+2*q}, v{17+2*q}")
    for q in range(4): unpack(a, 16 + 2*q, 17 + 2*q, 24 + q)
    for e in range(8): a(f"v_add_f32 v{16+e}, s{64+e}, v{16+e}")
    for q in range(4): a(f"v_cvt_pk_bf16_f32 v{24+q}, v{16+2*q}, v{17+2*q}")
    for q in range(4): unpack(a, 16 + 2*q, 17 + 2*q, 24 + q)
    import math, struct
    f2u = lambda f: struct.unpack("<I", struct.pack("<f", f))[0]
    c0 = -2.0 * math.log2(math.e) * math.sqrt(2.0 / math.pi); c1 = c0 * 0.044715
    a(f"v_mov_b32 v40, 0x{f2u(c0):08x}")
    a(f"s_mov_b32 s72, 0x{f2u(c1):08x}")
    for e in range(8): a(f"v_mul_f32 v{24+e}, v{16+e}, v{16+e}")
    for e in range(8): a(f"v_fma_f32 v{24+e}, v{24+e}, s72, v40")
    for e in range(8): a(f"v_mul_f32 v{24+e}, v{24+e}, v{16+e}")
    for e in range(8): a(f"v_exp_f32 v{24+e}, v{24+e}")
    for e in range(8): a(f"v_add_f32 v{24+e}, 1.0, v{24+e}")
    for e in range(8): a(f"v_rcp_f32 v{24+e}, v{24+e}")
    for e in range(8): a(f"v_mul_f32 v{16+e}, v{16+e}, v{24+e}")
    for q in range(4): a(f"v_cvt_pk_bf16_f32 v{24+q}, v{16+2*q}, v{17+2*q}")
    a(f"s_mul_i32 s50, s45, {224*1024}")
    a("s_lshl_b32 s51, s46, 3")
    a("s_add_u32 s51, s51, s42")
    a("s_lshl_b32 s51, s51, 10")
    a("s_add_u32 s50, s50, s51")
    a(f"s_add_u32 s50, s50, {WS_UT}")
    a("v_lshlrev_b32 v8, 4, v2")
    a("buffer_store_dwordx4 v[24:27], v8, s[24:27], s50 offen")
    stamp(a, 6)
    stamp_flush(a, 1, 7)
    a("s_endpgm")
    a.restore(snap0)
    a.label(f"L_{name}_fft")
    gen_k2_fft(a, name, ti, len(tb) * 4)
    a.label(f"L_{name}_end")
    a("s_endpgm")
    return 256

def gen_k2_fft(a, name, ti, tbytes):
    M = "v_mfma_f32_32x32x16_bf16"
    a("s_lshl_b32 s45, s43, 2")
    a("s_add_u32 s45, s45, s44")
    a("s_lshl_b32 s46, s45, 3")
    a("s_add_u32 s46, s46, s42")
    a("s_sub_u32 s47, 512, s46")
    a("s_and_b32 s47, s47, 511")
    a("v_lshlrev_b32 v3, 4, v2")
    a("s_lshl_b32 s50, s42, 10")
    dm = []
    for j in range(5):
        a(f"s_add_u32 m0, s50, {K2_TB + j*8192}")
        a(f"s_add_u32 s51, s50, {j*8192}")
        dm.append(a("buffer_load_dwordx4 v3, s[28:31], s51 offen lds"))
    PK, VD, VW, VT, VE, VO, TMP = 32, 64, 128, 160, 192, 216, 240
    VS1 = 192
    a("v_and_b32 v4, 31, v2")
    a("v_lshrrev_b32 v5, 5, v2")
    a("v_lshlrev_b32 v6, 4, v4")
    a("v_lshl_add_u32 v7, v5, 10, v6")
    a("v_cmp_eq_u32 vcc, 0, v5")
    a("s_cmp_eq_u32 s46, 0")
    a("s_cselect_b32 s48, 1, 0")
    def issue_loads():
        a("s_lshl_b32 s52, s46, 12")
        a("s_lshl_b32 s53, s47, 12")
        a("v_mov_b32 v8, s53")
        a("v_mov_b32 v9, s52")
        a("v_cndmask_b32 v8, v8, v9, vcc")
        a("v_add_u32 v8, v8, v6")
        a("s_lshl_b32 s54, s46, 13")
        a(f"s_add_u32 s54, s54, {WS_WT}")
        a("s_add_u32 s55, s54, 4096")
        a(f"s_mov_b32 s56, {WS_Z}")
        for p in range(2):
            for q in range(4):
                a(f"buffer_load_dwordx4 {vr(VW + (p*4+q)*4, 4)}, v7, s[24:27], s{54 + (q >> 1)} offen offset:{(q & 1)*2048 + p*512}")
        for c in range(4):
            for mt in range(2):
                a(f"buffer_load_dwordx4 {vr(PK + (mt*4+c)*4, 4)}, v8, s[24:27], s56 offen offset:{c*1024 + mt*512}")
    issue_loads()
    a(f"v_add_u32 v10, {K2_TB}, v3")
    stamp(a, 1)
    a.wait_tok(*dm)
    a("s_barrier")
    stamp(a, 2)
    def lds_tab(reg, nm): return a(f"ds_read_b128 {vr(reg,4)}, v10 offset:{ti[nm]*1024}")
    def load_s1():
        for c in range(4):
            lds_tab(VS1 + c * 4, f'S1re{c}'); lds_tab(VS1 + 16 + c * 4, f'S1im{c}')
    load_s1()
    for mt in range(2):
        for q in range(4): lds_tab(VT + (mt * 4 + q) * 4, f'T1_{mt}_{q}')
    a.wait_all()
    a.fence()
    a.label(f"L_{name}_fwd")
    a.reset_state()
    stamp(a, 3)
    D = lambda x, ri: VD + (x * 2 + ri) * 16
    for c in range(4):
        for mt in range(2):
            for ri in range(2):
                acc = vr(D(mt, ri), 16)
                a(f"{M} {acc}, {vr(PK + (mt*4+c)*4, 4)}, {vr(VS1 + ri*16 + c*4, 4)}, {'0' if c == 0 else acc}")
    EC = lambda x, u: VE + ('csn'.index(x) * 2 + u) * 4
    OC = lambda x, u: VO + ('csn'.index(x) * 2 + u) * 4
    def load_set(fn, t):
        for x in 'csn':
            for u in range(2): lds_tab(fn(x, u), f'{t}{x}{u}')
    load_set(EC, 'E'); load_set(OC, 'OF')
    PKR = lambda x, ri, u: PK + ((x * 2 + ri) * 2 + u) * 4
    def pack_all():
        for x in range(2):
            for ri in range(2):
                for q in range(8):
                    a(f"v_cvt_pk_bf16_f32 v{PKR(x, ri, 0) + q}, v{D(x, ri) + 2*q}, v{D(x, ri) + 2*q + 1}")
    for i in range(16):
        t0r, t0i, t1r, t1i = D(0, 0) + i, D(0, 1) + i, D(1, 0) + i, D(1, 1) + i
        w0, w1 = VT + i, VT + 16 + i
        A, B = TMP + 2 * (i & 3), TMP + 2 * (i & 3) + 1
        a(f"v_fma_mix_f32 v{A}, v{t0r}, v{w0}, 0 {MIXC}")
        a(f"v_fma_mix_f32 v{B}, v{t0i}, v{w0}, 0 {MIXC}")
        a(f"v_fma_mix_f32 v{A}, v{t0i}, v{w0}, v{A} {MIXS}")
        a(f"v_fma_mix_f32 v{B}, -v{t0r}, v{w0}, v{B} {MIXS}")
        a(f"v_fma_mix_f32 v{t0r}, v{t1r}, v{w1}, v{A} {MIXC}")
        a(f"v_fma_mix_f32 v{t0i}, v{t1i}, v{w1}, v{B} {MIXC}")
        a(f"v_fma_mix_f32 v{t0r}, v{t1i}, v{w1}, v{t0r} {MIXS}")
        a(f"v_fma_mix_f32 v{t0i}, -v{t1r}, v{w1}, v{t0i} {MIXS}")
        a(f"v_fma_f32 v{t1r}, v{A}, 2.0, -v{t0r}")
        a(f"v_fma_f32 v{t1i}, v{B}, 2.0, -v{t0i}")
    pack_all()
    def cstage(data_is_A, sets, inverse):
        for x in range(2):
            fn = sets[x]
            for u in range(2):
                for (ro, terms) in ((0, (('c', 0), ('n' if inverse else 's', 1))), (1, (('s' if inverse else 'n', 0), ('c', 1)))):
                    for ti_, (cx, ri) in enumerate(terms):
                        acc = vr(D(x, ro), 16)
                        dat = vr(PKR(x, ri, u), 4); con = vr(fn(cx, u), 4)
                        A_, B_ = (dat, con) if data_is_A else (con, dat)
                        c = '0' if (u == 0 and ti_ == 0) else acc
                        a(f"{M} {acc}, {A_}, {B_}, {c}")
    cstage(False, [EC, OC], False)
    load_set(OC, 'OI')
    for p in range(2):
        for i in range(16):
            xr, xi, w = D(p, 0) + i, D(p, 1) + i, VW + p * 16 + i
            wr, wi, t = TMP + 3 * (i & 3), TMP + 3 * (i & 3) + 1, TMP + 3 * (i & 3) + 2
            unpack(a, wr, wi, w)
            a(f"v_mul_f32 v{t}, v{xr}, v{wi}")
            a(f"v_mul_f32 v{xr}, v{xr}, v{wr}")
            a(f"v_fma_f32 v{xr}, -v{xi}, v{wi}, v{xr}")
            a(f"v_fma_f32 v{xi}, v{xi}, v{wr}, v{t}")
    a.wait_all()
    a("s_cmp_eq_u32 s48, 0")
    a.fence()
    a(f"s_cbranch_scc1 L_{name}_inv")
    a(f"v_add_u32 v11, {K2_SV}, v3")
    a("s_cmp_eq_u32 s48, 2")
    a(f"s_cbranch_scc1 L_{name}_add")
    snap = a.snapshot()
    for blk in range(16): a(f"ds_write_b128 v11, {vr(VD + blk*4, 4)} offset:{blk*1024}")
    a("s_movk_i32 s46, 256")
    a("s_movk_i32 s47, 256")
    a("s_mov_b32 s48, 2")
    issue_loads()
    load_s1()
    a.wait_all()
    a.fence()
    a(f"s_branch L_{name}_fwd")
    a.restore(snap)
    a.label(f"L_{name}_add")
    for half in range(2):
        for blk in range(8): a(f"ds_read_b128 {vr(VW + blk*4, 4)}, v11 offset:{(half*8+blk)*1024}")
        for r in range(32): a(f"v_add_f32 v{VD + half*32 + r}, v{VD + half*32 + r}, v{VW + r}")
    a("s_movk_i32 s46, 0")
    a.wait_all()
    a.fence()
    a.label(f"L_{name}_inv")
    a.reset_state()
    stamp(a, 4)
    for q in range(4): lds_tab(VT + q * 4, f'T2_{q}')
    pack_all()
    cstage(True, [EC, OC], True)
    load_set(OC, 'OF')
    for i in range(16):
        u0r, u0i, u1r, u1i = D(0, 0) + i, D(0, 1) + i, D(1, 0) + i, D(1, 1) + i
        w = VT + i
        A, B = TMP + 2 * (i & 3), TMP + 2 * (i & 3) + 1
        a(f"v_fma_mix_f32 v{A}, v{u0r}, v{w}, 0 {MIXC}")
        a(f"v_fma_mix_f32 v{B}, v{u0i}, v{w}, 0 {MIXC}")
        a(f"v_fma_mix_f32 v{A}, -v{u0i}, v{w}, v{A} {MIXS}")
        a(f"v_fma_mix_f32 v{B}, v{u0r}, v{w}, v{B} {MIXS}")
        a(f"v_fma_mix_f32 v{u0r}, v{u1r}, v{w}, v{A} {MIXC}")
        a(f"v_fma_mix_f32 v{u0i}, v{u1i}, v{w}, v{B} {MIXC}")
        a(f"v_fma_mix_f32 v{u0r}, -v{u1i}, v{w}, v{u0r} {MIXS}")
        a(f"v_fma_mix_f32 v{u0i}, v{u1r}, v{w}, v{u0i} {MIXS}")
        a(f"v_fma_f32 v{u1r}, v{A}, 2.0, -v{u0r}")
        a(f"v_fma_f32 v{u1i}, v{B}, 2.0, -v{u0i}")
    pack_all()
    cstage(False, [EC, OC], True)
    a("s_lshl_b32 s50, s42, 13")
    a("v_lshlrev_b32 v11, 10, v5")
    a("v_lshl_add_u32 v11, v4, 2, v11")
    a("v_add_u32 v11, s50, v11")
    for nt in range(2):
        for i in range(16):
            r = PK + nt * 16 + i
            a(f"v_cvt_pk_bf16_f32 v{r}, v{D(nt,0)+i}, v{D(nt,1)+i}")
            a(f"ds_write_b32 v11, v{r} offset:{K2_OX + (64*(8*(i>>2) + (i&3)) + 32*nt)*4}")
    a.wait_all()
    stamp(a, 5)
    a("s_barrier")
    stamp(a, 6)
    a("v_lshlrev_b32 v12, 2, v0")
    a("v_lshlrev_b32 v13, 4, v0")
    a("s_lshl_b32 s50, s45, 16")
    a(f"s_add_u32 s50, s50, {WS_Y1}")
    for z in range(8):
        o = K2_OX // 256 + (z >> 2) * 128 + (z & 3) * 8
        a(f"ds_read2st64_b32 {vr(64 + z*4, 2)}, v12 offset0:{o} offset1:{o+32}")
        a(f"ds_read2st64_b32 {vr(66 + z*4, 2)}, v12 offset0:{o+64} offset1:{o+96}")
    for z in range(8):
        a(f"buffer_store_dwordx4 {vr(64 + z*4, 4)}, v13, s[24:27], s50 offen")
        if z < 7: a("s_add_u32 s50, s50, 8192")
    stamp_flush(a, 1, 7)

K3_P = int(os.environ.get('K3_P', 4))
K3_BLK = 1088
K3_PART = 16 * K3_BLK
K3_RS = max(K3_P * 4096, K3_PART)
K3_AP = 4 * K3_RS
K3_LDS = K3_AP + 4 * K3_PART
def gen_k3(a, name):
    M = "v_mfma_f32_32x32x16_bf16"
    a.raw(f".p2align 8\n.type {name},@function\n{name}:")
    a.reset_state()
    a("s_cmp_ge_u32 s2, 256")
    a(f"s_cbranch_scc1 L_{name}_end")
    stamp_init(a)
    a("s_load_dwordx4 s[32:35], s[0:1], 48")
    a("s_load_dwordx2 s[36:37], s[0:1], 72")
    a("s_load_dwordx2 s[40:41], s[0:1], 88")
    a("v_lshrrev_b32 v1, 6, v0")
    a("v_and_b32 v2, 63, v0")
    a("v_readfirstlane_b32 s42, v1")
    a("s_and_b32 s43, s2, 7")
    a("s_lshr_b32 s44, s2, 3")
    a("s_and_b32 s45, s43, 1")
    a("s_lshl_b32 s45, s45, 2")
    a("s_lshr_b32 s46, s44, 3")
    a("s_add_u32 s45, s45, s46")
    a("s_lshr_b32 s46, s43, 1")
    a("s_lshl_b32 s46, s46, 3")
    a("s_and_b32 s47, s44, 7")
    a("s_add_u32 s46, s46, s47")
    a("s_and_b32 s47, s42, 3")
    srd(a, 8, 32, F * S * 2)
    srd(a, 12, 34, S * 2)
    srd(a, 16, 36, S * D * 2)
    srd(a, 24, 40, WS_BYTES)
    a("v_lshlrev_b32 v3, 4, v2")
    a("s_cmp_ge_u32 s42, 4")
    a.fence()
    a(f"s_cbranch_scc1 L_{name}_dft")
    snap = a.snapshot()
    a(f"s_mul_i32 s50, s42, {K3_RS}")
    a(f"s_mul_i32 s51, s42, {448*4096}")
    a("s_lshl_b32 s52, s46, 7")
    a("s_add_u32 s51, s51, s52")
    a(f"s_mul_i32 s52, s45, {224*1024}")
    a(f"s_mul_i32 s53, s42, {56*1024}")
    a("s_add_u32 s52, s52, s53")
    a(f"s_add_u32 s52, s52, {WS_UT}")
    vW, vA, vT0, vT1 = 4, 5, 6, 7
    lane_consts_gemm(a, vW, vA, vT0, vT1, 4096, 50, 2, 8)
    ACC, WF, AF = 16, 80, 112
    gemm_loop(a, 14, K3_P, False, vW, vA, vT0, vT1, 51, lambda sg, jj: 8 * 4096, 52, 8, 24, 50, ACC, WF, AF)
    stamp(a, 3)
    a("v_add_u32 v8, s50, v3")
    for blk in range(16):
        a(f"ds_write_b128 v8, {vr(ACC + blk*4, 4)} offset:{blk*K3_BLK}")
    a.wait_all()
    a.fence()
    a(f"s_branch L_{name}_red")
    a.restore(snap)
    a.label(f"L_{name}_dft")
    YF, GF = 80, 144
    if COOP:
        a("s_and_b32 s50, s43, 1")
        a(f"s_mul_i32 s50, s50, {4*224*1024}")
        a(f"s_mul_i32 s51, s44, {224*128}")
        a("s_add_u32 s50, s50, s51")
        a(f"s_mul_i32 s51, s47, {56*128}")
        a("s_add_u32 s50, s50, s51")
        a(f"s_add_u32 s50, s50, {WS_UT}")
        a("v_lshlrev_b32 v9, 7, v2")
        a("s_mov_b32 exec_hi, 0x00ffffff")
        a("buffer_load_dword v212, v9, s[24:27], s50 offen")
        a("s_mov_b64 exec, -1")
        a("s_lshl_b32 s50, s44, 16")
        a("s_lshr_b32 s51, s47, 1")
        a("s_lshl_b32 s51, s51, 15")
        a("s_add_u32 s50, s50, s51")
        a("s_lshr_b32 s51, s43, 1")
        a("s_lshl_b32 s51, s51, 13")
        a("s_add_u32 s50, s50, s51")
        a("s_and_b32 s51, s47, 1")
        a("s_lshl_b32 s51, s51, 12")
        a("s_add_u32 s50, s50, s51")
        a(f"s_add_u32 s50, s50, {WS_Y1}")
        a("s_mov_b32 exec_hi, 0")
        a("buffer_load_dword v213, v9, s[24:27], s50 offen")
        a("s_mov_b64 exec, -1")
    a("v_and_b32 v4, 31, v2")
    a("v_lshrrev_b32 v5, 5, v2")
    a("v_lshlrev_b32 v6, 15, v5")
    a("v_lshl_add_u32 v6, v4, 4, v6")
    a("s_lshl_b32 s50, s47, 19")
    a("s_lshl_b32 s51, s46, 10")
    a("s_add_u32 s50, s50, s51")
    a(f"s_add_u32 s50, s50, {WS_Y1}")
    for ks in range(8):
        for t in range(2):
            a(f"buffer_load_dwordx4 {vr(YF + (ks*2+t)*4, 4)}, v6, s[24:27], s50 offen offset:{t*512}")
        if ks < 7: a("s_add_u32 s50, s50, 65536")
    a("s_lshl_b32 s51, s45, 6")
    a("v_add_u32 v7, s51, v4")
    a("v_cvt_f32_u32 v8, v7")
    a("v_mul_f32 v8, 0x3b000000, v8")
    a("v_add_f32 v9, 0x3d800000, v8")
    a("s_lshl_b32 s52, s47, 6")
    a("v_lshlrev_b32 v10, 2, v5")
    a("v_add_u32 v10, s52, v10")
    a("v_cvt_f32_u32 v10, v10")
    a("v_mul_f32 v11, v8, v10")
    a("v_mul_f32 v12, v9, v10")
    a("v_mul_f32 v13, 0x40a00000, v8")
    a("v_mul_f32 v14, 0x40a00000, v9")
    ACC = 16
    for ks in range(8):
        for e in range(4):
            for mt in range(2):
                ang = 11 + mt; t0 = 208 + 2 * mt + 4 * (e & 1)
                a(f"v_cos_f32 v{t0}, v{ang}")
                a(f"v_sin_f32 v{t0+1}, v{ang}")
                if not (ks == 7 and e == 3):
                    a(f"v_add_f32 v{ang}, v{ang}, v{(13 if e == 3 else 8) + mt}")
            for mt in range(2):
                t0 = 208 + 2 * mt + 4 * (e & 1)
                a(f"v_cvt_pk_bf16_f32 v{GF + (ks*2+mt)*4 + e}, v{t0}, -v{t0+1}")
        if ks == 0:
            a("v_and_b32 v15, 1, v2")
            a("v_lshlrev_b32 v15, 31, v15")
            a("v_or_b32 v15, 0x3f003f00, v15")
            a("s_cmp_eq_u32 s47, 0")
            a("s_cselect_b32 s54, -1, 0")
            a("s_mov_b32 s55, 0")
            for mt in range(2): a(f"v_cndmask_b32 v{GF + mt*4}, v{GF + mt*4}, v15, s[54:55]")
        for mt in range(2):
            for t in range(2):
                acc = vr(ACC + (mt*2+t)*16, 16)
                a(f"{M} {acc}, {vr(GF + (ks*2+mt)*4, 4)}, {vr(YF + (ks*2+t)*4, 4)}, {'0' if ks == 0 else acc}")
    a(f"s_mul_i32 s50, s47, {K3_PART}")
    a(f"s_add_u32 s50, s50, {K3_AP}")
    stamp(a, 3)
    a("v_add_u32 v8, s50, v3")
    for blk in range(16):
        a(f"ds_write_b128 v8, {vr(ACC + blk*4, 4)} offset:{blk*K3_BLK}")
    a.wait_all()
    a.fence()
    a.label(f"L_{name}_red")
    a.reset_state()
    a("v_lshrrev_b32 v4, 3, v0")
    a("s_lshl_b32 s50, s46, 6")
    a("v_add_u32 v5, s50, v4")
    a("v_lshlrev_b32 v6, 2, v5")
    a(f"s_mov_b32 s51, {WS_G}")
    a("buffer_load_dword v10, v6, s[24:27], s51 offen")
    a("v_mov_b32 v11, 0")
    a("v_lshlrev_b32 v6, 1, v5")
    a("buffer_load_short_d16_hi v11, v6, s[12:15], 0 offen")
    a("v_and_b32 v6, 7, v0")
    a("v_lshrrev_b32 v7, 2, v6")
    a("v_lshlrev_b32 v7, 3, v7")
    a("v_and_b32 v8, 3, v6")
    a("v_add_u32 v7, v7, v8")
    a("v_lshrrev_b32 v8, 5, v4")
    a("v_lshl_add_u32 v7, v8, 2, v7")
    a(f"v_mul_u32_u24 v7, {K3_BLK}, v7")
    a("v_and_b32 v8, 31, v4")
    a("v_lshl_add_u32 v7, v8, 4, v7")
    a(f"v_add_u32 v8, {K3_AP}, v7")
    a("v_lshlrev_b32 v9, 10, v5")
    a("v_lshl_add_u32 v9, v6, 4, v9")
    a("s_lshl_b32 s52, s45, 7")
    stamp(a, 4)
    a("s_barrier")
    stamp(a, 5)
    B_, A_ = 16, 48
    for w in range(4):
        for hh in range(2):
            a(f"ds_read_b128 {vr(B_ + w*8 + hh*4, 4)}, v7 offset:{w*K3_RS + hh*512}")
    for w in range(4):
        for hh in range(2):
            a(f"ds_read_b128 {vr(A_ + w*8 + hh*4, 4)}, v8 offset:{w*K3_PART + hh*512}")
    for X in (B_, A_):
        for e in range(8): a(f"v_add_f32 v{X+e}, v{X+e}, v{X+8+e}")
        for e in range(8): a(f"v_add_f32 v{X+16+e}, v{X+16+e}, v{X+24+e}")
        for e in range(8): a(f"v_add_f32 v{X+e}, v{X+e}, v{X+16+e}")
    def rnd(X, T):
        for q in range(4): a(f"v_cvt_pk_bf16_f32 v{T+q}, v{X+2*q}, v{X+2*q+1}")
        for q in range(4): unpack(a, X + 2*q, X + 2*q + 1, T + q)
    rnd(B_, B_ + 8)
    for e in range(8): a(f"v_mul_f32 v{A_+e}, 0x36000000, v{A_+e}")
    for e in range(8): a(f"v_add_f32 v{B_+e}, v{B_+e}, v11")
    rnd(A_, A_ + 8)
    rnd(B_, B_ + 8)
    a("v_sub_f32 v12, 1.0, v10")
    a("v_cvt_pk_bf16_f32 v12, v12, v12")
    a("v_lshlrev_b32 v12, 16, v12")
    for e in range(8): a(f"v_mul_f32 v{A_+e}, v{A_+e}, v10")
    for e in range(8): a(f"v_mul_f32 v{B_+e}, v{B_+e}, v12")
    rnd(A_, A_ + 8)
    rnd(B_, B_ + 8)
    for e in range(8): a(f"v_add_f32 v{A_+e}, v{A_+e}, v{B_+e}")
    for q in range(4): a(f"v_cvt_pk_bf16_f32 v{B_+q}, v{A_+2*q}, v{A_+2*q+1}")
    a(f"buffer_store_dwordx4 {vr(B_,4)}, v9, s[16:19], s52 offen")
    stamp(a, 6)
    stamp_flush(a, 2, 7)
    a.label(f"L_{name}_end")
    a("s_endpgm")
    return 256 if STAMPS else 216

def desc(name, vg):
    acc = (vg + 3) // 4 * 4
    return f""".p2align 6
.amdhsa_kernel {name}
  .amdhsa_next_free_vgpr {vg}
  .amdhsa_next_free_sgpr 102
  .amdhsa_accum_offset {acc}
  .amdhsa_group_segment_fixed_size 0
  .amdhsa_kernarg_size 96
  .amdhsa_user_sgpr_count 2
  .amdhsa_user_sgpr_kernarg_segment_ptr 1
  .amdhsa_system_sgpr_workgroup_id_x 1
.end_amdhsa_kernel
"""
def table_text(label, dw, pad_to=None):
    s = f".p2align 8\n{label}:\n"
    for i in range(0, len(dw), 8):
        s += ".long " + ",".join(f"0x{x:x}" for x in dw[i:i+8]) + "\n"
    return s

def build(extra_empty=0):
    a = Asm()
    ks = [("k1_kernel", gen_k1, 98304), ("k2_kernel", gen_k2, K2_LDS), ("k3_kernel", gen_k3, K3_LDS)]
    head = HEADER
    order = [int(x) - 1 for x in os.environ.get("LIST", "1,2,3").split(",")]
    for n, _, lds in [ks[i] for i in order]:
        head += f"; @launch kernel={n} grid=(256,1,1) block=(512,1,1) lds={lds}\n"
    for i in range(extra_empty):
        head += f"; @launch kernel=kempty_kernel grid=(256,1,1) block=(64,1,1) lds=0\n"
    head += '.amdgcn_target "amdgcn-amd-amdhsa--gfx950"\n.text\n'
    vg = {}
    for n, fn, _ in ks:
        vg[n] = fn(a, n)
    if extra_empty:
        a.raw(".p2align 8\n.type kempty_kernel,@function\nkempty_kernel:\n    s_endpgm"); vg["kempty_kernel"] = 8
    body = a.text()
    body += table_text("K1_TABLE", table_dwords(1)[0]) + table_text("K2_TABLE", table_dwords(2)[0])
    body += '.section .rodata,"a"\n' + "".join(desc(n, v) for n, v in vg.items())
    return head + body, a.stats

if __name__ == "__main__":
    out = sys.argv[1] if len(sys.argv) > 1 else "gated_mix__spectral_gfnet__mixer_token_mlp__prompt.s"
    extra = int(sys.argv[2]) if len(sys.argv) > 2 else 0
    if len(sys.argv) > 3 and sys.argv[3] == "stamps": STAMPS = True
    if len(sys.argv) > 3 and sys.argv[3] == "dbgst": STAMPS = True; DBGST = True
    t, st = build(extra)
    open(out, "w").write(t)
    print(len(t), "bytes", st)
```

```python
import sys, os, math, struct
sys.path.insert(0, "work")
from asmlib import *
from design import *

NAME = "gated_mix__spectral_gfnet__mixer_token_mlp__prompt_kernel"
HEADER = open("gated_mix__spectral_gfnet__mixer_token_mlp__prompt.s.ref").read().split("; @launch")[0]
ENV = lambda k, d: type(d)(os.environ.get(k, d))
STAMPS = ENV("STAMPS", 0)
ST = ENV("STMOD", "sc1")
LD = ENV("LDMOD", "sc1")
PA = ENV("PA", 3)
NREG = 9 - PA
W2_EARLY = ENV("W2_EARLY", 1)
POLL_MAX = 50000
HALF_T = ENV('HALF_T', 1)
W_AFTER = ENV('W_AFTER', 1)
YSLEEP = ENV('YSLEEP', 12)
FFT_W2 = ENV('FFT_W2', 1)
PM = ENV('PM', 'sc1')
PSLEEP = ENV('PSLEEP', 2)
DFTPRIO = ENV('DFTPRIO', 0)
W2SIG = ENV('W2SIG', 12)
EARLY2 = ENV('EARLY2', 1)
NR1 = ENV('NR1', 99)
FFT_PUB_FIRST = ENV('FFT_PUB_FIRST', 0)
WS_FLG = 0xC00000
F_H, F_Z, F_U, F_Y, F_EP, F_W, F_G, F_X = 0, 8192, 16384, 32768, 40960, 49152, 57344, 65536
WS_DBG = 0x8000000
WS_BYTES = 0x10000000
MIXC = "op_sel_hi:[0,1,0]"
MIXS = "op_sel:[0,1,0] op_sel_hi:[0,1,0]"
f2u = lambda f: struct.unpack("<I", struct.pack("<f", f))[0]
SX, SWR, SWI, SGW, SWS, STB, SW1, SW2, SOUT, SB2 = 8, 12, 16, 20, 24, 28, 32, 36, 40, 44
sWAVE, sXCD, sIDX, sTAG, sN2, sC2, sDT1, sFT1, sDT2, sST2 = 48, 49, 50, 51, 52, 53, 54, 55, 56, 57
RING = 32768
AP = 4 * RING
LDS_TOTAL = 163840
FB_TB, FB_SV = 65536, 65536 + 40960

def srd(a, d, base, nbytes):
    a(f"s_mov_b32 s{d}, s{base}")
    a(f"s_and_b32 s{d+1}, s{base+1}, 0xffff")
    a(f"s_mov_b32 s{d+2}, {nbytes}")
    a(f"s_mov_b32 s{d+3}, 0x00020000")
def S4(d): return f"s[{d}:{d+3}]"
STK = ENV("STK", "start,xin,p1c,p1st,pre4,b4,loop1,ust,pre7,loop2,end").split(",")
def stamp(a, n):
    if STAMPS and n in STK:
        i = STK.index(n)
        a(f"s_memrealtime s[{80+2*i}:{81+2*i}]")
def stamp_flush(a):
    if not STAMPS: return
    a("s_waitcnt vmcnt(0)")
    stamp(a, 'end')
    a("s_waitcnt lgkmcnt(0)")
    for i in range(11): a(f"v_mov_b32 v{240+i}, s{80+2*i}")
    a("s_lshl_b32 s60, s2, 3")
    a(f"s_add_u32 s60, s60, s{sWAVE}")
    a("s_lshl_b32 s60, s60, 6")
    a(f"s_add_u32 s60, s60, {WS_DBG}")
    a("v_mov_b32 v239, 0")
    a("s_mov_b64 exec, 1")
    for q in range(3): a(f"buffer_store_dwordx4 v[{240+4*q}:{243+4*q}], v239, {S4(SWS)}, s60 offen offset:{16*q}")
    a("s_mov_b64 exec, -1")
def dpp_reduce(a, regs):
    for mod in ("quad_perm:[1,0,3,2] row_mask:0xf bank_mask:0xf", "quad_perm:[2,3,0,1] row_mask:0xf bank_mask:0xf",
                "row_half_mirror row_mask:0xf bank_mask:0xf", "row_mirror row_mask:0xf bank_mask:0xf",
                "row_bcast:15 row_mask:0xa bank_mask:0xf", "row_bcast:31 row_mask:0xc bank_mask:0xf"):
        for r in regs: a(f"v_add_f32_dpp v{r}, v{r}, v{r} {mod}")
def unpack(a, lo, hi, src):
    a(f"v_lshlrev_b32 v{lo}, 16, v{src}")
    a(f"v_and_b32 v{hi}, 0xffff0000, v{src}")
_uid = [0]
def uid(p): _uid[0] += 1; return f"L_{p}_{_uid[0]}"

def set_flag(a, off_s):
    a(f"s_add_u32 s{off_s}, s{off_s}, {WS_FLG}")
    a(f"v_mov_b32 v13, s{sTAG}")
    a("v_mov_b32 v14, 0")
    a("s_mov_b64 exec, 1")
    a(f"buffer_store_dword v13, v14, {S4(SWS)}, s{off_s} offen {PM}")
    a("s_mov_b64 exec, -1")

def poll(a, off_s, nflags, vt=13):
    L, Ld = uid("poll"), uid("polld")
    a(f"s_add_u32 s{off_s}, s{off_s}, {WS_FLG}")
    n1 = min(nflags, 64)
    a(f"v_min_u32 v{vt}, {n1-1}, v2")
    a(f"v_lshlrev_b32 v{vt}, 6, v{vt}")
    a(f"s_mov_b32 s79, {POLL_MAX}")
    if nflags > 64: a(f"s_add_u32 s78, s{off_s}, 4096")
    a.wait_all(vm=False); a.fence()
    snap_vm = list(a.vm)
    a.label(L)
    a.auto_wait = False
    a(f"buffer_load_dword v{vt+1}, v{vt}, {S4(SWS)}, s{off_s} offen {PM}")
    if nflags > 64: a(f"buffer_load_dword v{vt+2}, v{vt}, {S4(SWS)}, s78 offen {PM}")
    a("s_sub_u32 s79, s79, 1")
    a("s_waitcnt vmcnt(0)")
    a(f"v_cmp_ne_u32 vcc, s{sTAG}, v{vt+1}")
    if nflags > 64:
        a(f"v_cmp_ne_u32 s[76:77], s{sTAG}, v{vt+2}")
        a("s_nop 1")
        a("s_or_b64 vcc, vcc, s[76:77]")
    else:
        a("s_nop 1")
    a("s_cmp_eq_u64 vcc, 0")
    a(f"s_cbranch_scc1 {Ld}")
    a("s_cmp_eq_u32 s79, 0")
    a(f"s_cbranch_scc1 {Ld}")
    a(f"s_sleep {PSLEEP}")
    a(f"s_branch {L}")
    a.label(Ld)
    a.auto_wait = True
    a.reset_state()

vW0, vW1, vA, vT, vL16 = 4, 5, 6, 8, 3
ACC, WF, AF, RS = 16, 80, 112, 112 + 16 * PA
sRING, sW, sA0, sA, sROT, sSL = 58, 59, 60, 61, 74, 75
ROT = ENV('ROT', 1)
ROT2 = ENV('ROT2', 1)

def poll_pre(a, off, vt):
    a(f"v_lshlrev_b32 v{vt}, 6, v2")
    a(f"s_mov_b32 s78, {WS_FLG + off}")
    a(f"s_mov_b32 s79, {WS_FLG + off + 4096}")
    a(f"buffer_load_dword v{vt+1}, v{vt}, {S4(SWS)}, s78 offen {PM}")
    a(f"buffer_load_dword v{vt+2}, v{vt}, {S4(SWS)}, s79 offen {PM}")
def poll_fin(a, off, vt, off_s):
    L = uid("pf")
    a(f"v_cmp_ne_u32 vcc, s{sTAG}, v{vt+1}")
    a(f"v_cmp_ne_u32 s[76:77], s{sTAG}, v{vt+2}")
    a("s_or_b64 vcc, vcc, s[76:77]")
    a("s_cmp_eq_u64 vcc, 0")
    a.wait_all(); a.fence()
    a(f"s_cbranch_scc1 {L}")
    a(f"s_mov_b32 s{off_s}, {off}")
    poll(a, off_s, 128, vt=vt)
    a.label(L)
    a.reset_state()

def gpoll(a, groups, vt=(12, 13, 250, 251), sleep=None):
    L, Ld = uid("gp"), uid("gpd")
    for k, (so, n) in enumerate(groups):
        a(f"v_min_u32 v{vt[k]}, {n-1}, v2")
        a(f"v_lshlrev_b32 v{vt[k]}, 6, v{vt[k]}")
    a(f"s_mov_b32 s79, {POLL_MAX}")
    a.wait_all(vm=False); a.fence()
    a.label(L)
    a.auto_wait = False
    for k, (so, n) in enumerate(groups):
        a(f"buffer_load_dword v{vt[2+k]}, v{vt[k]}, {S4(SWS)}, s{so} offen {PM}")
    a("s_sub_u32 s79, s79, 1")
    a("s_waitcnt vmcnt(0)")
    a(f"v_cmp_ne_u32 vcc, s{sTAG}, v{vt[2]}")
    if len(groups) > 1:
        a(f"v_cmp_ne_u32 s[70:71], s{sTAG}, v{vt[3]}")
        a("s_nop 1")
        a("s_or_b64 vcc, vcc, s[70:71]")
    else:
        a("s_nop 1")
    a("s_cmp_eq_u64 vcc, 0")
    a(f"s_cbranch_scc1 {Ld}")
    a("s_cmp_eq_u32 s79, 0")
    a(f"s_cbranch_scc1 {Ld}")
    a("s_mov_b64 exec, vcc")
    a(f"s_sleep {PSLEEP if sleep is None else sleep}")
    a(f"s_branch {L}")
    a.label(Ld)
    a("s_mov_b64 exec, -1")
    a.auto_wait = True
    a.reset_state()

def wlane(a, r0, r1, rowstride, t0, t1):
    a(f"v_lshrrev_b32 v{t0}, 3, v2")
    a(f"s_mov_b32 s79, {rowstride}")
    a(f"v_mul_lo_u32 v{r0}, v{t0}, s79")
    a(f"v_bfe_u32 v{t0}, v2, 1, 2")
    a(f"v_bfe_u32 v{t1}, v2, 4, 1")
    a(f"v_xor_b32 v{t0}, v{t0}, v{t1}")
    a(f"v_lshl_add_u32 v{r0}, v{t0}, 5, v{r0}")
    a(f"v_and_b32 v{t0}, 1, v2")
    a(f"v_lshl_add_u32 v{r0}, v{t0}, 4, v{r0}")
    a(f"v_xor_b32 v{r1}, 64, v{r0}")
def gemm_lane_consts(a, rowstride):
    t0, t1 = 12, 13
    a(f"s_lshl_b32 s{sRING}, s{sWAVE}, 15")
    wlane(a, vW0, vW1, rowstride, t0, t1)
    a(f"v_lshrrev_b32 v{t1}, 4, v2")
    a(f"v_lshlrev_b32 v{vA}, 10, v{t1}")
    a(f"v_and_b32 v{t0}, 15, v2")
    a(f"v_lshl_add_u32 v{vA}, v{t0}, 4, v{vA}")
    a(f"v_lshlrev_b32 v{vT}, 10, v{t1}")
    a(f"v_bfe_u32 v{t0}, v2, 2, 2")
    a(f"v_lshl_add_u32 v{vT}, v{t0}, 7, v{vT}")
    a(f"v_bfe_u32 v{t0}, v2, 3, 2")
    a(f"v_lshl_add_u32 v{vT}, v{t0}, 5, v{vT}")
    a(f"v_and_b32 v{t0}, 3, v2")
    a(f"v_lshl_add_u32 v{vT}, v{t0}, 3, v{vT}")
    a(f"v_add_u32 v{vT}, s{sRING}, v{vT}")
    for t in range(1, 4): a(f"v_xor_b32 v{vT+t}, {32*t}, v{vT}")
    a(f"v_add_u32 v7, s{sRING}, v{vL16}")

class Gemm:
    def __init__(s, a, nslab, slots, kinds, srdW, wbase_s, jstep, sstep, w_is_A, vw=(4, 5), rot=74):
        s.vw, s.rot = vw, rot
        s.a, s.n, s.slots, s.kinds, s.srdW, s.wb, s.jstep, s.sstep, s.w_is_A = a, nslab, slots, kinds, srdW, wbase_s, jstep, sstep, w_is_A
        s.tok = {}
        s.regidx = {sg: i for i, sg in enumerate([x for x in range(nslab) if kinds[x] == 'reg'])}
    def wload(s, sig, jj):
        v = s.vw[jj % 2]
        o = []
        if jj == 0:
            o += s.actual(sig, sSL, sW) + [f"s_mul_i32 s{sSL}, s{sSL}, {s.sstep}", f"s_add_u32 s{sSL}, s{sSL}, s{s.wb}"]
        o.append(f"s_add_u32 s{sW}, s{sSL}, {jj * s.jstep}")
        if s.kinds[sig] == 'reg':
            r = RS + s.regidx[sig] * 16 + jj * 4
            o.append(f"buffer_load_dwordx4 {vr(r,4)}, v{v}, {S4(s.srdW)}, s{sW} offen")
        else:
            o.append(f"s_add_u32 m0, s{sRING}, {s.slots[sig]*4096 + jj*1024}")
            o.append(f"buffer_load_dwordx4 v{v}, {S4(s.srdW)}, s{sW} offen lds")
        return o
    def actual(s, sig, d, tmp):
        o = [f"s_add_u32 s{d}, s{s.rot}, {sig}"]
        if s.n == 16: o.append(f"s_and_b32 s{d}, s{d}, 15")
        else: o += [f"s_sub_u32 s{tmp}, s{d}, {s.n}", f"s_min_u32 s{d}, s{d}, s{tmp}"]
        return o
    def emit_w(s, sig, jjs=range(4)):
        if s.w_is_A: stamp(s.a, f"w{sig}")
        for jj in jjs:
            for l in s.wload(sig, jj):
                ins = s.a(l)
                if 'lds' in l and 'buffer' in l: s.tok.setdefault(sig, []).append(ins)
    def aload(s, sig, mt):
        r = AF + (sig % PA) * 16 + mt * 4
        o = []
        if mt == 0: o += s.actual(sig, sA, 73) + [f"s_lshl_b32 s{sA}, s{sA}, 12", f"s_add_u32 s{sA}, s{sA}, s{sA0}"]
        o.append(f"buffer_load_dwordx4 {vr(r,4)}, v{vA}, {S4(SWS)}, s{sA} offen offset:{mt*256} {LD}")
        return o
    def trreads(s, sig):
        out = []
        for t in range(4):
            for u in range(2):
                r = WF + (sig & 1) * 16 + t * 4 + 2 * u
                out.append(f"ds_read_b64_tr_b16 {vr(r,2)}, v{vT+t} offset:{s.slots[sig]*4096 + u*512}")
        return out
    def run(s, extra=None, drain_first=False):
        a = s.a; M = "v_mfma_f32_16x16x32_bf16"
        for sig in range(min(PA, s.n)):
            for mt in range(4):
                for l in s.aload(sig, mt): a(l)
        if drain_first: a.wait_tok(a.vm[0])
        a.wait_tok(*s.tok.get(0, []))
        rt = {0: [a(l) for l in s.trreads(0)]}
        wr = {}
        for sig in range(s.n):
            stamp(a, f"g{1 if s.w_is_A else 2}_{sig}")
            nxt = [x for x in range(sig + 1, s.n) if s.slots[x] == s.slots[sig] and s.kinds[x] != 'pre']
            fill = nxt[0] if nxt else None
            groups = [[] for _ in range(16)]
            trn = s.trreads(sig + 1) if sig + 1 < s.n else []
            for i, l in enumerate(trn): groups[6 + i].append(('tr', l))
            if fill is not None:
                for jj in range(4):
                    if s.kinds[fill] == 'reg':
                        r = RS + s.regidx[fill] * 16 + jj * 4
                        groups[jj].append(('wr', f"ds_write_b128 v7, {vr(r,4)} offset:{s.slots[fill]*4096 + jj*1024}"))
                    else:
                        groups[jj].append(('dma', jj))
            if sig + PA < s.n:
                for mt in range(4): groups[12 + mt].append(('act', mt))
            ex = extra(sig) if extra else []
            for i, g in enumerate(ex): groups[min(15, 1 + i * 14 // max(1, len(ex)))].append(('ex', g))
            if fill is not None or ex: a.wait_tok(*rt[sig])
            rt[sig + 1] = []
            k = 0
            for t in range(4):
                for mt in range(4):
                    wf = vr(WF + (sig & 1) * 16 + t * 4, 4); af = vr(AF + (sig % PA) * 16 + mt * 4, 4)
                    if s.w_is_A: acc = vr(ACC + (t * 4 + mt) * 4, 4); A_, B_ = wf, af
                    else:        acc = vr(ACC + (mt * 4 + t) * 4, 4); A_, B_ = af, wf
                    a(f"{M} {acc}, {A_}, {B_}, {'0' if sig == 0 else acc}")
                    for kind, x in groups[k]:
                        if kind == 'tr':
                            if not rt[sig + 1]: a.wait_tok(*s.tok.get(sig + 1, []), *wr.get(sig + 1, []))
                            rt[sig + 1].append(a(x))
                        elif kind == 'wr': wr.setdefault(fill, []).append(a(x))
                        elif kind == 'dma': s.emit_w(fill, [x])
                        elif kind == 'act':
                            for l in s.aload(sig + PA, x): a(l)
                        elif kind == 'ex': x()
                    k += 1

P1_EX, P1_GX, CNT, P1_TB = AP, AP + 16384, AP + 20480, AP + 21504
P1_XR = P1_EX
P1_WR, P1_WI = 0, 32768
LX, LF, LP, LGW = 16, 32, 64, 96
def hbar(a, cnt, target):
    a.wait_all(vm=False)
    a(f"v_mov_b32 v12, {CNT + 4*cnt}")
    a("v_mov_b32 v13, 1")
    a("s_mov_b64 exec, 1")
    a("ds_add_u32 v12, v13")
    a("s_mov_b64 exec, -1")
    wait_word(a, 12, target, sleep=0)

def phase1_ln(a):
    F = lambda r, e: LF + 8 * r + e
    P = lambda r, e: LP + 8 * r + e
    R = range(4)
    a(f"buffer_load_dwordx4 {vr(LGW,4)}, v3, {S4(SGW)}, 0 offen")
    stamp(a, 'ea0')
    a("s_barrier")
    a("v_mov_b32 v108, 0x3b000000")
    a("v_lshlrev_b32 v11, 5, v2")
    a("v_add_u32 v11, s64, v11")
    a("v_and_b32 v4, 255, v0")
    a("v_lshlrev_b32 v4, 2, v4")
    a(f"v_add_u32 v4, {P1_EX}, v4")
    a(f"s_lshl_b32 s72, s{sC2}, 6")
    a(f"s_add_u32 s72, s72, s{sN2}")
    a("s_lshl_b32 s72, s72, 6")
    a("s_lshl_b32 s70, s72, 4")
    a(f"s_lshl_b32 s71, s{sC2}, 16")
    a("s_add_u32 s70, s70, s71")
    a(f"s_and_b32 s71, s{sWAVE}, 3")
    a(f"s_lshl_b32 s71, s71, 18")
    a("s_add_u32 s70, s70, s71")
    if WS_HT: a(f"s_add_u32 s70, s70, {WS_HT}")
    if F_H: a(f"s_add_u32 s72, s72, {F_H}")
    S_, T_, M_, V_ = 100, 104, 112, 116
    for r in R:
        for q in range(4): unpack(a, F(r, 2*q), F(r, 2*q+1), LX + 4*r + q)
        if r == 0: stamp(a, 'xin')
        a(f"v_add_f32 v{S_+r}, v{F(r,0)}, v{F(r,1)}")
        a(f"v_add_f32 v{T_+r}, v{F(r,2)}, v{F(r,3)}")
        for e in (4, 6):
            a(f"v_add_f32 v{S_+r}, v{S_+r}, v{F(r,e)}")
            a(f"v_add_f32 v{T_+r}, v{T_+r}, v{F(r,e+1)}")
        a(f"v_add_f32 v{S_+r}, v{S_+r}, v{T_+r}")
    dpp_reduce(a, [S_ + r for r in R])
    for r in R: a(f"v_readlane_b32 s{64+r}, v{S_+r}, 63")
    for r in R: a(f"v_mul_f32 v{M_+r}, s{64+r}, v108")
    for e in range(8):
        for r in R: a(f"v_sub_f32 v{P(r,e)}, v{F(r,e)}, v{M_+r}")
        for r in R:
            if e == 0: a(f"v_mul_f32 v{S_+r}, v{P(r,e)}, v{P(r,e)}")
            else: a(f"v_fmac_f32 v{S_+r}, v{P(r,e)}, v{P(r,e)}")
    def rnd4(X):
        for p in range(2): a(f"v_cvt_pk_bf16_f32 v{T_+p}, v{X+2*p}, v{X+2*p+1}")
        for p in range(2): unpack(a, X + 2*p, X + 2*p + 1, T_ + p)
    rnd4(M_)
    dpp_reduce(a, [S_ + r for r in R])
    for r in R: a(f"v_readlane_b32 s{64+r}, v{S_+r}, 63")
    sub = [f"v_sub_f32 v{P(r,e)}, v{F(r,e)}, v{M_+r}" for e in range(8) for r in R]
    cv = [f"v_cvt_pk_bf16_f32 v{120 + 8*p + e}, v{P(2*p,e)}, v{P(2*p+1,e)}" for e in range(8) for p in range(2)]
    for l in sub[:4]: a(l)
    for r in R: a(f"v_mul_f32 v{V_+r}, s{64+r}, v108")
    rnd4(V_)
    for r in R: a(f"v_add_f32 v{V_+r}, 0x3727c5ac, v{V_+r}")
    rnd4(V_)
    for r in R: a(f"v_sqrt_f32 v{V_+r}, v{V_+r}")
    for l in sub[4:8]: a(l)
    rnd4(V_)
    for r in R: a(f"v_rcp_f32 v{V_+r}, v{V_+r}")
    for l in sub[8:]: a(l)
    for l in cv: a(l)
    for p in range(2):
        for e in range(8): unpack(a, P(2*p, e), P(2*p+1, e), 120 + 8*p + e)
        for e in range(8):
            a(f"v_mul_f32 v{P(2*p,e)}, v{P(2*p,e)}, v{V_+2*p}")
            a(f"v_mul_f32 v{P(2*p+1,e)}, v{P(2*p+1,e)}, v{V_+2*p+1}")
        for e in range(8): a(f"v_cvt_pk_bf16_f32 v{120 + 8*p + e}, v{P(2*p,e)}, v{P(2*p+1,e)}")
        a(f"ds_write_b128 v11, {vr(120 + 8*p, 4)} offset:{2048*p}")
        a(f"ds_write_b128 v11, {vr(124 + 8*p, 4)} offset:{2048*p + 16}")
    stamp(a, 'p1c')
    hbar(a, 8, 4)
    for dh in range(2):
        for cc in range(2):
            for hh in range(2):
                o = 32 * cc + 16 * hh + 4 * dh
                a(f"ds_read2st64_b32 {vr(136 + 8*dh + 4*cc + 2*hh, 2)}, v4 offset0:{o} offset1:{o+8}")
    for dh in range(2):
        for cc in range(2):
            a(f"s_add_u32 s71, s70, {dh * (1 << 20) + cc * 65536}")
            a(f"buffer_store_dwordx4 {vr(136 + 8*dh + 4*cc, 4)}, v3, {S4(SWS)}, s71 offen {ST}")
    stamp(a, 'p1st')
    lds_inc(a, 11)
    tag_ready(a)
    arrive(a, 0, [72], 0, 4)

def lds_inc(a, cnt, t=(12, 13)):
    a(f"v_mov_b32 v{t[0]}, {CNT + 4*cnt}")
    a(f"v_mov_b32 v{t[1]}, 1")
    a("s_mov_b64 exec, 1")
    a(f"ds_add_u32 v{t[0]}, v{t[1]}")
    a("s_mov_b64 exec, -1")
def touch_w1(a, t=(12, 13)):
    a(f"v_mul_u32_u24 v{t[0]}, 37, v2")
    a(f"v_lshrrev_b32 v{t[0]}, 8, v{t[0]}")
    a(f"v_mul_u32_u24 v{t[1]}, 7, v{t[0]}")
    a(f"v_sub_u32 v{t[1]}, v2, v{t[1]}")
    a(f"v_mul_u32_u24 v{t[0]}, 3584, v{t[0]}")
    a(f"v_lshl_add_u32 v{t[0]}, v{t[1]}, 7, v{t[0]}")
    a(f"s_lshl_b32 s70, s{sIDX}, 2")
    a(f"s_add_u32 s70, s70, s{sWAVE}")
    a(f"s_mul_i32 s70, s70, {16*3584}")
    a(f"s_lshr_b32 s71, s{sXCD}, 1")
    a("s_mul_i32 s71, s71, 896")
    a("s_add_u32 s70, s70, s71")
    a(f"s_and_b32 s71, s{sXCD}, 1")
    a(f"s_mul_i32 s71, s71, {8*3584}")
    a("s_add_u32 s70, s70, s71")
    a(f"s_xor_b32 s71, s71, {8*3584}")
    a("s_add_u32 s71, s71, s70")
    a(f"s_and_b32 s72, s{sXCD}, 1")
    a(f"s_mul_i32 s72, s72, {8*3584}")
    a("s_sub_u32 s71, s71, s72")
def touch_w1_issue(a, t=(12, 13)):
    a("s_mov_b32 exec_hi, 0x00ffffff")
    a(f"buffer_load_dword v250, v{t[0]}, {S4(SW1)}, s70 offen")
    if not HALF_T: a(f"buffer_load_dword v251, v{t[0]}, {S4(SW1)}, s71 offen")
    a("s_mov_b32 exec_hi, -1")
def touch_w2(a, t=12):
    a(f"v_lshrrev_b32 v{t}, 3, v2")
    a(f"v_lshlrev_b32 v{t}, 12, v{t}")
    a(f"v_and_b32 v{t+1}, 7, v2")
    a(f"v_lshl_add_u32 v{t}, v{t+1}, 7, v{t}")
    a(f"s_lshl_b32 s70, s{sIDX}, 2")
    a(f"s_and_b32 s71, s{sWAVE}, 3")
    a("s_add_u32 s70, s70, s71")
    a(f"s_mul_i32 s70, s70, {14*4096}")
    a(f"s_lshr_b32 s71, s{sXCD}, 1")
    a("s_lshl_b32 s71, s71, 10")
    a("s_add_u32 s70, s70, s71")
    a(f"s_add_u32 s71, s70, {8*4096}")
    a(f"buffer_load_dword v250, v{t}, {S4(SW2)}, s70 offen")
    a("s_mov_b32 exec_hi, 0x0000ffff")
    a(f"buffer_load_dword v251, v{t}, {S4(SW2)}, s71 offen")
    a("s_mov_b32 exec_hi, -1")
def tag_ready(a):
    a("s_waitcnt lgkmcnt(0)")
    a(f"s_add_u32 s{sTAG}, s{sTAG}, 0x9e3779b9")

def gate(a):
    L = uid("nogate")
    a(f"s_bitcmp1_b32 s{sIDX}, 0")
    a.fence()
    a(f"s_cbranch_scc1 {L}")
    snap = a.snapshot()
    F = lambda r, e: LF + 8 * r + e
    P = lambda r, e: LP + 8 * r + e
    G, S_ = 16, 100
    R = range(4)
    for q in range(4): unpack(a, G + 2*q, G + 2*q + 1, LGW + q)
    for e in range(8):
        for r in R: a(f"v_mul_f32 v{P(r,e)}, v{F(r,e)}, v{G+e}")
    for p in range(2):
        for e in range(8):
            t = 24 + (e & 3)
            a(f"v_cvt_pk_bf16_f32 v{t}, v{P(2*p,e)}, v{P(2*p+1,e)}")
            unpack(a, P(2*p, e), P(2*p+1, e), t)
    for r in R: a(f"v_add_f32 v{S_+r}, v{P(r,0)}, v{P(r,1)}")
    for e in range(2, 8):
        for r in R: a(f"v_add_f32 v{S_+r}, v{S_+r}, v{P(r,e)}")
    dpp_reduce(a, [S_ + r for r in R])
    def rnd4(X):
        for p in range(2): a(f"v_cvt_pk_bf16_f32 v{104+p}, v{X+2*p}, v{X+2*p+1}")
        for p in range(2): unpack(a, X + 2*p, X + 2*p + 1, 104 + p)
    rnd4(S_)
    for r in R: a(f"v_mul_f32 v{S_+r}, 0xbfb8aa3b, v{S_+r}")
    for r in R: a(f"v_exp_f32 v{S_+r}, v{S_+r}")
    for r in R: a(f"v_add_f32 v{S_+r}, 1.0, v{S_+r}")
    for r in R: a(f"v_rcp_f32 v{S_+r}, v{S_+r}")
    rnd4(S_)
    a(f"s_lshl_b32 s73, s{sC2}, 6")
    a(f"s_add_u32 s73, s73, s{sN2}")
    a("s_lshl_b32 s73, s73, 6")
    a(f"s_and_b32 s79, s{sWAVE}, 3")
    a("s_lshl_b32 s79, s79, 4")
    a("s_add_u32 s78, s73, s79")
    a(f"s_add_u32 s78, s78, {WS_G}")
    a(f"s_add_u32 s73, s73, {F_G}")
    a("v_mov_b32 v104, 0")
    a("s_mov_b32 exec_lo, 0")
    a("s_mov_b32 exec_hi, 0x80000000")
    a(f"buffer_store_dwordx4 {vr(S_,4)}, v104, {S4(SWS)}, s78 offen {ST}")
    a("s_mov_b64 exec, -1")
    arrive(a, 2, [73], 0, 4, lowprio=True)
    a.fence()
    a.label(L)
    a.restore(snap)

def arrive(a, cnt, flags, nvm, nw, t=(12, 13), st=78, lowprio=False):
    L = uid("arr")
    a(f"s_waitcnt vmcnt({nvm})")
    stamp(a, f'arr{cnt}')
    a(f"v_mov_b32 v{t[0]}, {CNT + 4*cnt}")
    a(f"v_mov_b32 v{t[1]}, 1")
    a("s_mov_b64 exec, 1")
    a(f"ds_add_rtn_u32 v{t[1]}, v{t[0]}, v{t[1]}")
    a("s_mov_b64 exec, -1")
    a("s_waitcnt lgkmcnt(0)")
    a(f"v_readfirstlane_b32 s{st}, v{t[1]}")
    a(f"s_cmp_lg_u32 s{st}, {nw-1}")
    a(f"s_cbranch_scc1 {L}")
    snap = a.snapshot()
    if lowprio: a("s_setprio 3")
    a(f"v_mov_b32 v{t[1]}, s{sTAG}")
    a(f"v_mov_b32 v{t[0]}, {WS_FLG}")
    a("s_mov_b64 exec, 1")
    for f in flags: a(f"buffer_store_dword v{t[1]}, v{t[0]}, {S4(SWS)}, s{f} offen {PM}")
    a("s_mov_b64 exec, -1")
    if lowprio: a("s_setprio 0")
    a.fence()
    a.label(L)
    a.restore(snap)
def wait_word(a, vaddr, val, tv=13, st=78, sleep=2):
    L, Ld = uid("wc"), uid("wcd")
    a("s_mov_b32 s79, 200000")
    a.wait_all(vm=False); a.fence()
    a.label(L)
    a.auto_wait = False
    a(f"ds_read_b32 v{tv}, v{vaddr}")
    a("s_waitcnt lgkmcnt(0)")
    a(f"v_readfirstlane_b32 s{st}, v{tv}")
    a(f"s_cmp_ge_u32 s{st}, {val}")
    a(f"s_cbranch_scc1 {Ld}")
    a("s_sub_u32 s79, s79, 1")
    a(f"s_cbranch_scc1 {Ld}")
    if sleep: a(f"s_sleep {sleep}")
    a(f"s_branch {L}")
    a.label(Ld)
    a.auto_wait = True

def phase1_fft(a, ti):
    M = "v_mfma_f32_16x16x32_bf16"
    a(f"s_and_b32 s65, s{sWAVE}, 3")
    a("s_lshl_b32 s66, s65, 10")
    for j in range(3):
        a(f"s_add_u32 s67, s66, {4096*j}")
        if j == 2: a("s_min_u32 s67, s67, 9216")
        a(f"s_add_u32 m0, s67, {P1_TB}")
        d2 = a(f"buffer_load_dwordx4 v3, {S4(STB)}, s67 offen lds")
    if W_AFTER:
        stamp(a, 'ea0')
        a("s_barrier")
    a("s_lshr_b32 s66, s62, 10")
    a("s_mul_i32 s67, s66, 514")
    a("s_and_b32 s67, s67, 0xfffffff0")
    a("s_mul_i32 s69, s65, 2112")
    a("s_mov_b32 exec_hi, 1")
    for r in range(4):
        for (srd_, base) in ((SWR, P1_WR), (SWI, P1_WI)):
            a(f"s_add_u32 m0, s69, {base + 528*r}")
            a(f"buffer_load_dwordx4 v3, {S4(srd_)}, s67 offen lds")
        if r < 3: a(f"s_add_u32 s67, s67, {64*514}")
    a("s_mov_b32 exec_hi, -1")
    a("v_and_b32 v9, 15, v2")
    w_special_pre(a)
    if not W_AFTER:
        stamp(a, 'ea0')
        a("s_barrier")
    a("v_lshrrev_b32 v4, 4, v2")
    a("v_lshlrev_b32 v5, 9, v4")
    a("v_lshlrev_b32 v4, 8, v4")
    a("v_lshl_add_u32 v4, v9, 3, v4")
    a("v_add_u32 v4, s64, v4")
    a("v_lshl_add_u32 v5, v9, 2, v5")
    a("v_add_u32 v5, s64, v5")
    a(f"v_add_u32 v14, {P1_TB}, v3")
    a("v_bfe_u32 v7, v0, 2, 6")
    a("v_and_b32 v6, 3, v2")
    a("v_and_b32 v15, 1, v2")
    a("v_cmp_eq_u32 vcc, 1, v15")
    a("v_bfe_u32 v10, v2, 1, 1")
    a("v_lshlrev_b32 v10, 13, v10")
    a(f"v_add_u32 v10, {P1_EX}, v10")
    for z in range(4):
        a(f"v_add_u32 v11, {64*z}, v7")
        a(f"v_sub_u32 v12, {512 - 64*z}, v7")
        if z == 0:
            a("v_mov_b32 v13, 256")
            a("v_cmp_eq_u32 s[76:77], 0, v7")
            a("v_cndmask_b32 v12, v12, v13, s[76:77]")
        a("v_cndmask_b32 v11, v11, v12, vcc")
        a(f"v_lshl_add_u32 v{136+z}, v11, 2, v10")
    a("v_lshlrev_b32 v8, 13, v7")
    a("v_lshl_add_u32 v8, v6, 4, v8")
    a(f"s_lshl_b32 s72, s{sC2}, 6")
    a(f"s_add_u32 s72, s72, s{sN2}")
    a("s_lshl_b32 s72, s72, 6")
    a(f"s_add_u32 s70, s72, {WS_Z}")
    a(f"s_add_u32 s72, s72, {F_Z}")
    a.wait_tok(d2)
    stamp(a, 'xin')
    hbar(a, 9, 4)
    AF_ = lambda p, r: 56 + 8 * p + 4 * r
    for p in range(2):
        for r in range(2):
            for u in range(2):
                a(f"ds_read_b64_tr_b16 {vr(AF_(p, r) + 2*u, 2)}, v4 offset:{2048*p + 1024*r + 128*u}")
        if p == 0:
            T = {}
            for n in ['COS0', 'NSIN0', 'SIN0', 'COS1', 'NSIN1', 'SIN1']:
                idx = ti[n]; r_ = 16 + 4 * idx; T[n] = r_
                a(f"ds_read_b128 {vr(r_,4)}, v14 offset:{idx*1024}")
    for n in ['TW0', 'TW1', 'ARE', 'AIM']:
        idx = ti[n]; r_ = 16 + 4 * idx; T[n] = r_
        a(f"ds_read_b128 {vr(r_,4)}, v14 offset:{idx*1024}")
    TR = lambda p, jh, x: 72 + 16 * p + 8 * jh + (0 if x == 're' else 4)
    for p in range(2):
        for jh in range(2):
            a(f"{M} {vr(TR(p,jh,'re'),4)}, {vr(AF_(p,0),4)}, {vr(T[f'COS{jh}'],4)}, 0")
            a(f"{M} {vr(TR(p,jh,'im'),4)}, {vr(AF_(p,0),4)}, {vr(T[f'NSIN{jh}'],4)}, 0")
            a(f"{M} {vr(TR(p,jh,'re'),4)}, {vr(AF_(p,1),4)}, {vr(T[f'SIN{jh}'],4)}, {vr(TR(p,jh,'re'),4)}")
            a(f"{M} {vr(TR(p,jh,'im'),4)}, {vr(AF_(p,1),4)}, {vr(T[f'COS{jh}'],4)}, {vr(TR(p,jh,'im'),4)}")
    for p in range(2):
        for jh in range(2):
            o = 120 + 8 * jh
            for i in range(4):
                tw = T[f'TW{jh}'] + i; re = TR(p, jh, 're') + i; im = TR(p, jh, 'im') + i
                a(f"v_fma_mix_f32 v{o+i}, v{re}, v{tw}, 0 {MIXC}")
                a(f"v_fma_mix_f32 v{o+4+i}, v{im}, v{tw}, 0 {MIXC}")
                a(f"v_fma_mix_f32 v{o+i}, v{im}, v{tw}, v{o+i} {MIXS}")
                a(f"v_fma_mix_f32 v{o+4+i}, -v{re}, v{tw}, v{o+4+i} {MIXS}")
            B = 104 + 8 * p + 4 * jh
            for q in range(4): a(f"v_cvt_pk_bf16_f32 v{B+q}, v{o+2*q}, v{o+2*q+1}")
            a(f"{M} {vr(TR(p,jh,'re'),4)}, {vr(T['ARE'],4)}, {vr(B,4)}, 0")
            a(f"{M} {vr(TR(p,jh,'im'),4)}, {vr(T['AIM'],4)}, {vr(B,4)}, 0")
    for p in range(2):
        for jh in range(2):
            for i in range(4):
                r = 56 + 8 * p + 4 * jh + i
                a(f"v_cvt_pk_bf16_f32 v{r}, v{TR(p,jh,'re')+i}, v{TR(p,jh,'im')+i}")
                a(f"ds_write_b32 v5, v{r} offset:{2048*p + (16*jh + 32*i) * 4}")
    stamp(a, 'p1c')
    hbar(a, 8, 4)
    for z in range(4):
        for hh in range(2):
            a(f"ds_read2st64_b32 {vr(96 + 4*z + 2*hh, 2)}, v{136+z} offset0:{16*hh} offset1:{16*hh+8}")
    for z in range(4):
        a(f"buffer_store_dwordx4 {vr(96 + 4*z, 4)}, v8, {S4(SWS)}, s70 offen {ST}")
        if z < 3: a(f"s_add_u32 s70, s70, {64*8192}")
    stamp(a, 'p1st')
    lds_inc(a, 11)
    tag_ready(a)
    arrive(a, 0, [72], 0, 4)
    a(f"v_mov_b32 v12, {CNT}")
    wait_word(a, 12, 4, sleep=0)
    w_relayout(a)
    arrive(a, 3, [69], 0, 4)

def w_special_pre(a):
    SP = 140
    a(f"s_lshl_b32 s66, s{sC2}, 10")
    a(f"s_add_u32 s66, s66, s{sN2}")
    a("v_lshlrev_b32 v10, 6, v9")
    a("v_add_u32 v10, s66, v10")
    a("v_sub_u32 v11, 2048, v10")
    a("v_and_b32 v11, 2047, v11")
    a("v_bfe_u32 v144, v2, 4, 1")
    a("v_lshlrev_b32 v145, 9, v144")
    a("s_movk_i32 s68, 514")
    a("v_mad_u32_u24 v11, v11, s68, v145")
    for i in range(4): a(f"v_mov_b32 v{SP+i}, 0")
    a(f"s_cmp_eq_u32 s{sWAVE}, 4")
    a("s_cselect_b32 s68, 0, 0x7fffffff")
    a("s_mov_b32 exec_hi, 0")
    a(f"buffer_load_short_d16_hi v{SP+2}, v11, {S4(SWR)}, s68 offen")
    a(f"buffer_load_short_d16_hi v{SP+3}, v11, {S4(SWI)}, s68 offen")
    a("s_mov_b32 exec_hi, -1")
def w_relayout(a):
    WR, WI, SP = 16, 32, 140
    a(f"s_lshl_b32 s67, s{sN2}, 1")
    a("s_and_b32 s67, s67, 15")
    a("v_mul_u32_u24 v14, 2112, v6")
    a("v_lshl_add_u32 v14, v7, 1, v14")
    a("v_add_u32 v14, s67, v14")
    a("v_mul_u32_u24 v10, 528, v9")
    a("v_add_u32 v10, v10, v145")
    a("v_add_u32 v10, s67, v10")
    for i in range(16): a(f"v_mov_b32 v{WI+i}, 0")
    for z in range(4):
        for e in range(4):
            a(f"ds_read_u16 v{WR+4*z+e}, v14 offset:{P1_WR + e*528 + 128*z}")
            a(f"ds_read_u16_d16_hi v{WI+4*z+e}, v14 offset:{P1_WI + e*528 + 128*z}")
    a(f"ds_read_u16_d16_hi v{SP}, v10 offset:{P1_WR}")
    a(f"ds_read_u16_d16_hi v{SP+1}, v10 offset:{P1_WI}")
    a(f"s_sub_u32 s69, s72, {F_Z}")
    a(f"s_add_u32 s70, s69, {WS_WT}")
    a(f"s_add_u32 s69, s69, {F_W}")
    for i in range(16): a(f"v_or_b32 v{WR+i}, v{WR+i}, v{WI+i}")
    a.wait_all(vm=False)
    a(f"v_mov_b32 v13, {CNT + 40}")
    a("v_mov_b32 v15, 1")
    a("s_mov_b64 exec, 1")
    a("ds_add_u32 v13, v15")
    a("s_mov_b64 exec, -1")
    for z in (1, 2, 3):
        a(f"s_add_u32 s71, s70, {z*64*8192}")
        a(f"buffer_store_dwordx4 {vr(WR+4*z,4)}, v8, {S4(SWS)}, s71 offen {ST}")
    a("v_cmp_ne_u32 vcc, 0, v7")
    a("s_and_saveexec_b64 s[76:77], vcc")
    a(f"buffer_store_dwordx4 {vr(WR,4)}, v8, {S4(SWS)}, s70 offen {ST}")
    a("s_mov_b64 exec, s[76:77]")
    a(f"v_add_f32 v{SP}, v{SP}, v{SP+2}")
    a(f"v_sub_f32 v{SP+1}, v{SP+1}, v{SP+3}")
    a(f"v_mul_f32 v{SP}, 0.5, v{SP}")
    a(f"v_mul_f32 v{SP+1}, 0.5, v{SP+1}")
    a(f"v_cvt_pk_bf16_f32 v{SP+2}, v{SP}, v{SP+1}")
    a(f"v_cvt_pk_bf16_f32 v{SP+3}, -v{SP+1}, v{SP}")
    a("v_cmp_eq_u32 vcc, 1, v144")
    a(f"v_cndmask_b32 v{SP+2}, v{SP+2}, v{SP+3}, vcc")
    a("v_lshlrev_b32 v14, 21, v144")
    a("v_lshl_add_u32 v14, v9, 2, v14")
    a("s_add_u32 s68, s68, s70")
    a("s_mov_b32 exec_hi, 0")
    a(f"buffer_store_dword v{SP+2}, v14, {S4(SWS)}, s68 offen {ST}")
    a("s_mov_b32 exec_hi, -1")

def wait_vm_untracked(a, toks):
    a.wait_tok(*toks)

def part_write(a, base_v0, base_v1, off0):
    pass

def flag_g(a):
    a(f"s_lshl_b32 s73, s{sC2}, 6")
    a(f"s_add_u32 s73, s73, s{sN2}")
    a("s_lshl_b32 s73, s73, 6")
    a(f"s_and_b32 s78, s{sIDX}, 1")
    a("s_lshl_b32 s78, s78, 13")
    a("s_add_u32 s73, s73, s78")
    a(f"s_add_u32 s73, s73, {F_G}")

def gen(a):
    tb1, ti1 = table_dwords(1); tb2, ti2 = table_dwords(2)
    TB2OFF = len(tb1) * 4
    a.raw(f".globl {NAME}\n.p2align 8\n.type {NAME},@function\n{NAME}:")
    a("s_cmp_ge_u32 s2, 256")
    a("s_cbranch_scc1 L_end")
    if STAMPS:
        for i in range(11): a(f"s_mov_b64 s[{80+2*i}:{81+2*i}], 0")
        stamp(a, 'start')
    a("s_load_dwordx16 s[64:79], s[0:1], 0")
    a("s_load_dwordx4 s[4:7], s[0:1], 64")
    a("s_load_dwordx2 s[60:61], s[0:1], 88")
    a(f"s_getpc_b64 s[{STB}:{STB+1}]")
    a.raw("Lpc0:")
    a(f"s_add_u32 s{STB}, s{STB}, TABLES-Lpc0")
    a(f"s_addc_u32 s{STB+1}, s{STB+1}, 0")
    a(f"s_and_b32 s{STB+1}, s{STB+1}, 0xffff")
    a(f"s_mov_b32 s{STB+2}, {(len(tb1) + len(tb2)) * 4}")
    a(f"s_mov_b32 s{STB+3}, 0x00020000")
    a("v_lshrrev_b32 v1, 6, v0")
    a("v_and_b32 v2, 63, v0")
    a(f"v_readfirstlane_b32 s{sWAVE}, v1")
    a("v_lshlrev_b32 v3, 4, v2")
    for r in range(4, 16): a(f"v_mov_b32 v{r}, 0")
    a(f"s_and_b32 s{sXCD}, s2, 7")
    a(f"s_lshr_b32 s{sIDX}, s2, 3")
    a(f"s_lshl_b32 s{sN2}, s{sXCD}, 3")
    a("s_bfe_u32 s3, s2, 0x30004")
    a(f"s_add_u32 s{sN2}, s{sN2}, s3")
    a(f"s_lshr_b32 s{sC2}, s2, 7")
    a(f"s_max_u32 s3, s{sIDX}, 4")
    a("s_sub_u32 s3, s3, 4")
    a(f"s_mul_i32 s{sDT1}, s3, 37")
    a(f"s_lshr_b32 s{sDT1}, s{sDT1}, 8")
    a(f"s_mul_i32 s{sFT1}, s{sDT1}, 7")
    a(f"s_sub_u32 s{sFT1}, s3, s{sFT1}")
    a(f"s_lshl_b32 s58, s{sDT1}, 1")
    a(f"s_mul_i32 s59, s{sFT1}, {ROT2}")
    a("s_add_u32 s58, s58, s59")
    a(f"s_mul_i32 s58, s58, {2 * ROT}")
    a(f"s_and_b32 s3, s{sXCD}, 1")
    a("s_lshl_b32 s3, s3, 2")
    a(f"s_add_u32 s{sDT1}, s{sDT1}, s3")
    a(f"s_lshr_b32 s{sDT2}, s{sIDX}, 3")
    a(f"s_add_u32 s{sDT2}, s{sDT2}, s3")
    a(f"s_lshr_b32 s3, s{sXCD}, 1")
    a(f"s_lshl_b32 s{sST2}, s3, 3")
    a("s_mul_i32 s3, s3, 7")
    a(f"s_add_u32 s{sFT1}, s{sFT1}, s3")
    a(f"s_and_b32 s3, s{sIDX}, 7")
    a(f"s_add_u32 s{sST2}, s{sST2}, s3")
    a(f"s_lshl_b32 s62, s{sC2}, 10")
    a(f"s_add_u32 s62, s62, s{sN2}")
    a(f"s_and_b32 s59, s{sWAVE}, 3")
    a("s_lshl_b32 s63, s59, 8")
    a("s_add_u32 s62, s62, s63")
    a("s_lshl_b32 s62, s62, 10")
    a("s_lshl_b32 s59, s59, 12")
    a(f"s_add_u32 s59, s59, {P1_XR}")
    srd(a, SX, 64, S * D * 2)
    a(f"s_cmp_lt_u32 s{sWAVE}, 4")
    a("s_cbranch_scc1 L_xdone")
    a("s_setprio 3")
    a(f"s_bitcmp1_b32 s{sIDX}, 0")
    a("s_cbranch_scc1 L_xdma")
    for r in range(4):
        a(f"s_add_u32 s63, s62, {65536*r}")
        a(f"buffer_load_dwordx4 {vr(LX + 4*r, 4)}, v3, {S4(SX)}, s63 offen")
    a("s_branch L_xdone")
    snapx = a.snapshot()
    a.label("L_xdma")
    for r in range(4):
        a(f"s_add_u32 s63, s62, {65536*r}")
        a(f"s_add_u32 m0, s59, {1024*r}")
        a(f"buffer_load_dwordx4 v3, {S4(SX)}, s63 offen lds")
    a.label("L_xdone")
    a.restore(snapx)
    srd(a, SGW, 4, 1024)
    srd(a, SWR, 66, S * 514)
    srd(a, SWI, 68, S * 514)
    srd(a, SW1, 72, S * F * 2)
    srd(a, SW2, 76, S * F * 2)
    srd(a, SB2, 78, S * 2)
    srd(a, SOUT, 6, S * D * 2)
    srd(a, SWS, 60, WS_BYTES)
    a("s_mov_b64 s[4:5], s[74:75]")
    a(f"s_add_u32 s6, s60, {WS_FLG + F_EP}")
    a("s_addc_u32 s7, s61, 0")
    a(f"v_mov_b32 v100, {CNT}")
    for q in range(3): a(f"ds_write_b128 v100, v[4:7] offset:{16*q}")
    a(f"s_and_b32 s{sROT}, s58, 15")
    a("s_mov_b32 s64, s59")
    a(f"s_lshl_b32 s58, s{sFT1}, 7")
    a(f"s_lshl_b32 s63, s{sWAVE}, 4")
    a("s_add_u32 s63, s63, s58")
    a("s_add_u32 s4, s4, s63")
    a("s_addc_u32 s5, s5, 0")
    a.wait_all(vm=False)
    a(f"s_load_dword s{sTAG}, s[6:7], 0")
    a(f"s_cmp_lt_u32 s{sWAVE}, 4")
    a.fence()
    a("s_cbranch_scc1 L_gwave")
    a(f"s_bitcmp1_b32 s{sIDX}, 0")
    a("s_cbranch_scc1 L_p1fft")
    snap = a.snapshot()
    phase1_ln(a)
    a.fence()
    a("s_branch L_p1done")
    a.restore(snap)
    a.label("L_p1fft")
    phase1_fft(a, ti1)
    a.fence()
    a.label("L_p1done")
    a.reset_state()
    a(f"s_cmp_lt_u32 s{sIDX}, 4")
    a("s_cbranch_scc1 L_fft")
    a("s_branch L_g1help")
    a.label("L_gwave")
    a.reset_state()
    a(f"s_cmp_ge_u32 s{sIDX}, 4")
    a("s_cbranch_scc1 L_g1")
    touch_w1(a)
    a("s_barrier")
    touch_w1_issue(a)
    a("s_waitcnt vmcnt(0)")
    a(f"v_mov_b32 v12, {CNT + 44}")
    wait_word(a, 12, 4)
    a(f"s_lshl_b32 s70, s{sWAVE}, 10")
    for j in range(10):
        a(f"s_add_u32 m0, s70, {FB_TB + j*4096}")
        a(f"s_add_u32 s71, s70, {TB2OFF + j*4096}")
        a(f"buffer_load_dwordx4 v3, {S4(STB)}, s71 offen lds")
    if FFT_W2:
        a(f"v_mov_b32 v12, {CNT}")
        wait_word(a, 12, 4)
        touch_w2(a)
    tag_ready(a)
    a.fence()
    a("s_branch L_fft2")
    a.label("L_g1")
    a.reset_state()
    gemm_lane_consts(a, 64 * 3584)
    a(f"s_mul_i32 s62, s{sWAVE}, {512*3584}")
    a(f"s_lshl_b32 s63, s{sFT1}, 7")
    a("s_add_u32 s62, s62, s63")
    a(f"s_lshl_b32 s{sA0}, s{sDT1}, 18")
    a(f"s_lshl_b32 s63, s{sWAVE}, 16")
    a(f"s_add_u32 s{sA0}, s{sA0}, s63")
    if WS_HT: a(f"s_add_u32 s{sA0}, s{sA0}, {WS_HT}")
    slots1 = [(x + 4) % 8 for x in range(16)]
    NR = min(NREG, NR1)
    kinds1 = ['pre'] * 8 + ['reg'] * NR + ['dma'] * (8 - NR)
    g1 = Gemm(a, 16, slots1, kinds1, SW1, 62, 3584, 4 * 3584, True)
    a("s_load_dwordx4 s[64:67], s[4:5], 0")
    touch_w1(a)
    stamp(a, 'ea0')
    a("s_barrier")
    touch_w1_issue(a)
    a("s_waitcnt vmcnt(0)")
    stamp(a, 'ea1')
    a(f"v_mov_b32 v12, {CNT + 44}")
    wait_word(a, 12, 4)
    for sg in list(range(4)) + list(range(8, 8 + NR)): g1.emit_w(sg)
    a(f"s_bitcmp0_b32 s{sIDX}, 0")
    a.fence()
    a("s_cbranch_scc1 L_g1wfree")
    a(f"v_mov_b32 v12, {CNT + 40}")
    wait_word(a, 12, 4)
    a.label("L_g1wfree")
    for sg in range(4, 8): g1.emit_w(sg)
    tag_ready(a)
    stamp(a, 'pre4')
    a(f"s_lshr_b32 s72, s{sWAVE}, 1")
    a("s_lshl_b32 s72, s72, 12")
    a(f"s_add_u32 s72, s72, {WS_FLG + F_H}")
    gpoll(a, [(72, 64)], vt=(12, 13, 16, 17))
    g1.tok = {}
    stamp(a, 'b4')
    slots2 = [4, 5, 6, 7, 0, 1, 2, 3, 4, 5, 6, 7, 0, 1]
    kinds2 = ['pre'] * 8 + ['reg'] * NREG + ['dma'] * (6 - NREG)
    g2 = Gemm(a, 14, slots2, kinds2, SW2, 63, 8 * 4096, 32 * 4096, False, vw=(14, 15), rot=77)
    def w2_consts():
        wlane(a, 14, 15, 4096, 12, 13)
        a(f"s_and_b32 s76, s{sWAVE}, 3")
        a(f"s_lshl_b32 s{sRING}, s76, 15")
        a(f"s_mul_i32 s63, s76, {448*4096}")
        a(f"s_lshl_b32 s76, s{sST2}, 7")
        a("s_add_u32 s63, s63, s76")
        a(f"s_and_b32 s77, s{sDT2}, 3")
        a("s_lshl_b32 s77, s77, 1")
        a(f"s_and_b32 s76, s{sST2}, 7")
        a(f"s_mul_i32 s76, s76, {ROT2}")
        a("s_add_u32 s77, s77, s76")
        a(f"s_mul_i32 s77, s77, {7 * ROT}")
        a("s_lshr_b32 s77, s77, 2")
        a("s_sub_u32 s76, s77, 14")
        a("s_min_u32 s77, s77, s76")
    w2_consts()
    a(f"s_lshl_b32 s76, s{sWAVE}, 2")
    a(f"s_add_u32 s76, s76, {CNT + 16}")
    a("v_mov_b32 v12, s76")
    def extra(sig):
        if sig == W2SIG: return [lambda: a("ds_write_b32 v12, v12")]
        return []
    g1.run(extra)
    stamp(a, 'loop1')
    for blk in range(16): a(f"ds_write_b128 v7, {vr(ACC + blk*4, 4)} offset:{blk*1024}")
    a.wait_all(vm=False)
    a.fence()
    a("s_branch L_g1red")
    a.label("L_g1help")
    a.reset_state()
    a("s_load_dwordx4 s[64:67], s[4:5], 0")
    a("s_setprio 0")
    gate(a)
    g_gen(a)
    w2_consts()
    a(f"s_lshl_b32 s76, s{sWAVE}, 2")
    a(f"s_add_u32 s76, s76, {CNT}")
    a("v_mov_b32 v12, s76")
    wait_word(a, 12, 1)
    touch_w2(a)
    a.fence()
    a.label("L_g1red")
    a.reset_state()
    a("s_waitcnt lgkmcnt(0)")
    a("s_barrier")
    stamp(a, 'b5')
    a(f"s_lshr_b32 s68, s{sWAVE}, 1")
    a("s_lshl_b32 s68, s68, 12")
    a(f"s_and_b32 s69, s{sWAVE}, 1")
    a("s_lshl_b32 s69, s69, 9")
    a("s_add_u32 s68, s68, s69")
    a("v_lshrrev_b32 v12, 4, v2")
    a("v_lshlrev_b32 v12, 10, v12")
    a("v_and_b32 v13, 15, v2")
    a("v_lshl_add_u32 v12, v13, 4, v12")
    a("v_add_u32 v12, s68, v12")
    a(f"v_add_u32 v13, {2*RING}, v12")
    E = 16
    for w in range(4):
        for hh in range(2):
            a(f"ds_read_b128 {vr(E + w*8 + hh*4, 4)}, v{12 + (w >> 1)} offset:{(w & 1)*RING + hh*256}")
    for e in range(4):
        a(f"s_lshl_b32 s{68+2*e}, s{64+e}, 16")
        a(f"s_and_b32 s{69+2*e}, s{64+e}, 0xffff0000")
    for e in range(8): a(f"v_add_f32 v{E+e}, v{E+e}, v{E+8+e}")
    for e in range(8): a(f"v_add_f32 v{E+16+e}, v{E+16+e}, v{E+24+e}")
    for e in range(8): a(f"v_add_f32 v{E+e}, v{E+e}, v{E+16+e}")
    def rnd(X, T):
        for q in range(4): a(f"v_cvt_pk_bf16_f32 v{T+q}, v{X+2*q}, v{X+2*q+1}")
        for q in range(4): unpack(a, X + 2*q, X + 2*q + 1, T + q)
    rnd(E, E + 8)
    for e in range(8): a(f"v_add_f32 v{E+e}, s{68+e}, v{E+e}")
    rnd(E, E + 8)
    c0 = -2.0 * math.log2(math.e) * math.sqrt(2.0 / math.pi); c1 = c0 * 0.044715
    a(f"v_mov_b32 v{E+24}, 0x{f2u(c0):08x}")
    a(f"s_mov_b32 s76, 0x{f2u(c1):08x}")
    for e in range(8): a(f"v_mul_f32 v{E+8+e}, v{E+e}, v{E+e}")
    for e in range(8): a(f"v_fma_f32 v{E+8+e}, v{E+8+e}, s76, v{E+24}")
    for e in range(8): a(f"v_mul_f32 v{E+8+e}, v{E+8+e}, v{E+e}")
    for e in range(8): a(f"v_exp_f32 v{E+8+e}, v{E+8+e}")
    for e in range(8): a(f"v_add_f32 v{E+8+e}, 1.0, v{E+8+e}")
    for e in range(8): a(f"v_rcp_f32 v{E+8+e}, v{E+8+e}")
    for e in range(8): a(f"v_mul_f32 v{E+e}, v{E+e}, v{E+8+e}")
    for q in range(4): a(f"v_cvt_pk_bf16_f32 v{E+8+q}, v{E+2*q}, v{E+2*q+1}")
    a(f"s_mul_i32 s68, s{sDT1}, {224*1024}")
    a(f"s_lshl_b32 s69, s{sFT1}, 3")
    a(f"s_add_u32 s69, s69, s{sWAVE}")
    a("s_lshl_b32 s69, s69, 10")
    a("s_add_u32 s68, s68, s69")
    a(f"s_add_u32 s68, s68, {WS_UT}")
    a(f"buffer_store_dwordx4 {vr(E+8,4)}, v3, {S4(SWS)}, s68 offen {ST}")
    a(f"s_lshl_b32 s72, s{sDT1}, 5")
    a(f"s_add_u32 s72, s72, s{sFT1}")
    a("s_lshl_b32 s72, s72, 6")
    a(f"s_add_u32 s72, s72, {F_U}")
    stamp(a, 'ust')
    a("s_barrier")
    a.fence()
    a("s_branch L_pub2")
    a.label("L_fft")
    a.reset_state()
    a("s_setprio 0")
    gate(a)
    a.fence()
    a.label("L_fft2")
    a.reset_state()
    fft_block(a, ti2, TB2OFF)
    w2_consts()
    a(f"s_cmp_ge_u32 s{sWAVE}, 4")
    a("s_cbranch_scc1 L_fhelp")
    gemm_lane_consts(a, 4096)
    a.fence()
    a("s_branch L_pub2")
    a.label("L_fhelp")
    arrive(a, 1, [72], 0, 8, lowprio=True)
    g_gen(a)
    a.fence()
    a("s_branch L_g2help2")
    a.label("L_pub2")
    a.reset_state()
    a(f"s_cmp_ge_u32 s{sWAVE}, 4")
    a("s_cbranch_scc1 L_g2help")
    snap3 = a.snapshot()
    g2.tok = {}
    for sg in range(0, 2): g2.emit_w(sg)
    arrive(a, 1, [72], 8, 8, lowprio=True)
    for sg in range(2, 8 + NREG): g2.emit_w(sg)
    a(f"s_mul_i32 s{sA0}, s{sDT2}, {224*1024}")
    a(f"s_mul_i32 s61, s{sWAVE}, {56*1024}")
    a(f"s_add_u32 s{sA0}, s{sA0}, s61")
    a(f"s_add_u32 s{sA0}, s{sA0}, {WS_UT}")
    stamp(a, 'pre7')
    a("s_barrier")
    a(f"s_lshl_b32 s72, s{sDT2}, 11")
    a(f"s_mul_i32 s73, s{sWAVE}, {7*64}")
    a("s_add_u32 s72, s72, s73")
    a(f"s_add_u32 s72, s72, {WS_FLG + F_U}")
    fg_off(a, 73)
    gpoll(a, [(72, 7), (73, 64)], vt=(12, 13, 16, 17))
    g2.tok = {}
    stamp(a, 'b7')
    gb_load(a, 12, 13, 16)
    g2.run()
    stamp(a, 'loop2')
    a("v_lshrrev_b32 v4, 5, v2")
    a("v_lshlrev_b32 v4, 6, v4")
    a("v_xor_b32 v4, v4, v7")
    a("v_xor_b32 v5, 128, v4")
    for mt in range(4):
        for t in range(4):
            a(f"ds_write_b128 v{4 + (mt & 1)}, {vr(ACC + (mt*4+t)*4, 4)} offset:{8192 + (mt*4+t)*1024}")
    a("v_mov_b32 v10, v12")
    a("v_mov_b32 v11, v13")
    a.wait_all(vm=False)
    a.fence()
    a("s_branch L_g2red")
    a.restore(snap3)
    a.label("L_g2help")
    a("s_setprio 3")
    arrive(a, 1, [72], 0, 8)
    a.fence()
    a.label("L_g2help2")
    a.reset_state()
    a(f"s_setprio {DFTPRIO}")
    a("s_barrier")
    dft_part(a)
    a("s_setprio 0")
    a.fence()
    a.label("L_g2red")
    a.reset_state()
    a("v_lshrrev_b32 v4, 3, v0")
    a(f"s_lshl_b32 s68, s{sST2}, 6")
    a("v_add_u32 v5, s68, v4")
    a("v_and_b32 v6, 7, v0")
    a("v_lshrrev_b32 v7, 1, v6")
    a("v_lshlrev_b32 v7, 12, v7")
    a("v_lshrrev_b32 v8, 4, v4")
    a("v_lshl_add_u32 v7, v8, 10, v7")
    a("v_and_b32 v8, 1, v6")
    a("v_lshl_add_u32 v7, v8, 9, v7")
    a("v_and_b32 v8, 3, v6")
    a("v_lshlrev_b32 v8, 2, v8")
    a("v_and_b32 v9, 15, v4")
    a("v_xor_b32 v8, v8, v9")
    a("v_lshl_add_u32 v7, v8, 4, v7")
    a(f"v_add_u32 v8, {2*RING}, v7")
    a(f"v_add_u32 v12, {AP}, v7")
    a("v_lshlrev_b32 v9, 10, v5")
    a("v_lshl_add_u32 v9, v6, 4, v9")
    a(f"s_lshl_b32 s70, s{sDT2}, 7")
    a("s_barrier")
    stamp(a, 'b8')
    B_, A_ = 16, 48
    for w in range(4):
        for hh in range(2):
            a(f"ds_read_b128 {vr(B_ + w*8 + hh*4, 4)}, v{7 + (w >> 1)} offset:{(w & 1)*RING + 8192 + hh*256}")
    for w in range(2):
        for hh in range(2):
            a(f"ds_read_b128 {vr(A_ + w*8 + hh*4, 4)}, v12 offset:{w*16384 + hh*256}")
    for e in range(8): a(f"v_add_f32 v{B_+e}, v{B_+e}, v{B_+8+e}")
    for e in range(8): a(f"v_add_f32 v{B_+16+e}, v{B_+16+e}, v{B_+24+e}")
    for e in range(8): a(f"v_add_f32 v{B_+e}, v{B_+e}, v{B_+16+e}")
    for e in range(8): a(f"v_add_f32 v{A_+e}, v{A_+e}, v{A_+8+e}")
    rnd(B_, B_ + 8)
    for e in range(8): a(f"v_mul_f32 v{A_+e}, 0x36000000, v{A_+e}")
    for e in range(8): a(f"v_add_f32 v{B_+e}, v{B_+e}, v11")
    rnd(A_, A_ + 8)
    rnd(B_, B_ + 8)
    a("v_sub_f32 v12, 1.0, v10")
    a("v_cvt_pk_bf16_f32 v12, v12, v12")
    a("v_lshlrev_b32 v12, 16, v12")
    for e in range(8): a(f"v_mul_f32 v{A_+e}, v{A_+e}, v10")
    for e in range(8): a(f"v_mul_f32 v{B_+e}, v{B_+e}, v12")
    rnd(A_, A_ + 8)
    rnd(B_, B_ + 8)
    for e in range(8): a(f"v_add_f32 v{A_+e}, v{A_+e}, v{B_+e}")
    for q in range(4): a(f"v_cvt_pk_bf16_f32 v{B_+q}, v{A_+2*q}, v{A_+2*q+1}")
    a(f"buffer_store_dwordx4 {vr(B_,4)}, v9, {S4(SOUT)}, s70 offen")
    a(f"s_or_b32 s71, s2, s{sWAVE}")
    a("s_cmp_lg_u32 s71, 0")
    a("s_cbranch_scc1 L_noep")
    a(f"s_mov_b32 s72, {F_EP}")
    set_flag(a, 72)
    a.fence()
    a.label("L_noep")
    stamp_flush(a)
    a.label("L_end")
    a("s_endpgm")
    return np.concatenate([tb1, tb2])

def fg_off(a, d):
    a(f"s_lshr_b32 s{d}, s{sST2}, 4")
    a(f"s_lshl_b32 s{d}, s{d}, 12")
    a(f"s_add_u32 s{d}, s{d}, {WS_FLG + F_G}")
def gb_load(a, vg, vb, t):
    a(f"v_lshrrev_b32 v{t}, 3, v0")
    a(f"s_lshr_b32 s69, s{sST2}, 4")
    a("s_lshl_b32 s69, s69, 12")
    a(f"s_and_b32 s70, s{sST2}, 15")
    a("s_lshl_b32 s70, s70, 2")
    a("s_add_u32 s69, s69, s70")
    a(f"s_add_u32 s69, s69, {WS_G}")
    a(f"v_lshlrev_b32 v{t+1}, 6, v{t}")
    a(f"buffer_load_dword v{vg}, v{t+1}, {S4(SWS)}, s69 offen {LD}")
    a(f"v_mov_b32 v{vb}, 0")
    a(f"v_lshlrev_b32 v{t}, 1, v{t}")
    a(f"s_lshl_b32 s70, s{sST2}, 7")
    a(f"buffer_load_short_d16_hi v{vb}, v{t}, {S4(SB2)}, s70 offen")
YF, GF, AC = 48, 112, 16
def g_gen(a):
    a(f"s_bfe_u32 s70, s{sWAVE}, 0x10001")
    a(f"s_and_b32 s71, s{sWAVE}, 1")
    a("v_and_b32 v4, 15, v2")
    a("v_lshrrev_b32 v5, 4, v2")
    a(f"s_lshl_b32 s62, s{sDT2}, 6")
    a("v_add_u32 v7, s62, v4")
    a("v_cvt_f32_u32 v8, v7")
    a("v_mul_f32 v8, 0x3b000000, v8")
    for mt in range(1, 4): a(f"v_add_f32 v{8+mt}, 0x3d000000, v{7+mt}")
    a("s_lshl_b32 s62, s70, 7")
    a("v_lshlrev_b32 v12, 2, v5")
    a("v_add_u32 v12, s62, v12")
    a("v_cvt_f32_u32 v12, v12")
    ANG, D13 = 240, 244
    for mt in range(4):
        a(f"v_mul_f32 v{ANG+mt}, v{8+mt}, v12")
        a(f"v_mul_f32 v{D13+mt}, 0x41500000, v{8+mt}")
    for ks in range(8):
        for e in range(4):
            for mt in range(4):
                t0 = 248 + 2 * mt
                a(f"v_cos_f32 v{t0}, v{ANG+mt}")
                a(f"v_sin_f32 v{t0+1}, v{ANG+mt}")
                if not (ks == 7 and e == 3): a(f"v_add_f32 v{ANG+mt}, v{ANG+mt}, v{(D13 if e == 3 else 8) + mt}")
            for mt in range(4):
                t0 = 248 + 2 * mt
                a(f"v_cvt_pk_bf16_f32 v{GF + (ks*4+mt)*4 + e}, v{t0}, -v{t0+1}")
        if ks == 0:
            a("v_and_b32 v13, 1, v2")
            a("v_lshlrev_b32 v13, 31, v13")
            a("v_or_b32 v13, 0x3f003f00, v13")
            a("s_cmp_eq_u32 s70, 0")
            a("s_cselect_b32 s76, 0xffff, 0")
            a("s_mov_b32 s77, 0")
            for mt in range(4): a(f"v_cndmask_b32 v{GF + mt*4}, v{GF + mt*4}, v13, s[76:77]")
def dft_part(a):
    M = "v_mfma_f32_16x16x32_bf16"
    a(f"s_bfe_u32 s64, s{sWAVE}, 0x10001")
    a(f"s_and_b32 s65, s{sWAVE}, 1")
    a("v_and_b32 v4, 15, v2")
    a("v_lshrrev_b32 v5, 4, v2")
    a("v_lshlrev_b32 v6, 15, v5")
    a("v_lshl_add_u32 v6, v4, 4, v6")
    a("s_lshl_b32 s62, s64, 10")
    a(f"s_add_u32 s62, s62, {F_Y}")
    a("s_lshl_b32 s66, s64, 20")
    a(f"s_lshl_b32 s67, s{sST2}, 10")
    a("s_add_u32 s66, s66, s67")
    a("s_lshl_b32 s67, s65, 9")
    a("s_add_u32 s66, s66, s67")
    a(f"s_add_u32 s66, s66, {WS_Y1}")
    a(f"s_add_u32 s62, s62, {WS_FLG}")
    fg_off(a, 63)
    gpoll(a, [(62, 16), (63, 64)], vt=(12, 13, 14, 15), sleep=YSLEEP)
    stamp(a, 'loop2')
    gb_load(a, 10, 11, 12)
    for ks in range(8):
        for t in range(2):
            a(f"buffer_load_dwordx4 {vr(YF + (ks*2+t)*4, 4)}, v6, {S4(SWS)}, s66 offen offset:{t*256} {LD}")
        if ks < 7: a("s_add_u32 s66, s66, 131072")
    for ks in range(8):
        for mt in range(4):
            for t in range(2):
                acc = vr(AC + (mt*2+t)*4, 4)
                a(f"{M} {acc}, {vr(GF + (ks*4+mt)*4, 4)}, {vr(YF + (ks*2+t)*4, 4)}, {'0' if ks == 0 else acc}")
    a("s_lshl_b32 s66, s64, 14")
    a("s_lshl_b32 s67, s65, 11")
    a("s_add_u32 s66, s66, s67")
    a(f"s_add_u32 s66, s66, {AP}")
    a("v_lshrrev_b32 v12, 5, v2")
    a("v_lshlrev_b32 v12, 6, v12")
    a("v_xor_b32 v12, v12, v3")
    a("v_add_u32 v12, s66, v12")
    a("v_xor_b32 v13, 128, v12")
    for mt in range(4):
        for t in range(2):
            a(f"ds_write_b128 v{12 + (mt & 1)}, {vr(AC + (mt*2+t)*4, 4)} offset:{(mt*4+t)*1024}")
    a.wait_all()

def fft_block(a, ti, tboff):
    M = "v_mfma_f32_32x32x16_bf16"
    a(f"s_lshl_b32 s62, s{sXCD}, 2")
    a(f"s_add_u32 s62, s62, s{sIDX}")
    a("s_lshl_b32 s63, s62, 3")
    a(f"s_add_u32 s63, s63, s{sWAVE}")
    PK, VD, VW, VT, VE, VO, TMP = 32, 64, 128, 160, 192, 216, 240
    VS1 = 192
    a("v_and_b32 v4, 31, v2")
    a("v_lshrrev_b32 v5, 5, v2")
    a(f"s_lshl_b32 s66, s{sWAVE}, 13")
    a("v_lshrrev_b32 v6, 4, v2")
    a("v_xor_b32 v6, v6, v2")
    a("v_and_b32 v6, 3, v6")
    a("v_lshlrev_b32 v6, 4, v6")
    a("v_lshrrev_b32 v7, 2, v2")
    a("v_lshl_add_u32 v6, v7, 6, v6")
    a("v_bfe_u32 v7, v2, 2, 2")
    a("v_xor_b32 v8, v7, v5")
    a("v_lshlrev_b32 v8, 4, v8")
    a("v_lshl_add_u32 v8, v4, 6, v8")
    a("v_add_u32 v8, s66, v8")
    a("v_xor_b32 v9, 32, v8")
    a("s_cmp_eq_u32 s63, 0")
    a("s_cselect_b32 s67, 1, 0")
    a("v_lshlrev_b32 v12, 4, v5")
    a("v_mul_u32_u24 v12, s67, v12")
    a("v_xor_b32 v14, v12, v8")
    a("v_xor_b32 v15, 32, v14")
    a(f"v_add_u32 v10, {FB_TB}, v3")
    a(f"s_cmp_lg_u32 s{sWAVE}, 4")
    a.fence()
    a("s_cbranch_scc1 L_fnopoll")
    a(f"s_mov_b32 s68, {F_Z}")
    poll(a, 68, 128, vt=20)
    a.label("L_fnopoll")
    a.reset_state()
    a("s_waitcnt vmcnt(0)")
    stamp(a, 'pre4')
    a("s_barrier")
    stamp(a, 'b4')
    def dma8(base, ks):
        a(f"s_lshl_b32 s68, s{ks}, 13")
        a(f"s_add_u32 s68, s68, {base}")
        t = []
        for j in range(8):
            a(f"s_add_u32 m0, s66, {j*1024}")
            t.append(a(f"buffer_load_dwordx4 v6, {S4(SWS)}, s68 offen {LD} lds"))
            if j < 7: a("s_add_u32 s68, s68, 1024")
        return t
    def lds_tab(reg, nm): return a(f"ds_read_b128 {vr(reg,4)}, v10 offset:{ti[nm]*1024}")
    def load_s1():
        for c in range(4):
            lds_tab(VS1 + c * 4, f'S1re{c}'); lds_tab(VS1 + 16 + c * 4, f'S1im{c}')
    a("s_mov_b32 s69, s63")
    tz = dma8(WS_Z, 63)
    poll_pre(a, F_W, 20)
    load_s1()
    for mt in range(2):
        for q in range(4): lds_tab(VT + (mt * 4 + q) * 4, f'T1_{mt}_{q}')
    a.wait_all()
    a.fence()
    a.label("L_fwd")
    a.reset_state()
    for c in range(4):
        for mt in range(2):
            a(f"ds_read_b128 {vr(PK + (mt*4+c)*4, 4)}, v{14 + (c & 1)} offset:{(c >> 1)*4096 + mt*2048}")
    poll_fin(a, F_W, 20, 68)
    tw = dma8(WS_WT, 69)
    D = lambda x, ri: VD + (x * 2 + ri) * 16
    for c in range(4):
        for mt in range(2):
            for ri in range(2):
                acc = vr(D(mt, ri), 16)
                a(f"{M} {acc}, {vr(PK + (mt*4+c)*4, 4)}, {vr(VS1 + ri*16 + c*4, 4)}, {'0' if c == 0 else acc}")
    EC = lambda x, u: VE + ('csn'.index(x) * 2 + u) * 4
    OC = lambda x, u: VO + ('csn'.index(x) * 2 + u) * 4
    def load_set(fn, t):
        for x in 'csn':
            for u in range(2): lds_tab(fn(x, u), f'{t}{x}{u}')
    load_set(EC, 'E'); load_set(OC, 'OF')
    PKR = lambda x, ri, u: PK + ((x * 2 + ri) * 2 + u) * 4
    def pack_all():
        for x in range(2):
            for ri in range(2):
                for q in range(8):
                    a(f"v_cvt_pk_bf16_f32 v{PKR(x, ri, 0) + q}, v{D(x, ri) + 2*q}, v{D(x, ri) + 2*q + 1}")
    for i in range(16):
        t0r, t0i, t1r, t1i = D(0, 0) + i, D(0, 1) + i, D(1, 0) + i, D(1, 1) + i
        w0, w1 = VT + i, VT + 16 + i
        A, B = TMP + 2 * (i & 3), TMP + 2 * (i & 3) + 1
        a(f"v_fma_mix_f32 v{A}, v{t0r}, v{w0}, 0 {MIXC}")
        a(f"v_fma_mix_f32 v{B}, v{t0i}, v{w0}, 0 {MIXC}")
        a(f"v_fma_mix_f32 v{A}, v{t0i}, v{w0}, v{A} {MIXS}")
        a(f"v_fma_mix_f32 v{B}, -v{t0r}, v{w0}, v{B} {MIXS}")
        a(f"v_fma_mix_f32 v{t0r}, v{t1r}, v{w1}, v{A} {MIXC}")
        a(f"v_fma_mix_f32 v{t0i}, v{t1i}, v{w1}, v{B} {MIXC}")
        a(f"v_fma_mix_f32 v{t0r}, v{t1i}, v{w1}, v{t0r} {MIXS}")
        a(f"v_fma_mix_f32 v{t0i}, -v{t1r}, v{w1}, v{t0i} {MIXS}")
        a(f"v_fma_f32 v{t1r}, v{A}, 2.0, -v{t0r}")
        a(f"v_fma_f32 v{t1i}, v{B}, 2.0, -v{t0i}")
    pack_all()
    def cstage(data_is_A, sets, inverse):
        for x in range(2):
            fn = sets[x]
            for u in range(2):
                for (ro, terms) in ((0, (('c', 0), ('n' if inverse else 's', 1))), (1, (('s' if inverse else 'n', 0), ('c', 1)))):
                    for ti_, (cx, ri) in enumerate(terms):
                        acc = vr(D(x, ro), 16)
                        dat = vr(PKR(x, ri, u), 4); con = vr(fn(cx, u), 4)
                        A_, B_ = (dat, con) if data_is_A else (con, dat)
                        a(f"{M} {acc}, {A_}, {B_}, {'0' if (u == 0 and ti_ == 0) else acc}")
    a.wait_tok(*tw)
    for p in range(2):
        for q in range(4):
            a(f"ds_read_b128 {vr(VW + (p*4+q)*4, 4)}, v{8 + (q & 1)} offset:{(q >> 1)*4096 + p*2048}")
    cstage(False, [EC, OC], False)
    load_set(OC, 'OI')
    for p in range(2):
        for i in range(16):
            xr, xi, w = D(p, 0) + i, D(p, 1) + i, VW + p * 16 + i
            wr, wi, t = TMP + 3 * (i & 3), TMP + 3 * (i & 3) + 1, TMP + 3 * (i & 3) + 2
            unpack(a, wr, wi, w)
            a(f"v_mul_f32 v{t}, v{xr}, v{wi}")
            a(f"v_mul_f32 v{xr}, v{xr}, v{wr}")
            a(f"v_fma_f32 v{xr}, -v{xi}, v{wi}, v{xr}")
            a(f"v_fma_f32 v{xi}, v{xi}, v{wr}, v{t}")
    a.wait_all()
    a("s_cmp_eq_u32 s67, 0")
    a.fence()
    a("s_cbranch_scc1 L_inv")
    a(f"v_add_u32 v11, {FB_SV}, v3")
    a("s_cmp_eq_u32 s67, 2")
    a("s_cbranch_scc1 L_add")
    snap = a.snapshot()
    for blk in range(16): a(f"ds_write_b128 v11, {vr(VD + blk*4, 4)} offset:{blk*1024}")
    a("s_movk_i32 s69, 256")
    a("s_mov_b32 s67, 2")
    a("v_xor_b32 v14, 16, v14")
    a("v_xor_b32 v15, 16, v15")
    dma8(WS_Z, 63)
    load_s1()
    a.wait_all()
    a.fence()
    a("s_branch L_fwd")
    a.restore(snap)
    a.label("L_add")
    for half in range(2):
        for blk in range(8): a(f"ds_read_b128 {vr(VW + blk*4, 4)}, v11 offset:{(half*8+blk)*1024}")
        for r in range(32): a(f"v_add_f32 v{VD + half*32 + r}, v{VD + half*32 + r}, v{VW + r}")
    a.wait_all()
    a.fence()
    a.label("L_inv")
    a.reset_state()
    stamp(a, 'loop1')
    for q in range(4): lds_tab(VT + q * 4, f'T2_{q}')
    pack_all()
    cstage(True, [EC, OC], True)
    load_set(OC, 'OF')
    for i in range(16):
        u0r, u0i, u1r, u1i = D(0, 0) + i, D(0, 1) + i, D(1, 0) + i, D(1, 1) + i
        w = VT + i
        A, B = TMP + 2 * (i & 3), TMP + 2 * (i & 3) + 1
        a(f"v_fma_mix_f32 v{A}, v{u0r}, v{w}, 0 {MIXC}")
        a(f"v_fma_mix_f32 v{B}, v{u0i}, v{w}, 0 {MIXC}")
        a(f"v_fma_mix_f32 v{A}, -v{u0i}, v{w}, v{A} {MIXS}")
        a(f"v_fma_mix_f32 v{B}, v{u0r}, v{w}, v{B} {MIXS}")
        a(f"v_fma_mix_f32 v{u0r}, v{u1r}, v{w}, v{A} {MIXC}")
        a(f"v_fma_mix_f32 v{u0i}, v{u1i}, v{w}, v{B} {MIXC}")
        a(f"v_fma_mix_f32 v{u0r}, -v{u1i}, v{w}, v{u0r} {MIXS}")
        a(f"v_fma_mix_f32 v{u0i}, v{u1r}, v{w}, v{u0i} {MIXS}")
        a(f"v_fma_f32 v{u1r}, v{A}, 2.0, -v{u0r}")
        a(f"v_fma_f32 v{u1i}, v{B}, 2.0, -v{u0i}")
    pack_all()
    cstage(False, [EC, OC], True)
    a("v_lshlrev_b32 v11, 10, v5")
    a("v_lshl_add_u32 v11, v4, 2, v11")
    a("v_add_u32 v11, s66, v11")
    for nt in range(2):
        for i in range(16):
            r = PK + nt * 16 + i
            a(f"v_cvt_pk_bf16_f32 v{r}, v{D(nt,0)+i}, v{D(nt,1)+i}")
            a(f"ds_write_b32 v11, v{r} offset:{(64*(8*(i>>2) + (i&3)) + 32*nt)*4}")
    a.wait_all()
    a("s_barrier")
    a("v_lshlrev_b32 v12, 2, v0")
    a("v_lshlrev_b32 v13, 4, v0")
    a("s_lshl_b32 s68, s62, 16")
    a(f"s_add_u32 s68, s68, {WS_Y1}")
    for z in range(8):
        o = (z >> 2) * 128 + (z & 3) * 8
        a(f"ds_read2st64_b32 {vr(64 + z*4, 2)}, v12 offset0:{o} offset1:{o+32}")
        a(f"ds_read2st64_b32 {vr(66 + z*4, 2)}, v12 offset0:{o+64} offset1:{o+96}")
    for z in range(8):
        a(f"buffer_store_dwordx4 {vr(64 + z*4, 4)}, v13, {S4(SWS)}, s68 offen {ST}")
        if z < 7: a("s_add_u32 s68, s68, 8192")
    a("s_lshl_b32 s72, s62, 6")
    a(f"s_add_u32 s72, s72, {F_Y}")
    stamp(a, 'ust')
    a("s_barrier")
    a.fence()

def build():
    a = Asm()
    head = HEADER + (f"; STK {','.join(STK)}\n" if STAMPS else "") + f"; @launch grid=(256,1,1) block=(512,1,1) lds={LDS_TOTAL}\n"
    head += '.amdgcn_target "amdgcn-amd-amdhsa--gfx950"\n.text\n'
    tb = gen(a)
    body = a.text() + ".p2align 8\nTABLES:\n"
    for i in range(0, len(tb), 8):
        body += ".long " + ",".join(f"0x{x:x}" for x in tb[i:i+8]) + "\n"
    body += f""".section .rodata,"a"
.p2align 6
.amdhsa_kernel {NAME}
  .amdhsa_next_free_vgpr 256
  .amdhsa_next_free_sgpr 102
  .amdhsa_accum_offset 256
  .amdhsa_group_segment_fixed_size 0
  .amdhsa_kernarg_size 96
  .amdhsa_user_sgpr_count 2
  .amdhsa_user_sgpr_kernarg_segment_ptr 1
  .amdhsa_system_sgpr_workgroup_id_x 1
.end_amdhsa_kernel
"""
    return head + body, a.stats
if __name__ == "__main__":
    t, st = build()
    open(sys.argv[1], "w").write(t)
    print(len(t), "bytes", st)
```

```python
import numpy as np
S, D, F = 2048, 512, 1792
WS_HT = 0x000000
WS_Z  = 0x200000
WS_WT = 0x400000
WS_UT = 0x700000
WS_Y1 = 0x900000
WS_G  = 0xB00000

def bf16_bits(f):
    u = np.ascontiguousarray(f, dtype=np.float32).view(np.uint32)
    return ((u + 0x7FFF + ((u >> 16) & 1)) >> 16).astype(np.uint16)
def bf16_val(b): return (b.astype(np.uint32) << 16).view(np.float32)
def bf16r(f): return bf16_val(bf16_bits(f))

L = np.arange(64)
E8 = np.arange(8)
def cs(num, den):
    ang = 2 * np.pi * (np.asarray(num) % den) / den
    return np.cos(ang), np.sin(ang)

def mfma32(A, B, C=None):
    Am = np.zeros((32, 16)); Bm = np.zeros((16, 32))
    for e in range(8):
        Am[L & 31, 8 * (L >> 5) + e] = A[:, e]; Bm[8 * (L >> 5) + e, L & 31] = B[:, e]
    Dm = Am @ Bm
    out = np.zeros((64, 16))
    for i in range(16):
        out[:, i] = Dm[8 * (i >> 2) + 4 * (L >> 5) + (i & 3), L & 31]
    return out if C is None else out + C
def mfma16(A, B, C=None):
    Am = np.zeros((16, 32)); Bm = np.zeros((32, 16))
    for e in range(8):
        Am[L & 15, 8 * (L >> 4) + e] = A[:, e]; Bm[8 * (L >> 4) + e, L & 15] = B[:, e]
    Dm = Am @ Bm
    out = np.zeros((64, 4))
    for i in range(4):
        out[:, i] = Dm[4 * (L >> 4) + i, L & 15]
    return out if C is None else out + C

def k1_tables():
    jbp = (L & 15)[:, None]; g = (L >> 4)[:, None]; e = E8[None, :]
    fr = {}
    for jh in range(2):
        c, s = cs((8 * g + e) * (jbp + 16 * jh), 32)
        fr[f'COS{jh}'] = c; fr[f'SIN{jh}'] = s; fr[f'NSIN{jh}'] = -s
    a = 4 * g + (e & 3)
    c, s = cs(a * jbp, 16)
    fr['ARE'] = np.where(e < 4, c, s); fr['AIM'] = np.where(e < 4, -s, c)
    tw = {}
    for jh in range(2):
        i = np.arange(4)[None, :]
        c, s = cs((4 * g + i) * (jbp + 16 * jh), 512)
        tw[f'TW{jh}'] = (c, s)
    return fr, tw
K1_FRAGS = ['COS0', 'COS1', 'SIN0', 'SIN1', 'NSIN0', 'NSIN1', 'ARE', 'AIM']
K1_TWS = ['TW0', 'TW1']

def pat(u, h, e):
    return 16 * u + 8 * (e >> 2) + 4 * h + (e & 3)
def dpat(h, i): return 8 * (i >> 2) + 4 * h + (i & 3)
def k2_tables():
    n = (L & 31)[:, None]; h = (L >> 5)[:, None]; e = E8[None, :]
    fr = {}
    for c in range(4):
        mu = e >> 1; reim = e & 1
        m = 4 * c + mu
        c0, s0 = cs(2 * m * n, 32); c1, s1 = cs((2 * m + 1) * n, 32)
        Ar_re, Ai_re, Br_re, Bi_re = c0 - s1, s0 + c1, c0 + s1, -s0 + c1
        Ar_im, Ai_im, Br_im, Bi_im = -s0 - c1, c0 - s1, -s0 + c1, -c0 - s1
        re = np.where(h == 0, np.where(reim == 0, Ar_re, Ai_re), np.where(reim == 0, Br_re, Bi_re)) / 2
        im = np.where(h == 0, np.where(reim == 0, Ar_im, Ai_im), np.where(reim == 0, Br_im, Bi_im)) / 2
        fr[f'S1re{c}'] = re; fr[f'S1im{c}'] = im
        fr[f'P1re{c}'] = np.where(h == 0, np.where(reim == 0, c0, c1), np.where(reim == 0, s0, s1))
        fr[f'P1im{c}'] = np.where(h == 0, np.where(reim == 0, -s0, -s1), np.where(reim == 0, c0, c1))
    for u in range(2):
        kk = pat(u, h, e)
        c, s = cs(n * kk, 32);            fr[f'Ec{u}'] = c;  fr[f'Es{u}'] = s;  fr[f'En{u}'] = -s
        c, s = cs(kk * (2 * n + 1), 64);  fr[f'OFc{u}'] = c; fr[f'OFs{u}'] = s; fr[f'OFn{u}'] = -s
        c, s = cs(n * (2 * kk + 1), 64);  fr[f'OIc{u}'] = c; fr[f'OIs{u}'] = s; fr[f'OIn{u}'] = -s
    tw = {}
    for mt in range(2):
        for q in range(4):
            i = 4 * q + np.arange(4)[None, :]
            n2 = 32 * mt + dpat(h, i)
            tw[f'T1_{mt}_{q}'] = cs(n2 * n, 2048)
    for q in range(4):
        i = 4 * q + np.arange(4)[None, :]
        k1 = dpat(h, i)
        tw[f'T2_{q}'] = cs(n * k1, 2048)
    return fr, tw
K2_FRAGS = [f'S1re{c}' for c in range(4)] + [f'S1im{c}' for c in range(4)] + \
    [f'{t}{x}{u}' for t in ('E', 'OF', 'OI') for x in 'csn' for u in range(2)]
K2_TWS = [f'T1_{mt}_{q}' for mt in range(2) for q in range(4)] + [f'T2_{q}' for q in range(4)]
K2_EXTRA = [f'P1re{c}' for c in range(4)] + [f'P1im{c}' for c in range(4)]

def frag_bytes(f):
    b = bf16_bits(f.astype(np.float32)).astype(np.uint32)
    return (b[:, 0::2] | (b[:, 1::2] << 16)).reshape(-1)
def tw_bytes(cs_):
    c = cs_[0].astype(np.float16).view(np.uint16).astype(np.uint32)
    s = cs_[1].astype(np.float16).view(np.uint16).astype(np.uint32)
    return (c | (s << 16)).reshape(-1)
def table_dwords(which):
    fr, tw = (k1_tables() if which == 1 else k2_tables())
    names_f, names_t = (K1_FRAGS, K1_TWS) if which == 1 else (K2_FRAGS, K2_TWS)
    blocks = [frag_bytes(fr[n]) for n in names_f] + [tw_bytes(tw[n]) for n in names_t]
    if which == 2:
        names_t = []
        blocks = [frag_bytes(fr[n]) for n in names_f]
        def tw32(nm, q, half):
            c, s_ = tw[nm]
            return np.stack([c[:, 2*half], c[:, 2*half+1], s_[:, 2*half], s_[:, 2*half+1]], axis=1).astype(np.float32).view(np.uint32).reshape(-1)
        for mt in range(2):
            for pr in range(8):
                names_t.append(f'F1_{mt}_{pr}'); blocks.append(tw32(f'T1_{mt}_{pr >> 1}', pr >> 1, pr & 1))
        for pr in range(8):
            names_t.append(f'F2_{pr}'); blocks.append(tw32(f'T2_{pr >> 1}', pr >> 1, pr & 1))
    extra = K2_EXTRA if which == 2 else []
    blocks += [frag_bytes(fr[n]) for n in extra]
    idx = {n: i for i, n in enumerate(names_f + names_t + extra)}
    return np.concatenate(blocks).astype(np.uint32), idx

def f16r(x): return x.astype(np.float16).astype(np.float64)
def emu_k1_pair(x0, x1):
    fr, tw = k1_tables(); fr = {k: bf16r(v) for k, v in fr.items()}
    a = (L & 15)[:, None]; g = (L >> 4)[:, None]; e = E8[None, :]
    A0 = x0[a + 16 * (8 * g + e)]; A1 = x1[a + 16 * (8 * g + e)]
    Z = np.zeros(512, complex)
    for jh in range(2):
        Tre = mfma16(A1, fr[f'SIN{jh}'], mfma16(A0, fr[f'COS{jh}']))
        Tim = mfma16(A1, fr[f'COS{jh}'], mfma16(A0, fr[f'NSIN{jh}']))
        c, s = map(f16r, tw[f'TW{jh}'])
        re = Tre * c + Tim * s; im = Tim * c - Tre * s
        B = bf16r(np.concatenate([re, im], axis=1))
        Zre = mfma16(fr['ARE'], B); Zim = mfma16(fr['AIM'], B)
        for i in range(4):
            k = (L & 15) + 16 * jh + 32 * (4 * (L >> 4) + i)
            Z[k] = bf16r(Zre[:, i]) + 1j * bf16r(Zim[:, i])
    return Z

def emu_k2_fwd(ZA, ZB):
    fr, tw = k2_tables(); fr = {k: bf16r(v) for k, v in fr.items()}
    n = L & 31; h = L >> 5
    D1 = {}
    for mt in range(2):
        for nt in ('re', 'im'):
            acc = None
            for c in range(4):
                A = np.where((h == 0)[:, None], ZA[c, 32 * mt + n], ZB[c, 32 * mt + n])
                acc = mfma32(A, fr[f'S1{nt}{c}'], acc)
            D1[mt, nt] = acc
    def twf(mt):
        c = np.concatenate([f16r(tw[f'T1_{mt}_{q}'][0]) for q in range(4)], axis=1)
        s = np.concatenate([f16r(tw[f'T1_{mt}_{q}'][1]) for q in range(4)], axis=1)
        return c, s
    c0, s0 = twf(0); c1, s1 = twf(1)
    a_re = D1[0, 're'] * c0 + D1[0, 'im'] * s0; a_im = D1[0, 'im'] * c0 - D1[0, 're'] * s0
    b_re = D1[1, 're'] * c1 + D1[1, 'im'] * s1; b_im = D1[1, 'im'] * c1 - D1[1, 're'] * s1
    U = {(0, 're'): bf16r(a_re + b_re), (0, 'im'): bf16r(a_im + b_im), (1, 're'): bf16r(a_re - b_re), (1, 'im'): bf16r(a_im - b_im)}
    X = {}
    for p in range(2):
        t = 'E' if p == 0 else 'OF'
        xr = xi = None
        for u in range(2):
            ur = U[p, 're'][:, 8 * u:8 * u + 8]; ui = U[p, 'im'][:, 8 * u:8 * u + 8]
            xr = mfma32(fr[f'{t}c{u}'], ur, xr); xr = mfma32(fr[f'{t}s{u}'], ui, xr)
            xi = mfma32(fr[f'{t}n{u}'], ur, xi); xi = mfma32(fr[f'{t}c{u}'], ui, xi)
        X[p] = xr + 1j * xi
    return X
def j_of(p):
    i = np.arange(16)[None, :]
    return (L & 31)[:, None] + 32 * p + 64 * dpat((L >> 5)[:, None], i)
def emu_k2_inv(V):
    fr, tw = k2_tables(); fr = {k: bf16r(v) for k, v in fr.items()}
    Up = {}
    for p in range(2):
        t = 'E' if p == 0 else 'OI'
        vr_, vi_ = bf16r(V[p].real), bf16r(V[p].imag)
        r = im = None
        for u in range(2):
            ar = vr_[:, 8 * u:8 * u + 8]; ai = vi_[:, 8 * u:8 * u + 8]
            r = mfma32(ar, fr[f'{t}c{u}'], r); r = mfma32(ai, fr[f'{t}n{u}'], r)
            im = mfma32(ar, fr[f'{t}s{u}'], im); im = mfma32(ai, fr[f'{t}c{u}'], im)
        Up[p] = r + 1j * im
    c = np.concatenate([f16r(tw[f'T2_{q}'][0]) for q in range(4)], axis=1)
    s = np.concatenate([f16r(tw[f'T2_{q}'][1]) for q in range(4)], axis=1)
    w = c + 1j * s
    R = {0: (Up[0] + Up[1]) * w, 1: (Up[0] - Up[1]) * w}
    Y = np.zeros(2048, complex)
    for nt in range(2):
        t = 'E' if nt == 0 else 'OF'
        rr, ri = bf16r(R[nt].real), bf16r(R[nt].imag)
        yr = yi = None
        for u in range(2):
            br = rr[:, 8 * u:8 * u + 8]; bi = ri[:, 8 * u:8 * u + 8]
            yr = mfma32(fr[f'{t}c{u}'], br, yr); yr = mfma32(fr[f'{t}n{u}'], bi, yr)
            yi = mfma32(fr[f'{t}s{u}'], br, yi); yi = mfma32(fr[f'{t}c{u}'], bi, yi)
        for i in range(16):
            s_ = 64 * dpat(L >> 5, i) + 32 * nt + (L & 31)
            Y[s_] = bf16r(yr[:, i]) + 1j * bf16r(yi[:, i])
    return Y

def rows_of(c, n2): return 512 * c + 64 * np.arange(8) + n2

if __name__ == "__main__":
    rng = np.random.default_rng(0)
    x = bf16r(rng.standard_normal((S, D)) * 0.05).astype(np.float64)
    wr = bf16r(rng.standard_normal((S, 257)) * 0.016); wi = bf16r(rng.standard_normal((S, 257)) * 0.032)
    z = emu_k1_pair(x[0], x[64]); zr = np.fft.fft(x[0] + 1j * x[64])
    print("k1 rel err", np.abs(z - zr).std() / np.abs(zr).std())
    def zcol(k):
        out = np.zeros((4, 64, 8))
        for c in range(4):
            for n2 in range(64):
                r = rows_of(c, n2)
                for mu in range(4):
                    v = np.sum((x[r[2 * mu]] + 1j * x[r[2 * mu + 1]]) * np.exp(-2j * np.pi * k * np.arange(D) / D))
                    out[c, n2, 2 * mu] = v.real; out[c, n2, 2 * mu + 1] = v.imag
        return bf16r(out)
    X2 = np.fft.rfft2(x)
    for k in (5, 0, 256, 255):
        X = emu_k2_fwd(zcol(k), zcol((512 - k) % 512))
        err = max(np.abs(X[p] - X2[j_of(p), k]).std() / np.abs(X2[:, k]).std() for p in range(2))
        W = wr[:, k] + 1j * wi[:, k]
        V = {p: X[p] * W[j_of(p)] for p in range(2)}
        Y = emu_k2_inv(V)
        Yr = np.fft.ifft(X2[:, k] * W) * S
        print("k", k, "fwd rel err", err, "full rel err", np.abs(Y - Yr).std() / np.abs(Yr).std())
```

```python
import sys, os, math, struct
sys.path.insert(0, "work")
from asmlib import *
from design import *

NAME = "gated_mix__spectral_gfnet__mixer_token_mlp__prompt_kernel"
HEADER = open("gated_mix__spectral_gfnet__mixer_token_mlp__prompt.s.ref").read().split("; @launch")[0]
ENV = lambda k, d: type(d)(os.environ.get(k, d))
STAMPS = ENV("STAMPS", 0)
ST = ENV("STMOD", "sc1")
LD = ENV("LDMOD", "sc1")
PA = ENV("PA", 3)
NREG = 9 - PA
W2_EARLY = ENV("W2_EARLY", 1)
POLL_MAX = 50000
YSLEEP0 = ENV('YSLEEP0', 0)
TOUCH_FR = ENV('TOUCH_FR', 0)
DRY = ENV('DRY', 4)
ZLD = ENV('ZLD', ' ')
CODEPF = ENV('CODEPF', 1)
HALF_T = ENV('HALF_T', 1)
W_AFTER = ENV('W_AFTER', 1)
YSLEEP = ENV('YSLEEP', 12)
FFT_W2 = ENV('FFT_W2', 1)
PM = ENV('PM', 'sc1')
PSLEEP = ENV('PSLEEP', 2)
DFTPRIO = ENV('DFTPRIO', 0)
W2SIG = ENV('W2SIG', 13)
NB1 = ENV('NB1', 3)
NB2 = ENV('NB2', 3)
EARLY2 = ENV('EARLY2', 1)
NR1 = ENV('NR1', 99)
FFT_PUB_FIRST = ENV('FFT_PUB_FIRST', 0)
WS_FLG = 0xC00000
F_H, F_Z, F_U, F_Y, F_EP, F_W, F_G, F_X = 0, 8192, 16384, 32768, 40960, 49152, 57344, 65536
WS_DBG = 0x8000000
WS_BYTES = 0x10000000
MIXC = "op_sel_hi:[0,1,0]"
MIXS = "op_sel:[0,1,0] op_sel_hi:[0,1,0]"
f2u = lambda f: struct.unpack("<I", struct.pack("<f", f))[0]
SX, SWR, SWI, SGW, SWS, STB, SW1, SW2, SOUT, SB2 = 8, 12, 16, 20, 24, 28, 32, 36, 40, 44
sWAVE, sXCD, sIDX, sTAG, sN2, sC2, sDT1, sFT1, sDT2, sST2 = 48, 49, 50, 51, 52, 53, 54, 55, 56, 57
RING = 32768
AP = 4 * RING
LDS_TOTAL = 163840
FB_TB, FB_WG = 65536, 65536 + 59392

def srd(a, d, base, nbytes):
    a(f"s_mov_b32 s{d}, s{base}")
    a(f"s_and_b32 s{d+1}, s{base+1}, 0xffff")
    a(f"s_mov_b32 s{d+2}, {nbytes}")
    a(f"s_mov_b32 s{d+3}, 0x00020000")
def S4(d): return f"s[{d}:{d+3}]"
STK = ENV("STK", "start,xin,p1c,p1st,pre4,b4,loop1,ust,pre7,loop2,end").split(",")
def stamp(a, n):
    if STAMPS and n in STK:
        i = STK.index(n)
        a(f"s_memrealtime s[{80+2*i}:{81+2*i}]")
def stamp_flush(a):
    if not STAMPS: return
    a("s_waitcnt vmcnt(0)")
    stamp(a, 'end')
    a("s_waitcnt lgkmcnt(0)")
    for i in range(11): a(f"v_mov_b32 v{240+i}, s{80+2*i}")
    a("s_lshl_b32 s60, s2, 3")
    a(f"s_add_u32 s60, s60, s{sWAVE}")
    a("s_lshl_b32 s60, s60, 6")
    a(f"s_add_u32 s60, s60, {WS_DBG}")
    a("v_mov_b32 v239, 0")
    a("s_mov_b64 exec, 1")
    for q in range(3): a(f"buffer_store_dwordx4 v[{240+4*q}:{243+4*q}], v239, {S4(SWS)}, s60 offen offset:{16*q}")
    a("s_mov_b64 exec, -1")
def dpp_reduce(a, regs):
    for mod in ("quad_perm:[1,0,3,2] row_mask:0xf bank_mask:0xf", "quad_perm:[2,3,0,1] row_mask:0xf bank_mask:0xf",
                "row_half_mirror row_mask:0xf bank_mask:0xf", "row_mirror row_mask:0xf bank_mask:0xf",
                "row_bcast:15 row_mask:0xa bank_mask:0xf", "row_bcast:31 row_mask:0xc bank_mask:0xf"):
        for r in regs: a(f"v_add_f32_dpp v{r}, v{r}, v{r} {mod}")
def unpack(a, lo, hi, src):
    a(f"v_lshlrev_b32 v{lo}, 16, v{src}")
    a(f"v_and_b32 v{hi}, 0xffff0000, v{src}")
_uid = [0]
def uid(p): _uid[0] += 1; return f"L_{p}_{_uid[0]}"

def set_flag(a, off_s):
    a(f"s_add_u32 s{off_s}, s{off_s}, {WS_FLG}")
    a(f"v_mov_b32 v13, s{sTAG}")
    a("v_mov_b32 v14, 0")
    a("s_mov_b64 exec, 1")
    a(f"buffer_store_dword v13, v14, {S4(SWS)}, s{off_s} offen {PM}")
    a("s_mov_b64 exec, -1")

def poll(a, off_s, nflags, vt=13):
    L, Ld = uid("poll"), uid("polld")
    a(f"s_add_u32 s{off_s}, s{off_s}, {WS_FLG}")
    n1 = min(nflags, 64)
    a(f"v_min_u32 v{vt}, {n1-1}, v2")
    a(f"v_lshlrev_b32 v{vt}, 6, v{vt}")
    a(f"s_mov_b32 s79, {POLL_MAX}")
    if nflags > 64: a(f"s_add_u32 s78, s{off_s}, 4096")
    a.wait_all(vm=False); a.fence()
    snap_vm = list(a.vm)
    a.label(L)
    a.auto_wait = False
    a(f"buffer_load_dword v{vt+1}, v{vt}, {S4(SWS)}, s{off_s} offen {PM}")
    if nflags > 64: a(f"buffer_load_dword v{vt+2}, v{vt}, {S4(SWS)}, s78 offen {PM}")
    a("s_sub_u32 s79, s79, 1")
    a("s_waitcnt vmcnt(0)")
    a(f"v_cmp_ne_u32 vcc, s{sTAG}, v{vt+1}")
    if nflags > 64:
        a(f"v_cmp_ne_u32 s[76:77], s{sTAG}, v{vt+2}")
        a("s_nop 1")
        a("s_or_b64 vcc, vcc, s[76:77]")
    else:
        a("s_nop 1")
    a("s_cmp_eq_u64 vcc, 0")
    a(f"s_cbranch_scc1 {Ld}")
    a("s_cmp_eq_u32 s79, 0")
    a(f"s_cbranch_scc1 {Ld}")
    a(f"s_sleep {PSLEEP}")
    a(f"s_branch {L}")
    a.label(Ld)
    a.auto_wait = True
    a.reset_state()

vW0, vW1, vA, vT, vL16 = 4, 5, 6, 8, 3
ACC, WF, AF, RS = 16, 80, 112, 112 + 16 * PA
sRING, sW, sA0, sA, sROT, sSL = 58, 59, 60, 61, 74, 75
ROT = ENV('ROT', 1)
ROT2 = ENV('ROT2', 1)

def poll_pre(a, off, vt):
    a(f"v_lshlrev_b32 v{vt}, 6, v2")
    a(f"s_mov_b32 s78, {WS_FLG + off}")
    a(f"s_mov_b32 s79, {WS_FLG + off + 4096}")
    a(f"buffer_load_dword v{vt+1}, v{vt}, {S4(SWS)}, s78 offen {PM}")
    a(f"buffer_load_dword v{vt+2}, v{vt}, {S4(SWS)}, s79 offen {PM}")
def poll_fin(a, off, vt, off_s):
    L = uid("pf")
    a(f"v_cmp_ne_u32 vcc, s{sTAG}, v{vt+1}")
    a(f"v_cmp_ne_u32 s[76:77], s{sTAG}, v{vt+2}")
    a("s_or_b64 vcc, vcc, s[76:77]")
    a("s_cmp_eq_u64 vcc, 0")
    a.wait_all(); a.fence()
    a(f"s_cbranch_scc1 {L}")
    a(f"s_mov_b32 s{off_s}, {off}")
    poll(a, off_s, 128, vt=vt)
    a.label(L)
    a.reset_state()

def gpoll(a, groups, vt=(12, 13, 250, 251), sleep=None, behind=None):
    L, Ld = uid("gp"), uid("gpd")
    for k, (so, n) in enumerate(groups):
        a(f"v_min_u32 v{vt[k]}, {n-1}, v2")
        a(f"v_lshlrev_b32 v{vt[k]}, 6, v{vt[k]}")
    L2 = uid("gpc")
    after = []
    if behind:
        for k, (so, n) in enumerate(groups):
            a(f"buffer_load_dword v{vt[2+k]}, v{vt[k]}, {S4(SWS)}, s{so} offen {PM}")
        n0 = len(a.vm)
        behind()
        after = a.vm[n0:] if len(a.vm) < 63 else None
        assert after is not None
        a(f"s_waitcnt vmcnt({len(after)})")
        a(f"s_mov_b32 s79, {POLL_MAX}")
        a.wait_all(vm=False); a.fence()
        a(f"s_branch {L2}")
    else:
        a(f"s_mov_b32 s79, {POLL_MAX}")
        a.wait_all(vm=False); a.fence()
    a.label(L)
    a.auto_wait = False
    for k, (so, n) in enumerate(groups):
        a(f"buffer_load_dword v{vt[2+k]}, v{vt[k]}, {S4(SWS)}, s{so} offen {PM}")
    a("s_sub_u32 s79, s79, 1")
    a("s_waitcnt vmcnt(0)")
    a.label(L2)
    a(f"v_cmp_ne_u32 vcc, s{sTAG}, v{vt[2]}")
    if len(groups) > 1:
        a(f"v_cmp_ne_u32 s[70:71], s{sTAG}, v{vt[3]}")
        a("s_nop 1")
        a("s_or_b64 vcc, vcc, s[70:71]")
    else:
        a("s_nop 1")
    a("s_cmp_eq_u64 vcc, 0")
    a(f"s_cbranch_scc1 {Ld}")
    a("s_cmp_eq_u32 s79, 0")
    a(f"s_cbranch_scc1 {Ld}")
    a("s_mov_b64 exec, vcc")
    a(f"s_sleep {PSLEEP if sleep is None else sleep}")
    a(f"s_branch {L}")
    a.label(Ld)
    a("s_mov_b64 exec, -1")
    a.auto_wait = True
    a.reset_state()
    a.vm = list(after)

def wlane(a, r0, r1, rowstride, t0, t1):
    a(f"v_lshrrev_b32 v{t0}, 3, v2")
    a(f"s_mov_b32 s79, {rowstride}")
    a(f"v_mul_lo_u32 v{r0}, v{t0}, s79")
    a(f"v_bfe_u32 v{t0}, v2, 1, 2")
    a(f"v_bfe_u32 v{t1}, v2, 4, 1")
    a(f"v_xor_b32 v{t0}, v{t0}, v{t1}")
    a(f"v_lshl_add_u32 v{r0}, v{t0}, 5, v{r0}")
    a(f"v_and_b32 v{t0}, 1, v2")
    a(f"v_lshl_add_u32 v{r0}, v{t0}, 4, v{r0}")
    a(f"v_xor_b32 v{r1}, 64, v{r0}")
def gemm_lane_consts(a, rowstride):
    t0, t1 = 12, 13
    a(f"s_lshl_b32 s{sRING}, s{sWAVE}, 15")
    wlane(a, vW0, vW1, rowstride, t0, t1)
    a(f"v_lshrrev_b32 v{t1}, 4, v2")
    a(f"v_lshlrev_b32 v{vA}, 10, v{t1}")
    a(f"v_and_b32 v{t0}, 15, v2")
    a(f"v_lshl_add_u32 v{vA}, v{t0}, 4, v{vA}")
    a(f"v_lshlrev_b32 v{vT}, 10, v{t1}")
    a(f"v_bfe_u32 v{t0}, v2, 2, 2")
    a(f"v_lshl_add_u32 v{vT}, v{t0}, 7, v{vT}")
    a(f"v_bfe_u32 v{t0}, v2, 3, 2")
    a(f"v_lshl_add_u32 v{vT}, v{t0}, 5, v{vT}")
    a(f"v_and_b32 v{t0}, 3, v2")
    a(f"v_lshl_add_u32 v{vT}, v{t0}, 3, v{vT}")
    a(f"v_add_u32 v{vT}, s{sRING}, v{vT}")
    for t in range(1, 4): a(f"v_xor_b32 v{vT+t}, {32*t}, v{vT}")
    a(f"v_add_u32 v7, s{sRING}, v{vL16}")

class Gemm:
    def __init__(s, a, nslab, slots, kinds, srdW, wbase_s, jstep, sstep, w_is_A, vw=(4, 5), rot=74):
        s.vw, s.rot = vw, rot
        s.a, s.n, s.slots, s.kinds, s.srdW, s.wb, s.jstep, s.sstep, s.w_is_A = a, nslab, slots, kinds, srdW, wbase_s, jstep, sstep, w_is_A
        s.tok = {}
        s.regidx = {sg: i for i, sg in enumerate([x for x in range(nslab) if kinds[x] == 'reg'])}
    def wload(s, sig, jj):
        v = s.vw[jj % 2]
        o = []
        if jj == 0:
            o += s.actual(sig, sSL, sW) + [f"s_mul_i32 s{sSL}, s{sSL}, {s.sstep}", f"s_add_u32 s{sSL}, s{sSL}, s{s.wb}"]
        o.append(f"s_add_u32 s{sW}, s{sSL}, {jj * s.jstep}")
        if s.kinds[sig] == 'reg':
            r = RS + s.regidx[sig] * 16 + jj * 4
            o.append(f"buffer_load_dwordx4 {vr(r,4)}, v{v}, {S4(s.srdW)}, s{sW} offen")
        else:
            o.append(f"s_add_u32 m0, s{sRING}, {s.slots[sig]*4096 + jj*1024}")
            o.append(f"buffer_load_dwordx4 v{v}, {S4(s.srdW)}, s{sW} offen lds")
        return o
    def actual(s, sig, d, tmp):
        o = [f"s_add_u32 s{d}, s{s.rot}, {sig}"]
        if s.n == 16: o.append(f"s_and_b32 s{d}, s{d}, 15")
        else: o += [f"s_sub_u32 s{tmp}, s{d}, {s.n}", f"s_min_u32 s{d}, s{d}, s{tmp}"]
        return o
    def emit_w(s, sig, jjs=range(4)):
        if s.w_is_A: stamp(s.a, f"w{sig}")
        for jj in jjs:
            for l in s.wload(sig, jj):
                ins = s.a(l)
                if 'lds' in l and 'buffer' in l: s.tok.setdefault(sig, []).append(ins)
    def aload(s, sig, mt):
        r = AF + (sig % PA) * 16 + mt * 4
        o = []
        if mt == 0: o += s.actual(sig, sA, 73) + [f"s_lshl_b32 s{sA}, s{sA}, 12", f"s_add_u32 s{sA}, s{sA}, s{sA0}"]
        o.append(f"buffer_load_dwordx4 {vr(r,4)}, v{vA}, {S4(SWS)}, s{sA} offen offset:{mt*256} {LD}")
        return o
    def trreads(s, sig):
        out = []
        for t in range(4):
            for u in range(2):
                r = WF + (sig & 1) * 16 + t * 4 + 2 * u
                out.append(f"ds_read_b64_tr_b16 {vr(r,2)}, v{vT+t} offset:{s.slots[sig]*4096 + u*512}")
        return out
    def run(s, extra=None, drain_first=False, post=None):
        a = s.a; M = "v_mfma_f32_16x16x32_bf16"
        for sig in range(min(PA, s.n)):
            for mt in range(4):
                for l in s.aload(sig, mt): a(l)
        if post: post()
        if drain_first: a.wait_tok(a.vm[0])
        a.wait_tok(*s.tok.get(0, []))
        rt = {0: [a(l) for l in s.trreads(0)]}
        wr = {}
        for sig in range(s.n):
            stamp(a, f"g{1 if s.w_is_A else 2}_{sig}")
            nxt = [x for x in range(sig + 1, s.n) if s.slots[x] == s.slots[sig] and s.kinds[x] != 'pre']
            fill = nxt[0] if nxt else None
            groups = [[] for _ in range(16)]
            trn = s.trreads(sig + 1) if sig + 1 < s.n else []
            for i, l in enumerate(trn): groups[6 + i].append(('tr', l))
            if fill is not None:
                for jj in range(4):
                    if s.kinds[fill] == 'reg':
                        r = RS + s.regidx[fill] * 16 + jj * 4
                        groups[jj].append(('wr', f"ds_write_b128 v7, {vr(r,4)} offset:{s.slots[fill]*4096 + jj*1024}"))
                    else:
                        groups[jj].append(('dma', jj))
            if sig + PA < s.n:
                for mt in range(4): groups[12 + mt].append(('act', mt))
            ex = extra(sig) if extra else []
            for i, g in enumerate(ex): groups[min(15, 1 + i * 14 // max(1, len(ex)))].append(('ex', g))
            if fill is not None or ex: a.wait_tok(*rt[sig])
            rt[sig + 1] = []
            k = 0
            for t in range(4):
                for mt in range(4):
                    wf = vr(WF + (sig & 1) * 16 + t * 4, 4); af = vr(AF + (sig % PA) * 16 + mt * 4, 4)
                    if s.w_is_A: acc = vr(ACC + (t * 4 + mt) * 4, 4); A_, B_ = wf, af
                    else:        acc = vr(ACC + (mt * 4 + t) * 4, 4); A_, B_ = af, wf
                    a(f"{M} {acc}, {A_}, {B_}, {'0' if sig == 0 else acc}")
                    for kind, x in groups[k]:
                        if kind == 'tr':
                            if not rt[sig + 1]: a.wait_tok(*s.tok.get(sig + 1, []), *wr.get(sig + 1, []))
                            rt[sig + 1].append(a(x))
                        elif kind == 'wr': wr.setdefault(fill, []).append(a(x))
                        elif kind == 'dma': s.emit_w(fill, [x])
                        elif kind == 'act':
                            for l in s.aload(sig + PA, x): a(l)
                        elif kind == 'ex': x()
                    k += 1

P1_EX, P1_GX, CNT, P1_TB = AP, AP + 16384, LDS_TOTAL - 64, AP + 21504
P1_XR = P1_EX
P1_WR, P1_WI = 0, 32768
LX, LF, LP, LGW = 16, 32, 64, 96
def hbar(a, cnt, target):
    a.wait_all(vm=False)
    a(f"v_mov_b32 v12, {CNT + 4*cnt}")
    a("v_mov_b32 v13, 1")
    a("s_mov_b64 exec, 1")
    a("ds_add_u32 v12, v13")
    a("s_mov_b64 exec, -1")
    wait_word(a, 12, target, sleep=0)

def phase1_ln(a):
    F = lambda r, e: LF + 8 * r + e
    P = lambda r, e: LP + 8 * r + e
    R = range(4)
    a(f"buffer_load_dwordx4 {vr(LGW,4)}, v3, {S4(SGW)}, 0 offen")
    stamp(a, 'ea0')
    a("s_barrier")
    a("v_mov_b32 v108, 0x3b000000")
    a("v_lshlrev_b32 v11, 5, v2")
    a("v_add_u32 v11, s64, v11")
    a("v_and_b32 v4, 255, v0")
    a("v_lshlrev_b32 v4, 2, v4")
    a(f"v_add_u32 v4, {P1_EX}, v4")
    a(f"s_lshl_b32 s72, s{sC2}, 6")
    a(f"s_add_u32 s72, s72, s{sN2}")
    a("s_lshl_b32 s72, s72, 6")
    a("s_lshl_b32 s70, s72, 4")
    a(f"s_lshl_b32 s71, s{sC2}, 16")
    a("s_add_u32 s70, s70, s71")
    a(f"s_and_b32 s71, s{sWAVE}, 3")
    a(f"s_lshl_b32 s71, s71, 18")
    a("s_add_u32 s70, s70, s71")
    if WS_HT: a(f"s_add_u32 s70, s70, {WS_HT}")
    if F_H: a(f"s_add_u32 s72, s72, {F_H}")
    S_, T_, M_, V_ = 100, 104, 112, 116
    for r in R:
        for q in range(4): unpack(a, F(r, 2*q), F(r, 2*q+1), LX + 4*r + q)
        if r == 0: stamp(a, 'xin')
        a(f"v_add_f32 v{S_+r}, v{F(r,0)}, v{F(r,1)}")
        a(f"v_add_f32 v{T_+r}, v{F(r,2)}, v{F(r,3)}")
        for e in (4, 6):
            a(f"v_add_f32 v{S_+r}, v{S_+r}, v{F(r,e)}")
            a(f"v_add_f32 v{T_+r}, v{T_+r}, v{F(r,e+1)}")
        a(f"v_add_f32 v{S_+r}, v{S_+r}, v{T_+r}")
    dpp_reduce(a, [S_ + r for r in R])
    for r in R: a(f"v_readlane_b32 s{64+r}, v{S_+r}, 63")
    for r in R: a(f"v_mul_f32 v{M_+r}, s{64+r}, v108")
    for e in range(8):
        for r in R: a(f"v_sub_f32 v{P(r,e)}, v{F(r,e)}, v{M_+r}")
        for r in R:
            if e == 0: a(f"v_mul_f32 v{S_+r}, v{P(r,e)}, v{P(r,e)}")
            else: a(f"v_fmac_f32 v{S_+r}, v{P(r,e)}, v{P(r,e)}")
    def rnd4(X):
        for p in range(2): a(f"v_cvt_pk_bf16_f32 v{T_+p}, v{X+2*p}, v{X+2*p+1}")
        for p in range(2): unpack(a, X + 2*p, X + 2*p + 1, T_ + p)
    rnd4(M_)
    dpp_reduce(a, [S_ + r for r in R])
    for r in R: a(f"v_readlane_b32 s{64+r}, v{S_+r}, 63")
    sub = [f"v_sub_f32 v{P(r,e)}, v{F(r,e)}, v{M_+r}" for e in range(8) for r in R]
    cv = [f"v_cvt_pk_bf16_f32 v{120 + 8*p + e}, v{P(2*p,e)}, v{P(2*p+1,e)}" for e in range(8) for p in range(2)]
    for l in sub[:4]: a(l)
    for r in R: a(f"v_mul_f32 v{V_+r}, s{64+r}, v108")
    rnd4(V_)
    for r in R: a(f"v_add_f32 v{V_+r}, 0x3727c5ac, v{V_+r}")
    rnd4(V_)
    for r in R: a(f"v_sqrt_f32 v{V_+r}, v{V_+r}")
    for l in sub[4:8]: a(l)
    rnd4(V_)
    for r in R: a(f"v_rcp_f32 v{V_+r}, v{V_+r}")
    for l in sub[8:]: a(l)
    for l in cv: a(l)
    for p in range(2):
        for e in range(8): unpack(a, P(2*p, e), P(2*p+1, e), 120 + 8*p + e)
        for e in range(8):
            a(f"v_mul_f32 v{P(2*p,e)}, v{P(2*p,e)}, v{V_+2*p}")
            a(f"v_mul_f32 v{P(2*p+1,e)}, v{P(2*p+1,e)}, v{V_+2*p+1}")
        for e in range(8): a(f"v_cvt_pk_bf16_f32 v{120 + 8*p + e}, v{P(2*p,e)}, v{P(2*p+1,e)}")
        a(f"ds_write_b128 v11, {vr(120 + 8*p, 4)} offset:{2048*p}")
        a(f"ds_write_b128 v11, {vr(124 + 8*p, 4)} offset:{2048*p + 16}")
    stamp(a, 'p1c')
    hbar(a, 8, 4)
    for dh in range(2):
        for cc in range(2):
            for hh in range(2):
                o = 32 * cc + 16 * hh + 4 * dh
                a(f"ds_read2st64_b32 {vr(136 + 8*dh + 4*cc + 2*hh, 2)}, v4 offset0:{o} offset1:{o+8}")
    for dh in range(2):
        for cc in range(2):
            a(f"s_add_u32 s71, s70, {dh * (1 << 20) + cc * 65536}")
            a(f"buffer_store_dwordx4 {vr(136 + 8*dh + 4*cc, 4)}, v3, {S4(SWS)}, s71 offen {ST}")
    stamp(a, 'p1st')
    lds_inc(a, 11)
    tag_ready(a)
    arrive(a, 0, [72], 0, 4)

def lds_inc(a, cnt, t=(12, 13)):
    a(f"v_mov_b32 v{t[0]}, {CNT + 4*cnt}")
    a(f"v_mov_b32 v{t[1]}, 1")
    a("s_mov_b64 exec, 1")
    a(f"ds_add_u32 v{t[0]}, v{t[1]}")
    a("s_mov_b64 exec, -1")
def touch_w1(a, t=(12, 13)):
    a(f"v_mul_u32_u24 v{t[0]}, 37, v2")
    a(f"v_lshrrev_b32 v{t[0]}, 8, v{t[0]}")
    a(f"v_mul_u32_u24 v{t[1]}, 7, v{t[0]}")
    a(f"v_sub_u32 v{t[1]}, v2, v{t[1]}")
    a(f"v_mul_u32_u24 v{t[0]}, 3584, v{t[0]}")
    a(f"v_lshl_add_u32 v{t[0]}, v{t[1]}, 7, v{t[0]}")
    a(f"s_lshl_b32 s70, s{sIDX}, 2")
    a(f"s_add_u32 s70, s70, s{sWAVE}")
    a(f"s_mul_i32 s70, s70, {16*3584}")
    a(f"s_lshr_b32 s71, s{sXCD}, 1")
    a("s_mul_i32 s71, s71, 896")
    a("s_add_u32 s70, s70, s71")
    a(f"s_and_b32 s71, s{sXCD}, 1")
    a(f"s_mul_i32 s71, s71, {8*3584}")
    a("s_add_u32 s70, s70, s71")
    a(f"s_xor_b32 s71, s71, {8*3584}")
    a("s_add_u32 s71, s71, s70")
    a(f"s_and_b32 s72, s{sXCD}, 1")
    a(f"s_mul_i32 s72, s72, {8*3584}")
    a("s_sub_u32 s71, s71, s72")
def touch_w1_issue(a, t=(150, 151)):
    a("s_mov_b32 exec_hi, 0x00ffffff")
    a(f"buffer_load_dword v250, v{t[0]}, {S4(SW1)}, s70 offen")
    if not HALF_T: a(f"buffer_load_dword v251, v{t[0]}, {S4(SW1)}, s71 offen")
    a("s_mov_b32 exec_hi, -1")
def touch_w2(a, t=12):
    a(f"v_lshrrev_b32 v{t}, 3, v2")
    a(f"v_lshlrev_b32 v{t}, 12, v{t}")
    a(f"v_and_b32 v{t+1}, 7, v2")
    a(f"v_lshl_add_u32 v{t}, v{t+1}, 7, v{t}")
    a(f"s_lshl_b32 s70, s{sIDX}, 2")
    a(f"s_and_b32 s71, s{sWAVE}, 3")
    a("s_add_u32 s70, s70, s71")
    a(f"s_mul_i32 s70, s70, {14*4096}")
    a(f"s_lshr_b32 s71, s{sXCD}, 1")
    a("s_lshl_b32 s71, s71, 10")
    a("s_add_u32 s70, s70, s71")
    a(f"s_add_u32 s71, s70, {8*4096}")
    a(f"buffer_load_dword v250, v{t}, {S4(SW2)}, s70 offen")
    a("s_mov_b32 exec_hi, 0x0000ffff")
    a(f"buffer_load_dword v251, v{t}, {S4(SW2)}, s71 offen")
    a("s_mov_b32 exec_hi, -1")
def touch_w2_8(a):
    a("v_lshrrev_b32 v15, 3, v2")
    a("v_lshlrev_b32 v15, 12, v15")
    a("v_and_b32 v7, 7, v2")
    a("v_lshl_add_u32 v15, v7, 7, v15")
    a(f"s_lshl_b32 s70, s{sIDX}, 3")
    a(f"s_add_u32 s70, s70, s{sWAVE}")
    a(f"s_mul_i32 s70, s70, {7*4096}")
    a(f"s_lshr_b32 s71, s{sXCD}, 1")
    a("s_lshl_b32 s71, s71, 10")
    a("s_add_u32 s70, s70, s71")
    a("s_mov_b32 exec_hi, 0x00ffffff")
    a(f"buffer_load_dword v1, v15, {S4(SW2)}, s70 offen")
    a("s_mov_b32 exec_hi, -1")
def tag_ready(a):
    a("s_waitcnt lgkmcnt(0)")
    a(f"s_add_u32 s{sTAG}, s{sTAG}, 0x9e3779b9")

def gate(a):
    L = uid("nogate")
    a(f"s_bitcmp1_b32 s{sIDX}, 0")
    a.fence()
    a(f"s_cbranch_scc1 {L}")
    snap = a.snapshot()
    F = lambda r, e: LF + 8 * r + e
    P = lambda r, e: LP + 8 * r + e
    G, S_ = 16, 100
    R = range(4)
    for q in range(4): unpack(a, G + 2*q, G + 2*q + 1, LGW + q)
    for e in range(8):
        for r in R: a(f"v_mul_f32 v{P(r,e)}, v{F(r,e)}, v{G+e}")
    for p in range(2):
        for e in range(8):
            t = 24 + (e & 3)
            a(f"v_cvt_pk_bf16_f32 v{t}, v{P(2*p,e)}, v{P(2*p+1,e)}")
            unpack(a, P(2*p, e), P(2*p+1, e), t)
    for r in R: a(f"v_add_f32 v{S_+r}, v{P(r,0)}, v{P(r,1)}")
    for e in range(2, 8):
        for r in R: a(f"v_add_f32 v{S_+r}, v{S_+r}, v{P(r,e)}")
    dpp_reduce(a, [S_ + r for r in R])
    def rnd4(X):
        for p in range(2): a(f"v_cvt_pk_bf16_f32 v{104+p}, v{X+2*p}, v{X+2*p+1}")
        for p in range(2): unpack(a, X + 2*p, X + 2*p + 1, 104 + p)
    rnd4(S_)
    for r in R: a(f"v_mul_f32 v{S_+r}, 0xbfb8aa3b, v{S_+r}")
    for r in R: a(f"v_exp_f32 v{S_+r}, v{S_+r}")
    for r in R: a(f"v_add_f32 v{S_+r}, 1.0, v{S_+r}")
    for r in R: a(f"v_rcp_f32 v{S_+r}, v{S_+r}")
    rnd4(S_)
    a(f"s_lshl_b32 s73, s{sC2}, 6")
    a(f"s_add_u32 s73, s73, s{sN2}")
    a("s_lshl_b32 s73, s73, 6")
    a(f"s_and_b32 s79, s{sWAVE}, 3")
    a("s_lshl_b32 s79, s79, 4")
    a("s_add_u32 s78, s73, s79")
    a(f"s_add_u32 s78, s78, {WS_G}")
    a(f"s_add_u32 s73, s73, {F_G}")
    a("v_mov_b32 v104, 0")
    a("s_mov_b32 exec_lo, 0")
    a("s_mov_b32 exec_hi, 0x80000000")
    a(f"buffer_store_dwordx4 {vr(S_,4)}, v104, {S4(SWS)}, s78 offen {ST}")
    a("s_mov_b64 exec, -1")
    arrive(a, 2, [73], 0, 4, lowprio=True)
    a.fence()
    a.label(L)
    a.restore(snap)

def arrive(a, cnt, flags, nvm, nw, t=(12, 13), st=78, lowprio=False):
    L = uid("arr")
    a(f"s_waitcnt vmcnt({nvm})")
    stamp(a, f'arr{cnt}')
    a(f"v_mov_b32 v{t[0]}, {CNT + 4*cnt}")
    a(f"v_mov_b32 v{t[1]}, 1")
    a("s_mov_b64 exec, 1")
    a(f"ds_add_rtn_u32 v{t[1]}, v{t[0]}, v{t[1]}")
    a("s_mov_b64 exec, -1")
    a("s_waitcnt lgkmcnt(0)")
    a(f"v_readfirstlane_b32 s{st}, v{t[1]}")
    a(f"s_cmp_lg_u32 s{st}, {nw-1}")
    a(f"s_cbranch_scc1 {L}")
    snap = a.snapshot()
    if lowprio: a("s_setprio 3")
    a(f"v_mov_b32 v{t[1]}, s{sTAG}")
    a(f"v_mov_b32 v{t[0]}, {WS_FLG}")
    a("s_mov_b64 exec, 1")
    for f in flags: a(f"buffer_store_dword v{t[1]}, v{t[0]}, {S4(SWS)}, s{f} offen {PM}")
    a("s_mov_b64 exec, -1")
    if lowprio: a("s_setprio 0")
    a.fence()
    a.label(L)
    a.restore(snap)
def wait_word(a, vaddr, val, tv=13, st=78, sleep=2):
    L, Ld = uid("wc"), uid("wcd")
    a("s_mov_b32 s79, 200000")
    a.wait_all(vm=False); a.fence()
    a.label(L)
    a.auto_wait = False
    a(f"ds_read_b32 v{tv}, v{vaddr}")
    a("s_waitcnt lgkmcnt(0)")
    a(f"v_readfirstlane_b32 s{st}, v{tv}")
    a(f"s_cmp_ge_u32 s{st}, {val}")
    a(f"s_cbranch_scc1 {Ld}")
    a("s_sub_u32 s79, s79, 1")
    a(f"s_cbranch_scc1 {Ld}")
    if sleep: a(f"s_sleep {sleep}")
    a(f"s_branch {L}")
    a.label(Ld)
    a.auto_wait = True

def phase1_fft(a, ti):
    M = "v_mfma_f32_16x16x32_bf16"
    a(f"s_and_b32 s65, s{sWAVE}, 3")
    a("s_lshl_b32 s66, s65, 10")
    for j in range(3):
        a(f"s_add_u32 s67, s66, {4096*j}")
        if j == 2: a("s_min_u32 s67, s67, 9216")
        a(f"s_add_u32 m0, s67, {P1_TB}")
        a(f"s_add_u32 s67, s67, TABLES-{NAME}")
        d2 = a(f"buffer_load_dwordx4 v3, {S4(STB)}, s67 offen lds")
    a("v_and_b32 v9, 15, v2")
    stamp(a, 'ea0')
    a("s_barrier")
    a("v_lshrrev_b32 v4, 4, v2")
    a("v_lshlrev_b32 v5, 9, v4")
    a("v_lshlrev_b32 v4, 8, v4")
    a("v_lshl_add_u32 v4, v9, 3, v4")
    a("v_add_u32 v4, s64, v4")
    a("v_lshl_add_u32 v5, v9, 2, v5")
    a("v_add_u32 v5, s64, v5")
    a(f"v_add_u32 v14, {P1_TB}, v3")
    a("v_bfe_u32 v7, v0, 2, 6")
    a("v_and_b32 v6, 3, v2")
    a("v_and_b32 v15, 1, v2")
    a("v_cmp_eq_u32 vcc, 1, v15")
    a("v_bfe_u32 v10, v2, 1, 1")
    a("v_lshlrev_b32 v10, 13, v10")
    a(f"v_add_u32 v10, {P1_EX}, v10")
    for z in range(4):
        a(f"v_add_u32 v11, {64*z}, v7")
        a(f"v_sub_u32 v12, {512 - 64*z}, v7")
        if z == 0:
            a("v_mov_b32 v13, 256")
            a("v_cmp_eq_u32 s[76:77], 0, v7")
            a("v_cndmask_b32 v12, v12, v13, s[76:77]")
        a("v_cndmask_b32 v11, v11, v12, vcc")
        a(f"v_lshl_add_u32 v{136+z}, v11, 2, v10")
    a("v_lshlrev_b32 v8, 13, v7")
    a("v_lshl_add_u32 v8, v6, 4, v8")
    a(f"s_lshl_b32 s72, s{sC2}, 6")
    a(f"s_add_u32 s72, s72, s{sN2}")
    a("s_lshl_b32 s72, s72, 6")
    a(f"s_add_u32 s70, s72, {WS_Z}")
    a(f"s_add_u32 s72, s72, {F_Z}")
    a.wait_tok(d2)
    stamp(a, 'xin')
    hbar(a, 9, 4)
    AF_ = lambda p, r: 56 + 8 * p + 4 * r
    for p in range(2):
        for r in range(2):
            for u in range(2):
                a(f"ds_read_b64_tr_b16 {vr(AF_(p, r) + 2*u, 2)}, v4 offset:{2048*p + 1024*r + 128*u}")
        if p == 0:
            T = {}
            for n in ['COS0', 'NSIN0', 'SIN0', 'COS1', 'NSIN1', 'SIN1']:
                idx = ti[n]; r_ = 16 + 4 * idx; T[n] = r_
                a(f"ds_read_b128 {vr(r_,4)}, v14 offset:{idx*1024}")
    for n in ['TW0', 'TW1', 'ARE', 'AIM']:
        idx = ti[n]; r_ = 16 + 4 * idx; T[n] = r_
        a(f"ds_read_b128 {vr(r_,4)}, v14 offset:{idx*1024}")
    TR = lambda p, jh, x: 72 + 16 * p + 8 * jh + (0 if x == 're' else 4)
    for p in range(2):
        for jh in range(2):
            a(f"{M} {vr(TR(p,jh,'re'),4)}, {vr(AF_(p,0),4)}, {vr(T[f'COS{jh}'],4)}, 0")
            a(f"{M} {vr(TR(p,jh,'im'),4)}, {vr(AF_(p,0),4)}, {vr(T[f'NSIN{jh}'],4)}, 0")
            a(f"{M} {vr(TR(p,jh,'re'),4)}, {vr(AF_(p,1),4)}, {vr(T[f'SIN{jh}'],4)}, {vr(TR(p,jh,'re'),4)}")
            a(f"{M} {vr(TR(p,jh,'im'),4)}, {vr(AF_(p,1),4)}, {vr(T[f'COS{jh}'],4)}, {vr(TR(p,jh,'im'),4)}")
    for p in range(2):
        for jh in range(2):
            o = 120 + 8 * jh
            for i in range(4):
                tw = T[f'TW{jh}'] + i; re = TR(p, jh, 're') + i; im = TR(p, jh, 'im') + i
                a(f"v_fma_mix_f32 v{o+i}, v{re}, v{tw}, 0 {MIXC}")
                a(f"v_fma_mix_f32 v{o+4+i}, v{im}, v{tw}, 0 {MIXC}")
                a(f"v_fma_mix_f32 v{o+i}, v{im}, v{tw}, v{o+i} {MIXS}")
                a(f"v_fma_mix_f32 v{o+4+i}, -v{re}, v{tw}, v{o+4+i} {MIXS}")
            B = 104 + 8 * p + 4 * jh
            for q in range(4): a(f"v_cvt_pk_bf16_f32 v{B+q}, v{o+2*q}, v{o+2*q+1}")
            a(f"{M} {vr(TR(p,jh,'re'),4)}, {vr(T['ARE'],4)}, {vr(B,4)}, 0")
            a(f"{M} {vr(TR(p,jh,'im'),4)}, {vr(T['AIM'],4)}, {vr(B,4)}, 0")
    for p in range(2):
        for jh in range(2):
            for i in range(4):
                r = 56 + 8 * p + 4 * jh + i
                a(f"v_cvt_pk_bf16_f32 v{r}, v{TR(p,jh,'re')+i}, v{TR(p,jh,'im')+i}")
                a(f"ds_write_b32 v5, v{r} offset:{2048*p + (16*jh + 32*i) * 4}")
    stamp(a, 'p1c')
    hbar(a, 8, 4)
    for z in range(4):
        for hh in range(2):
            a(f"ds_read2st64_b32 {vr(96 + 4*z + 2*hh, 2)}, v{136+z} offset0:{16*hh} offset1:{16*hh+8}")
    for z in range(4):
        a(f"buffer_store_dwordx4 {vr(96 + 4*z, 4)}, v8, {S4(SWS)}, s70 offen {ST}")
        if z < 3: a(f"s_add_u32 s70, s70, {64*8192}")
    stamp(a, 'p1st')
    lds_inc(a, 11)
    tag_ready(a)
    arrive(a, 0, [72], 0, 4)

def g_prologue(a):
    L1, L2 = uid("gw"), uid("gw")
    a(f"s_bitcmp1_b32 s{sIDX}, 0")
    a.fence()
    a(f"s_cbranch_scc1 {L1}")
    a("s_lshr_b32 s66, s62, 10")
    a("s_mul_i32 s67, s66, 514")
    a("s_and_b32 s67, s67, 0xfffffff0")
    a(f"s_mul_i32 s69, s{sWAVE}, 2112")
    a("s_mov_b32 exec_hi, 1")
    for r in range(4):
        for (srd_, base) in ((SWR, P1_WR), (SWI, P1_WI)):
            a(f"s_add_u32 m0, s69, {base + 528*r}")
            a(f"buffer_load_dwordx4 v3, {S4(srd_)}, s67 offen lds")
        if r < 3: a(f"s_add_u32 s67, s67, {64*514}")
    a("s_mov_b32 exec_hi, -1")
    a("v_and_b32 v9, 15, v2")
    w_special_pre(a)
    a("v_bfe_u32 v7, v0, 2, 6")
    a("v_and_b32 v6, 3, v2")
    a("v_lshlrev_b32 v8, 13, v7")
    a("v_lshl_add_u32 v8, v6, 4, v8")
    a(f"s_lshl_b32 s72, s{sC2}, 6")
    a(f"s_add_u32 s72, s72, s{sN2}")
    a("s_lshl_b32 s72, s72, 6")
    a(f"s_add_u32 s72, s72, {F_Z}")
    a("s_mov_b64 s[64:65], s[70:71]")
    a("s_waitcnt vmcnt(0)")
    hbar(a, 10, 4)
    w_relayout(a)
    tag_ready(a)
    if TOUCH_FR == 0:
        a("s_mov_b64 s[70:71], s[64:65]")
        touch_w1_issue(a)
    arrive(a, 3, [69], 0 if TOUCH_FR else 1, 4)
    a(f"v_mov_b32 v12, {CNT + 12}")
    wait_word(a, 12, 4, sleep=0)
    a.fence()
    a(f"s_branch {L2}")
    a.label(L1)
    a.reset_state()
    touch_w1_issue(a)
    if TOUCH_FR:
        a(f"s_sub_u32 s70, s70, {64*3584}")
        touch_w1_issue(a)
    if CODEPF:
        a(f"s_cmp_lg_u32 s{sIDX}, 1")
        a("s_cbranch_scc1 L_nocpf")
        a("v_lshlrev_b32 v152, 7, v2")
        a(f"s_lshl_b32 s73, s{sWAVE}, 13")
        for j in range(2):
            a(f"buffer_load_dword v153, v152, {S4(STB)}, s73 offen")
            if j < 1: a("s_add_u32 s73, s73, 32768")
        a.fence()
        a.label("L_nocpf")
        a.reset_state()
    tag_ready(a)
    a("s_waitcnt vmcnt(0)")
    a.fence()
    a.label(L2)
    a.reset_state()
    stamp(a, 'ea1')
    a(f"v_mov_b32 v12, {CNT + 44}")
    wait_word(a, 12, 4)

def w_special_pre(a):
    SP = 140
    a(f"s_lshl_b32 s66, s{sC2}, 10")
    a(f"s_add_u32 s66, s66, s{sN2}")
    a("v_lshlrev_b32 v10, 6, v9")
    a("v_add_u32 v10, s66, v10")
    a("v_sub_u32 v11, 2048, v10")
    a("v_and_b32 v11, 2047, v11")
    a("v_bfe_u32 v144, v2, 4, 1")
    a("v_lshlrev_b32 v145, 9, v144")
    a("s_movk_i32 s68, 514")
    a("v_mad_u32_u24 v11, v11, s68, v145")
    for i in range(4): a(f"v_mov_b32 v{SP+i}, 0")
    a(f"s_cmp_eq_u32 s{sWAVE}, 0")
    a("s_cselect_b32 s68, 0, 0x7fffffff")
    a("s_mov_b32 exec_hi, 0")
    a(f"buffer_load_short_d16_hi v{SP+2}, v11, {S4(SWR)}, s68 offen")
    a(f"buffer_load_short_d16_hi v{SP+3}, v11, {S4(SWI)}, s68 offen")
    a("s_mov_b32 exec_hi, -1")
def w_relayout(a):
    WR, WI, SP = 16, 32, 140
    a(f"s_lshl_b32 s67, s{sN2}, 1")
    a("s_and_b32 s67, s67, 15")
    a("v_mul_u32_u24 v14, 2112, v6")
    a("v_lshl_add_u32 v14, v7, 1, v14")
    a("v_add_u32 v14, s67, v14")
    a("v_mul_u32_u24 v10, 528, v9")
    a("v_add_u32 v10, v10, v145")
    a("v_add_u32 v10, s67, v10")
    for i in range(16): a(f"v_mov_b32 v{WI+i}, 0")
    for z in range(4):
        for e in range(4):
            a(f"ds_read_u16 v{WR+4*z+e}, v14 offset:{P1_WR + e*528 + 128*z}")
            a(f"ds_read_u16_d16_hi v{WI+4*z+e}, v14 offset:{P1_WI + e*528 + 128*z}")
    a(f"ds_read_u16_d16_hi v{SP}, v10 offset:{P1_WR}")
    a(f"ds_read_u16_d16_hi v{SP+1}, v10 offset:{P1_WI}")
    a(f"s_sub_u32 s69, s72, {F_Z}")
    a(f"s_add_u32 s70, s69, {WS_WT}")
    a(f"s_add_u32 s69, s69, {F_W}")
    for i in range(16): a(f"v_or_b32 v{WR+i}, v{WR+i}, v{WI+i}")
    for z in (1, 2, 3):
        a(f"s_add_u32 s71, s70, {z*64*8192}")
        a(f"buffer_store_dwordx4 {vr(WR+4*z,4)}, v8, {S4(SWS)}, s71 offen {ST}")
    a("v_cmp_ne_u32 vcc, 0, v7")
    a("s_and_saveexec_b64 s[76:77], vcc")
    a(f"buffer_store_dwordx4 {vr(WR,4)}, v8, {S4(SWS)}, s70 offen {ST}")
    a("s_mov_b64 exec, s[76:77]")
    a(f"v_add_f32 v{SP}, v{SP}, v{SP+2}")
    a(f"v_sub_f32 v{SP+1}, v{SP+1}, v{SP+3}")
    a(f"ds_swizzle_b32 v{SP+2}, v{SP} offset:0x401F")
    a(f"ds_swizzle_b32 v{SP+3}, v{SP+1} offset:0x401F")
    a("v_lshlrev_b32 v15, 31, v144")
    a(f"v_xor_b32 v{SP}, v15, v{SP}")
    a(f"v_xor_b32 v{SP+1}, v15, v{SP+1}")
    a(f"v_add_f32 v{SP}, v{SP}, v{SP+2}")
    a(f"v_add_f32 v{SP+1}, v{SP+1}, v{SP+3}")
    a(f"v_mul_f32 v{SP}, 0x3e800000, v{SP}")
    a(f"v_mul_f32 v{SP+1}, 0x3e800000, v{SP+1}")
    a(f"v_cvt_pk_bf16_f32 v{SP+2}, v{SP}, v{SP+1}")
    a("v_lshlrev_b32 v14, 21, v144")
    a("v_lshl_add_u32 v14, v9, 2, v14")
    a("s_add_u32 s68, s68, s70")
    a("s_mov_b32 exec_hi, 0")
    a(f"buffer_store_dword v{SP+2}, v14, {S4(SWS)}, s68 offen {ST}")
    a("s_mov_b32 exec_hi, -1")

def wait_vm_untracked(a, toks):
    a.wait_tok(*toks)

def part_write(a, base_v0, base_v1, off0):
    pass

def flag_g(a):
    a(f"s_lshl_b32 s73, s{sC2}, 6")
    a(f"s_add_u32 s73, s73, s{sN2}")
    a("s_lshl_b32 s73, s73, 6")
    a(f"s_and_b32 s78, s{sIDX}, 1")
    a("s_lshl_b32 s78, s78, 13")
    a("s_add_u32 s73, s73, s78")
    a(f"s_add_u32 s73, s73, {F_G}")

def gen(a):
    tb1, ti1 = table_dwords(1); tb2, ti2 = table_dwords(2)
    TB2OFF = len(tb1) * 4
    a.raw(f".globl {NAME}\n.p2align 8\n.type {NAME},@function\n{NAME}:")
    a("s_cmp_ge_u32 s2, 256")
    a("s_cbranch_scc1 L_end")
    if STAMPS:
        for i in range(11): a(f"s_mov_b64 s[{80+2*i}:{81+2*i}], 0")
        stamp(a, 'start')
    a("s_load_dwordx16 s[64:79], s[0:1], 0")
    a("s_load_dwordx4 s[4:7], s[0:1], 64")
    a("s_load_dwordx2 s[60:61], s[0:1], 88")
    a(f"s_getpc_b64 s[{STB}:{STB+1}]")
    a.raw("Lpc0:")
    a(f"s_sub_u32 s{STB}, s{STB}, Lpc0-{NAME}")
    a(f"s_subb_u32 s{STB+1}, s{STB+1}, 0")
    a(f"s_and_b32 s{STB+1}, s{STB+1}, 0xffff")
    a(f"s_mov_b32 s{STB+2}, TABLES-{NAME}+{(len(tb1) + len(tb2)) * 4}")
    a(f"s_mov_b32 s{STB+3}, 0x00020000")
    a("v_lshrrev_b32 v1, 6, v0")
    a("v_and_b32 v2, 63, v0")
    a(f"v_readfirstlane_b32 s{sWAVE}, v1")
    a("v_lshlrev_b32 v3, 4, v2")
    for r in range(4, 16): a(f"v_mov_b32 v{r}, 0")
    a(f"s_and_b32 s{sXCD}, s2, 7")
    a(f"s_lshr_b32 s{sIDX}, s2, 3")
    a(f"s_lshl_b32 s{sN2}, s{sXCD}, 3")
    a("s_bfe_u32 s3, s2, 0x30004")
    a(f"s_add_u32 s{sN2}, s{sN2}, s3")
    a(f"s_lshr_b32 s{sC2}, s2, 7")
    a(f"s_max_u32 s3, s{sIDX}, 4")
    a("s_sub_u32 s3, s3, 4")
    a(f"s_mul_i32 s{sDT1}, s3, 37")
    a(f"s_lshr_b32 s{sDT1}, s{sDT1}, 8")
    a(f"s_mul_i32 s{sFT1}, s{sDT1}, 7")
    a(f"s_sub_u32 s{sFT1}, s3, s{sFT1}")
    a(f"s_lshl_b32 s58, s{sDT1}, 1")
    a(f"s_mul_i32 s59, s{sFT1}, {ROT2}")
    a("s_add_u32 s58, s58, s59")
    a(f"s_mul_i32 s58, s58, {2 * ROT}")
    a(f"s_and_b32 s3, s{sXCD}, 1")
    a("s_lshl_b32 s3, s3, 2")
    a(f"s_add_u32 s{sDT1}, s{sDT1}, s3")
    a(f"s_lshr_b32 s{sDT2}, s{sIDX}, 3")
    a(f"s_add_u32 s{sDT2}, s{sDT2}, s3")
    a(f"s_lshr_b32 s3, s{sXCD}, 1")
    a(f"s_lshl_b32 s{sST2}, s3, 3")
    a("s_mul_i32 s3, s3, 7")
    a(f"s_add_u32 s{sFT1}, s{sFT1}, s3")
    a(f"s_and_b32 s3, s{sIDX}, 7")
    a(f"s_add_u32 s{sST2}, s{sST2}, s3")
    a(f"s_lshl_b32 s62, s{sC2}, 10")
    a(f"s_add_u32 s62, s62, s{sN2}")
    a(f"s_and_b32 s59, s{sWAVE}, 3")
    a("s_lshl_b32 s63, s59, 8")
    a("s_add_u32 s62, s62, s63")
    a("s_lshl_b32 s62, s62, 10")
    a("s_lshl_b32 s59, s59, 12")
    a(f"s_add_u32 s59, s59, {P1_XR}")
    srd(a, SX, 64, S * D * 2)
    a(f"s_cmp_lt_u32 s{sWAVE}, 4")
    a("s_cbranch_scc1 L_xdone")
    a("s_setprio 3")
    a(f"s_bitcmp1_b32 s{sIDX}, 0")
    a("s_cbranch_scc1 L_xdma")
    for r in range(4):
        a(f"s_add_u32 s63, s62, {65536*r}")
        a(f"buffer_load_dwordx4 {vr(LX + 4*r, 4)}, v3, {S4(SX)}, s63 offen")
    a("s_branch L_xdone")
    snapx = a.snapshot()
    a.label("L_xdma")
    for r in range(4):
        a(f"s_add_u32 s63, s62, {65536*r}")
        a(f"s_add_u32 m0, s59, {1024*r}")
        a(f"buffer_load_dwordx4 v3, {S4(SX)}, s63 offen lds")
    a.label("L_xdone")
    a.restore(snapx)
    srd(a, SGW, 4, 1024)
    srd(a, SWR, 66, S * 514)
    srd(a, SWI, 68, S * 514)
    srd(a, SW1, 72, S * F * 2)
    srd(a, SW2, 76, S * F * 2)
    srd(a, SB2, 78, S * 2)
    srd(a, SOUT, 6, S * D * 2)
    srd(a, SWS, 60, WS_BYTES)
    a("s_mov_b64 s[4:5], s[74:75]")
    a(f"s_add_u32 s6, s60, {WS_FLG + F_EP}")
    a("s_addc_u32 s7, s61, 0")
    a(f"v_mov_b32 v100, {CNT}")
    for q in range(4): a(f"ds_write_b128 v100, v[4:7] offset:{16*q}")
    a(f"s_and_b32 s{sROT}, s58, 15")
    a("s_mov_b32 s64, s59")
    a(f"s_lshl_b32 s58, s{sFT1}, 7")
    a(f"s_lshl_b32 s63, s{sWAVE}, 4")
    a("s_add_u32 s63, s63, s58")
    a("s_add_u32 s4, s4, s63")
    a("s_addc_u32 s5, s5, 0")
    a.wait_all(vm=False)
    a(f"s_load_dword s{sTAG}, s[6:7], 0")
    a(f"s_cmp_lt_u32 s{sWAVE}, 4")
    a.fence()
    a("s_cbranch_scc1 L_gwave")
    a(f"s_bitcmp1_b32 s{sIDX}, 0")
    a("s_cbranch_scc1 L_p1fft")
    snap = a.snapshot()
    phase1_ln(a)
    a.fence()
    a("s_branch L_p1done")
    a.restore(snap)
    a.label("L_p1fft")
    phase1_fft(a, ti1)
    a.fence()
    a.label("L_p1done")
    a.reset_state()
    a(f"s_cmp_lt_u32 s{sIDX}, 4")
    a("s_cbranch_scc1 L_fft")
    a("s_branch L_g1help")
    a.label("L_gwave")
    a.reset_state()
    touch_w1(a, t=(150, 151))
    stamp(a, 'ea0')
    a("s_barrier")
    g_prologue(a)
    a(f"s_cmp_ge_u32 s{sIDX}, 4")
    a("s_cbranch_scc1 L_g1")
    a(f"s_lshl_b32 s70, s{sWAVE}, 10")
    for j in range(15):
        if j == 14: a("s_min_u32 s70, s70, 1024")
        a(f"s_add_u32 m0, s70, {FB_TB + j*4096}")
        a(f"s_add_u32 s71, s70, TABLES-{NAME}+{TB2OFF + j*4096}")
        a(f"buffer_load_dwordx4 v3, {S4(STB)}, s71 offen lds")
    a.fence()
    a("s_branch L_fft2")
    a.label("L_g1")
    a.reset_state()
    a("s_load_dwordx4 s[64:67], s[4:5], 0")
    gemm_lane_consts(a, 64 * 3584)
    a(f"s_mul_i32 s62, s{sWAVE}, {512*3584}")
    a(f"s_lshl_b32 s63, s{sFT1}, 7")
    a("s_add_u32 s62, s62, s63")
    a(f"s_lshl_b32 s{sA0}, s{sDT1}, 18")
    a(f"s_lshl_b32 s63, s{sWAVE}, 16")
    a(f"s_add_u32 s{sA0}, s{sA0}, s63")
    if WS_HT: a(f"s_add_u32 s{sA0}, s{sA0}, {WS_HT}")
    slots1 = [(x + 4) % 8 for x in range(16)]
    NR = min(NREG, NR1)
    kinds1 = ['pre'] * 8 + ['reg'] * NR + ['dma'] * (8 - NR)
    g1 = Gemm(a, 16, slots1, kinds1, SW1, 62, 3584, 4 * 3584, True)
    for sg in range(8 + NR - NB1 - NB2): g1.emit_w(sg)
    stamp(a, 'pre4')
    a(f"s_lshr_b32 s72, s{sWAVE}, 1")
    a("s_lshl_b32 s72, s72, 12")
    a(f"s_add_u32 s72, s72, {WS_FLG + F_H}")
    a.vm = a.vm[-8:]
    gpoll(a, [(72, 64)], vt=(12, 13, 16, 17), behind=(lambda: [g1.emit_w(sg) for sg in range(8 + NR - NB1 - NB2, 8 + NR - NB2)]) if NB1 else None)
    g1.tok = {}
    stamp(a, 'b4')
    slots2 = [4, 5, 6, 7, 0, 1, 2, 3, 4, 5, 6, 7, 0, 1]
    kinds2 = ['pre'] * 8 + ['reg'] * NREG + ['dma'] * (6 - NREG)
    g2 = Gemm(a, 14, slots2, kinds2, SW2, 63, 8 * 4096, 32 * 4096, False, vw=(14, 15), rot=77)
    def w2_consts():
        wlane(a, 14, 15, 4096, 12, 13)
        a(f"s_and_b32 s76, s{sWAVE}, 3")
        a(f"s_lshl_b32 s{sRING}, s76, 15")
        a(f"s_mul_i32 s63, s76, {448*4096}")
        a(f"s_lshl_b32 s76, s{sST2}, 7")
        a("s_add_u32 s63, s63, s76")
        a(f"s_and_b32 s77, s{sDT2}, 3")
        a("s_lshl_b32 s77, s77, 1")
        a(f"s_and_b32 s76, s{sST2}, 7")
        a(f"s_mul_i32 s76, s76, {ROT2}")
        a("s_add_u32 s77, s77, s76")
        a(f"s_mul_i32 s77, s77, {7 * ROT}")
        a("s_lshr_b32 s77, s77, 2")
        a("s_sub_u32 s76, s77, 14")
        a("s_min_u32 s77, s77, s76")
    w2_consts()
    a(f"s_lshl_b32 s76, s{sWAVE}, 2")
    a(f"s_add_u32 s76, s76, {CNT + 16}")
    a("v_mov_b32 v12, s76")
    def extra(sig):
        if sig == W2SIG: return [lambda: a("ds_write_b32 v12, v12")]
        return []
    g1.run(extra, post=lambda: [g1.emit_w(sg) for sg in range(8 + NR - NB2, 8 + NR)])
    stamp(a, 'loop1')
    for blk in range(16): a(f"ds_write_b128 v7, {vr(ACC + blk*4, 4)} offset:{blk*1024}")
    a.wait_all(vm=False)
    a.fence()
    a("s_branch L_g1red")
    a.label("L_g1help")
    a.reset_state()
    a("s_load_dwordx4 s[64:67], s[4:5], 0")
    a("s_setprio 0")
    gate(a)
    g_gen(a)
    w2_consts()
    a(f"s_lshl_b32 s76, s{sWAVE}, 2")
    a(f"s_add_u32 s76, s76, {CNT}")
    a("v_mov_b32 v12, s76")
    wait_word(a, 12, 1)
    touch_w2(a)
    a.fence()
    a.label("L_g1red")
    a.reset_state()
    a("s_waitcnt lgkmcnt(0)")
    a("s_barrier")
    stamp(a, 'b5')
    a(f"s_lshr_b32 s68, s{sWAVE}, 1")
    a("s_lshl_b32 s68, s68, 12")
    a(f"s_and_b32 s69, s{sWAVE}, 1")
    a("s_lshl_b32 s69, s69, 9")
    a("s_add_u32 s68, s68, s69")
    a("v_lshrrev_b32 v12, 4, v2")
    a("v_lshlrev_b32 v12, 10, v12")
    a("v_and_b32 v13, 15, v2")
    a("v_lshl_add_u32 v12, v13, 4, v12")
    a("v_add_u32 v12, s68, v12")
    a(f"v_add_u32 v13, {2*RING}, v12")
    E = 16
    for w in range(4):
        for hh in range(2):
            a(f"ds_read_b128 {vr(E + w*8 + hh*4, 4)}, v{12 + (w >> 1)} offset:{(w & 1)*RING + hh*256}")
    for e in range(4):
        a(f"s_lshl_b32 s{68+2*e}, s{64+e}, 16")
        a(f"s_and_b32 s{69+2*e}, s{64+e}, 0xffff0000")
    for e in range(8): a(f"v_add_f32 v{E+e}, v{E+e}, v{E+8+e}")
    for e in range(8): a(f"v_add_f32 v{E+16+e}, v{E+16+e}, v{E+24+e}")
    for e in range(8): a(f"v_add_f32 v{E+e}, v{E+e}, v{E+16+e}")
    def rnd(X, T):
        for q in range(4): a(f"v_cvt_pk_bf16_f32 v{T+q}, v{X+2*q}, v{X+2*q+1}")
        for q in range(4): unpack(a, X + 2*q, X + 2*q + 1, T + q)
    rnd(E, E + 8)
    for e in range(8): a(f"v_add_f32 v{E+e}, s{68+e}, v{E+e}")
    rnd(E, E + 8)
    c0 = -2.0 * math.log2(math.e) * math.sqrt(2.0 / math.pi); c1 = c0 * 0.044715
    a(f"v_mov_b32 v{E+24}, 0x{f2u(c0):08x}")
    a(f"s_mov_b32 s76, 0x{f2u(c1):08x}")
    for e in range(8): a(f"v_mul_f32 v{E+8+e}, v{E+e}, v{E+e}")
    for e in range(8): a(f"v_fma_f32 v{E+8+e}, v{E+8+e}, s76, v{E+24}")
    for e in range(8): a(f"v_mul_f32 v{E+8+e}, v{E+8+e}, v{E+e}")
    for e in range(8): a(f"v_exp_f32 v{E+8+e}, v{E+8+e}")
    for e in range(8): a(f"v_add_f32 v{E+8+e}, 1.0, v{E+8+e}")
    for e in range(8): a(f"v_rcp_f32 v{E+8+e}, v{E+8+e}")
    for e in range(8): a(f"v_mul_f32 v{E+e}, v{E+e}, v{E+8+e}")
    for q in range(4): a(f"v_cvt_pk_bf16_f32 v{E+8+q}, v{E+2*q}, v{E+2*q+1}")
    a(f"s_mul_i32 s68, s{sDT1}, {224*1024}")
    a(f"s_lshl_b32 s69, s{sFT1}, 3")
    a(f"s_add_u32 s69, s69, s{sWAVE}")
    a("s_lshl_b32 s69, s69, 10")
    a("s_add_u32 s68, s68, s69")
    a(f"s_add_u32 s68, s68, {WS_UT}")
    a(f"buffer_store_dwordx4 {vr(E+8,4)}, v3, {S4(SWS)}, s68 offen {ST}")
    a(f"s_lshl_b32 s72, s{sDT1}, 5")
    a(f"s_add_u32 s72, s72, s{sFT1}")
    a("s_lshl_b32 s72, s72, 6")
    a(f"s_add_u32 s72, s72, {F_U}")
    stamp(a, 'ust')
    a("s_barrier")
    a.fence()
    a("s_branch L_pub2")
    a.label("L_fft")
    a.reset_state()
    a("s_setprio 0")
    gate(a)
    a.fence()
    a.label("L_fft2")
    a.reset_state()
    fft_block(a, ti2, TB2OFF)
    w2_consts()
    a(f"s_cmp_ge_u32 s{sWAVE}, 4")
    a("s_cbranch_scc1 L_fhelp")
    gemm_lane_consts(a, 4096)
    a.fence()
    a("s_branch L_pub2")
    a.label("L_fhelp")
    arrive(a, 1, [72], 0, 8, lowprio=True)
    g_gen(a)
    a.fence()
    a("s_branch L_g2help2")
    a.label("L_pub2")
    a.reset_state()
    a(f"s_cmp_ge_u32 s{sWAVE}, 4")
    a("s_cbranch_scc1 L_g2help")
    snap3 = a.snapshot()
    g2.tok = {}
    for sg in range(0, 2): g2.emit_w(sg)
    arrive(a, 1, [72], 8, 8, lowprio=True)
    for sg in range(2, 8 + NREG - NB1 - NB2): g2.emit_w(sg)
    a(f"s_mul_i32 s{sA0}, s{sDT2}, {224*1024}")
    a(f"s_mul_i32 s61, s{sWAVE}, {56*1024}")
    a(f"s_add_u32 s{sA0}, s{sA0}, s61")
    a(f"s_add_u32 s{sA0}, s{sA0}, {WS_UT}")
    stamp(a, 'pre7')
    a("s_barrier")
    a(f"s_lshl_b32 s72, s{sDT2}, 11")
    a(f"s_mul_i32 s73, s{sWAVE}, {7*64}")
    a("s_add_u32 s72, s72, s73")
    a(f"s_add_u32 s72, s72, {WS_FLG + F_U}")
    fg_off(a, 69)
    a.vm = a.vm[-8:]
    gpoll(a, [(72, 7), (69, 64)], vt=(12, 13, 16, 17), behind=(lambda: [g2.emit_w(sg) for sg in range(8 + NREG - NB1 - NB2, 8 + NREG - NB2)]) if NB1 else None)
    g2.tok = {}
    stamp(a, 'b7')
    gb_load(a, 12, 13, 16)
    g2.run(post=lambda: [g2.emit_w(sg) for sg in range(8 + NREG - NB2, 8 + NREG)])
    stamp(a, 'loop2')
    a("v_lshrrev_b32 v4, 5, v2")
    a("v_lshlrev_b32 v4, 6, v4")
    a("v_xor_b32 v4, v4, v7")
    a("v_xor_b32 v5, 128, v4")
    for mt in range(4):
        for t in range(4):
            a(f"ds_write_b128 v{4 + (mt & 1)}, {vr(ACC + (mt*4+t)*4, 4)} offset:{8192 + (mt*4+t)*1024}")
    a("v_mov_b32 v10, v12")
    a("v_mov_b32 v11, v13")
    a.wait_all(vm=False)
    a.fence()
    a("s_branch L_g2red")
    a.restore(snap3)
    a.label("L_g2help")
    a("s_setprio 3")
    arrive(a, 1, [72], 0, 8)
    a.fence()
    a.label("L_g2help2")
    a.reset_state()
    a(f"s_setprio {DFTPRIO}")
    a("s_barrier")
    dft_part(a)
    a("s_setprio 0")
    a.fence()
    a.label("L_g2red")
    a.reset_state()
    a("v_lshrrev_b32 v4, 3, v0")
    a(f"s_lshl_b32 s68, s{sST2}, 6")
    a("v_add_u32 v5, s68, v4")
    a("v_and_b32 v6, 7, v0")
    a("v_lshrrev_b32 v7, 1, v6")
    a("v_lshlrev_b32 v7, 12, v7")
    a("v_lshrrev_b32 v8, 4, v4")
    a("v_lshl_add_u32 v7, v8, 10, v7")
    a("v_and_b32 v8, 1, v6")
    a("v_lshl_add_u32 v7, v8, 9, v7")
    a("v_and_b32 v8, 3, v6")
    a("v_lshlrev_b32 v8, 2, v8")
    a("v_and_b32 v9, 15, v4")
    a("v_xor_b32 v8, v8, v9")
    a("v_lshl_add_u32 v7, v8, 4, v7")
    a(f"v_add_u32 v8, {2*RING}, v7")
    a(f"v_add_u32 v12, {AP}, v7")
    a("v_lshlrev_b32 v9, 10, v5")
    a("v_lshl_add_u32 v9, v6, 4, v9")
    a(f"s_lshl_b32 s70, s{sDT2}, 7")
    a("s_barrier")
    stamp(a, 'b8')
    B_, A_ = 16, 48
    for w in range(4):
        for hh in range(2):
            a(f"ds_read_b128 {vr(B_ + w*8 + hh*4, 4)}, v{7 + (w >> 1)} offset:{(w & 1)*RING + 8192 + hh*256}")
    for w in range(2):
        for hh in range(2):
            a(f"ds_read_b128 {vr(A_ + w*8 + hh*4, 4)}, v12 offset:{w*16384 + hh*256}")
    for e in range(8): a(f"v_add_f32 v{B_+e}, v{B_+e}, v{B_+8+e}")
    for e in range(8): a(f"v_add_f32 v{B_+16+e}, v{B_+16+e}, v{B_+24+e}")
    for e in range(8): a(f"v_add_f32 v{B_+e}, v{B_+e}, v{B_+16+e}")
    for e in range(8): a(f"v_add_f32 v{A_+e}, v{A_+e}, v{A_+8+e}")
    rnd(B_, B_ + 8)
    for e in range(8): a(f"v_mul_f32 v{A_+e}, 0x36000000, v{A_+e}")
    for e in range(8): a(f"v_add_f32 v{B_+e}, v{B_+e}, v11")
    rnd(A_, A_ + 8)
    rnd(B_, B_ + 8)
    a("v_sub_f32 v12, 1.0, v10")
    a("v_cvt_pk_bf16_f32 v12, v12, v12")
    a("v_lshlrev_b32 v12, 16, v12")
    for e in range(8): a(f"v_mul_f32 v{A_+e}, v{A_+e}, v10")
    for e in range(8): a(f"v_mul_f32 v{B_+e}, v{B_+e}, v12")
    rnd(A_, A_ + 8)
    rnd(B_, B_ + 8)
    for e in range(8): a(f"v_add_f32 v{A_+e}, v{A_+e}, v{B_+e}")
    for q in range(4): a(f"v_cvt_pk_bf16_f32 v{B_+q}, v{A_+2*q}, v{A_+2*q+1}")
    a(f"buffer_store_dwordx4 {vr(B_,4)}, v9, {S4(SOUT)}, s70 offen")
    a(f"s_or_b32 s71, s2, s{sWAVE}")
    a("s_cmp_lg_u32 s71, 0")
    a("s_cbranch_scc1 L_noep")
    a(f"s_mov_b32 s72, {F_EP}")
    set_flag(a, 72)
    a.fence()
    a.label("L_noep")
    stamp_flush(a)
    a.label("L_end")
    a("s_endpgm")
    return np.concatenate([tb1, tb2])

def fg_off(a, d):
    a(f"s_lshr_b32 s{d}, s{sST2}, 4")
    a(f"s_lshl_b32 s{d}, s{d}, 12")
    a(f"s_add_u32 s{d}, s{d}, {WS_FLG + F_G}")
def gb_load(a, vg, vb, t):
    a(f"v_lshrrev_b32 v{t}, 3, v0")
    a(f"s_lshr_b32 s69, s{sST2}, 4")
    a("s_lshl_b32 s69, s69, 12")
    a(f"s_and_b32 s70, s{sST2}, 15")
    a("s_lshl_b32 s70, s70, 2")
    a("s_add_u32 s69, s69, s70")
    a(f"s_add_u32 s69, s69, {WS_G}")
    a(f"v_lshlrev_b32 v{t+1}, 6, v{t}")
    a(f"buffer_load_dword v{vg}, v{t+1}, {S4(SWS)}, s69 offen {LD}")
    a(f"v_mov_b32 v{vb}, 0")
    a(f"v_lshlrev_b32 v{t}, 1, v{t}")
    a(f"s_lshl_b32 s70, s{sST2}, 7")
    a(f"buffer_load_short_d16_hi v{vb}, v{t}, {S4(SB2)}, s70 offen")
YF, GF, AC = 48, 112, 16
def g_gen(a):
    a(f"s_bfe_u32 s70, s{sWAVE}, 0x10001")
    a(f"s_and_b32 s71, s{sWAVE}, 1")
    a("v_and_b32 v4, 15, v2")
    a("v_lshrrev_b32 v5, 4, v2")
    a(f"s_lshl_b32 s62, s{sDT2}, 6")
    a("v_add_u32 v7, s62, v4")
    a("v_cvt_f32_u32 v8, v7")
    a("v_mul_f32 v8, 0x3b000000, v8")
    for mt in range(1, 4): a(f"v_add_f32 v{8+mt}, 0x3d000000, v{7+mt}")
    a("s_lshl_b32 s62, s70, 7")
    a("v_lshlrev_b32 v12, 2, v5")
    a("v_add_u32 v12, s62, v12")
    a("v_cvt_f32_u32 v12, v12")
    ANG, D13 = 240, 244
    for mt in range(4):
        a(f"v_mul_f32 v{ANG+mt}, v{8+mt}, v12")
        a(f"v_mul_f32 v{D13+mt}, 0x41500000, v{8+mt}")
    for ks in range(8):
        for e in range(4):
            for mt in range(4):
                t0 = 248 + 2 * mt
                a(f"v_cos_f32 v{t0}, v{ANG+mt}")
                a(f"v_sin_f32 v{t0+1}, v{ANG+mt}")
                if not (ks == 7 and e == 3): a(f"v_add_f32 v{ANG+mt}, v{ANG+mt}, v{(D13 if e == 3 else 8) + mt}")
            for mt in range(4):
                t0 = 248 + 2 * mt
                a(f"v_cvt_pk_bf16_f32 v{GF + (ks*4+mt)*4 + e}, v{t0}, -v{t0+1}")
        if ks == 0:
            a("v_and_b32 v13, 1, v2")
            a("v_lshlrev_b32 v13, 31, v13")
            a("v_or_b32 v13, 0x3f003f00, v13")
            a("s_cmp_eq_u32 s70, 0")
            a("s_cselect_b32 s76, 0xffff, 0")
            a("s_mov_b32 s77, 0")
            for mt in range(4): a(f"v_cndmask_b32 v{GF + mt*4}, v{GF + mt*4}, v13, s[76:77]")
def dft_part(a):
    M = "v_mfma_f32_16x16x32_bf16"
    a(f"s_bfe_u32 s64, s{sWAVE}, 0x10001")
    a(f"s_and_b32 s65, s{sWAVE}, 1")
    a("v_and_b32 v4, 15, v2")
    a("v_lshrrev_b32 v5, 4, v2")
    a("v_lshlrev_b32 v6, 15, v5")
    a("v_lshl_add_u32 v6, v4, 4, v6")
    a("s_lshl_b32 s62, s64, 10")
    a(f"s_add_u32 s62, s62, {F_Y}")
    a("s_lshl_b32 s66, s64, 20")
    a(f"s_lshl_b32 s67, s{sST2}, 10")
    a("s_add_u32 s66, s66, s67")
    a("s_lshl_b32 s67, s65, 9")
    a("s_add_u32 s66, s66, s67")
    a(f"s_add_u32 s66, s66, {WS_Y1}")
    a(f"s_add_u32 s62, s62, {WS_FLG}")
    fg_off(a, 63)
    if YSLEEP0: a(f"s_sleep {YSLEEP0}")
    gpoll(a, [(62, 16), (63, 64)], vt=(12, 13, 14, 15), sleep=YSLEEP)
    stamp(a, 'loop2')
    gb_load(a, 10, 11, 12)
    for ks in range(8):
        for t in range(2):
            a(f"buffer_load_dwordx4 {vr(YF + (ks*2+t)*4, 4)}, v6, {S4(SWS)}, s66 offen offset:{t*256} {LD}")
        if ks < 7: a("s_add_u32 s66, s66, 131072")
    for ks in range(8):
        for mt in range(4):
            for t in range(2):
                acc = vr(AC + (mt*2+t)*4, 4)
                a(f"{M} {acc}, {vr(GF + (ks*4+mt)*4, 4)}, {vr(YF + (ks*2+t)*4, 4)}, {'0' if ks == 0 else acc}")
    a("s_lshl_b32 s66, s64, 14")
    a("s_lshl_b32 s67, s65, 11")
    a("s_add_u32 s66, s66, s67")
    a(f"s_add_u32 s66, s66, {AP}")
    a("v_lshrrev_b32 v12, 5, v2")
    a("v_lshlrev_b32 v12, 6, v12")
    a("v_xor_b32 v12, v12, v3")
    a("v_add_u32 v12, s66, v12")
    a("v_xor_b32 v13, 128, v12")
    for mt in range(4):
        for t in range(2):
            a(f"ds_write_b128 v{12 + (mt & 1)}, {vr(AC + (mt*2+t)*4, 4)} offset:{(mt*4+t)*1024}")
    a.wait_all()

def fft_block(a, ti, tboff):
    M = "v_mfma_f32_32x32x16_bf16"
    PK, VA, VB, VT, CF, TMP = 16, 48, 112, 176, 208, 240
    a(f"s_lshl_b32 s62, s{sXCD}, 2")
    a(f"s_add_u32 s62, s62, s{sIDX}")
    a("s_lshl_b32 s63, s62, 3")
    a(f"s_add_u32 s63, s63, s{sWAVE}")
    a("v_and_b32 v4, 31, v2")
    a("v_lshrrev_b32 v5, 5, v2")
    a(f"s_lshl_b32 s66, s{sWAVE}, 13")
    a("v_lshrrev_b32 v6, 4, v2")
    a("v_xor_b32 v6, v6, v2")
    a("v_and_b32 v6, 3, v6")
    a("v_lshlrev_b32 v6, 4, v6")
    a("v_lshrrev_b32 v7, 2, v2")
    a("v_lshl_add_u32 v6, v7, 6, v6")
    a("v_bfe_u32 v7, v2, 2, 2")
    a("v_xor_b32 v8, v7, v5")
    a("v_lshlrev_b32 v8, 4, v8")
    a("v_lshl_add_u32 v8, v4, 6, v8")
    a("v_add_u32 v8, s66, v8")
    a("v_xor_b32 v9, 32, v8")
    a(f"v_add_u32 v10, {FB_TB}, v3")
    a("s_cmp_eq_u32 s63, 0")
    a(f"s_cselect_b32 s67, {(ti['P1re0'] - ti['S1re0']) * 1024}, 0")
    a("v_add_u32 v14, s67, v10")
    a("v_lshlrev_b32 v11, 10, v5")
    a("v_lshl_add_u32 v11, v4, 2, v11")
    a("v_add_u32 v11, s66, v11")
    def dma8(base, ks, ldsbase="s66"):
        a(f"s_lshl_b32 s68, s{ks}, 13")
        a(f"s_add_u32 s68, s68, {base}")
        t = []
        for j in range(8):
            a(f"s_add_u32 m0, {ldsbase}, {j*1024}")
            t.append(a(f"buffer_load_dwordx4 v6, {S4(SWS)}, s68 offen {LD} lds"))
            if j < 7: a("s_add_u32 s68, s68, 1024")
        return t
    tab = lambda reg, nm, base=10: f"ds_read_b128 {vr(reg,4)}, v{base} offset:{ti[nm]*1024}"
    TWO = TMP + 14
    a(f"s_cmp_lt_u32 s{sWAVE}, 4")
    a(f"s_cselect_b32 s68, {FB_WG}, 0")
    a("v_add_u32 v12, s68, v8")
    a("v_add_u32 v13, s68, v9")
    a(f"s_cmp_eq_u32 s{sWAVE}, 4")
    a.fence()
    a("s_cbranch_scc1 L_fpollz")
    a(f"s_cmp_eq_u32 s{sWAVE}, 5")
    a("s_cbranch_scc1 L_fpollw")
    a(f"s_cmp_ge_u32 s{sWAVE}, 4")
    a("s_cbranch_scc1 L_fgo")
    a("s_waitcnt vmcnt(0)")
    lds_inc(a, 15, t=(20, 21))
    a.fence()
    a("s_branch L_fgo")
    a.label("L_fpollw")
    a.reset_state()
    a(f"s_mov_b32 s68, {F_W}")
    poll(a, 68, 128, vt=20)
    a(f"v_mov_b32 v20, {CNT}")
    wait_word(a, 20, 4, tv=21)
    lds_inc(a, 13, t=(20, 21))
    for w in range(4):
        a(f"s_sub_u32 s69, s63, {5 - w}")
        a(f"s_mov_b32 s70, {FB_WG + w*8192}")
        dma8(WS_WT, 69, "s70")
    a.fence()
    a("s_branch L_fgo")
    a.label("L_fpollz")
    a.reset_state()
    a(f"s_mov_b32 s68, {F_Z}")
    poll(a, 68, 128, vt=20)
    lds_inc(a, 14, t=(20, 21))
    a.fence()
    a.label("L_fgo")
    a.reset_state()
    stamp(a, 'pre4')
    a(f"v_mov_b32 v20, {CNT + 60}")
    wait_word(a, 20, 4, tv=21, sleep=1)
    a(f"v_mov_b32 v20, {CNT + 56}")
    wait_word(a, 20, 1, tv=21, sleep=1)
    stamp(a, 'b4')
    tz = dma8(WS_Z, 63)
    for c in range(4):
        a(tab(CF + c * 4, f'S1re{c}', 14)); a(tab(CF + 16 + c * 4, f'S1im{c}', 14))
    for mt in range(2):
        for pr in range(4): a(tab(VT + (mt * 4 + pr) * 4, f'F1_{mt}_{pr}'))
    for c in range(4):
        a.wait_tok(*tz[(c >> 1) * 4: (c >> 1) * 4 + 4])
        for mt in range(2):
            a(f"ds_read_b128 {vr(PK + (mt*4+c)*4, 4)}, v{8 + (c & 1)} offset:{(c >> 1)*4096 + mt*2048}")
    a(f"s_cmp_eq_u32 s{sWAVE}, 5")
    a.wait_all(); a.fence()
    a("s_cbranch_scc0 L_fnot5")
    lds_inc(a, 15 - 8, t=(240, 241))
    a.fence()
    a.label("L_fnot5")
    a(f"s_cmp_lt_u32 s{sWAVE}, 4")
    a("s_cbranch_scc1 L_fcomp")
    a(f"v_mov_b32 v240, {CNT + 52}")
    wait_word(a, 240, 1, tv=241, sleep=0)
    dma8(WS_WT, 63)
    a.fence()
    a.label("L_fcomp")
    a.reset_state()
    D = lambda base, x, ri: base + (x * 2 + ri) * 16
    for c in range(4):
        for mt in range(2):
            for ri in range(2):
                acc = vr(D(VA, mt, ri), 16)
                a(f"{M} {acc}, {vr(PK + (mt*4+c)*4, 4)}, {vr(CF + ri*16 + c*4, 4)}, {'0' if c == 0 else acc}")
    PKR = lambda x, ri, u: PK + ((x * 2 + ri) * 2 + u) * 4
    WSL = [[0, 4, 1, 5], [2, 6, 3, 7]]
    Wr = lambda p, i: VT + 4 * WSL[p][i >> 2] + (i & 3)
    P2 = lambda r: f"v[{r}:{r+1}]"
    NEG0 = "neg_lo:[1,0,0] neg_hi:[1,0,0]"; NEG2 = "neg_lo:[0,0,1] neg_hi:[0,0,1]"
    a(f"v_mov_b32 v{TWO}, 2.0"); a(f"v_mov_b32 v{TWO+1}, 2.0")
    G2 = [('E', 0, 0), ('OF', 1, 0), ('E', 0, 1), ('OF', 1, 1)]
    G3 = [('E', 0, 0), ('E', 0, 1), ('OI', 1, 0), ('OI', 1, 1)]
    G4 = G2
    groups = [(g, 2) for g in G2] + [(g, 3) for g in G3] + [(g, 4) for g in G4]
    def cload(k):
        if k >= len(groups): return []
        (t, x, u), st = groups[k]
        return [tab(CF + (k & 1) * 12 + 4 * n, f'{t}{y}{u}') for n, y in enumerate('csn')]
    seen = set()
    def mgroup(k):
        (t, x, u), st = groups[k]
        out = VB if st in (2, 4) else VA
        inv = st != 2
        fr = lambda y: vr(CF + (k & 1) * 12 + 4 * 'csn'.index(y), 4)
        r = []
        for (ro, cx, ri) in ((0, 'c', 0), (1, 's' if inv else 'n', 0), (0, 'n' if inv else 's', 1), (1, 'c', 1)):
            acc = vr(D(out, x, ro), 16); dat = vr(PKR(x, ri, u), 4)
            A_, B_ = (dat, fr(cx)) if st == 3 else (fr(cx), dat)
            c = acc if (st, x, ro) in seen else '0'
            seen.add((st, x, ro))
            r.append(f"{M} {acc}, {A_}, {B_}, {c}")
        return r
    def mix(ks, valu):
        ms = []
        for k in ks: ms += [(m, (k if i == 3 else None)) for i, m in enumerate(mgroup(k))]
        n = len(ms); per = -(-len(valu) // n) if valu else 0
        vi = 0
        for m, k in ms:
            a(m)
            if k is not None:
                for l in cload(k + 2): a(l)
            for l in valu[vi:vi + per]: a(l)
            vi += per
    def pack(base, x, u):
        return [f"v_cvt_pk_bf16_f32 v{PKR(x, ri, u) + q}, v{D(base, x, ri) + 8*u + 2*q}, v{D(base, x, ri) + 8*u + 2*q + 1}"
                for ri in range(2) for q in range(4)]
    def wread1(p, q, off=0): return f"ds_read_b128 {vr(Wr(p, 4*q), 4)}, v{12 + (q & 1)} offset:{off + (q >> 1)*4096 + p*2048}"
    def twx(u, inv, refill):
        o = []
        sg = lambda fwd: (NEG0 if (fwd != inv) else "")
        for pr in range(4):
            i = 8 * u + 2 * pr
            t0r, t0i, t1r, t1i = (P2(D(VA, x, ri) + i) for x in range(2) for ri in range(2))
            if inv: s0 = s1 = Wr(u, 4 * pr)
            else: s0, s1 = VT + 4 * pr, VT + 16 + 4 * pr
            c0, sn0, c1, sn1 = P2(s0), P2(s0 + 2), P2(s1), P2(s1 + 2)
            A, B = P2(TMP + 4 * (pr & 1)), P2(TMP + 4 * (pr & 1) + 2)
            o += [f"v_pk_mul_f32 {A}, {t0r}, {c0}", f"v_pk_mul_f32 {B}, {t0i}, {c0}",
                  f"v_pk_fma_f32 {A}, {t0i}, {sn0}, {A} {sg(False)}", f"v_pk_fma_f32 {B}, {t0r}, {sn0}, {B} {sg(True)}",
                  f"v_pk_fma_f32 {t0r}, {t1r}, {c1}, {A}", f"v_pk_fma_f32 {t0i}, {t1i}, {c1}, {B}",
                  f"v_pk_fma_f32 {t0r}, {t1i}, {sn1}, {t0r} {sg(False)}", f"v_pk_fma_f32 {t0i}, {t1r}, {sn1}, {t0i} {sg(True)}",
                  f"v_pk_fma_f32 {t1r}, {A}, {P2(TWO)}, {t0r} {NEG2}", f"v_pk_fma_f32 {t1i}, {B}, {P2(TWO)}, {t0i} {NEG2}"]
            o += refill(pr)
            o += [f"v_cvt_pk_bf16_f32 v{PKR(x, ri, u) + pr}, v{D(VA, x, ri) + i}, v{D(VA, x, ri) + i + 1}" for x in range(2) for ri in range(2)]
        return o
    def tw1(u):
        if u == 0: return twx(0, False, lambda pr: [tab(VT + (mt * 4 + pr) * 4, f'F1_{mt}_{4 + pr}') for mt in range(2)])
        return twx(1, False, lambda pr: [])
    def tw2(u): return twx(u, True, lambda pr: [])
    def xw(p, t2=True, packit=True):
        o = []
        for pr in range(8):
            i = 2 * pr
            xr, xi, w = P2(D(VB, p, 0) + i), P2(D(VB, p, 1) + i), Wr(p, i)
            b = TMP + 6 * (pr & 1)
            wr, wi, t = P2(b), P2(b + 2), P2(b + 4)
            o += [f"v_lshlrev_b32 v{b}, 16, v{w}", f"v_lshlrev_b32 v{b+1}, 16, v{w+1}",
                  f"v_and_b32 v{b+2}, 0xffff0000, v{w}", f"v_and_b32 v{b+3}, 0xffff0000, v{w+1}",
                  f"v_pk_mul_f32 {t}, {xr}, {wi}", f"v_pk_mul_f32 {xr}, {xr}, {wr}",
                  f"v_pk_fma_f32 {xr}, {xi}, {wi}, {xr} {NEG0}", f"v_pk_fma_f32 {xi}, {xi}, {wr}, {t}"]
            if t2 and (pr & 1): o.append(tab(Wr(p, i & ~3), f'F2_{4 * p + (pr >> 1)}'))
            if packit:
                o += [f"v_cvt_pk_bf16_f32 v{PKR(p, ri, pr >> 2) + (pr & 3)}, v{D(VB, p, ri) + i}, v{D(VB, p, ri) + i + 1}" for ri in range(2)]
        return o
    def wread(p): return [wread1(p, q) for q in range(4)]
    for l in cload(0) + cload(1): a(l)
    stamp(a, 'zin')
    for l in tw1(0): a(l)
    mix([0, 1], tw1(1))
    a("s_waitcnt vmcnt(0)")
    a(f"v_mov_b32 v15, {CNT + 28}")
    wait_word(a, 15, 1, tv=7, sleep=0)
    stamp(a, 'win')
    for l in wread(0) + wread(1): a(l)
    if FFT_W2:
        touch_w2_8(a)
    a("s_cmp_lg_u32 s67, 0")
    a.wait_all(vm=False); a.fence()
    a("s_cbranch_scc1 L_fspecial")
    snap = a.snapshot(); seen0 = set(seen)
    x0 = xw(0)
    mix([2], [])
    mix([3], x0[:24])
    for l in x0[24:]: a(l)
    stamp(a, 'loop1')
    mix([4, 5], xw(1))
    mix([6, 7], [])
    a.wait_all(vm=False); a.fence()
    a("s_branch L_fjoin")
    a.restore(snap); seen.clear(); seen.update(seen0)
    a.label("L_fspecial")
    a("s_movk_i32 s71, 256")
    a(f"s_mov_b32 s72, {FB_WG}")
    dma8(WS_WT, 71, "s72")
    mix([2, 3], [])
    a("v_lshlrev_b32 v15, 8, v5")
    a("v_add_u32 v15, v15, v4")
    a("v_lshlrev_b32 v15, 2, v15")
    joff = lambda p, i: (32 * p + 64 * (8 * (i >> 2) + (i & 3))) * 4
    MAXO = joff(1, 15)
    a(f"v_sub_u32 v7, {8192 - MAXO}, v15")
    a("v_cmp_eq_u32 vcc, 0, v2")
    for ri in range(2):
        for p in range(2):
            for i in range(16): a(f"ds_write_b32 v15, v{D(VB,p,ri)+i} offset:{joff(p, i)}")
        a.wait_all(vm=False)
        for p in range(2):
            for i in range(16): a(f"ds_read_b32 v{D(VA,p,ri)+i}, v7 offset:{MAXO - joff(p, i)}")
        a.wait_all(vm=False)
        a(f"v_cndmask_b32 v{D(VA,0,ri)}, v{D(VA,0,ri)}, v{D(VB,0,ri)}, vcc")
    for l in xw(0, False, False) + xw(1, False, False): a(l)
    a("s_waitcnt vmcnt(0)")
    for l in wread(0) + wread(1): a(l)
    for p in range(2):
        for pr in range(8):
            i = 2 * pr
            vr_, vi_, w = P2(D(VB, p, 0) + i), P2(D(VB, p, 1) + i), Wr(p, i)
            mr, mi = P2(D(VA, p, 0) + i), P2(D(VA, p, 1) + i)
            b = TMP + 4 * (pr & 1)
            wr, wi = P2(b), P2(b + 2)
            for l in [f"v_lshlrev_b32 v{b}, 16, v{w}", f"v_lshlrev_b32 v{b+1}, 16, v{w+1}",
                      f"v_and_b32 v{b+2}, 0xffff0000, v{w}", f"v_and_b32 v{b+3}, 0xffff0000, v{w+1}",
                      f"v_pk_fma_f32 {vr_}, {mr}, {wr}, {vr_}", f"v_pk_fma_f32 {vi_}, {mr}, {wi}, {vi_}",
                      f"v_pk_fma_f32 {vr_}, {mi}, {wi}, {vr_}", f"v_pk_fma_f32 {vi_}, {mi}, {wr}, {vi_} {NEG0}"]: a(l)
            if pr & 1: a(tab(Wr(p, i & ~3), f'F2_{4 * p + (pr >> 1)}'))
    for x in range(2):
        for u in range(2):
            for l in pack(VB, x, u): a(l)
    stamp(a, 'loop1')
    mix([4, 5, 6, 7], [])
    a.wait_all(vm=False); a.fence()
    a.label("L_fjoin")
    a.reset_state()
    for l in tw2(0): a(l)
    mix([8, 9], tw2(1))
    def outp(nt):
        o = []
        for i in range(16):
            r = TMP + (i & 7)
            o += [f"v_cvt_pk_bf16_f32 v{r}, v{D(VB,nt,0)+i}, v{D(VB,nt,1)+i}",
                  f"ds_write_b32 v11, v{r} offset:{(64*(8*(i>>2) + (i&3)) + 32*nt)*4}"]
        return o
    mix([10], [])
    o0 = outp(0)
    mix([11], o0[:16])
    for l in o0[16:] + outp(1): a(l)
    a.wait_all(vm=False)
    stamp(a, 'f2')
    a("s_barrier")
    a("v_lshlrev_b32 v12, 2, v0")
    a("v_lshlrev_b32 v13, 4, v0")
    a("s_lshl_b32 s68, s62, 16")
    a(f"s_add_u32 s68, s68, {WS_Y1}")
    for z in range(8):
        o = (z >> 2) * 128 + (z & 3) * 8
        a(f"ds_read2st64_b32 {vr(64 + z*4, 2)}, v12 offset0:{o} offset1:{o+32}")
        a(f"ds_read2st64_b32 {vr(66 + z*4, 2)}, v12 offset0:{o+64} offset1:{o+96}")
    for z in range(8):
        a(f"buffer_store_dwordx4 {vr(64 + z*4, 4)}, v13, {S4(SWS)}, s68 offen {ST}")
        if z < 7: a("s_add_u32 s68, s68, 8192")
    a("s_lshl_b32 s72, s62, 6")
    a(f"s_add_u32 s72, s72, {F_Y}")
    stamp(a, 'ust')
    a("s_barrier")
    a.fence()

def build():
    a = Asm()
    head = HEADER + (f"; STK {','.join(STK)}\n" if STAMPS else "") + f"; @launch grid=(256,1,1) block=(512,1,1) lds={LDS_TOTAL}\n"
    head += '.amdgcn_target "amdgcn-amd-amdhsa--gfx950"\n.text\n'
    tb = gen(a)
    body = a.text() + ".p2align 8\nTABLES:\n"
    for i in range(0, len(tb), 8):
        body += ".long " + ",".join(f"0x{x:x}" for x in tb[i:i+8]) + "\n"
    body += f""".section .rodata,"a"
.p2align 6
.amdhsa_kernel {NAME}
  .amdhsa_next_free_vgpr 256
  .amdhsa_next_free_sgpr 102
  .amdhsa_accum_offset 256
  .amdhsa_group_segment_fixed_size 0
  .amdhsa_kernarg_size 96
  .amdhsa_user_sgpr_count 2
  .amdhsa_user_sgpr_kernarg_segment_ptr 1
  .amdhsa_system_sgpr_workgroup_id_x 1
.end_amdhsa_kernel
"""
    return head + body, a.stats
if __name__ == "__main__":
    t, st = build()
    open(sys.argv[1], "w").write(t)
    print(len(t), "bytes", st)
```

```python
import sys, os, math, struct
sys.path.insert(0, "work")
from asmlib import *
from design import *

NAME = "gated_mix__spectral_gfnet__mixer_token_mlp__prompt_kernel"
HEADER = open("gated_mix__spectral_gfnet__mixer_token_mlp__prompt.s.ref").read().split("; @launch")[0]
ENV = lambda k, d: type(d)(os.environ.get(k, d))
STAMPS = ENV("STAMPS", 0)
ST = ENV("STMOD", "sc1")
LD = ENV("LDMOD", "sc1")
PA = ENV("PA", 3)
NREG = 9 - PA
W2_EARLY = ENV("W2_EARLY", 1)
POLL_MAX = 50000
OST = ENV('OST', '').replace('_', ' ')
TBIT = ENV('TBIT', 0)
SPREAD = ENV('SPREAD', 0)
PFH = ENV('PFH', 0)
PFU = ENV('PFU', 0)
HSLEEP = ENV('HSLEEP', 12)
USLEEP = ENV('USLEEP', 12)
TBWAIT = ENV('TBWAIT', 0)
FFT_T1 = ENV('FFT_T1', 1)
MAP1 = ENV('MAP1', 24)
MAP2 = ENV('MAP2', 24)
YSLEEP0 = ENV('YSLEEP0', 0)
TOUCH_FR = ENV('TOUCH_FR', 0)
DRY = ENV('DRY', 4)
ZLD = ENV('ZLD', ' ')
CODEPF = ENV('CODEPF', 0)
HALF_T = ENV('HALF_T', 1)
W_AFTER = ENV('W_AFTER', 1)
YSLEEP = ENV('YSLEEP', 40)
FFT_W2 = ENV('FFT_W2', 1)
PM = ENV('PM', 'sc1')
PSLEEP = ENV('PSLEEP', 2)
DFTPRIO = ENV('DFTPRIO', 0)
W2SIG = ENV('W2SIG', 13)
NB1 = ENV('NB1', 3)
NB2 = ENV('NB2', 3)
NB3 = 0
NB4 = 0
EARLY2 = ENV('EARLY2', 1)
NR1 = ENV('NR1', 99)
FFT_PUB_FIRST = ENV('FFT_PUB_FIRST', 0)
WS_FLG = 0xC00000
F_H, F_Z, F_U, F_Y, F_EP, F_W, F_G, F_X = 0, 8192, 16384, 32768, 40960, 49152, 57344, 65536
WS_DBG = 0x8000000
WS_BYTES = 0x10000000
MIXC = "op_sel_hi:[0,1,0]"
MIXS = "op_sel:[0,1,0] op_sel_hi:[0,1,0]"
f2u = lambda f: struct.unpack("<I", struct.pack("<f", f))[0]
SX, SWR, SWI, SGW, SWS, STB, SW1, SW2, SOUT, SB2 = 8, 12, 16, 20, 24, 28, 32, 36, 40, 44
sWAVE, sXCD, sIDX, sTAG, sN2, sC2, sDT1, sFT1, sDT2, sST2 = 48, 49, 50, 51, 52, 53, 54, 55, 56, 57
RING = 32768
AP = 4 * RING
LDS_TOTAL = 163840
FB_TB, FB_WG = 65536, 65536 + 59392

def srd(a, d, base, nbytes):
    a(f"s_mov_b32 s{d}, s{base}")
    a(f"s_and_b32 s{d+1}, s{base+1}, 0xffff")
    a(f"s_mov_b32 s{d+2}, {nbytes}")
    a(f"s_mov_b32 s{d+3}, 0x00020000")
def S4(d): return f"s[{d}:{d+3}]"
STK = ENV("STK", "start,xin,p1c,p1st,pre4,b4,loop1,ust,pre7,loop2,end").split(",")
def stamp(a, n):
    if STAMPS and n in STK:
        i = STK.index(n)
        a(f"s_memrealtime s[{80+2*i}:{81+2*i}]")
def stamp_flush(a):
    if not STAMPS: return
    a("s_waitcnt vmcnt(0)")
    stamp(a, 'end')
    a("s_waitcnt lgkmcnt(0)")
    for i in range(11): a(f"v_mov_b32 v{240+i}, s{80+2*i}")
    a("s_lshl_b32 s60, s2, 3")
    a(f"s_add_u32 s60, s60, s{sWAVE}")
    a("s_lshl_b32 s60, s60, 6")
    a(f"s_add_u32 s60, s60, {WS_DBG}")
    a("v_mov_b32 v239, 0")
    if ENV("DBG", 0):
        a("s_load_dwordx2 s[64:65], s[0:1], 80")
        a("s_waitcnt lgkmcnt(0)")
        srd(a, 68, 64, 256)
        a("v_not_b32 v238, v240")
        a("s_mov_b64 exec, 1")
        a(f"buffer_atomic_umax v238, v239, s[68:71], 0 offen")
        for i in range(1, 11): a(f"buffer_atomic_umax v{240+i}, v239, s[68:71], 0 offen offset:{4*i}")
        a(f"buffer_atomic_umax v240, v239, s[68:71], 0 offen offset:44")
        a("s_mov_b64 exec, -1")
        return
    a("s_mov_b64 exec, 1")
    for q in range(3): a(f"buffer_store_dwordx4 v[{240+4*q}:{243+4*q}], v239, {S4(SWS)}, s60 offen offset:{16*q}")
    a("s_mov_b64 exec, -1")
def dpp_reduce(a, regs):
    for mod in ("quad_perm:[1,0,3,2] row_mask:0xf bank_mask:0xf", "quad_perm:[2,3,0,1] row_mask:0xf bank_mask:0xf",
                "row_half_mirror row_mask:0xf bank_mask:0xf", "row_mirror row_mask:0xf bank_mask:0xf",
                "row_bcast:15 row_mask:0xa bank_mask:0xf", "row_bcast:31 row_mask:0xc bank_mask:0xf"):
        for r in regs: a(f"v_add_f32_dpp v{r}, v{r}, v{r} {mod}")
def unpack(a, lo, hi, src):
    a(f"v_lshlrev_b32 v{lo}, 16, v{src}")
    a(f"v_and_b32 v{hi}, 0xffff0000, v{src}")
_uid = [0]
def uid(p): _uid[0] += 1; return f"L_{p}_{_uid[0]}"

def set_flag(a, off_s):
    a(f"s_add_u32 s{off_s}, s{off_s}, {WS_FLG}")
    a(f"v_mov_b32 v13, s{sTAG}")
    a("v_mov_b32 v14, 0")
    a("s_mov_b64 exec, 1")
    a(f"buffer_store_dword v13, v14, {S4(SWS)}, s{off_s} offen {PM}")
    a("s_mov_b64 exec, -1")

def poll(a, off_s, nflags, vt=13):
    L, Ld = uid("poll"), uid("polld")
    a(f"s_add_u32 s{off_s}, s{off_s}, {WS_FLG}")
    n1 = min(nflags, 64)
    a(f"v_min_u32 v{vt}, {n1-1}, v2")
    a(f"v_lshlrev_b32 v{vt}, 6, v{vt}")
    a(f"s_mov_b32 s79, {POLL_MAX}")
    if nflags > 64: a(f"s_add_u32 s78, s{off_s}, 4096")
    a.wait_all(vm=False); a.fence()
    snap_vm = list(a.vm)
    a.label(L)
    a.auto_wait = False
    a(f"buffer_load_dword v{vt+1}, v{vt}, {S4(SWS)}, s{off_s} offen {PM}")
    if nflags > 64: a(f"buffer_load_dword v{vt+2}, v{vt}, {S4(SWS)}, s78 offen {PM}")
    a("s_sub_u32 s79, s79, 1")
    a("s_waitcnt vmcnt(0)")
    a(f"v_cmp_ne_u32 vcc, s{sTAG}, v{vt+1}")
    if nflags > 64:
        a(f"v_cmp_ne_u32 s[76:77], s{sTAG}, v{vt+2}")
        a("s_nop 1")
        a("s_or_b64 vcc, vcc, s[76:77]")
    else:
        a("s_nop 1")
    a("s_cmp_eq_u64 vcc, 0")
    a(f"s_cbranch_scc1 {Ld}")
    a("s_cmp_eq_u32 s79, 0")
    a(f"s_cbranch_scc1 {Ld}")
    a(f"s_sleep {PSLEEP}")
    a(f"s_branch {L}")
    a.label(Ld)
    a.auto_wait = True
    a.reset_state()

vW0, vW1, vA, vT, vL16 = 4, 5, 6, 8, 3
ACC, WF, AF, RS = 16, 80, 112, 112 + 16 * PA
sRING, sW, sA0, sA, sROT, sSL = 58, 59, 60, 61, 74, 75
ROT = ENV('ROT', 1)
ROT2 = ENV('ROT2', 1)

def poll_pre(a, off, vt):
    a(f"v_lshlrev_b32 v{vt}, 6, v2")
    a(f"s_mov_b32 s78, {WS_FLG + off}")
    a(f"s_mov_b32 s79, {WS_FLG + off + 4096}")
    a(f"buffer_load_dword v{vt+1}, v{vt}, {S4(SWS)}, s78 offen {PM}")
    a(f"buffer_load_dword v{vt+2}, v{vt}, {S4(SWS)}, s79 offen {PM}")
def poll_fin(a, off, vt, off_s):
    L = uid("pf")
    a(f"v_cmp_ne_u32 vcc, s{sTAG}, v{vt+1}")
    a(f"v_cmp_ne_u32 s[76:77], s{sTAG}, v{vt+2}")
    a("s_or_b64 vcc, vcc, s[76:77]")
    a("s_cmp_eq_u64 vcc, 0")
    a.wait_all(); a.fence()
    a(f"s_cbranch_scc1 {L}")
    a(f"s_mov_b32 s{off_s}, {off}")
    poll(a, off_s, 128, vt=vt)
    a.label(L)
    a.reset_state()

def gpoll(a, groups, vt=(12, 13, 250, 251), sleep=None, behind=None):
    L, Ld = uid("gp"), uid("gpd")
    for k, (so, n) in enumerate(groups):
        a(f"v_min_u32 v{vt[k]}, {n-1}, v2")
        a(f"v_lshlrev_b32 v{vt[k]}, 6, v{vt[k]}")
    L2 = uid("gpc")
    after = []
    if behind:
        for k, (so, n) in enumerate(groups):
            a(f"buffer_load_dword v{vt[2+k]}, v{vt[k]}, {S4(SWS)}, s{so} offen {PM}")
        n0 = len(a.vm)
        behind()
        after = a.vm[n0:] if len(a.vm) < 63 else None
        assert after is not None
        a(f"s_waitcnt vmcnt({len(after)})")
        a(f"s_mov_b32 s79, {POLL_MAX}")
        a.wait_all(vm=False); a.fence()
        a(f"s_branch {L2}")
    else:
        a(f"s_mov_b32 s79, {POLL_MAX}")
        a.wait_all(vm=False); a.fence()
    a.label(L)
    a.auto_wait = False
    for k, (so, n) in enumerate(groups):
        a(f"buffer_load_dword v{vt[2+k]}, v{vt[k]}, {S4(SWS)}, s{so} offen {PM}")
    a("s_sub_u32 s79, s79, 1")
    a("s_waitcnt vmcnt(0)")
    a.label(L2)
    a(f"v_cmp_ne_u32 vcc, s{sTAG}, v{vt[2]}")
    if len(groups) > 1:
        a(f"v_cmp_ne_u32 s[70:71], s{sTAG}, v{vt[3]}")
        a("s_nop 1")
        a("s_or_b64 vcc, vcc, s[70:71]")
    else:
        a("s_nop 1")
    a("s_cmp_eq_u64 vcc, 0")
    a(f"s_cbranch_scc1 {Ld}")
    a("s_cmp_eq_u32 s79, 0")
    a(f"s_cbranch_scc1 {Ld}")
    a("s_mov_b64 exec, vcc")
    a(f"s_sleep {PSLEEP if sleep is None else sleep}")
    a(f"s_branch {L}")
    a.label(Ld)
    a("s_mov_b64 exec, -1")
    a.auto_wait = True
    a.reset_state()
    a.vm = list(after)

def prefetch_loop(a, groups, sleep):
    L, Ld = uid("pl"), uid("pld")
    a(f"s_mov_b32 s79, {POLL_MAX}")
    a.wait_all(vm=False); a.fence()
    a.label(L)
    a.auto_wait = False
    for k, (pd, vf, sf, vd, sd) in enumerate(groups):
        Ls = uid("pls")
        a(f"s_mov_b64 exec, s[{pd}:{pd+1}]")
        a(f"s_cbranch_execz {Ls}")
        a(f"buffer_load_dword v{14+k}, v{vf}, {S4(SWS)}, s{sf} offen {PM}")
        a.label(Ls)
    a("s_waitcnt vmcnt(0)")
    for k, (pd, vf, sf, vd, sd) in enumerate(groups):
        Ls = uid("pls")
        a(f"s_mov_b64 exec, s[{pd}:{pd+1}]")
        a(f"v_cmp_eq_u32 vcc, s{sTAG}, v{14+k}")
        a("s_nop 1")
        a(f"s_andn2_b64 s[{pd}:{pd+1}], s[{pd}:{pd+1}], vcc")
        a("s_mov_b64 exec, vcc")
        a(f"s_cbranch_execz {Ls}")
        a(f"buffer_load_dword v1, v{vd}, {S4(SWS)}, s{sd} offen")
        a.label(Ls)
    a("s_mov_b64 exec, -1")
    if len(groups) > 1: a(f"s_or_b64 vcc, s[{groups[0][0]}:{groups[0][0]+1}], s[{groups[1][0]}:{groups[1][0]+1}]")
    else: a(f"s_mov_b64 vcc, s[{groups[0][0]}:{groups[0][0]+1}]")
    a("s_cmp_eq_u64 vcc, 0")
    a(f"s_cbranch_scc1 {Ld}")
    a("s_sub_u32 s79, s79, 1")
    a(f"s_cbranch_scc1 {Ld}")
    a(f"s_sleep {sleep}")
    a(f"s_branch {L}")
    a.label(Ld)
    a.auto_wait = True
    a.reset_state()

def prefetch_h(a):
    a(f"s_lshr_b32 s62, s{sXCD}, 1")
    a("s_mul_i32 s62, s62, 7")
    a(f"s_sub_u32 s62, s{sFT1}, s62")
    a("v_lshrrev_b32 v4, 3, v2")
    a("v_mul_u32_u24 v4, 7, v4")
    a("v_add_u32 v4, s62, v4")
    a("v_and_b32 v5, 7, v2")
    a("v_lshlrev_b32 v5, 7, v5")
    a("v_lshlrev_b32 v6, 6, v4")
    a("v_lshl_add_u32 v7, v4, 10, v5")
    a("v_cmp_gt_u32 vcc, 8, v4")
    a("s_mov_b64 s[70:71], -1")
    a("s_mov_b64 s[72:73], vcc")
    a(f"s_bfe_u32 s63, s{sWAVE}, 0x10001")
    a("s_lshl_b32 s63, s63, 12")
    a(f"s_add_u32 s63, s63, {WS_FLG + F_H}")
    a(f"s_add_u32 s68, s63, {56*64}")
    a(f"s_lshl_b32 s69, s{sDT1}, 18")
    a(f"s_and_b32 s76, s{sWAVE}, 3")
    a("s_lshl_b32 s76, s76, 16")
    a("s_add_u32 s69, s69, s76")
    if WS_HT: a(f"s_add_u32 s69, s69, {WS_HT}")
    a(f"s_add_u32 s76, s69, {56*1024}")
    prefetch_loop(a, [(70, 6, 63, 7, 69), (72, 6, 68, 7, 76)], HSLEEP)

def prefetch_u(a):
    a("v_lshrrev_b32 v4, 3, v2")
    a("v_and_b32 v5, 7, v2")
    a("v_lshlrev_b32 v5, 7, v5")
    a("v_lshlrev_b32 v6, 6, v4")
    a("v_lshl_add_u32 v7, v4, 13, v5")
    a("s_mov_b32 s70, -1")
    a("s_mov_b32 s71, 0x00ffffff")
    a(f"s_and_b32 s76, s{sWAVE}, 3")
    a(f"s_lshl_b32 s63, s{sDT2}, 11")
    a(f"s_mul_i32 s68, s76, {7*64}")
    a("s_add_u32 s63, s63, s68")
    a(f"s_add_u32 s63, s63, {WS_FLG + F_U}")
    a(f"s_mul_i32 s69, s{sDT2}, {224*1024}")
    a(f"s_mul_i32 s68, s76, {56*1024}")
    a("s_add_u32 s69, s69, s68")
    a(f"s_and_b32 s68, s{sST2}, 7")
    a("s_lshl_b32 s68, s68, 10")
    a("s_add_u32 s69, s69, s68")
    a(f"s_add_u32 s69, s69, {WS_UT}")
    prefetch_loop(a, [(70, 6, 63, 7, 69)], USLEEP)

def wlane(a, r0, r1, rowstride, t0, t1):
    a(f"v_lshrrev_b32 v{t0}, 3, v2")
    a(f"s_mov_b32 s79, {rowstride}")
    a(f"v_mul_lo_u32 v{r0}, v{t0}, s79")
    a(f"v_bfe_u32 v{t0}, v2, 1, 2")
    a(f"v_bfe_u32 v{t1}, v2, 4, 1")
    a(f"v_xor_b32 v{t0}, v{t0}, v{t1}")
    a(f"v_lshl_add_u32 v{r0}, v{t0}, 5, v{r0}")
    a(f"v_and_b32 v{t0}, 1, v2")
    a(f"v_lshl_add_u32 v{r0}, v{t0}, 4, v{r0}")
    a(f"v_xor_b32 v{r1}, 64, v{r0}")
def gemm_lane_consts(a, rowstride):
    t0, t1 = 12, 13
    a(f"s_lshl_b32 s{sRING}, s{sWAVE}, 15")
    wlane(a, vW0, vW1, rowstride, t0, t1)
    a(f"v_lshrrev_b32 v{t1}, 4, v2")
    a(f"v_lshlrev_b32 v{vA}, 10, v{t1}")
    a(f"v_and_b32 v{t0}, 15, v2")
    a(f"v_lshl_add_u32 v{vA}, v{t0}, 4, v{vA}")
    a(f"v_lshlrev_b32 v{vT}, 10, v{t1}")
    a(f"v_bfe_u32 v{t0}, v2, 2, 2")
    a(f"v_lshl_add_u32 v{vT}, v{t0}, 7, v{vT}")
    a(f"v_bfe_u32 v{t0}, v2, 3, 2")
    a(f"v_lshl_add_u32 v{vT}, v{t0}, 5, v{vT}")
    a(f"v_and_b32 v{t0}, 3, v2")
    a(f"v_lshl_add_u32 v{vT}, v{t0}, 3, v{vT}")
    a(f"v_add_u32 v{vT}, s{sRING}, v{vT}")
    for t in range(1, 4): a(f"v_xor_b32 v{vT+t}, {32*t}, v{vT}")
    a(f"v_add_u32 v7, s{sRING}, v{vL16}")

class Gemm:
    def __init__(s, a, nslab, slots, kinds, srdW, wbase_s, jstep, sstep, w_is_A, vw=(4, 5), rot=74):
        s.vw, s.rot = vw, rot
        s.a, s.n, s.slots, s.kinds, s.srdW, s.wb, s.jstep, s.sstep, s.w_is_A = a, nslab, slots, kinds, srdW, wbase_s, jstep, sstep, w_is_A
        s.tok = {}
        s.regidx = {sg: i for i, sg in enumerate([x for x in range(nslab) if kinds[x] == 'reg'])}
    def wload(s, sig, jj):
        v = s.vw[jj % 2]
        o = []
        if jj == 0:
            o += s.actual(sig, sSL, sW) + [f"s_mul_i32 s{sSL}, s{sSL}, {s.sstep}", f"s_add_u32 s{sSL}, s{sSL}, s{s.wb}"]
        o.append(f"s_add_u32 s{sW}, s{sSL}, {jj * s.jstep}")
        if s.kinds[sig] == 'reg':
            r = RS + s.regidx[sig] * 16 + jj * 4
            o.append(f"buffer_load_dwordx4 {vr(r,4)}, v{v}, {S4(s.srdW)}, s{sW} offen")
        else:
            o.append(f"s_add_u32 m0, s{sRING}, {s.slots[sig]*4096 + jj*1024}")
            o.append(f"buffer_load_dwordx4 v{v}, {S4(s.srdW)}, s{sW} offen lds")
        return o
    def actual(s, sig, d, tmp):
        o = [f"s_add_u32 s{d}, s{s.rot}, {sig}"]
        if s.n == 16: o.append(f"s_and_b32 s{d}, s{d}, 15")
        else: o += [f"s_sub_u32 s{tmp}, s{d}, {s.n}", f"s_min_u32 s{d}, s{d}, s{tmp}"]
        return o
    def emit_w(s, sig, jjs=range(4)):
        if s.w_is_A: stamp(s.a, f"w{sig}")
        for jj in jjs:
            for l in s.wload(sig, jj):
                ins = s.a(l)
                if 'lds' in l and 'buffer' in l: s.tok.setdefault(sig, []).append(ins)
    def aload(s, sig, mt):
        r = AF + (sig % PA) * 16 + mt * 4
        o = []
        if mt == 0: o += s.actual(sig, sA, 73) + [f"s_lshl_b32 s{sA}, s{sA}, 12", f"s_add_u32 s{sA}, s{sA}, s{sA0}"]
        o.append(f"buffer_load_dwordx4 {vr(r,4)}, v{vA}, {S4(SWS)}, s{sA} offen offset:{mt*256} {LD}")
        return o
    def trreads(s, sig):
        out = []
        for t in range(4):
            for u in range(2):
                r = WF + (sig & 1) * 16 + t * 4 + 2 * u
                out.append(f"ds_read_b64_tr_b16 {vr(r,2)}, v{vT+t} offset:{s.slots[sig]*4096 + u*512}")
        return out
    def run(s, extra=None, drain_first=False, post=None, pwrite=None):
        a = s.a; M = "v_mfma_f32_16x16x32_bf16"
        for sig in range(min(PA, s.n)):
            for mt in range(4):
                for l in s.aload(sig, mt): a(l)
        if post: post()
        if drain_first: a.wait_tok(a.vm[0])
        a.wait_tok(*s.tok.get(0, []))
        rt = {0: [a(l) for l in s.trreads(0)]}
        wr = {}; done = []
        for sig in range(s.n):
            stamp(a, f"g{1 if s.w_is_A else 2}_{sig}")
            nxt = [x for x in range(sig + 1, s.n) if s.slots[x] == s.slots[sig] and s.kinds[x] != 'pre']
            fill = nxt[0] if nxt else None
            groups = [[] for _ in range(16)]
            trn = s.trreads(sig + 1) if sig + 1 < s.n else []
            for i, l in enumerate(trn): groups[6 + i].append(('tr', l))
            if fill is not None:
                for jj in range(4):
                    if s.kinds[fill] == 'reg':
                        r = RS + s.regidx[fill] * 16 + jj * 4
                        groups[jj].append(('wr', f"ds_write_b128 v7, {vr(r,4)} offset:{s.slots[fill]*4096 + jj*1024}"))
                    else:
                        groups[jj].append(('dma', jj))
            if sig + PA < s.n:
                for mt in range(4): groups[12 + mt].append(('act', mt))
            ex = extra(sig) if extra else []
            for i, g in enumerate(ex): groups[min(15, 1 + i * 14 // max(1, len(ex)))].append(('ex', g))
            if fill is not None or ex: a.wait_tok(*rt[sig])
            rt[sig + 1] = []
            k = 0
            for t in range(4):
                for mt in range(4):
                    wf = vr(WF + (sig & 1) * 16 + t * 4, 4); af = vr(AF + (sig % PA) * 16 + mt * 4, 4)
                    if s.w_is_A: acc = vr(ACC + (t * 4 + mt) * 4, 4); A_, B_ = wf, af
                    else:        acc = vr(ACC + (mt * 4 + t) * 4, 4); A_, B_ = af, wf
                    a(f"{M} {acc}, {A_}, {B_}, {'0' if sig == 0 else acc}")
                    for kind, x in groups[k]:
                        if kind == 'tr':
                            if not rt[sig + 1]: a.wait_tok(*s.tok.get(sig + 1, []), *wr.get(sig + 1, []))
                            rt[sig + 1].append(a(x))
                        elif kind == 'wr': wr.setdefault(fill, []).append(a(x))
                        elif kind == 'dma': s.emit_w(fill, [x])
                        elif kind == 'act':
                            for l in s.aload(sig + PA, x): a(l)
                        elif kind == 'ex': x()
                    if pwrite and sig == s.n - 1:
                        done.append((t * 4 + mt) if s.w_is_A else (mt * 4 + t))
                        if k >= 8: a(pwrite(done[k - 8]))
                    k += 1
        if pwrite:
            for b in done[8:]: a(pwrite(b))

P1_EX, P1_GX, CNT, P1_TB = AP, AP + 16384, LDS_TOTAL - 64, AP + 21504
P1_XR = P1_EX
P1_WR, P1_WI = 0, 32768
LX, LF, LP, LGW = 16, 32, 64, 96
def hbar(a, cnt, target):
    a.wait_all(vm=False)
    a(f"v_mov_b32 v12, {CNT + 4*cnt}")
    a("v_mov_b32 v13, 1")
    a("s_mov_b64 exec, 1")
    a("ds_add_u32 v12, v13")
    a("s_mov_b64 exec, -1")
    wait_word(a, 12, target, sleep=0)

def phase1_ln(a):
    F = lambda r, e: LF + 8 * r + e
    P = lambda r, e: LP + 8 * r + e
    R = range(4)
    a(f"buffer_load_dwordx4 {vr(LGW,4)}, v3, {S4(SGW)}, 0 offen")
    stamp(a, 'ea0')
    a("s_barrier")
    a("v_mov_b32 v108, 0x3b000000")
    a("v_lshlrev_b32 v11, 5, v2")
    a("v_add_u32 v11, s64, v11")
    a("v_and_b32 v4, 255, v0")
    a("v_lshlrev_b32 v4, 2, v4")
    a(f"v_add_u32 v4, {P1_EX}, v4")
    a(f"s_lshl_b32 s72, s{sC2}, 6")
    a(f"s_add_u32 s72, s72, s{sN2}")
    a("s_lshl_b32 s72, s72, 6")
    a("s_lshl_b32 s70, s72, 4")
    a(f"s_lshl_b32 s71, s{sC2}, 16")
    a("s_add_u32 s70, s70, s71")
    a(f"s_and_b32 s71, s{sWAVE}, 3")
    a(f"s_lshl_b32 s71, s71, 18")
    a("s_add_u32 s70, s70, s71")
    if WS_HT: a(f"s_add_u32 s70, s70, {WS_HT}")
    if F_H: a(f"s_add_u32 s72, s72, {F_H}")
    S_, T_, M_, V_, M2, V2 = 100, 104, 112, 116, 152, 160
    P2 = lambda r: f"v[{r}:{r+1}]"
    NEG1 = "neg_lo:[0,1] neg_hi:[0,1]"
    SP_ = 168
    for r in R:
        for q in range(4): unpack(a, F(r, 2*q), F(r, 2*q+1), LX + 4*r + q)
        if r == 0: stamp(a, 'xin')
        a(f"v_pk_add_f32 {P2(SP_+4*r)}, {P2(F(r,0))}, {P2(F(r,2))}")
        a(f"v_pk_add_f32 {P2(SP_+4*r+2)}, {P2(F(r,4))}, {P2(F(r,6))}")
        a(f"v_pk_add_f32 {P2(SP_+4*r)}, {P2(SP_+4*r)}, {P2(SP_+4*r+2)}")
        a(f"v_add_f32 v{S_+r}, v{SP_+4*r}, v{SP_+4*r+1}")
    dpp_reduce(a, [S_ + r for r in R])
    for r in R: a(f"v_readlane_b32 s{64+r}, v{S_+r}, 63")
    for r in R:
        a(f"v_mul_f32 v{M2+2*r}, s{64+r}, v108"); a(f"v_mul_f32 v{M2+2*r+1}, s{64+r}, v108")
    for q in range(4):
        for r in R: a(f"v_pk_add_f32 {P2(P(r,2*q))}, {P2(F(r,2*q))}, {P2(M2+2*r)} {NEG1}")
        for r in R:
            if q == 0: a(f"v_pk_mul_f32 {P2(SP_+2*r)}, {P2(P(r,0))}, {P2(P(r,0))}")
            else: a(f"v_pk_fma_f32 {P2(SP_+2*r)}, {P2(P(r,2*q))}, {P2(P(r,2*q))}, {P2(SP_+2*r)}")
    for r in R: a(f"v_add_f32 v{S_+r}, v{SP_+2*r}, v{SP_+2*r+1}")
    for r in R:
        a(f"v_cvt_pk_bf16_f32 v{T_+r}, v{M2+2*r}, v{M2+2*r}")
    for r in R: unpack(a, M2 + 2*r, M2 + 2*r + 1, T_ + r)
    dpp_reduce(a, [S_ + r for r in R])
    for r in R: a(f"v_readlane_b32 s{64+r}, v{S_+r}, 63")
    def rnd4(X):
        for p in range(2): a(f"v_cvt_pk_bf16_f32 v{T_+p}, v{X+2*p}, v{X+2*p+1}")
        for p in range(2): unpack(a, X + 2*p, X + 2*p + 1, T_ + p)
    sub = [f"v_pk_add_f32 {P2(P(r,2*q))}, {P2(F(r,2*q))}, {P2(M2+2*r)} {NEG1}" for q in range(4) for r in R]
    cv = [f"v_cvt_pk_bf16_f32 v{120 + 4*r + q}, v{P(r,2*q)}, v{P(r,2*q+1)}" for q in range(4) for r in R]
    for l in sub[:4]: a(l)
    for r in R: a(f"v_mul_f32 v{V_+r}, s{64+r}, v108")
    rnd4(V_)
    for r in R: a(f"v_add_f32 v{V_+r}, 0x3727c5ac, v{V_+r}")
    rnd4(V_)
    for r in R: a(f"v_sqrt_f32 v{V_+r}, v{V_+r}")
    for l in sub[4:8]: a(l)
    rnd4(V_)
    for r in R:
        a(f"v_rcp_f32 v{V2+2*r}, v{V_+r}"); a(f"v_rcp_f32 v{V2+2*r+1}, v{V_+r}")
    for l in sub[8:]: a(l)
    for l in cv: a(l)
    for p in range(2):
        for r in (2*p, 2*p+1):
            for q in range(4): unpack(a, P(r, 2*q), P(r, 2*q+1), 120 + 4*r + q)
            for q in range(4): a(f"v_pk_mul_f32 {P2(P(r,2*q))}, {P2(P(r,2*q))}, {P2(V2+2*r)}")
        for e in range(8): a(f"v_cvt_pk_bf16_f32 v{176 + 8*p + e}, v{P(2*p,e)}, v{P(2*p+1,e)}")
        a(f"ds_write_b128 v11, {vr(176 + 8*p, 4)} offset:{2048*p}")
        a(f"ds_write_b128 v11, {vr(180 + 8*p, 4)} offset:{2048*p + 16}")
    stamp(a, 'p1c')
    hbar(a, 8, 4)
    for dh in range(2):
        for cc in range(2):
            for hh in range(2):
                o = 32 * cc + 16 * hh + 4 * dh
                a(f"ds_read2st64_b32 {vr(136 + 8*dh + 4*cc + 2*hh, 2)}, v4 offset0:{o} offset1:{o+8}")
    for dh in range(2):
        for cc in range(2):
            a(f"s_add_u32 s71, s70, {dh * (1 << 20) + cc * 65536}")
            a(f"buffer_store_dwordx4 {vr(136 + 8*dh + 4*cc, 4)}, v3, {S4(SWS)}, s71 offen {ST}")
    stamp(a, 'p1st')
    lds_inc(a, 11)
    tag_ready(a)
    arrive(a, 0, [72], 0, 4)

def lds_inc(a, cnt, t=(12, 13)):
    a(f"v_mov_b32 v{t[0]}, {CNT + 4*cnt}")
    a(f"v_mov_b32 v{t[1]}, 1")
    a("s_mov_b64 exec, 1")
    a(f"ds_add_u32 v{t[0]}, v{t[1]}")
    a("s_mov_b64 exec, -1")
def touch_w1(a, t=(12, 13)):
    if MAP1 == 18:
        a(f"v_lshrrev_b32 v{t[0]}, 2, v2")
        a(f"v_and_b32 v{t[1]}, 3, v2")
        a(f"v_mul_u32_u24 v{t[0]}, 3584, v{t[0]}")
        a(f"v_lshl_add_u32 v{t[0]}, v{t[1]}, 7, v{t[0]}")
        a(f"s_lshl_b32 s70, s{sIDX}, 2")
        a(f"s_add_u32 s70, s70, s{sWAVE}")
        a(f"s_mul_i32 s70, s70, {16*3584}")
        a(f"s_lshr_b32 s71, s{sXCD}, 1")
        a("s_mul_i32 s71, s71, 896")
        a("s_add_u32 s70, s70, s71")
        a(f"s_and_b32 s71, s{sXCD}, 1")
        a("s_mul_i32 s71, s71, 384")
        a("s_add_u32 s70, s70, s71")
        return
    a(f"v_mul_u32_u24 v{t[0]}, 37, v2")
    a(f"v_lshrrev_b32 v{t[0]}, 8, v{t[0]}")
    a(f"v_mul_u32_u24 v{t[1]}, 7, v{t[0]}")
    a(f"v_sub_u32 v{t[1]}, v2, v{t[1]}")
    a(f"v_mul_u32_u24 v{t[0]}, 3584, v{t[0]}")
    a(f"v_lshl_add_u32 v{t[0]}, v{t[1]}, 7, v{t[0]}")
    a(f"s_lshl_b32 s70, s{sIDX}, 2")
    a(f"s_add_u32 s70, s70, s{sWAVE}")
    a(f"s_mul_i32 s70, s70, {16*3584}")
    a(f"s_lshr_b32 s71, s{sXCD}, 1")
    a("s_mul_i32 s71, s71, 896")
    a("s_add_u32 s70, s70, s71")
    a(f"s_and_b32 s71, s{sXCD}, 1")
    a(f"s_mul_i32 s71, s71, {8*3584}")
    a("s_add_u32 s70, s70, s71")
    a(f"s_xor_b32 s71, s71, {8*3584}")
    a("s_add_u32 s71, s71, s70")
    a(f"s_and_b32 s72, s{sXCD}, 1")
    a(f"s_mul_i32 s72, s72, {8*3584}")
    a("s_sub_u32 s71, s71, s72")
def touch_w1_issue(a, t=(150, 151)):
    if MAP1 == 24: a("s_mov_b32 exec_hi, 0x00ffffff")
    a(f"buffer_load_dword v250, v{t[0]}, {S4(SW1)}, s70 offen")
    if not HALF_T: a(f"buffer_load_dword v251, v{t[0]}, {S4(SW1)}, s71 offen")
    a("s_mov_b32 exec_hi, -1")
def touch_w2(a, t=12):
    if MAP2 == 18:
        a(f"v_lshrrev_b32 v{t}, 2, v2")
        a(f"v_lshlrev_b32 v{t}, 12, v{t}")
        a(f"v_and_b32 v{t+1}, 3, v2")
        a(f"v_lshl_add_u32 v{t}, v{t+1}, 7, v{t}")
        a(f"s_lshl_b32 s70, s{sIDX}, 2")
        a(f"s_and_b32 s71, s{sWAVE}, 3")
        a("s_add_u32 s70, s70, s71")
        a(f"s_mul_i32 s70, s70, {14*4096}")
        a(f"s_lshl_b32 s71, s{sXCD}, 9")
        a("s_add_u32 s70, s70, s71")
        a("s_mov_b32 exec_hi, 0x00ffffff")
        a(f"buffer_load_dword v250, v{t}, {S4(SW2)}, s70 offen")
        a("s_mov_b32 exec_hi, -1")
        return
    a(f"v_lshrrev_b32 v{t}, 3, v2")
    a(f"v_lshlrev_b32 v{t}, 12, v{t}")
    a(f"v_and_b32 v{t+1}, 7, v2")
    a(f"v_lshl_add_u32 v{t}, v{t+1}, 7, v{t}")
    a(f"s_lshl_b32 s70, s{sIDX}, 2")
    a(f"s_and_b32 s71, s{sWAVE}, 3")
    a("s_add_u32 s70, s70, s71")
    a(f"s_mul_i32 s70, s70, {14*4096}")
    a(f"s_lshr_b32 s71, s{sXCD}, 1")
    a("s_lshl_b32 s71, s71, 10")
    a("s_add_u32 s70, s70, s71")
    a(f"s_add_u32 s71, s70, {8*4096}")
    a(f"buffer_load_dword v250, v{t}, {S4(SW2)}, s70 offen")
    a("s_mov_b32 exec_hi, 0x0000ffff")
    a(f"buffer_load_dword v251, v{t}, {S4(SW2)}, s71 offen")
    a("s_mov_b32 exec_hi, -1")
def touch_w2_8(a):
    if MAP2 == 18:
        a("v_lshrrev_b32 v15, 2, v2")
        a("v_lshlrev_b32 v15, 12, v15")
        a("v_and_b32 v7, 3, v2")
        a("v_lshl_add_u32 v15, v7, 7, v15")
        a(f"s_lshl_b32 s70, s{sIDX}, 3")
        a(f"s_add_u32 s70, s70, s{sWAVE}")
        a(f"s_mul_i32 s70, s70, {7*4096}")
        a(f"s_lshl_b32 s71, s{sXCD}, 9")
        a("s_add_u32 s70, s70, s71")
        a("s_mov_b64 exec, 0x0fffffff")
        a(f"buffer_load_dword v1, v15, {S4(SW2)}, s70 offen")
        a("s_mov_b64 exec, -1")
        return
    a("v_lshrrev_b32 v15, 3, v2")
    a("v_lshlrev_b32 v15, 12, v15")
    a("v_and_b32 v7, 7, v2")
    a("v_lshl_add_u32 v15, v7, 7, v15")
    a(f"s_lshl_b32 s70, s{sIDX}, 3")
    a(f"s_add_u32 s70, s70, s{sWAVE}")
    a(f"s_mul_i32 s70, s70, {7*4096}")
    a(f"s_lshr_b32 s71, s{sXCD}, 1")
    a("s_lshl_b32 s71, s71, 10")
    a("s_add_u32 s70, s70, s71")
    a("s_mov_b32 exec_hi, 0x00ffffff")
    a(f"buffer_load_dword v1, v15, {S4(SW2)}, s70 offen")
    a("s_mov_b32 exec_hi, -1")
def tag_ready(a):
    a("s_waitcnt lgkmcnt(0)")
    a(f"s_add_u32 s{sTAG}, s{sTAG}, 0x9e3779b9")

def gate(a):
    L = uid("nogate")
    a(f"s_bitcmp1_b32 s{sIDX}, {TBIT}")
    a.fence()
    a(f"s_cbranch_scc1 {L}")
    snap = a.snapshot()
    F = lambda r, e: LF + 8 * r + e
    P = lambda r, e: LP + 8 * r + e
    G, S_ = 16, 100
    R = range(4)
    for q in range(4): unpack(a, G + 2*q, G + 2*q + 1, LGW + q)
    for e in range(8):
        for r in R: a(f"v_mul_f32 v{P(r,e)}, v{F(r,e)}, v{G+e}")
    for p in range(2):
        for e in range(8):
            t = 24 + (e & 3)
            a(f"v_cvt_pk_bf16_f32 v{t}, v{P(2*p,e)}, v{P(2*p+1,e)}")
            unpack(a, P(2*p, e), P(2*p+1, e), t)
    for r in R: a(f"v_add_f32 v{S_+r}, v{P(r,0)}, v{P(r,1)}")
    for e in range(2, 8):
        for r in R: a(f"v_add_f32 v{S_+r}, v{S_+r}, v{P(r,e)}")
    dpp_reduce(a, [S_ + r for r in R])
    def rnd4(X):
        for p in range(2): a(f"v_cvt_pk_bf16_f32 v{104+p}, v{X+2*p}, v{X+2*p+1}")
        for p in range(2): unpack(a, X + 2*p, X + 2*p + 1, 104 + p)
    rnd4(S_)
    for r in R: a(f"v_mul_f32 v{S_+r}, 0xbfb8aa3b, v{S_+r}")
    for r in R: a(f"v_exp_f32 v{S_+r}, v{S_+r}")
    for r in R: a(f"v_add_f32 v{S_+r}, 1.0, v{S_+r}")
    for r in R: a(f"v_rcp_f32 v{S_+r}, v{S_+r}")
    rnd4(S_)
    a(f"s_lshl_b32 s73, s{sC2}, 6")
    a(f"s_add_u32 s73, s73, s{sN2}")
    a("s_lshl_b32 s73, s73, 6")
    a(f"s_and_b32 s79, s{sWAVE}, 3")
    a("s_lshl_b32 s79, s79, 4")
    a("s_add_u32 s78, s73, s79")
    a(f"s_add_u32 s78, s78, {WS_G}")
    a(f"s_add_u32 s73, s73, {F_G}")
    a("v_mov_b32 v104, 0")
    a("s_mov_b32 exec_lo, 0")
    a("s_mov_b32 exec_hi, 0x80000000")
    a(f"buffer_store_dwordx4 {vr(S_,4)}, v104, {S4(SWS)}, s78 offen {ST}")
    a("s_mov_b64 exec, -1")
    arrive(a, 2, [73], 0, 4, lowprio=True)
    a.fence()
    a.label(L)
    a.restore(snap)

def arrive(a, cnt, flags, nvm, nw, t=(12, 13), st=78, lowprio=False):
    L = uid("arr")
    a(f"s_waitcnt vmcnt({nvm})")
    stamp(a, f'arr{cnt}')
    a(f"v_mov_b32 v{t[0]}, {CNT + 4*cnt}")
    a(f"v_mov_b32 v{t[1]}, 1")
    a("s_mov_b64 exec, 1")
    a(f"ds_add_rtn_u32 v{t[1]}, v{t[0]}, v{t[1]}")
    a("s_mov_b64 exec, -1")
    a("s_waitcnt lgkmcnt(0)")
    a(f"v_readfirstlane_b32 s{st}, v{t[1]}")
    a(f"s_cmp_lg_u32 s{st}, {nw-1}")
    a(f"s_cbranch_scc1 {L}")
    snap = a.snapshot()
    if lowprio: a("s_setprio 3")
    a(f"v_mov_b32 v{t[1]}, s{sTAG}")
    a(f"v_mov_b32 v{t[0]}, {WS_FLG}")
    a("s_mov_b64 exec, 1")
    for f in flags: a(f"buffer_store_dword v{t[1]}, v{t[0]}, {S4(SWS)}, s{f} offen {PM}")
    a("s_mov_b64 exec, -1")
    if lowprio: a("s_setprio 0")
    a.fence()
    a.label(L)
    a.restore(snap)
def wait_word(a, vaddr, val, tv=13, st=78, sleep=2):
    L, Ld = uid("wc"), uid("wcd")
    a("s_mov_b32 s79, 200000")
    a.wait_all(vm=False); a.fence()
    a.label(L)
    a.auto_wait = False
    a(f"ds_read_b32 v{tv}, v{vaddr}")
    a("s_waitcnt lgkmcnt(0)")
    a(f"v_readfirstlane_b32 s{st}, v{tv}")
    a(f"s_cmp_ge_u32 s{st}, {val}")
    a(f"s_cbranch_scc1 {Ld}")
    a("s_sub_u32 s79, s79, 1")
    a(f"s_cbranch_scc1 {Ld}")
    if sleep: a(f"s_sleep {sleep}")
    a(f"s_branch {L}")
    a.label(Ld)
    a.auto_wait = True

def phase1_fft(a, ti):
    M = "v_mfma_f32_16x16x32_bf16"
    a(f"s_and_b32 s65, s{sWAVE}, 3")
    a("s_lshl_b32 s66, s65, 10")
    for j in range(3):
        a(f"s_add_u32 s67, s66, {4096*j}")
        if j == 2: a("s_min_u32 s67, s67, 9216")
        a(f"s_add_u32 m0, s67, {P1_TB}")
        a(f"s_add_u32 s67, s67, TABLES-{NAME}")
        d2 = a(f"buffer_load_dwordx4 v3, {S4(STB)}, s67 offen lds")
    a("v_and_b32 v9, 15, v2")
    stamp(a, 'ea0')
    a("s_barrier")
    a("v_lshrrev_b32 v4, 4, v2")
    a("v_lshlrev_b32 v5, 9, v4")
    a("v_lshlrev_b32 v4, 8, v4")
    a("v_lshl_add_u32 v4, v9, 3, v4")
    a("v_add_u32 v4, s64, v4")
    a("v_lshl_add_u32 v5, v9, 2, v5")
    a("v_add_u32 v5, s64, v5")
    a(f"v_add_u32 v14, {P1_TB}, v3")
    a("v_bfe_u32 v7, v0, 2, 6")
    a("v_and_b32 v6, 3, v2")
    a("v_and_b32 v15, 1, v2")
    a("v_cmp_eq_u32 vcc, 1, v15")
    a("v_bfe_u32 v10, v2, 1, 1")
    a("v_lshlrev_b32 v10, 13, v10")
    a(f"v_add_u32 v10, {P1_EX}, v10")
    for z in range(4):
        a(f"v_add_u32 v11, {64*z}, v7")
        a(f"v_sub_u32 v12, {512 - 64*z}, v7")
        if z == 0:
            a("v_mov_b32 v13, 256")
            a("v_cmp_eq_u32 s[76:77], 0, v7")
            a("v_cndmask_b32 v12, v12, v13, s[76:77]")
        a("v_cndmask_b32 v11, v11, v12, vcc")
        a(f"v_lshl_add_u32 v{136+z}, v11, 2, v10")
    a("v_lshlrev_b32 v8, 13, v7")
    a("v_lshl_add_u32 v8, v6, 4, v8")
    a(f"s_lshl_b32 s72, s{sC2}, 6")
    a(f"s_add_u32 s72, s72, s{sN2}")
    a("s_lshl_b32 s72, s72, 6")
    a(f"s_add_u32 s70, s72, {WS_Z}")
    a(f"s_add_u32 s72, s72, {F_Z}")
    a.wait_tok(d2)
    stamp(a, 'xin')
    hbar(a, 9, 4)
    AF_ = lambda p, r: 56 + 8 * p + 4 * r
    for p in range(2):
        for r in range(2):
            for u in range(2):
                a(f"ds_read_b64_tr_b16 {vr(AF_(p, r) + 2*u, 2)}, v4 offset:{2048*p + 1024*r + 128*u}")
        if p == 0:
            T = {}
            for n in ['COS0', 'NSIN0', 'SIN0', 'COS1', 'NSIN1', 'SIN1']:
                idx = ti[n]; r_ = 16 + 4 * idx; T[n] = r_
                a(f"ds_read_b128 {vr(r_,4)}, v14 offset:{idx*1024}")
    for n in ['TW0', 'TW1', 'ARE', 'AIM']:
        idx = ti[n]; r_ = 16 + 4 * idx; T[n] = r_
        a(f"ds_read_b128 {vr(r_,4)}, v14 offset:{idx*1024}")
    TR = lambda p, jh, x: 72 + 16 * p + 8 * jh + (0 if x == 're' else 4)
    for p in range(2):
        for jh in range(2):
            a(f"{M} {vr(TR(p,jh,'re'),4)}, {vr(AF_(p,0),4)}, {vr(T[f'COS{jh}'],4)}, 0")
            a(f"{M} {vr(TR(p,jh,'im'),4)}, {vr(AF_(p,0),4)}, {vr(T[f'NSIN{jh}'],4)}, 0")
            a(f"{M} {vr(TR(p,jh,'re'),4)}, {vr(AF_(p,1),4)}, {vr(T[f'SIN{jh}'],4)}, {vr(TR(p,jh,'re'),4)}")
            a(f"{M} {vr(TR(p,jh,'im'),4)}, {vr(AF_(p,1),4)}, {vr(T[f'COS{jh}'],4)}, {vr(TR(p,jh,'im'),4)}")
    for p in range(2):
        for jh in range(2):
            o = 120 + 8 * jh
            for i in range(4):
                tw = T[f'TW{jh}'] + i; re = TR(p, jh, 're') + i; im = TR(p, jh, 'im') + i
                a(f"v_fma_mix_f32 v{o+i}, v{re}, v{tw}, 0 {MIXC}")
                a(f"v_fma_mix_f32 v{o+4+i}, v{im}, v{tw}, 0 {MIXC}")
                a(f"v_fma_mix_f32 v{o+i}, v{im}, v{tw}, v{o+i} {MIXS}")
                a(f"v_fma_mix_f32 v{o+4+i}, -v{re}, v{tw}, v{o+4+i} {MIXS}")
            B = 104 + 8 * p + 4 * jh
            for q in range(4): a(f"v_cvt_pk_bf16_f32 v{B+q}, v{o+2*q}, v{o+2*q+1}")
            a(f"{M} {vr(TR(p,jh,'re'),4)}, {vr(T['ARE'],4)}, {vr(B,4)}, 0")
            a(f"{M} {vr(TR(p,jh,'im'),4)}, {vr(T['AIM'],4)}, {vr(B,4)}, 0")
    for p in range(2):
        for jh in range(2):
            for i in range(4):
                r = 56 + 8 * p + 4 * jh + i
                a(f"v_cvt_pk_bf16_f32 v{r}, v{TR(p,jh,'re')+i}, v{TR(p,jh,'im')+i}")
                a(f"ds_write_b32 v5, v{r} offset:{2048*p + (16*jh + 32*i) * 4}")
    stamp(a, 'p1c')
    hbar(a, 8, 4)
    for z in range(4):
        for hh in range(2):
            a(f"ds_read2st64_b32 {vr(96 + 4*z + 2*hh, 2)}, v{136+z} offset0:{16*hh} offset1:{16*hh+8}")
    for z in range(4):
        a(f"buffer_store_dwordx4 {vr(96 + 4*z, 4)}, v8, {S4(SWS)}, s70 offen {ST}")
        if z < 3: a(f"s_add_u32 s70, s70, {64*8192}")
    stamp(a, 'p1st')
    lds_inc(a, 11)
    tag_ready(a)
    arrive(a, 0, [72], 0, 4)

def g_prologue(a):
    L1, L2 = uid("gw"), uid("gw")
    a(f"s_bitcmp1_b32 s{sIDX}, {TBIT}")
    a.fence()
    a(f"s_cbranch_scc1 {L1}")
    a("s_lshr_b32 s66, s62, 10")
    a("s_mul_i32 s67, s66, 514")
    a("s_and_b32 s67, s67, 0xfffffff0")
    a(f"s_mul_i32 s69, s{sWAVE}, 2112")
    a("s_mov_b32 exec_hi, 1")
    for r in range(4):
        for (srd_, base) in ((SWR, P1_WR), (SWI, P1_WI)):
            a(f"s_add_u32 m0, s69, {base + 528*r}")
            a(f"buffer_load_dwordx4 v3, {S4(srd_)}, s67 offen lds")
        if r < 3: a(f"s_add_u32 s67, s67, {64*514}")
    a("s_mov_b32 exec_hi, -1")
    a("v_and_b32 v9, 15, v2")
    w_special_pre(a)
    a("v_bfe_u32 v7, v0, 2, 6")
    a("v_and_b32 v6, 3, v2")
    a("v_lshlrev_b32 v8, 13, v7")
    a("v_lshl_add_u32 v8, v6, 4, v8")
    a(f"s_lshl_b32 s72, s{sC2}, 6")
    a(f"s_add_u32 s72, s72, s{sN2}")
    a("s_lshl_b32 s72, s72, 6")
    a(f"s_add_u32 s72, s72, {F_Z}")
    a("s_mov_b64 s[64:65], s[70:71]")
    a("s_waitcnt vmcnt(0)")
    hbar(a, 10, 4)
    w_relayout(a)
    tag_ready(a)
    if TOUCH_FR == 0:
        a("s_mov_b64 s[70:71], s[64:65]")
        touch_w1_issue(a)
    hbar(a, 10, 8)
    a.fence()
    a(f"s_branch {L2}")
    a.label(L1)
    a.reset_state()
    touch_w1_issue(a)
    if TOUCH_FR:
        a(f"s_sub_u32 s70, s70, {64*3584*(1 << TBIT)}")
        touch_w1_issue(a)
    if CODEPF:
        a(f"s_cmp_lg_u32 s{sIDX}, 1")
        a("s_cbranch_scc1 L_nocpf")
        a("v_lshlrev_b32 v152, 7, v2")
        a(f"s_lshl_b32 s73, s{sWAVE}, 13")
        for j in range(2):
            a(f"buffer_load_dword v153, v152, {S4(STB)}, s73 offen")
            if j < 1: a("s_add_u32 s73, s73, 32768")
        a.fence()
        a.label("L_nocpf")
        a.reset_state()
    tag_ready(a)
    a("s_waitcnt vmcnt(0)")
    a.fence()
    a.label(L2)
    a.reset_state()
    stamp(a, 'ea1')
    a(f"v_mov_b32 v12, {CNT + 44}")
    wait_word(a, 12, 4)

def w_arrive(a, nvm):
    L = uid("nowa")
    a(f"s_bitcmp1_b32 s{sIDX}, {TBIT}")
    a.fence()
    a(f"s_cbranch_scc1 {L}")
    snap = a.snapshot()
    arrive(a, 3, [69], nvm, 4)
    a.fence()
    a.label(L)
    a.restore(snap)
def w_special_pre(a):
    SP = 140
    a(f"s_lshl_b32 s66, s{sC2}, 10")
    a(f"s_add_u32 s66, s66, s{sN2}")
    a("v_lshlrev_b32 v10, 6, v9")
    a("v_add_u32 v10, s66, v10")
    a("v_sub_u32 v11, 2048, v10")
    a("v_and_b32 v11, 2047, v11")
    a("v_bfe_u32 v144, v2, 4, 1")
    a("v_lshlrev_b32 v145, 9, v144")
    a("s_movk_i32 s68, 514")
    a("v_mad_u32_u24 v11, v11, s68, v145")
    for i in range(4): a(f"v_mov_b32 v{SP+i}, 0")
    a(f"s_cmp_eq_u32 s{sWAVE}, 0")
    a("s_cselect_b32 s68, 0, 0x7fffffff")
    a("s_mov_b32 exec_hi, 0")
    a(f"buffer_load_short_d16_hi v{SP+2}, v11, {S4(SWR)}, s68 offen")
    a(f"buffer_load_short_d16_hi v{SP+3}, v11, {S4(SWI)}, s68 offen")
    a("s_mov_b32 exec_hi, -1")
def w_relayout(a):
    WR, WI, SP = 16, 32, 140
    a(f"s_lshl_b32 s67, s{sN2}, 1")
    a("s_and_b32 s67, s67, 15")
    a("v_mul_u32_u24 v14, 2112, v6")
    a("v_lshl_add_u32 v14, v7, 1, v14")
    a("v_add_u32 v14, s67, v14")
    a("v_mul_u32_u24 v10, 528, v9")
    a("v_add_u32 v10, v10, v145")
    a("v_add_u32 v10, s67, v10")
    for i in range(16): a(f"v_mov_b32 v{WI+i}, 0")
    for z in range(4):
        for e in range(4):
            a(f"ds_read_u16 v{WR+4*z+e}, v14 offset:{P1_WR + e*528 + 128*z}")
            a(f"ds_read_u16_d16_hi v{WI+4*z+e}, v14 offset:{P1_WI + e*528 + 128*z}")
    a(f"ds_read_u16_d16_hi v{SP}, v10 offset:{P1_WR}")
    a(f"ds_read_u16_d16_hi v{SP+1}, v10 offset:{P1_WI}")
    a(f"s_sub_u32 s69, s72, {F_Z}")
    a(f"s_add_u32 s70, s69, {WS_WT}")
    a(f"s_add_u32 s69, s69, {F_W}")
    for i in range(16): a(f"v_or_b32 v{WR+i}, v{WR+i}, v{WI+i}")
    for z in (1, 2, 3):
        a(f"s_add_u32 s71, s70, {z*64*8192}")
        a(f"buffer_store_dwordx4 {vr(WR+4*z,4)}, v8, {S4(SWS)}, s71 offen {ST}")
    a("v_cmp_ne_u32 vcc, 0, v7")
    a("s_and_saveexec_b64 s[76:77], vcc")
    a(f"buffer_store_dwordx4 {vr(WR,4)}, v8, {S4(SWS)}, s70 offen {ST}")
    a("s_mov_b64 exec, s[76:77]")
    a(f"v_add_f32 v{SP}, v{SP}, v{SP+2}")
    a(f"v_sub_f32 v{SP+1}, v{SP+1}, v{SP+3}")
    a(f"ds_swizzle_b32 v{SP+2}, v{SP} offset:0x401F")
    a(f"ds_swizzle_b32 v{SP+3}, v{SP+1} offset:0x401F")
    a("v_lshlrev_b32 v15, 31, v144")
    a(f"v_xor_b32 v{SP}, v15, v{SP}")
    a(f"v_xor_b32 v{SP+1}, v15, v{SP+1}")
    a(f"v_add_f32 v{SP}, v{SP}, v{SP+2}")
    a(f"v_add_f32 v{SP+1}, v{SP+1}, v{SP+3}")
    a(f"v_mul_f32 v{SP}, 0x3e800000, v{SP}")
    a(f"v_mul_f32 v{SP+1}, 0x3e800000, v{SP+1}")
    a(f"v_cvt_pk_bf16_f32 v{SP+2}, v{SP}, v{SP+1}")
    a("v_lshlrev_b32 v14, 21, v144")
    a("v_lshl_add_u32 v14, v9, 2, v14")
    a("s_add_u32 s68, s68, s70")
    a("s_mov_b32 exec_hi, 0")
    a(f"buffer_store_dword v{SP+2}, v14, {S4(SWS)}, s68 offen {ST}")
    a("s_mov_b32 exec_hi, -1")

def wait_vm_untracked(a, toks):
    a.wait_tok(*toks)

def part_write(a, base_v0, base_v1, off0):
    pass

def flag_g(a):
    a(f"s_lshl_b32 s73, s{sC2}, 6")
    a(f"s_add_u32 s73, s73, s{sN2}")
    a("s_lshl_b32 s73, s73, 6")
    a(f"s_and_b32 s78, s{sIDX}, 1")
    a("s_lshl_b32 s78, s78, 13")
    a("s_add_u32 s73, s73, s78")
    a(f"s_add_u32 s73, s73, {F_G}")

def gen(a):
    tb1, ti1 = table_dwords(1); tb2, ti2 = table_dwords(2)
    TB2OFF = len(tb1) * 4
    a.raw(f".globl {NAME}\n.p2align 8\n.type {NAME},@function\n{NAME}:")
    a("s_cmp_ge_u32 s2, 256")
    a("s_cbranch_scc1 L_end")
    if STAMPS:
        for i in range(11): a(f"s_mov_b64 s[{80+2*i}:{81+2*i}], 0")
        stamp(a, 'start')
    a("s_load_dwordx16 s[64:79], s[0:1], 0")
    a("s_load_dwordx4 s[4:7], s[0:1], 64")
    a("s_load_dwordx2 s[60:61], s[0:1], 88")
    a(f"s_getpc_b64 s[{STB}:{STB+1}]")
    a.raw("Lpc0:")
    a(f"s_sub_u32 s{STB}, s{STB}, Lpc0-{NAME}")
    a(f"s_subb_u32 s{STB+1}, s{STB+1}, 0")
    a(f"s_and_b32 s{STB+1}, s{STB+1}, 0xffff")
    a(f"s_mov_b32 s{STB+2}, TABLES-{NAME}+{(len(tb1) + len(tb2)) * 4}")
    a(f"s_mov_b32 s{STB+3}, 0x00020000")
    a("v_lshrrev_b32 v1, 6, v0")
    a("v_and_b32 v2, 63, v0")
    a(f"v_readfirstlane_b32 s{sWAVE}, v1")
    a("v_lshlrev_b32 v3, 4, v2")
    for r in range(4, 16): a(f"v_mov_b32 v{r}, 0")
    a(f"s_and_b32 s{sXCD}, s2, 7")
    a(f"s_lshr_b32 s{sIDX}, s2, 3")
    a(f"s_lshl_b32 s{sN2}, s{sXCD}, 3")
    if TBIT == 0:
        a("s_bfe_u32 s3, s2, 0x30004")
        a(f"s_lshr_b32 s{sC2}, s2, 7")
    else:
        a("s_bfe_u32 s3, s2, 0x30003")
        a(f"s_bfe_u32 s{sC2}, s2, 0x10006")
    a(f"s_add_u32 s{sN2}, s{sN2}, s3")
    a(f"s_sub_u32 s3, s{sIDX}, 4")
    if TBIT == 0:
        a(f"s_lshr_b32 s59, s{sIDX}, 1")
        a(f"s_cmp_lt_u32 s{sIDX}, 8")
        a("s_cselect_b32 s3, s59, s3")
    else:
        a(f"s_cmp_lt_u32 s{sIDX}, 16")
        a(f"s_cselect_b32 s3, s{sIDX}, s3")
    if MAP1 == 24:
        a(f"s_mul_i32 s{sDT1}, s3, 37")
        a(f"s_lshr_b32 s{sDT1}, s{sDT1}, 8")
        a(f"s_mul_i32 s{sFT1}, s{sDT1}, 7")
        a(f"s_sub_u32 s{sFT1}, s3, s{sFT1}")
        a(f"s_lshl_b32 s58, s{sDT1}, 1")
        a(f"s_mul_i32 s59, s{sFT1}, {ROT2}")
        a("s_add_u32 s58, s58, s59")
        a(f"s_mul_i32 s58, s58, {2 * ROT}")
        a(f"s_and_b32 s3, s{sXCD}, 1")
        a("s_lshl_b32 s3, s3, 2")
        a(f"s_add_u32 s{sDT1}, s{sDT1}, s3")
    else:
        a(f"s_and_b32 s59, s{sXCD}, 1")
        a("s_lshl_b32 s59, s59, 2")
        a("s_lshr_b32 s58, s3, 3")
        a(f"s_add_u32 s{sFT1}, s58, s59")
        a(f"s_and_b32 s{sDT1}, s3, 7")
        a(f"s_add_u32 s59, s59, s{sDT1}")
        a("s_cmp_ge_u32 s3, 24")
        a(f"s_cselect_b32 s{sFT1}, 3, s{sFT1}")
        a(f"s_cselect_b32 s{sDT1}, s59, s{sDT1}")
        a("s_lshl_b32 s58, s58, 1")
        a(f"s_add_u32 s58, s58, s{sDT1}")
        a(f"s_mul_i32 s58, s58, {2 * ROT}")
    a(f"s_lshr_b32 s3, s{sXCD}, 1")
    a("s_mul_i32 s3, s3, 7")
    a(f"s_add_u32 s{sFT1}, s{sFT1}, s3")
    if MAP2 == 24:
        a(f"s_and_b32 s3, s{sXCD}, 1")
        a("s_lshl_b32 s3, s3, 2")
        a(f"s_lshr_b32 s{sDT2}, s{sIDX}, 3")
        a(f"s_add_u32 s{sDT2}, s{sDT2}, s3")
        a(f"s_lshr_b32 s3, s{sXCD}, 1")
        a(f"s_lshl_b32 s{sST2}, s3, 3")
        a(f"s_and_b32 s3, s{sIDX}, 7")
        a(f"s_add_u32 s{sST2}, s{sST2}, s3")
    else:
        a(f"s_and_b32 s{sDT2}, s{sIDX}, 7")
        a(f"s_lshl_b32 s{sST2}, s{sXCD}, 2")
        a(f"s_lshr_b32 s3, s{sIDX}, 3")
        a(f"s_add_u32 s{sST2}, s{sST2}, s3")
    if TBIT == 0: a(f"s_and_b32 s3, s{sIDX}, 0x19")
    else:
        a(f"s_lshr_b32 s3, s{sIDX}, 2")
        a("s_sub_u32 s3, s3, 3")
    a(f"s_lshl_b32 s62, s{sC2}, 10")
    a(f"s_add_u32 s62, s62, s{sN2}")
    a(f"s_and_b32 s59, s{sWAVE}, 3")
    a("s_lshl_b32 s63, s59, 8")
    a("s_add_u32 s62, s62, s63")
    a("s_lshl_b32 s62, s62, 10")
    a("s_lshl_b32 s59, s59, 12")
    a(f"s_add_u32 s59, s59, {P1_XR}")
    srd(a, SX, 64, S * D * 2)
    a(f"s_cmp_lt_u32 s{sWAVE}, 4")
    a("s_cbranch_scc1 L_xdone")
    a("s_setprio 3")
    a(f"s_bitcmp1_b32 s{sIDX}, {TBIT}")
    a("s_cbranch_scc1 L_xdma")
    for r in range(4):
        a(f"s_add_u32 s63, s62, {65536*r}")
        a(f"buffer_load_dwordx4 {vr(LX + 4*r, 4)}, v3, {S4(SX)}, s63 offen")
    a("s_branch L_xdone")
    snapx = a.snapshot()
    a.label("L_xdma")
    for r in range(4):
        a(f"s_add_u32 s63, s62, {65536*r}")
        a(f"s_add_u32 m0, s59, {1024*r}")
        a(f"buffer_load_dwordx4 v3, {S4(SX)}, s63 offen lds")
    a.label("L_xdone")
    a.restore(snapx)
    srd(a, SGW, 4, 1024)
    srd(a, SWR, 66, S * 514)
    srd(a, SWI, 68, S * 514)
    srd(a, SW1, 72, S * F * 2)
    srd(a, SW2, 76, S * F * 2)
    srd(a, SB2, 78, S * 2)
    srd(a, SOUT, 6, S * D * 2)
    srd(a, SWS, 60, WS_BYTES)
    a("s_mov_b64 s[4:5], s[74:75]")
    a(f"s_add_u32 s6, s60, {WS_FLG + F_EP}")
    a("s_addc_u32 s7, s61, 0")
    a(f"v_mov_b32 v100, {CNT}")
    for q in range(4): a(f"ds_write_b128 v100, v[4:7] offset:{16*q}")
    a(f"s_and_b32 s{sROT}, s58, 15")
    a("s_mov_b32 s64, s59")
    a(f"s_lshl_b32 s58, s{sFT1}, 7")
    a(f"s_lshl_b32 s63, s{sWAVE}, 4")
    a("s_add_u32 s63, s63, s58")
    a("s_add_u32 s4, s4, s63")
    a("s_addc_u32 s5, s5, 0")
    a.wait_all(vm=False)
    a(f"s_load_dword s{sTAG}, s[6:7], 0")
    a(f"s_cmp_lt_u32 s{sWAVE}, 4")
    a.fence()
    a("s_cbranch_scc1 L_gwave")
    a(f"s_bitcmp1_b32 s{sIDX}, {TBIT}")
    a("s_cbranch_scc1 L_p1fft")
    snap = a.snapshot()
    phase1_ln(a)
    a.fence()
    a("s_branch L_p1done")
    a.restore(snap)
    a.label("L_p1fft")
    phase1_fft(a, ti1)
    a.fence()
    a.label("L_p1done")
    a.reset_state()
    a("s_cmp_eq_u32 s3, 1")
    a("s_cbranch_scc1 L_fft")
    a("s_branch L_g1help")
    a.label("L_gwave")
    a.reset_state()
    touch_w1(a, t=(150, 151))
    stamp(a, 'ea0')
    a("s_barrier")
    a("s_cmp_lg_u32 s3, 1")
    a("s_cbranch_scc1 L_g1")
    if FFT_T1: touch_w1_issue(a)
    a(f"v_mov_b32 v12, {CNT + TBWAIT}")
    wait_word(a, 12, 4)
    a(f"s_lshl_b32 s72, s{sWAVE}, 10")
    for j in range(15):
        if j == 14: a("s_min_u32 s72, s72, 1024")
        a(f"s_add_u32 m0, s72, {FB_TB + j*4096}")
        a(f"s_add_u32 s73, s72, TABLES-{NAME}+{TB2OFF + j*4096}")
        a(f"buffer_load_dwordx4 v3, {S4(STB)}, s73 offen lds")
    tag_ready(a)
    a.fence()
    a("s_branch L_fft2")
    a.label("L_g1")
    a.reset_state()
    g_prologue(a)
    a("s_load_dwordx4 s[64:67], s[4:5], 0")
    gemm_lane_consts(a, 64 * 3584)
    a(f"s_mul_i32 s62, s{sWAVE}, {512*3584}")
    a(f"s_lshl_b32 s63, s{sFT1}, 7")
    a("s_add_u32 s62, s62, s63")
    a(f"s_lshl_b32 s{sA0}, s{sDT1}, 18")
    a(f"s_lshl_b32 s63, s{sWAVE}, 16")
    a(f"s_add_u32 s{sA0}, s{sA0}, s63")
    if WS_HT: a(f"s_add_u32 s{sA0}, s{sA0}, {WS_HT}")
    slots1 = [(x + 4) % 8 for x in range(16)]
    NR = min(NREG, NR1)
    kinds1 = ['pre'] * 8 + ['reg'] * NR + ['dma'] * (8 - NR)
    g1 = Gemm(a, 16, slots1, kinds1, SW1, 62, 3584, 4 * 3584, True)
    for sg in range(8 + NR - NB1 - NB2):
        g1.emit_w(sg)
        if sg == 1: w_arrive(a, 8)
    stamp(a, 'pre4')
    a(f"s_lshr_b32 s72, s{sWAVE}, 1")
    a("s_lshl_b32 s72, s72, 12")
    a(f"s_add_u32 s72, s72, {WS_FLG + F_H}")
    a.vm = a.vm[-8:]
    g1.tok = {}
    gpoll(a, [(72, 64)], vt=(12, 13, 16, 17), behind=(lambda: [g1.emit_w(sg) for sg in range(8 + NR - NB1 - NB2, 8 + NR - NB2)]) if NB1 else None)
    stamp(a, 'b4')
    slots2 = [4, 5, 6, 7, 0, 1, 2, 3, 4, 5, 6, 7, 0, 1]
    kinds2 = ['pre'] * 8 + ['reg'] * NREG + ['dma'] * (6 - NREG)
    g2 = Gemm(a, 14, slots2, kinds2, SW2, 63, 8 * 4096, 32 * 4096, False, vw=(14, 15), rot=77)
    def w2_consts():
        wlane(a, 14, 15, 4096, 12, 13)
        a(f"s_and_b32 s76, s{sWAVE}, 3")
        a(f"s_lshl_b32 s{sRING}, s76, 15")
        a(f"s_mul_i32 s63, s76, {448*4096}")
        a(f"s_lshl_b32 s76, s{sST2}, 7")
        a("s_add_u32 s63, s63, s76")
        a(f"s_and_b32 s77, s{sDT2 if MAP2 == 24 else sST2}, 3")
        a("s_lshl_b32 s77, s77, 1")
        a(f"s_and_b32 s76, s{sST2 if MAP2 == 24 else sDT2}, 7")
        a(f"s_mul_i32 s76, s76, {ROT2}")
        a("s_add_u32 s77, s77, s76")
        a(f"s_mul_i32 s77, s77, {7 * ROT}")
        a("s_lshr_b32 s77, s77, 2")
        a("s_sub_u32 s76, s77, 14")
        a("s_min_u32 s77, s77, s76")
    w2_consts()
    a(f"s_lshl_b32 s76, s{sWAVE}, 2")
    a(f"s_add_u32 s76, s76, {CNT + 16}")
    a("v_mov_b32 v12, s76")
    def extra(sig):
        if SPREAD and sig < NB2: return [(lambda jj=jj: g1.emit_w(8 + NR - NB2 + sig, [jj])) for jj in range(4)]
        if sig == W2SIG: return [lambda: a("ds_write_b32 v12, v12")]
        return []
    g1.run(extra, post=(None if SPREAD else lambda: [g1.emit_w(sg) for sg in range(8 + NR - NB2, 8 + NR)]),
           pwrite=lambda blk: f"ds_write_b128 v7, {vr(ACC + blk*4, 4)} offset:{16384 + blk*1024}")
    stamp(a, 'loop1')
    a.wait_all(vm=False)
    a.fence()
    a("s_branch L_g1red")
    a.label("L_g1help")
    a.reset_state()
    a("s_load_dwordx4 s[64:67], s[4:5], 0")
    if PFH: prefetch_h(a)
    a("s_setprio 0")
    gate(a)
    g_gen(a)
    w2_consts()
    a(f"s_lshl_b32 s76, s{sWAVE}, 2")
    a(f"s_add_u32 s76, s76, {CNT}")
    a("v_mov_b32 v12, s76")
    wait_word(a, 12, 1)
    touch_w2(a)
    a.fence()
    a.label("L_g1red")
    a.reset_state()
    a("s_waitcnt lgkmcnt(0)")
    a("s_barrier")
    stamp(a, 'b5')
    a(f"s_lshr_b32 s68, s{sWAVE}, 1")
    a("s_lshl_b32 s68, s68, 12")
    a(f"s_and_b32 s69, s{sWAVE}, 1")
    a("s_lshl_b32 s69, s69, 9")
    a("s_add_u32 s68, s68, s69")
    a("v_lshrrev_b32 v12, 4, v2")
    a("v_lshlrev_b32 v12, 10, v12")
    a("v_and_b32 v13, 15, v2")
    a("v_lshl_add_u32 v12, v13, 4, v12")
    a("v_add_u32 v12, s68, v12")
    a(f"v_add_u32 v13, {2*RING}, v12")
    E = 16
    for w in range(4):
        for hh in range(2):
            a(f"ds_read_b128 {vr(E + w*8 + hh*4, 4)}, v{12 + (w >> 1)} offset:{(w & 1)*RING + 16384 + hh*256}")
    for e in range(4):
        a(f"s_lshl_b32 s{68+2*e}, s{64+e}, 16")
        a(f"s_and_b32 s{69+2*e}, s{64+e}, 0xffff0000")
    P2 = lambda r: f"v[{r}:{r+1}]"
    def pk(op, d, x, y, z=None):
        for q in range(4):
            o = lambda r: (r if isinstance(r, str) else P2(r + 2*q))
            a(f"v_pk_{op}_f32 {P2(d + 2*q)}, {o(x)}, {o(y)}" + (f", {o(z)}" if z is not None else ""))
    pk("add", E, E, E + 8); pk("add", E + 16, E + 16, E + 24); pk("add", E, E, E + 16)
    def rnd(X, T):
        for q in range(4): a(f"v_cvt_pk_bf16_f32 v{T+q}, v{X+2*q}, v{X+2*q+1}")
        for q in range(4): unpack(a, X + 2*q, X + 2*q + 1, T + q)
    rnd(E, E + 8)
    for q in range(4): a(f"v_pk_add_f32 {P2(E + 2*q)}, {P2(E + 2*q)}, s[{68+2*q}:{69+2*q}]")
    c0 = -2.0 * math.log2(math.e) * math.sqrt(2.0 / math.pi); c1 = c0 * 0.044715
    for r, c in ((24, c0), (25, c0), (26, c1), (27, c1), (28, 1.0), (29, 1.0)): a(f"v_mov_b32 v{E+r}, 0x{f2u(c):08x}")
    rnd(E, E + 8)
    pk("mul", E + 8, E, E)
    pk("fma", E + 8, E + 8, P2(E + 26), P2(E + 24))
    pk("mul", E + 8, E + 8, E)
    for e in range(8): a(f"v_exp_f32 v{E+8+e}, v{E+8+e}")
    pk("add", E + 8, E + 8, P2(E + 28))
    for e in range(8): a(f"v_rcp_f32 v{E+8+e}, v{E+8+e}")
    pk("mul", E, E, E + 8)
    for q in range(4): a(f"v_cvt_pk_bf16_f32 v{E+8+q}, v{E+2*q}, v{E+2*q+1}")
    a(f"s_mul_i32 s68, s{sDT1}, {224*1024}")
    a(f"s_lshl_b32 s69, s{sFT1}, 3")
    a(f"s_add_u32 s69, s69, s{sWAVE}")
    a("s_lshl_b32 s69, s69, 10")
    a("s_add_u32 s68, s68, s69")
    a(f"s_add_u32 s68, s68, {WS_UT}")
    a(f"buffer_store_dwordx4 {vr(E+8,4)}, v3, {S4(SWS)}, s68 offen {ST}")
    a(f"s_lshl_b32 s72, s{sDT1}, 5")
    a(f"s_add_u32 s72, s72, s{sFT1}")
    a("s_lshl_b32 s72, s72, 6")
    a(f"s_add_u32 s72, s72, {F_U}")
    stamp(a, 'ust')
    a("s_barrier")
    a.fence()
    a("s_branch L_pub2")
    a.label("L_fft")
    a.reset_state()
    a("s_setprio 0")
    a.fence()
    a.label("L_fft2")
    a.reset_state()
    fft_block(a, ti2, TB2OFF)
    w2_consts()
    a(f"s_cmp_ge_u32 s{sWAVE}, 4")
    a("s_cbranch_scc1 L_fhelp")
    gemm_lane_consts(a, 4096)
    g2.tok = {}
    for sg in range(8, 10): g2.emit_w(sg)
    arrive(a, 1, [72], 8, 8, lowprio=True)
    for sg in range(10, 8 + NREG): g2.emit_w(sg)
    a(f"v_mov_b32 v12, {CNT + 24}")
    wait_word(a, 12, 8)
    for sg in range(8): g2.emit_w(sg)
    a.fence()
    a("s_branch L_pub3")
    a.label("L_fhelp")
    arrive(a, 1, [72], 0, 8, lowprio=True)
    g_gen(a)
    a.fence()
    a("s_branch L_g2help2")
    a.label("L_pub2")
    a.reset_state()
    a(f"s_cmp_ge_u32 s{sWAVE}, 4")
    a("s_cbranch_scc1 L_g2help")
    snap3 = a.snapshot()
    g2.tok = {}
    for sg in range(0, 2): g2.emit_w(sg)
    arrive(a, 1, [72], 8, 8, lowprio=True)
    for sg in range(2, 8 + NREG): g2.emit_w(sg)
    a.fence()
    a.label("L_pub3")
    a.reset_state()
    a(f"s_mul_i32 s{sA0}, s{sDT2}, {224*1024}")
    a(f"s_mul_i32 s61, s{sWAVE}, {56*1024}")
    a(f"s_add_u32 s{sA0}, s{sA0}, s61")
    a(f"s_add_u32 s{sA0}, s{sA0}, {WS_UT}")
    stamp(a, 'pre7')
    a("s_barrier")
    a(f"s_lshl_b32 s72, s{sDT2}, 11")
    a(f"s_mul_i32 s73, s{sWAVE}, {7*64}")
    a("s_add_u32 s72, s72, s73")
    a(f"s_add_u32 s72, s72, {WS_FLG + F_U}")
    fg_off(a, 69)
    a.vm = a.vm[-8:]
    gpoll(a, [(72, 7), (69, 64)], vt=(12, 13, 16, 17), behind=(lambda: [g2.emit_w(sg) for sg in range(8 + NREG - NB3 - NB4, 8 + NREG - NB4)]) if NB3 else None)
    g2.tok = {}
    stamp(a, 'b7')
    gb_load(a, 12, 13, 16)
    a("v_lshrrev_b32 v4, 5, v2")
    a("v_lshlrev_b32 v4, 6, v4")
    a("v_xor_b32 v4, v4, v7")
    a("v_xor_b32 v5, 128, v4")
    g2.run(post=lambda: [g2.emit_w(sg) for sg in range(8 + NREG - NB4, 8 + NREG)],
           pwrite=lambda blk: f"ds_write_b128 v{4 + ((blk >> 2) & 1)}, {vr(ACC + blk*4, 4)} offset:{8192 + blk*1024}")
    stamp(a, 'loop2')
    a("v_mov_b32 v10, v12")
    a("v_mov_b32 v11, v13")
    a.wait_all(vm=False)
    a.fence()
    a("s_branch L_g2red")
    a.restore(snap3)
    a.label("L_g2help")
    a("s_setprio 3")
    arrive(a, 1, [72], 0, 8)
    a.fence()
    a.label("L_g2help2")
    a.reset_state()
    if PFU:
        a("s_setprio 3")
        prefetch_u(a)
    a(f"s_setprio {DFTPRIO}")
    a("s_barrier")
    dft_part(a)
    a("s_setprio 0")
    a.fence()
    a.label("L_g2red")
    a.reset_state()
    a("v_lshrrev_b32 v4, 3, v0")
    a(f"s_lshl_b32 s68, s{sST2}, 6")
    a("v_add_u32 v5, s68, v4")
    a("v_and_b32 v6, 7, v0")
    a("v_lshrrev_b32 v7, 1, v6")
    a("v_lshlrev_b32 v7, 12, v7")
    a("v_lshrrev_b32 v8, 4, v4")
    a("v_lshl_add_u32 v7, v8, 10, v7")
    a("v_and_b32 v8, 1, v6")
    a("v_lshl_add_u32 v7, v8, 9, v7")
    a("v_and_b32 v8, 3, v6")
    a("v_lshlrev_b32 v8, 2, v8")
    a("v_and_b32 v9, 15, v4")
    a("v_xor_b32 v8, v8, v9")
    a("v_lshl_add_u32 v7, v8, 4, v7")
    a(f"v_add_u32 v8, {2*RING}, v7")
    a(f"v_add_u32 v12, {AP}, v7")
    a("v_lshlrev_b32 v9, 10, v5")
    a("v_lshl_add_u32 v9, v6, 4, v9")
    a(f"s_lshl_b32 s70, s{sDT2}, 7")
    a("s_barrier")
    stamp(a, 'b8')
    B_, A_ = 16, 48
    for w in range(4):
        for hh in range(2):
            a(f"ds_read_b128 {vr(B_ + w*8 + hh*4, 4)}, v{7 + (w >> 1)} offset:{(w & 1)*RING + 8192 + hh*256}")
    for w in range(2):
        for hh in range(2):
            a(f"ds_read_b128 {vr(A_ + w*8 + hh*4, 4)}, v12 offset:{w*16384 + hh*256}")
    a("v_sub_f32 v68, 1.0, v10")
    a("v_cvt_pk_bf16_f32 v68, v68, v68")
    a("v_lshlrev_b32 v68, 16, v68")
    a("v_mov_b32 v69, v68")
    a("v_mov_b32 v70, v10"); a("v_mov_b32 v71, v10")
    a("v_mov_b32 v72, v11"); a("v_mov_b32 v73, v11")
    a("v_mov_b32 v74, 0x36000000"); a("v_mov_b32 v75, 0x36000000")
    pk("add", B_, B_, B_ + 8); pk("add", B_ + 16, B_ + 16, B_ + 24); pk("add", B_, B_, B_ + 16)
    pk("add", A_, A_, A_ + 8)
    rnd(B_, B_ + 8)
    pk("mul", A_, A_, P2(74))
    pk("add", B_, B_, P2(72))
    rnd(A_, A_ + 8)
    rnd(B_, B_ + 8)
    pk("mul", A_, A_, P2(70))
    pk("mul", B_, B_, P2(68))
    rnd(A_, A_ + 8)
    rnd(B_, B_ + 8)
    pk("add", A_, A_, B_)
    for q in range(4): a(f"v_cvt_pk_bf16_f32 v{B_+q}, v{A_+2*q}, v{A_+2*q+1}")
    a(f"buffer_store_dwordx4 {vr(B_,4)}, v9, {S4(SOUT)}, s70 offen {OST}")
    a(f"s_or_b32 s71, s2, s{sWAVE}")
    a("s_cmp_lg_u32 s71, 0")
    a("s_cbranch_scc1 L_noep")
    a(f"s_mov_b32 s72, {F_EP}")
    set_flag(a, 72)
    a.fence()
    a.label("L_noep")
    stamp_flush(a)
    a.label("L_end")
    a("s_endpgm")
    return np.concatenate([tb1, tb2])

def fg_off(a, d):
    a(f"s_lshr_b32 s{d}, s{sST2}, 4")
    a(f"s_lshl_b32 s{d}, s{d}, 12")
    a(f"s_add_u32 s{d}, s{d}, {WS_FLG + F_G}")
def gb_load(a, vg, vb, t):
    a(f"v_lshrrev_b32 v{t}, 3, v0")
    a(f"s_lshr_b32 s69, s{sST2}, 4")
    a("s_lshl_b32 s69, s69, 12")
    a(f"s_and_b32 s70, s{sST2}, 15")
    a("s_lshl_b32 s70, s70, 2")
    a("s_add_u32 s69, s69, s70")
    a(f"s_add_u32 s69, s69, {WS_G}")
    a(f"v_lshlrev_b32 v{t+1}, 6, v{t}")
    a(f"buffer_load_dword v{vg}, v{t+1}, {S4(SWS)}, s69 offen {LD}")
    a(f"v_mov_b32 v{vb}, 0")
    a(f"v_lshlrev_b32 v{t}, 1, v{t}")
    a(f"s_lshl_b32 s70, s{sST2}, 7")
    a(f"buffer_load_short_d16_hi v{vb}, v{t}, {S4(SB2)}, s70 offen")
YF, GF, AC = 48, 112, 16
def g_gen(a):
    a(f"s_bfe_u32 s70, s{sWAVE}, 0x10001")
    a(f"s_and_b32 s71, s{sWAVE}, 1")
    a("v_and_b32 v4, 15, v2")
    a("v_lshrrev_b32 v5, 4, v2")
    a(f"s_lshl_b32 s62, s{sDT2}, 6")
    a("v_add_u32 v7, s62, v4")
    a("v_cvt_f32_u32 v8, v7")
    a("v_mul_f32 v8, 0x3b000000, v8")
    for mt in range(1, 4): a(f"v_add_f32 v{8+mt}, 0x3d000000, v{7+mt}")
    a("s_lshl_b32 s62, s70, 7")
    a("v_lshlrev_b32 v12, 2, v5")
    a("v_add_u32 v12, s62, v12")
    a("v_cvt_f32_u32 v12, v12")
    ANG, D13 = 240, 244
    for mt in range(4):
        a(f"v_mul_f32 v{ANG+mt}, v{8+mt}, v12")
        a(f"v_mul_f32 v{D13+mt}, 0x41500000, v{8+mt}")
    for ks in range(8):
        for e in range(4):
            for mt in range(4):
                t0 = 248 + 2 * mt
                a(f"v_cos_f32 v{t0}, v{ANG+mt}")
                a(f"v_sin_f32 v{t0+1}, v{ANG+mt}")
                if not (ks == 7 and e == 3): a(f"v_add_f32 v{ANG+mt}, v{ANG+mt}, v{(D13 if e == 3 else 8) + mt}")
            for mt in range(4):
                t0 = 248 + 2 * mt
                a(f"v_cvt_pk_bf16_f32 v{GF + (ks*4+mt)*4 + e}, v{t0}, -v{t0+1}")
        if ks == 0:
            a("v_and_b32 v13, 1, v2")
            a("v_lshlrev_b32 v13, 31, v13")
            a("v_or_b32 v13, 0x3f003f00, v13")
            a("s_cmp_eq_u32 s70, 0")
            a("s_cselect_b32 s76, 0xffff, 0")
            a("s_mov_b32 s77, 0")
            for mt in range(4): a(f"v_cndmask_b32 v{GF + mt*4}, v{GF + mt*4}, v13, s[76:77]")
def dft_part(a):
    M = "v_mfma_f32_16x16x32_bf16"
    a(f"s_bfe_u32 s64, s{sWAVE}, 0x10001")
    a(f"s_and_b32 s65, s{sWAVE}, 1")
    a("v_and_b32 v4, 15, v2")
    a("v_lshrrev_b32 v5, 4, v2")
    a("v_lshlrev_b32 v6, 15, v5")
    a("v_lshl_add_u32 v6, v4, 4, v6")
    a("s_lshl_b32 s62, s64, 10")
    a(f"s_add_u32 s62, s62, {F_Y}")
    a("s_lshl_b32 s66, s64, 20")
    a(f"s_lshl_b32 s67, s{sST2}, 10")
    a("s_add_u32 s66, s66, s67")
    a("s_lshl_b32 s67, s65, 9")
    a("s_add_u32 s66, s66, s67")
    a(f"s_add_u32 s66, s66, {WS_Y1}")
    a(f"s_add_u32 s62, s62, {WS_FLG}")
    fg_off(a, 63)
    if YSLEEP0: a(f"s_sleep {YSLEEP0}")
    gpoll(a, [(62, 16), (63, 64)], vt=(12, 13, 14, 15), sleep=YSLEEP)
    stamp(a, 'loop2')
    gb_load(a, 10, 11, 12)
    for ks in range(8):
        for t in range(2):
            a(f"buffer_load_dwordx4 {vr(YF + (ks*2+t)*4, 4)}, v6, {S4(SWS)}, s66 offen offset:{t*256} {LD}")
        if ks < 7: a("s_add_u32 s66, s66, 131072")
    for ks in range(8):
        for mt in range(4):
            for t in range(2):
                acc = vr(AC + (mt*2+t)*4, 4)
                a(f"{M} {acc}, {vr(GF + (ks*4+mt)*4, 4)}, {vr(YF + (ks*2+t)*4, 4)}, {'0' if ks == 0 else acc}")
    a("s_lshl_b32 s66, s64, 14")
    a("s_lshl_b32 s67, s65, 11")
    a("s_add_u32 s66, s66, s67")
    a(f"s_add_u32 s66, s66, {AP}")
    a("v_lshrrev_b32 v12, 5, v2")
    a("v_lshlrev_b32 v12, 6, v12")
    a("v_xor_b32 v12, v12, v3")
    a("v_add_u32 v12, s66, v12")
    a("v_xor_b32 v13, 128, v12")
    for mt in range(4):
        for t in range(2):
            a(f"ds_write_b128 v{12 + (mt & 1)}, {vr(AC + (mt*2+t)*4, 4)} offset:{(mt*4+t)*1024}")
    a.wait_all()

def fft_block(a, ti, tboff):
    M = "v_mfma_f32_32x32x16_bf16"
    PK, VA, VB, VT, CF, TMP = 16, 48, 112, 176, 208, 240
    a(f"s_lshl_b32 s62, s{sXCD}, 2")
    a(f"s_lshr_b32 s63, s{sIDX}, 1" if TBIT == 0 else f"s_and_b32 s63, s{sIDX}, 3")
    a("s_add_u32 s62, s62, s63")
    a("s_lshl_b32 s63, s62, 3")
    a(f"s_add_u32 s63, s63, s{sWAVE}")
    a("v_and_b32 v4, 31, v2")
    a("v_lshrrev_b32 v5, 5, v2")
    a(f"s_lshl_b32 s66, s{sWAVE}, 13")
    a("v_lshrrev_b32 v6, 4, v2")
    a("v_xor_b32 v6, v6, v2")
    a("v_and_b32 v6, 3, v6")
    a("v_lshlrev_b32 v6, 4, v6")
    a("v_lshrrev_b32 v7, 2, v2")
    a("v_lshl_add_u32 v6, v7, 6, v6")
    a("v_bfe_u32 v7, v2, 2, 2")
    a("v_xor_b32 v8, v7, v5")
    a("v_lshlrev_b32 v8, 4, v8")
    a("v_lshl_add_u32 v8, v4, 6, v8")
    a("v_add_u32 v8, s66, v8")
    a("v_xor_b32 v9, 32, v8")
    a(f"v_add_u32 v10, {FB_TB}, v3")
    a("s_cmp_eq_u32 s63, 0")
    a(f"s_cselect_b32 s67, {(ti['P1re0'] - ti['S1re0']) * 1024}, 0")
    a("v_add_u32 v14, s67, v10")
    a("v_lshlrev_b32 v11, 10, v5")
    a("v_lshl_add_u32 v11, v4, 2, v11")
    a("v_add_u32 v11, s66, v11")
    def dma8(base, ks, ldsbase="s66"):
        a(f"s_lshl_b32 s68, s{ks}, 13")
        a(f"s_add_u32 s68, s68, {base}")
        t = []
        for j in range(8):
            a(f"s_add_u32 m0, {ldsbase}, {j*1024}")
            t.append(a(f"buffer_load_dwordx4 v6, {S4(SWS)}, s68 offen {LD} lds"))
            if j < 7: a("s_add_u32 s68, s68, 1024")
        return t
    tab = lambda reg, nm, base=10: f"ds_read_b128 {vr(reg,4)}, v{base} offset:{ti[nm]*1024}"
    TWO = TMP + 14
    a(f"s_cmp_lt_u32 s{sWAVE}, 4")
    a(f"s_cselect_b32 s68, {FB_WG}, 0")
    a("v_add_u32 v12, s68, v8")
    a("v_add_u32 v13, s68, v9")
    a(f"s_cmp_eq_u32 s{sWAVE}, 4")
    a.fence()
    a("s_cbranch_scc1 L_fpollz")
    a(f"s_cmp_eq_u32 s{sWAVE}, 5")
    a("s_cbranch_scc1 L_fpollw")
    a(f"s_cmp_ge_u32 s{sWAVE}, 4")
    a("s_cbranch_scc1 L_fgo")
    a("s_waitcnt vmcnt(0)")
    lds_inc(a, 15, t=(20, 21))
    a.fence()
    a("s_branch L_fgo")
    a.label("L_fpollw")
    a.reset_state()
    a(f"s_mov_b32 s68, {F_W}")
    poll(a, 68, 128, vt=20)
    a(f"v_mov_b32 v20, {CNT}")
    wait_word(a, 20, 4, tv=21)
    lds_inc(a, 13, t=(20, 21))
    for w in range(4):
        a(f"s_sub_u32 s69, s63, {5 - w}")
        a(f"s_mov_b32 s70, {FB_WG + w*8192}")
        dma8(WS_WT, 69, "s70")
    a.fence()
    a("s_branch L_fgo")
    a.label("L_fpollz")
    a.reset_state()
    a(f"s_mov_b32 s68, {F_Z}")
    poll(a, 68, 128, vt=20)
    lds_inc(a, 14, t=(20, 21))
    a.fence()
    a.label("L_fgo")
    a.reset_state()
    stamp(a, 'pre4')
    a(f"v_mov_b32 v20, {CNT + 60}")
    wait_word(a, 20, 4, tv=21, sleep=1)
    a(f"v_mov_b32 v20, {CNT + 56}")
    wait_word(a, 20, 1, tv=21, sleep=1)
    stamp(a, 'b4')
    tz = dma8(WS_Z, 63)
    for c in range(4):
        a(tab(CF + c * 4, f'S1re{c}', 14)); a(tab(CF + 16 + c * 4, f'S1im{c}', 14))
    for mt in range(2):
        for pr in range(4): a(tab(VT + (mt * 4 + pr) * 4, f'F1_{mt}_{pr}'))
    for c in range(4):
        a.wait_tok(*tz[(c >> 1) * 4: (c >> 1) * 4 + 4])
        for mt in range(2):
            a(f"ds_read_b128 {vr(PK + (mt*4+c)*4, 4)}, v{8 + (c & 1)} offset:{(c >> 1)*4096 + mt*2048}")
    a(f"s_cmp_eq_u32 s{sWAVE}, 5")
    a.wait_all(); a.fence()
    a("s_cbranch_scc0 L_fnot5")
    lds_inc(a, 15 - 8, t=(240, 241))
    a.fence()
    a.label("L_fnot5")
    a(f"s_cmp_lt_u32 s{sWAVE}, 4")
    a("s_cbranch_scc1 L_fcomp")
    a(f"v_mov_b32 v240, {CNT + 52}")
    wait_word(a, 240, 1, tv=241, sleep=0)
    dma8(WS_WT, 63)
    a.fence()
    a.label("L_fcomp")
    a.reset_state()
    D = lambda base, x, ri: base + (x * 2 + ri) * 16
    for c in range(4):
        for mt in range(2):
            for ri in range(2):
                acc = vr(D(VA, mt, ri), 16)
                a(f"{M} {acc}, {vr(PK + (mt*4+c)*4, 4)}, {vr(CF + ri*16 + c*4, 4)}, {'0' if c == 0 else acc}")
    PKR = lambda x, ri, u: PK + ((x * 2 + ri) * 2 + u) * 4
    WSL = [[0, 4, 1, 5], [2, 6, 3, 7]]
    Wr = lambda p, i: VT + 4 * WSL[p][i >> 2] + (i & 3)
    P2 = lambda r: f"v[{r}:{r+1}]"
    NEG0 = "neg_lo:[1,0,0] neg_hi:[1,0,0]"; NEG2 = "neg_lo:[0,0,1] neg_hi:[0,0,1]"
    a(f"v_mov_b32 v{TWO}, 2.0"); a(f"v_mov_b32 v{TWO+1}, 2.0")
    G2 = [('E', 0, 0), ('OF', 1, 0), ('E', 0, 1), ('OF', 1, 1)]
    G3 = [('E', 0, 0), ('E', 0, 1), ('OI', 1, 0), ('OI', 1, 1)]
    G4 = G2
    groups = [(g, 2) for g in G2] + [(g, 3) for g in G3] + [(g, 4) for g in G4]
    def cload(k):
        if k >= len(groups): return []
        (t, x, u), st = groups[k]
        return [tab(CF + (k & 1) * 12 + 4 * n, f'{t}{y}{u}') for n, y in enumerate('csn')]
    seen = set()
    def mgroup(k):
        (t, x, u), st = groups[k]
        out = VB if st in (2, 4) else VA
        inv = st != 2
        fr = lambda y: vr(CF + (k & 1) * 12 + 4 * 'csn'.index(y), 4)
        r = []
        for (ro, cx, ri) in ((0, 'c', 0), (1, 's' if inv else 'n', 0), (0, 'n' if inv else 's', 1), (1, 'c', 1)):
            acc = vr(D(out, x, ro), 16); dat = vr(PKR(x, ri, u), 4)
            A_, B_ = (dat, fr(cx)) if st == 3 else (fr(cx), dat)
            c = acc if (st, x, ro) in seen else '0'
            seen.add((st, x, ro))
            r.append(f"{M} {acc}, {A_}, {B_}, {c}")
        return r
    def mix(ks, valu):
        ms = []
        for k in ks: ms += [(m, (k if i == 3 else None)) for i, m in enumerate(mgroup(k))]
        n = len(ms); per = -(-len(valu) // n) if valu else 0
        vi = 0
        for m, k in ms:
            a(m)
            if k is not None:
                for l in cload(k + 2): a(l)
            for l in valu[vi:vi + per]: a(l)
            vi += per
    def pack(base, x, u):
        return [f"v_cvt_pk_bf16_f32 v{PKR(x, ri, u) + q}, v{D(base, x, ri) + 8*u + 2*q}, v{D(base, x, ri) + 8*u + 2*q + 1}"
                for ri in range(2) for q in range(4)]
    def wread1(p, q, off=0): return f"ds_read_b128 {vr(Wr(p, 4*q), 4)}, v{12 + (q & 1)} offset:{off + (q >> 1)*4096 + p*2048}"
    def twx(u, inv, refill):
        o = []
        sg = lambda fwd: (NEG0 if (fwd != inv) else "")
        for pr in range(4):
            i = 8 * u + 2 * pr
            t0r, t0i, t1r, t1i = (P2(D(VA, x, ri) + i) for x in range(2) for ri in range(2))
            if inv: s0 = s1 = Wr(u, 4 * pr)
            else: s0, s1 = VT + 4 * pr, VT + 16 + 4 * pr
            c0, sn0, c1, sn1 = P2(s0), P2(s0 + 2), P2(s1), P2(s1 + 2)
            A, B = P2(TMP + 4 * (pr & 1)), P2(TMP + 4 * (pr & 1) + 2)
            o += [f"v_pk_mul_f32 {A}, {t0r}, {c0}", f"v_pk_mul_f32 {B}, {t0i}, {c0}",
                  f"v_pk_fma_f32 {A}, {t0i}, {sn0}, {A} {sg(False)}", f"v_pk_fma_f32 {B}, {t0r}, {sn0}, {B} {sg(True)}",
                  f"v_pk_fma_f32 {t0r}, {t1r}, {c1}, {A}", f"v_pk_fma_f32 {t0i}, {t1i}, {c1}, {B}",
                  f"v_pk_fma_f32 {t0r}, {t1i}, {sn1}, {t0r} {sg(False)}", f"v_pk_fma_f32 {t0i}, {t1r}, {sn1}, {t0i} {sg(True)}",
                  f"v_pk_fma_f32 {t1r}, {A}, {P2(TWO)}, {t0r} {NEG2}", f"v_pk_fma_f32 {t1i}, {B}, {P2(TWO)}, {t0i} {NEG2}"]
            o += refill(pr)
            o += [f"v_cvt_pk_bf16_f32 v{PKR(x, ri, u) + pr}, v{D(VA, x, ri) + i}, v{D(VA, x, ri) + i + 1}" for x in range(2) for ri in range(2)]
        return o
    def tw1(u):
        if u == 0: return twx(0, False, lambda pr: [tab(VT + (mt * 4 + pr) * 4, f'F1_{mt}_{4 + pr}') for mt in range(2)])
        return twx(1, False, lambda pr: [])
    def tw2(u): return twx(u, True, lambda pr: [])
    def xw(p, t2=True, packit=True):
        o = []
        for pr in range(8):
            i = 2 * pr
            xr, xi, w = P2(D(VB, p, 0) + i), P2(D(VB, p, 1) + i), Wr(p, i)
            b = TMP + 6 * (pr & 1)
            wr, wi, t = P2(b), P2(b + 2), P2(b + 4)
            o += [f"v_lshlrev_b32 v{b}, 16, v{w}", f"v_lshlrev_b32 v{b+1}, 16, v{w+1}",
                  f"v_and_b32 v{b+2}, 0xffff0000, v{w}", f"v_and_b32 v{b+3}, 0xffff0000, v{w+1}",
                  f"v_pk_mul_f32 {t}, {xr}, {wi}", f"v_pk_mul_f32 {xr}, {xr}, {wr}",
                  f"v_pk_fma_f32 {xr}, {xi}, {wi}, {xr} {NEG0}", f"v_pk_fma_f32 {xi}, {xi}, {wr}, {t}"]
            if t2 and (pr & 1): o.append(tab(Wr(p, i & ~3), f'F2_{4 * p + (pr >> 1)}'))
            if packit:
                o += [f"v_cvt_pk_bf16_f32 v{PKR(p, ri, pr >> 2) + (pr & 3)}, v{D(VB, p, ri) + i}, v{D(VB, p, ri) + i + 1}" for ri in range(2)]
        return o
    def wread(p): return [wread1(p, q) for q in range(4)]
    for l in cload(0) + cload(1): a(l)
    stamp(a, 'zin')
    for l in tw1(0): a(l)
    mix([0, 1], tw1(1))
    a("s_waitcnt vmcnt(0)")
    a(f"v_mov_b32 v15, {CNT + 28}")
    wait_word(a, 15, 1, tv=7, sleep=0)
    stamp(a, 'win')
    for l in wread(0) + wread(1): a(l)
    if FFT_W2:
        touch_w2_8(a)
    a("s_cmp_lg_u32 s67, 0")
    a.wait_all(vm=False); a.fence()
    a("s_cbranch_scc1 L_fspecial")
    snap = a.snapshot(); seen0 = set(seen)
    x0 = xw(0)
    mix([2], [])
    mix([3], x0[:24])
    for l in x0[24:]: a(l)
    stamp(a, 'loop1')
    mix([4, 5], xw(1))
    mix([6, 7], [])
    a.wait_all(vm=False); a.fence()
    a("s_branch L_fjoin")
    a.restore(snap); seen.clear(); seen.update(seen0)
    a.label("L_fspecial")
    a("s_movk_i32 s71, 256")
    a(f"s_mov_b32 s72, {FB_WG}")
    dma8(WS_WT, 71, "s72")
    mix([2, 3], [])
    a("v_lshlrev_b32 v15, 8, v5")
    a("v_add_u32 v15, v15, v4")
    a("v_lshlrev_b32 v15, 2, v15")
    joff = lambda p, i: (32 * p + 64 * (8 * (i >> 2) + (i & 3))) * 4
    MAXO = joff(1, 15)
    a(f"v_sub_u32 v7, {8192 - MAXO}, v15")
    a("v_cmp_eq_u32 vcc, 0, v2")
    for ri in range(2):
        for p in range(2):
            for i in range(16): a(f"ds_write_b32 v15, v{D(VB,p,ri)+i} offset:{joff(p, i)}")
        a.wait_all(vm=False)
        for p in range(2):
            for i in range(16): a(f"ds_read_b32 v{D(VA,p,ri)+i}, v7 offset:{MAXO - joff(p, i)}")
        a.wait_all(vm=False)
        a(f"v_cndmask_b32 v{D(VA,0,ri)}, v{D(VA,0,ri)}, v{D(VB,0,ri)}, vcc")
    for l in xw(0, False, False) + xw(1, False, False): a(l)
    a("s_waitcnt vmcnt(0)")
    for l in wread(0) + wread(1): a(l)
    for p in range(2):
        for pr in range(8):
            i = 2 * pr
            vr_, vi_, w = P2(D(VB, p, 0) + i), P2(D(VB, p, 1) + i), Wr(p, i)
            mr, mi = P2(D(VA, p, 0) + i), P2(D(VA, p, 1) + i)
            b = TMP + 4 * (pr & 1)
            wr, wi = P2(b), P2(b + 2)
            for l in [f"v_lshlrev_b32 v{b}, 16, v{w}", f"v_lshlrev_b32 v{b+1}, 16, v{w+1}",
                      f"v_and_b32 v{b+2}, 0xffff0000, v{w}", f"v_and_b32 v{b+3}, 0xffff0000, v{w+1}",
                      f"v_pk_fma_f32 {vr_}, {mr}, {wr}, {vr_}", f"v_pk_fma_f32 {vi_}, {mr}, {wi}, {vi_}",
                      f"v_pk_fma_f32 {vr_}, {mi}, {wi}, {vr_}", f"v_pk_fma_f32 {vi_}, {mi}, {wr}, {vi_} {NEG0}"]: a(l)
            if pr & 1: a(tab(Wr(p, i & ~3), f'F2_{4 * p + (pr >> 1)}'))
    for x in range(2):
        for u in range(2):
            for l in pack(VB, x, u): a(l)
    stamp(a, 'loop1')
    mix([4, 5, 6, 7], [])
    a.wait_all(vm=False); a.fence()
    a.label("L_fjoin")
    a.reset_state()
    for l in tw2(0): a(l)
    mix([8, 9], tw2(1))
    def outp(nt):
        o = []
        for i in range(16):
            r = TMP + (i & 7)
            o += [f"v_cvt_pk_bf16_f32 v{r}, v{D(VB,nt,0)+i}, v{D(VB,nt,1)+i}",
                  f"ds_write_b32 v11, v{r} offset:{(64*(8*(i>>2) + (i&3)) + 32*nt)*4}"]
        return o
    mix([10], [])
    o0 = outp(0)
    mix([11], o0[:16])
    for l in o0[16:] + outp(1): a(l)
    a.wait_all(vm=False)
    stamp(a, 'f2')
    a(f"s_lshr_b32 s69, s{sWAVE}, 2")
    a("s_lshl_b32 s70, s69, 2")
    a(f"s_add_u32 s70, s70, {CNT + 16}")
    a("v_mov_b32 v12, s70")
    a("v_mov_b32 v13, 1")
    a("s_mov_b64 exec, 1")
    a("ds_add_u32 v12, v13")
    a("s_mov_b64 exec, -1")
    a("v_and_b32 v14, 255, v0")
    a("s_lshl_b32 s70, s69, 15")
    a("v_lshlrev_b32 v15, 4, v14")
    a("v_lshlrev_b32 v14, 2, v14")
    a("v_add_u32 v14, s70, v14")
    a("s_lshl_b32 s68, s62, 16")
    a("s_add_u32 s68, s68, s70")
    a(f"s_add_u32 s68, s68, {WS_Y1}")
    a("s_setprio 3")
    wait_word(a, 12, 4, sleep=0)
    for z in range(8):
        o = z * 4
        a(f"ds_read2st64_b32 {vr(64 + z*4, 2)}, v14 offset0:{o} offset1:{o+32}")
        a(f"ds_read2st64_b32 {vr(66 + z*4, 2)}, v14 offset0:{o+64} offset1:{o+96}")
    for z in range(8):
        a(f"buffer_store_dwordx4 {vr(64 + z*4, 4)}, v15, {S4(SWS)}, s68 offen {ST}")
        if z < 7: a("s_add_u32 s68, s68, 4096")
    a("s_setprio 0")
    lds_inc(a, 6)
    a("s_lshl_b32 s72, s62, 6")
    a(f"s_add_u32 s72, s72, {F_Y}")
    stamp(a, 'ust')
    a.fence()

def build():
    a = Asm()
    head = HEADER + ("; CFG " + os.environ.get("CFG", "") + "\n" if os.environ.get("CFG") else "") + (f"; STK {','.join(STK)}\n" if STAMPS else "") + f"; @launch grid=(256,1,1) block=(512,1,1) lds={LDS_TOTAL}\n"
    head += '.amdgcn_target "amdgcn-amd-amdhsa--gfx950"\n.text\n'
    tb = gen(a)
    body = a.text() + ".p2align 8\nTABLES:\n"
    for i in range(0, len(tb), 8):
        body += ".long " + ",".join(f"0x{x:x}" for x in tb[i:i+8]) + "\n"
    body += f""".section .rodata,"a"
.p2align 6
.amdhsa_kernel {NAME}
  .amdhsa_next_free_vgpr 256
  .amdhsa_next_free_sgpr 102
  .amdhsa_accum_offset 256
  .amdhsa_group_segment_fixed_size 0
  .amdhsa_kernarg_size 96
  .amdhsa_user_sgpr_count 2
  .amdhsa_user_sgpr_kernarg_segment_ptr 1
  .amdhsa_system_sgpr_workgroup_id_x 1
.end_amdhsa_kernel
"""
    return head + body, a.stats
if __name__ == "__main__":
    t, st = build()
    open(sys.argv[1], "w").write(t)
    print(len(t), "bytes", st)
```

```python
import sys, os, math, struct
sys.path.insert(0, "work")
from asmlib import *
from design import *

NAME = "gated_mix__spectral_gfnet__mixer_token_mlp__prompt_kernel"
HEADER = open("gated_mix__spectral_gfnet__mixer_token_mlp__prompt.s.ref").read().split("; @launch")[0]
ENV = lambda k, d: type(d)(os.environ.get(k, d))
STAMPS = ENV("STAMPS", 0)
ST = ENV("STMOD", "sc1").replace("_", " ")
LD = ENV("LDMOD", "sc1").replace("_", " ")
PA = ENV("PA", 3)
NREG = 9 - PA
W2_EARLY = ENV("W2_EARLY", 1)
POLL_MAX = 50000
CODEPF2 = ENV('CODEPF2', 1)
WJOBH = ENV('WJOBH', 0)
SPB = 208
HPOLL2 = ENV('HPOLL2', 1)
NREP = ENV('NREP', 8)
OST = ENV('OST', '').replace('_', ' ')
TBIT = ENV('TBIT', 0)
SPREAD = ENV('SPREAD', 0)
PFH = ENV('PFH', 0)
PFU = ENV('PFU', 0)
HSLEEP = ENV('HSLEEP', 12)
USLEEP = ENV('USLEEP', 12)
TBWAIT = ENV('TBWAIT', 0)
FFT_T1 = ENV('FFT_T1', 1)
MAP1 = ENV('MAP1', 24)
MAP2 = ENV('MAP2', 24)
YSLEEP0 = ENV('YSLEEP0', 0)
TOUCH_FR = ENV('TOUCH_FR', 0)
DRY = ENV('DRY', 4)
ZLD = ENV('ZLD', ' ')
CODEPF = ENV('CODEPF', 0)
HALF_T = ENV('HALF_T', 1)
W_AFTER = ENV('W_AFTER', 1)
YSLEEP = ENV('YSLEEP', 40)
FFT_W2 = ENV('FFT_W2', 1)
PM = ENV('PM', 'sc1').replace('_', ' ')
PSLEEP = ENV('PSLEEP', 2)
DFTPRIO = ENV('DFTPRIO', 0)
W2SIG = ENV('W2SIG', 13)
NB1 = ENV('NB1', 3)
NB2 = ENV('NB2', 3)
NB3 = 0
NB4 = 0
EARLY2 = ENV('EARLY2', 1)
NR1 = ENV('NR1', 99)
FFT_PUB_FIRST = ENV('FFT_PUB_FIRST', 0)
WS_FLG = 0xC00000
F_H, F_Z, F_U, F_Y, F_EP, F_W, F_G, F_X = 0, 8192, 16384, 32768, 40960, 49152, 57344, 65536
WS_DBG = 0x8000000
WS_BYTES = 0x10000000
MIXC = "op_sel_hi:[0,1,0]"
MIXS = "op_sel:[0,1,0] op_sel_hi:[0,1,0]"
f2u = lambda f: struct.unpack("<I", struct.pack("<f", f))[0]
SX, SWR, SWI, SGW, SWS, STB, SW1, SW2, SOUT, SB2 = 8, 12, 16, 20, 24, 28, 32, 36, 40, 44
sWAVE, sXCD, sIDX, sTAG, sN2, sC2, sDT1, sFT1, sDT2, sST2 = 48, 49, 50, 51, 52, 53, 54, 55, 56, 57
RING = 32768
AP = 4 * RING
LDS_TOTAL = 163840
FB_TB, FB_WG = 65536, 65536 + 59392

def srd(a, d, base, nbytes):
    a(f"s_mov_b32 s{d}, s{base}")
    a(f"s_and_b32 s{d+1}, s{base+1}, 0xffff")
    a(f"s_mov_b32 s{d+2}, {nbytes}")
    a(f"s_mov_b32 s{d+3}, 0x00020000")
def S4(d): return f"s[{d}:{d+3}]"
STK = ENV("STK", "start,xin,p1c,p1st,pre4,b4,loop1,ust,pre7,loop2,end").split(",")
def stamp(a, n):
    if STAMPS and n in STK:
        i = STK.index(n)
        a(f"s_memrealtime s[{80+2*i}:{81+2*i}]")
def stamp_flush(a):
    if not STAMPS: return
    a("s_waitcnt vmcnt(0)")
    stamp(a, 'end')
    a("s_waitcnt lgkmcnt(0)")
    for i in range(11): a(f"v_mov_b32 v{240+i}, s{80+2*i}")
    a("s_lshl_b32 s60, s2, 3")
    a(f"s_add_u32 s60, s60, s{sWAVE}")
    a("s_lshl_b32 s60, s60, 6")
    a(f"s_add_u32 s60, s60, {WS_DBG}")
    a("v_mov_b32 v239, 0")
    if ENV("DBG", 0):
        a("s_load_dwordx2 s[64:65], s[0:1], 80")
        a("s_waitcnt lgkmcnt(0)")
        srd(a, 68, 64, 256)
        a("v_not_b32 v238, v240")
        a("s_mov_b64 exec, 1")
        a(f"buffer_atomic_umax v238, v239, s[68:71], 0 offen")
        for i in range(1, 11): a(f"buffer_atomic_umax v{240+i}, v239, s[68:71], 0 offen offset:{4*i}")
        a(f"buffer_atomic_umax v240, v239, s[68:71], 0 offen offset:44")
        a("s_mov_b64 exec, -1")
        return
    a("s_mov_b64 exec, 1")
    for q in range(3): a(f"buffer_store_dwordx4 v[{240+4*q}:{243+4*q}], v239, {S4(SWS)}, s60 offen offset:{16*q}")
    a("s_mov_b64 exec, -1")
def dpp_reduce(a, regs):
    for mod in ("quad_perm:[1,0,3,2] row_mask:0xf bank_mask:0xf", "quad_perm:[2,3,0,1] row_mask:0xf bank_mask:0xf",
                "row_half_mirror row_mask:0xf bank_mask:0xf", "row_mirror row_mask:0xf bank_mask:0xf",
                "row_bcast:15 row_mask:0xa bank_mask:0xf", "row_bcast:31 row_mask:0xc bank_mask:0xf"):
        for r in regs: a(f"v_add_f32_dpp v{r}, v{r}, v{r} {mod}")
def unpack(a, lo, hi, src):
    a(f"v_lshlrev_b32 v{lo}, 16, v{src}")
    a(f"v_and_b32 v{hi}, 0xffff0000, v{src}")
_uid = [0]
def uid(p): _uid[0] += 1; return f"L_{p}_{_uid[0]}"

def set_flag(a, off_s):
    a(f"s_add_u32 s{off_s}, s{off_s}, {WS_FLG}")
    a(f"v_mov_b32 v13, s{sTAG}")
    a("v_mov_b32 v14, 0")
    a("s_mov_b64 exec, 1")
    a(f"buffer_store_dword v13, v14, {S4(SWS)}, s{off_s} offen {PM}")
    a("s_mov_b64 exec, -1")

def poll(a, off_s, nflags, vt=13):
    L, Ld = uid("poll"), uid("polld")
    a(f"s_add_u32 s{off_s}, s{off_s}, {WS_FLG}")
    n1 = min(nflags, 64)
    a(f"v_min_u32 v{vt}, {n1-1}, v2")
    a(f"v_lshlrev_b32 v{vt}, 6, v{vt}")
    a(f"v_add_u32 v{vt}, s6, v{vt}")
    a(f"s_mov_b32 s79, {POLL_MAX}")
    if nflags > 64: a(f"s_add_u32 s78, s{off_s}, 4096")
    a.wait_all(vm=False); a.fence()
    snap_vm = list(a.vm)
    a.label(L)
    a.auto_wait = False
    a(f"buffer_load_dword v{vt+1}, v{vt}, {S4(SWS)}, s{off_s} offen {PM}")
    if nflags > 64: a(f"buffer_load_dword v{vt+2}, v{vt}, {S4(SWS)}, s78 offen {PM}")
    a("s_sub_u32 s79, s79, 1")
    a("s_waitcnt vmcnt(0)")
    a(f"v_cmp_ne_u32 vcc, s{sTAG}, v{vt+1}")
    if nflags > 64:
        a(f"v_cmp_ne_u32 s[76:77], s{sTAG}, v{vt+2}")
        a("s_nop 1")
        a("s_or_b64 vcc, vcc, s[76:77]")
    else:
        a("s_nop 1")
    a("s_cmp_eq_u64 vcc, 0")
    a(f"s_cbranch_scc1 {Ld}")
    a("s_cmp_eq_u32 s79, 0")
    a(f"s_cbranch_scc1 {Ld}")
    a(f"s_sleep {PSLEEP}")
    a(f"s_branch {L}")
    a.label(Ld)
    a.auto_wait = True
    a.reset_state()

vW0, vW1, vA, vT, vL16 = 4, 5, 6, 8, 3
ACC, WF, AF, RS = 16, 80, 112, 112 + 16 * PA
sRING, sW, sA0, sA, sROT, sSL = 58, 59, 60, 61, 74, 75
ROT = ENV('ROT', 1)
ROT2 = ENV('ROT2', 0)

def poll_pre(a, off, vt):
    a(f"v_lshlrev_b32 v{vt}, 6, v2")
    a(f"s_mov_b32 s78, {WS_FLG + off}")
    a(f"s_mov_b32 s79, {WS_FLG + off + 4096}")
    a(f"buffer_load_dword v{vt+1}, v{vt}, {S4(SWS)}, s78 offen {PM}")
    a(f"buffer_load_dword v{vt+2}, v{vt}, {S4(SWS)}, s79 offen {PM}")
def poll_fin(a, off, vt, off_s):
    L = uid("pf")
    a(f"v_cmp_ne_u32 vcc, s{sTAG}, v{vt+1}")
    a(f"v_cmp_ne_u32 s[76:77], s{sTAG}, v{vt+2}")
    a("s_or_b64 vcc, vcc, s[76:77]")
    a("s_cmp_eq_u64 vcc, 0")
    a.wait_all(); a.fence()
    a(f"s_cbranch_scc1 {L}")
    a(f"s_mov_b32 s{off_s}, {off}")
    poll(a, off_s, 128, vt=vt)
    a.label(L)
    a.reset_state()

def gpoll(a, groups, vt=(12, 13, 250, 251), sleep=None, behind=None):
    L, Ld = uid("gp"), uid("gpd")
    for k, (so, n) in enumerate(groups):
        a(f"v_min_u32 v{vt[k]}, {n-1}, v2")
        a(f"v_lshlrev_b32 v{vt[k]}, 6, v{vt[k]}")
        a(f"v_add_u32 v{vt[k]}, s6, v{vt[k]}")
    L2 = uid("gpc")
    after = []
    if behind:
        for k, (so, n) in enumerate(groups):
            a(f"buffer_load_dword v{vt[2+k]}, v{vt[k]}, {S4(SWS)}, s{so} offen {PM}")
        n0 = len(a.vm)
        behind()
        after = a.vm[n0:] if len(a.vm) < 63 else None
        assert after is not None
        a(f"s_waitcnt vmcnt({len(after)})")
        a(f"s_mov_b32 s79, {POLL_MAX}")
        a.wait_all(vm=False); a.fence()
        a(f"s_branch {L2}")
    else:
        a(f"s_mov_b32 s79, {POLL_MAX}")
        a.wait_all(vm=False); a.fence()
    a.label(L)
    a.auto_wait = False
    for k, (so, n) in enumerate(groups):
        a(f"buffer_load_dword v{vt[2+k]}, v{vt[k]}, {S4(SWS)}, s{so} offen {PM}")
    a("s_sub_u32 s79, s79, 1")
    a("s_waitcnt vmcnt(0)")
    a.label(L2)
    a(f"v_cmp_ne_u32 vcc, s{sTAG}, v{vt[2]}")
    if len(groups) > 1:
        a(f"v_cmp_ne_u32 s[70:71], s{sTAG}, v{vt[3]}")
        a("s_nop 1")
        a("s_or_b64 vcc, vcc, s[70:71]")
    else:
        a("s_nop 1")
    a("s_cmp_eq_u64 vcc, 0")
    a(f"s_cbranch_scc1 {Ld}")
    a("s_cmp_eq_u32 s79, 0")
    a(f"s_cbranch_scc1 {Ld}")
    a("s_mov_b64 exec, vcc")
    a(f"s_sleep {PSLEEP if sleep is None else sleep}")
    a(f"s_branch {L}")
    a.label(Ld)
    a("s_mov_b64 exec, -1")
    a.auto_wait = True
    a.reset_state()
    a.vm = list(after)

def prefetch_loop(a, groups, sleep):
    L, Ld = uid("pl"), uid("pld")
    a(f"s_mov_b32 s79, {POLL_MAX}")
    a.wait_all(vm=False); a.fence()
    a.label(L)
    a.auto_wait = False
    for k, (pd, vf, sf, vd, sd) in enumerate(groups):
        Ls = uid("pls")
        a(f"s_mov_b64 exec, s[{pd}:{pd+1}]")
        a(f"s_cbranch_execz {Ls}")
        a(f"buffer_load_dword v{14+k}, v{vf}, {S4(SWS)}, s{sf} offen {PM}")
        a.label(Ls)
    a("s_waitcnt vmcnt(0)")
    for k, (pd, vf, sf, vd, sd) in enumerate(groups):
        Ls = uid("pls")
        a(f"s_mov_b64 exec, s[{pd}:{pd+1}]")
        a(f"v_cmp_eq_u32 vcc, s{sTAG}, v{14+k}")
        a("s_nop 1")
        a(f"s_andn2_b64 s[{pd}:{pd+1}], s[{pd}:{pd+1}], vcc")
        a("s_mov_b64 exec, vcc")
        a(f"s_cbranch_execz {Ls}")
        a(f"buffer_load_dword v1, v{vd}, {S4(SWS)}, s{sd} offen")
        a.label(Ls)
    a("s_mov_b64 exec, -1")
    if len(groups) > 1: a(f"s_or_b64 vcc, s[{groups[0][0]}:{groups[0][0]+1}], s[{groups[1][0]}:{groups[1][0]+1}]")
    else: a(f"s_mov_b64 vcc, s[{groups[0][0]}:{groups[0][0]+1}]")
    a("s_cmp_eq_u64 vcc, 0")
    a(f"s_cbranch_scc1 {Ld}")
    a("s_sub_u32 s79, s79, 1")
    a(f"s_cbranch_scc1 {Ld}")
    a(f"s_sleep {sleep}")
    a(f"s_branch {L}")
    a.label(Ld)
    a.auto_wait = True
    a.reset_state()

def prefetch_h(a):
    a(f"s_lshr_b32 s62, s{sXCD}, 1")
    a("s_mul_i32 s62, s62, 7")
    a(f"s_sub_u32 s62, s{sFT1}, s62")
    a("v_lshrrev_b32 v4, 3, v2")
    a("v_mul_u32_u24 v4, 7, v4")
    a("v_add_u32 v4, s62, v4")
    a("v_and_b32 v5, 7, v2")
    a("v_lshlrev_b32 v5, 7, v5")
    a("v_lshlrev_b32 v6, 6, v4")
    a("v_lshl_add_u32 v7, v4, 10, v5")
    a("v_cmp_gt_u32 vcc, 8, v4")
    a("s_mov_b64 s[70:71], -1")
    a("s_mov_b64 s[72:73], vcc")
    a(f"s_bfe_u32 s63, s{sWAVE}, 0x10001")
    a("s_lshl_b32 s63, s63, 12")
    a(f"s_add_u32 s63, s63, {WS_FLG + F_H}")
    a(f"s_add_u32 s68, s63, {56*64}")
    a(f"s_lshl_b32 s69, s{sDT1}, 18")
    a(f"s_and_b32 s76, s{sWAVE}, 3")
    a("s_lshl_b32 s76, s76, 16")
    a("s_add_u32 s69, s69, s76")
    if WS_HT: a(f"s_add_u32 s69, s69, {WS_HT}")
    a(f"s_add_u32 s76, s69, {56*1024}")
    prefetch_loop(a, [(70, 6, 63, 7, 69), (72, 6, 68, 7, 76)], HSLEEP)

def prefetch_u(a):
    a("v_lshrrev_b32 v4, 3, v2")
    a("v_and_b32 v5, 7, v2")
    a("v_lshlrev_b32 v5, 7, v5")
    a("v_lshlrev_b32 v6, 6, v4")
    a("v_lshl_add_u32 v7, v4, 13, v5")
    a("s_mov_b32 s70, -1")
    a("s_mov_b32 s71, 0x00ffffff")
    a(f"s_and_b32 s76, s{sWAVE}, 3")
    a(f"s_lshl_b32 s63, s{sDT2}, 11")
    a(f"s_mul_i32 s68, s76, {7*64}")
    a("s_add_u32 s63, s63, s68")
    a(f"s_add_u32 s63, s63, {WS_FLG + F_U}")
    a(f"s_mul_i32 s69, s{sDT2}, {224*1024}")
    a(f"s_mul_i32 s68, s76, {56*1024}")
    a("s_add_u32 s69, s69, s68")
    a(f"s_and_b32 s68, s{sST2}, 7")
    a("s_lshl_b32 s68, s68, 10")
    a("s_add_u32 s69, s69, s68")
    a(f"s_add_u32 s69, s69, {WS_UT}")
    prefetch_loop(a, [(70, 6, 63, 7, 69)], USLEEP)

def wlane(a, r0, r1, rowstride, t0, t1):
    a(f"v_lshrrev_b32 v{t0}, 3, v2")
    a(f"s_mov_b32 s79, {rowstride}")
    a(f"v_mul_lo_u32 v{r0}, v{t0}, s79")
    a(f"v_bfe_u32 v{t0}, v2, 1, 2")
    a(f"v_bfe_u32 v{t1}, v2, 4, 1")
    a(f"v_xor_b32 v{t0}, v{t0}, v{t1}")
    a(f"v_lshl_add_u32 v{r0}, v{t0}, 5, v{r0}")
    a(f"v_and_b32 v{t0}, 1, v2")
    a(f"v_lshl_add_u32 v{r0}, v{t0}, 4, v{r0}")
    a(f"v_xor_b32 v{r1}, 64, v{r0}")
def gemm_lane_consts(a, rowstride):
    t0, t1 = 12, 13
    a(f"s_lshl_b32 s{sRING}, s{sWAVE}, 15")
    wlane(a, vW0, vW1, rowstride, t0, t1)
    a(f"v_lshrrev_b32 v{t1}, 4, v2")
    a(f"v_lshlrev_b32 v{vA}, 10, v{t1}")
    a(f"v_and_b32 v{t0}, 15, v2")
    a(f"v_lshl_add_u32 v{vA}, v{t0}, 4, v{vA}")
    a(f"v_lshlrev_b32 v{vT}, 10, v{t1}")
    a(f"v_bfe_u32 v{t0}, v2, 2, 2")
    a(f"v_lshl_add_u32 v{vT}, v{t0}, 7, v{vT}")
    a(f"v_bfe_u32 v{t0}, v2, 3, 2")
    a(f"v_lshl_add_u32 v{vT}, v{t0}, 5, v{vT}")
    a(f"v_and_b32 v{t0}, 3, v2")
    a(f"v_lshl_add_u32 v{vT}, v{t0}, 3, v{vT}")
    a(f"v_add_u32 v{vT}, s{sRING}, v{vT}")
    for t in range(1, 4): a(f"v_xor_b32 v{vT+t}, {32*t}, v{vT}")
    a(f"v_add_u32 v7, s{sRING}, v{vL16}")

class Gemm:
    def __init__(s, a, nslab, slots, kinds, srdW, wbase_s, jstep, sstep, w_is_A, vw=(4, 5), rot=74):
        s.vw, s.rot = vw, rot
        s.a, s.n, s.slots, s.kinds, s.srdW, s.wb, s.jstep, s.sstep, s.w_is_A = a, nslab, slots, kinds, srdW, wbase_s, jstep, sstep, w_is_A
        s.tok = {}
        s.regidx = {sg: i for i, sg in enumerate([x for x in range(nslab) if kinds[x] == 'reg'])}
    def wload(s, sig, jj):
        v = s.vw[jj % 2]
        o = []
        if jj == 0:
            o += s.actual(sig, sSL, sW) + [f"s_mul_i32 s{sSL}, s{sSL}, {s.sstep}", f"s_add_u32 s{sSL}, s{sSL}, s{s.wb}"]
        o.append(f"s_add_u32 s{sW}, s{sSL}, {jj * s.jstep}")
        if s.kinds[sig] == 'reg':
            r = RS + s.regidx[sig] * 16 + jj * 4
            o.append(f"buffer_load_dwordx4 {vr(r,4)}, v{v}, {S4(s.srdW)}, s{sW} offen")
        else:
            o.append(f"s_add_u32 m0, s{sRING}, {s.slots[sig]*4096 + jj*1024}")
            o.append(f"buffer_load_dwordx4 v{v}, {S4(s.srdW)}, s{sW} offen lds")
        return o
    def actual(s, sig, d, tmp):
        o = [f"s_add_u32 s{d}, s{s.rot}, {sig}"]
        if s.n == 16: o.append(f"s_and_b32 s{d}, s{d}, 15")
        else: o += [f"s_sub_u32 s{tmp}, s{d}, {s.n}", f"s_min_u32 s{d}, s{d}, s{tmp}"]
        return o
    def emit_w(s, sig, jjs=range(4)):
        if s.w_is_A: stamp(s.a, f"w{sig}")
        for jj in jjs:
            for l in s.wload(sig, jj):
                ins = s.a(l)
                if 'lds' in l and 'buffer' in l: s.tok.setdefault(sig, []).append(ins)
    def aload(s, sig, mt):
        r = AF + (sig % PA) * 16 + mt * 4
        o = []
        if mt == 0: o += s.actual(sig, sA, 73) + [f"s_lshl_b32 s{sA}, s{sA}, 12", f"s_add_u32 s{sA}, s{sA}, s{sA0}"]
        o.append(f"buffer_load_dwordx4 {vr(r,4)}, v{vA}, {S4(SWS)}, s{sA} offen offset:{mt*256} {LD}")
        return o
    def trreads(s, sig):
        out = []
        for t in range(4):
            for u in range(2):
                r = WF + (sig & 1) * 16 + t * 4 + 2 * u
                out.append(f"ds_read_b64_tr_b16 {vr(r,2)}, v{vT+t} offset:{s.slots[sig]*4096 + u*512}")
        return out
    def run(s, extra=None, drain_first=False, post=None, pwrite=None):
        a = s.a; M = "v_mfma_f32_16x16x32_bf16"
        for sig in range(min(PA, s.n)):
            for mt in range(4):
                for l in s.aload(sig, mt): a(l)
        if post: post()
        if drain_first: a.wait_tok(a.vm[0])
        a.wait_tok(*s.tok.get(0, []))
        rt = {0: [a(l) for l in s.trreads(0)]}
        wr = {}; done = []
        for sig in range(s.n):
            stamp(a, f"g{1 if s.w_is_A else 2}_{sig}")
            nxt = [x for x in range(sig + 1, s.n) if s.slots[x] == s.slots[sig] and s.kinds[x] != 'pre']
            fill = nxt[0] if nxt else None
            groups = [[] for _ in range(16)]
            trn = s.trreads(sig + 1) if sig + 1 < s.n else []
            for i, l in enumerate(trn): groups[6 + i].append(('tr', l))
            if fill is not None:
                for jj in range(4):
                    if s.kinds[fill] == 'reg':
                        r = RS + s.regidx[fill] * 16 + jj * 4
                        groups[jj].append(('wr', f"ds_write_b128 v7, {vr(r,4)} offset:{s.slots[fill]*4096 + jj*1024}"))
                    else:
                        groups[jj].append(('dma', jj))
            if sig + PA < s.n:
                for mt in range(4): groups[12 + mt].append(('act', mt))
            ex = extra(sig) if extra else []
            for i, g in enumerate(ex): groups[min(15, 1 + i * 14 // max(1, len(ex)))].append(('ex', g))
            if fill is not None or ex: a.wait_tok(*rt[sig])
            rt[sig + 1] = []
            k = 0
            for t in range(4):
                for mt in range(4):
                    wf = vr(WF + (sig & 1) * 16 + t * 4, 4); af = vr(AF + (sig % PA) * 16 + mt * 4, 4)
                    if s.w_is_A: acc = vr(ACC + (t * 4 + mt) * 4, 4); A_, B_ = wf, af
                    else:        acc = vr(ACC + (mt * 4 + t) * 4, 4); A_, B_ = af, wf
                    a(f"{M} {acc}, {A_}, {B_}, {'0' if sig == 0 else acc}")
                    for kind, x in groups[k]:
                        if kind == 'tr':
                            if not rt[sig + 1]: a.wait_tok(*s.tok.get(sig + 1, []), *wr.get(sig + 1, []))
                            rt[sig + 1].append(a(x))
                        elif kind == 'wr': wr.setdefault(fill, []).append(a(x))
                        elif kind == 'dma': s.emit_w(fill, [x])
                        elif kind == 'act':
                            for l in s.aload(sig + PA, x): a(l)
                        elif kind == 'ex': x()
                    if pwrite and sig == s.n - 1:
                        done.append((t * 4 + mt) if s.w_is_A else (mt * 4 + t))
                        if k >= 8: a(pwrite(done[k - 8]))
                    k += 1
        if pwrite:
            for b in done[8:]: a(pwrite(b))

P1_EX, P1_GX, CNT, P1_TB = AP, AP + 16384, LDS_TOTAL - 64, AP + 21504
P1_XR = P1_EX
P1_WR, P1_WI = 0, 32768
LX, LF, LP, LGW = 16, 32, 64, 96
def hbar(a, cnt, target):
    a.wait_all(vm=False)
    a(f"v_mov_b32 v12, {CNT + 4*cnt}")
    a("v_mov_b32 v13, 1")
    a("s_mov_b64 exec, 1")
    a("ds_add_u32 v12, v13")
    a("s_mov_b64 exec, -1")
    wait_word(a, 12, target, sleep=0)

def phase1_ln(a):
    F = lambda r, e: LF + 8 * r + e
    P = lambda r, e: LP + 8 * r + e
    R = range(4)
    a(f"buffer_load_dwordx4 {vr(LGW,4)}, v3, {S4(SGW)}, 0 offen")
    if WJOBH:
        a("v_and_b32 v9, 15, v2")
        w_special_pre(a)
    stamp(a, 'ea0')
    a("s_barrier")
    a("v_mov_b32 v108, 0x3b000000")
    a("v_lshlrev_b32 v11, 5, v2")
    a("v_add_u32 v11, s64, v11")
    a("v_and_b32 v4, 255, v0")
    a("v_lshlrev_b32 v4, 2, v4")
    a(f"v_add_u32 v4, {P1_EX}, v4")
    a(f"s_lshl_b32 s72, s{sC2}, 6")
    a(f"s_add_u32 s72, s72, s{sN2}")
    a("s_lshl_b32 s72, s72, 6")
    a("s_lshl_b32 s70, s72, 4")
    a(f"s_lshl_b32 s71, s{sC2}, 16")
    a("s_add_u32 s70, s70, s71")
    a(f"s_and_b32 s71, s{sWAVE}, 3")
    a(f"s_lshl_b32 s71, s71, 18")
    a("s_add_u32 s70, s70, s71")
    if WS_HT: a(f"s_add_u32 s70, s70, {WS_HT}")
    if F_H: a(f"s_add_u32 s72, s72, {F_H}")
    S_, T_, M_, V_, M2, V2 = 100, 104, 112, 116, 152, 160
    P2 = lambda r: f"v[{r}:{r+1}]"
    NEG1 = "neg_lo:[0,1] neg_hi:[0,1]"
    SP_ = 168
    for r in R:
        for q in range(4): unpack(a, F(r, 2*q), F(r, 2*q+1), LX + 4*r + q)
        if r == 0: stamp(a, 'xin')
        a(f"v_pk_add_f32 {P2(SP_+4*r)}, {P2(F(r,0))}, {P2(F(r,2))}")
        a(f"v_pk_add_f32 {P2(SP_+4*r+2)}, {P2(F(r,4))}, {P2(F(r,6))}")
        a(f"v_pk_add_f32 {P2(SP_+4*r)}, {P2(SP_+4*r)}, {P2(SP_+4*r+2)}")
        a(f"v_add_f32 v{S_+r}, v{SP_+4*r}, v{SP_+4*r+1}")
    dpp_reduce(a, [S_ + r for r in R])
    for r in R: a(f"v_readlane_b32 s{64+r}, v{S_+r}, 63")
    for r in R:
        a(f"v_mul_f32 v{M2+2*r}, s{64+r}, v108"); a(f"v_mul_f32 v{M2+2*r+1}, s{64+r}, v108")
    for q in range(4):
        for r in R: a(f"v_pk_add_f32 {P2(P(r,2*q))}, {P2(F(r,2*q))}, {P2(M2+2*r)} {NEG1}")
        for r in R:
            if q == 0: a(f"v_pk_mul_f32 {P2(SP_+2*r)}, {P2(P(r,0))}, {P2(P(r,0))}")
            else: a(f"v_pk_fma_f32 {P2(SP_+2*r)}, {P2(P(r,2*q))}, {P2(P(r,2*q))}, {P2(SP_+2*r)}")
    for r in R: a(f"v_add_f32 v{S_+r}, v{SP_+2*r}, v{SP_+2*r+1}")
    for r in R:
        a(f"v_cvt_pk_bf16_f32 v{T_+r}, v{M2+2*r}, v{M2+2*r}")
    for r in R: unpack(a, M2 + 2*r, M2 + 2*r + 1, T_ + r)
    dpp_reduce(a, [S_ + r for r in R])
    for r in R: a(f"v_readlane_b32 s{64+r}, v{S_+r}, 63")
    def rnd4(X):
        for p in range(2): a(f"v_cvt_pk_bf16_f32 v{T_+p}, v{X+2*p}, v{X+2*p+1}")
        for p in range(2): unpack(a, X + 2*p, X + 2*p + 1, T_ + p)
    sub = [f"v_pk_add_f32 {P2(P(r,2*q))}, {P2(F(r,2*q))}, {P2(M2+2*r)} {NEG1}" for q in range(4) for r in R]
    cv = [f"v_cvt_pk_bf16_f32 v{120 + 4*r + q}, v{P(r,2*q)}, v{P(r,2*q+1)}" for q in range(4) for r in R]
    for l in sub[:4]: a(l)
    for r in R: a(f"v_mul_f32 v{V_+r}, s{64+r}, v108")
    rnd4(V_)
    for r in R: a(f"v_add_f32 v{V_+r}, 0x3727c5ac, v{V_+r}")
    rnd4(V_)
    for r in R: a(f"v_sqrt_f32 v{V_+r}, v{V_+r}")
    for l in sub[4:8]: a(l)
    rnd4(V_)
    for r in R:
        a(f"v_rcp_f32 v{V2+2*r}, v{V_+r}"); a(f"v_rcp_f32 v{V2+2*r+1}, v{V_+r}")
    for l in sub[8:]: a(l)
    for l in cv: a(l)
    for p in range(2):
        for r in (2*p, 2*p+1):
            for q in range(4): unpack(a, P(r, 2*q), P(r, 2*q+1), 120 + 4*r + q)
            for q in range(4): a(f"v_pk_mul_f32 {P2(P(r,2*q))}, {P2(P(r,2*q))}, {P2(V2+2*r)}")
        for e in range(8): a(f"v_cvt_pk_bf16_f32 v{176 + 8*p + e}, v{P(2*p,e)}, v{P(2*p+1,e)}")
        a(f"ds_write_b128 v11, {vr(176 + 8*p, 4)} offset:{2048*p}")
        a(f"ds_write_b128 v11, {vr(180 + 8*p, 4)} offset:{2048*p + 16}")
    stamp(a, 'p1c')
    hbar(a, 8, 4)
    for dh in range(2):
        for cc in range(2):
            for hh in range(2):
                o = 32 * cc + 16 * hh + 4 * dh
                a(f"ds_read2st64_b32 {vr(136 + 8*dh + 4*cc + 2*hh, 2)}, v4 offset0:{o} offset1:{o+8}")
    for dh in range(2):
        for cc in range(2):
            a(f"s_add_u32 s71, s70, {dh * (1 << 20) + cc * 65536}")
            a(f"buffer_store_dwordx4 {vr(136 + 8*dh + 4*cc, 4)}, v3, {S4(SWS)}, s71 offen {ST}")
    stamp(a, 'p1st')
    lds_inc(a, 11)
    tag_ready(a)
    if not WJOBH:
        arrive(a, 0, [72], 0, 4)
        return
    a("v_bfe_u32 v7, v0, 2, 6")
    a("v_and_b32 v6, 3, v2")
    a("v_lshlrev_b32 v8, 13, v7")
    a("v_lshl_add_u32 v8, v6, 4, v8")
    a(f"v_mov_b32 v12, {CNT + 40}")
    wait_word(a, 12, 4, sleep=0)
    w_relayout(a, WR=176, WI=192, flagbase=F_H)
    arrive(a, 0, [72], 5, 4)
    arrive(a, 3, [69], 0, 4)

def lds_inc(a, cnt, t=(12, 13)):
    a(f"v_mov_b32 v{t[0]}, {CNT + 4*cnt}")
    a(f"v_mov_b32 v{t[1]}, 1")
    a("s_mov_b64 exec, 1")
    a(f"ds_add_u32 v{t[0]}, v{t[1]}")
    a("s_mov_b64 exec, -1")
def touch_w1(a, t=(12, 13)):
    if MAP1 == 18:
        a(f"v_lshrrev_b32 v{t[0]}, 2, v2")
        a(f"v_and_b32 v{t[1]}, 3, v2")
        a(f"v_mul_u32_u24 v{t[0]}, 3584, v{t[0]}")
        a(f"v_lshl_add_u32 v{t[0]}, v{t[1]}, 7, v{t[0]}")
        a(f"s_lshl_b32 s70, s{sIDX}, 2")
        a(f"s_add_u32 s70, s70, s{sWAVE}")
        a(f"s_mul_i32 s70, s70, {16*3584}")
        a(f"s_lshr_b32 s71, s{sXCD}, 1")
        a("s_mul_i32 s71, s71, 896")
        a("s_add_u32 s70, s70, s71")
        a(f"s_and_b32 s71, s{sXCD}, 1")
        a("s_mul_i32 s71, s71, 384")
        a("s_add_u32 s70, s70, s71")
        return
    a(f"v_mul_u32_u24 v{t[0]}, 37, v2")
    a(f"v_lshrrev_b32 v{t[0]}, 8, v{t[0]}")
    a(f"v_mul_u32_u24 v{t[1]}, 7, v{t[0]}")
    a(f"v_sub_u32 v{t[1]}, v2, v{t[1]}")
    a(f"v_mul_u32_u24 v{t[0]}, 3584, v{t[0]}")
    a(f"v_lshl_add_u32 v{t[0]}, v{t[1]}, 7, v{t[0]}")
    a(f"s_lshl_b32 s70, s{sIDX}, 2")
    a(f"s_add_u32 s70, s70, s{sWAVE}")
    a(f"s_mul_i32 s70, s70, {16*3584}")
    a(f"s_lshr_b32 s71, s{sXCD}, 1")
    a("s_mul_i32 s71, s71, 896")
    a("s_add_u32 s70, s70, s71")
    a(f"s_and_b32 s71, s{sXCD}, 1")
    a(f"s_mul_i32 s71, s71, {8*3584}")
    a("s_add_u32 s70, s70, s71")
    a(f"s_xor_b32 s71, s71, {8*3584}")
    a("s_add_u32 s71, s71, s70")
    a(f"s_and_b32 s72, s{sXCD}, 1")
    a(f"s_mul_i32 s72, s72, {8*3584}")
    a("s_sub_u32 s71, s71, s72")
def touch_w1_issue(a, t=(150, 151)):
    if MAP1 == 24: a("s_mov_b32 exec_hi, 0x00ffffff")
    a(f"buffer_load_dword v250, v{t[0]}, {S4(SW1)}, s70 offen")
    if not HALF_T: a(f"buffer_load_dword v251, v{t[0]}, {S4(SW1)}, s71 offen")
    a("s_mov_b32 exec_hi, -1")
def touch_w2(a, t=12):
    if MAP2 == 18:
        a(f"v_lshrrev_b32 v{t}, 2, v2")
        a(f"v_lshlrev_b32 v{t}, 12, v{t}")
        a(f"v_and_b32 v{t+1}, 3, v2")
        a(f"v_lshl_add_u32 v{t}, v{t+1}, 7, v{t}")
        a(f"s_lshl_b32 s70, s{sIDX}, 2")
        a(f"s_and_b32 s71, s{sWAVE}, 3")
        a("s_add_u32 s70, s70, s71")
        a(f"s_mul_i32 s70, s70, {14*4096}")
        a(f"s_lshl_b32 s71, s{sXCD}, 9")
        a("s_add_u32 s70, s70, s71")
        a("s_mov_b32 exec_hi, 0x00ffffff")
        a(f"buffer_load_dword v250, v{t}, {S4(SW2)}, s70 offen")
        a("s_mov_b32 exec_hi, -1")
        return
    a(f"v_lshrrev_b32 v{t}, 3, v2")
    a(f"v_lshlrev_b32 v{t}, 12, v{t}")
    a(f"v_and_b32 v{t+1}, 7, v2")
    a(f"v_lshl_add_u32 v{t}, v{t+1}, 7, v{t}")
    a(f"s_lshl_b32 s70, s{sIDX}, 2")
    a(f"s_and_b32 s71, s{sWAVE}, 3")
    a("s_add_u32 s70, s70, s71")
    a(f"s_mul_i32 s70, s70, {14*4096}")
    a(f"s_lshr_b32 s71, s{sXCD}, 1")
    a("s_lshl_b32 s71, s71, 10")
    a("s_add_u32 s70, s70, s71")
    a(f"s_add_u32 s71, s70, {8*4096}")
    a(f"buffer_load_dword v250, v{t}, {S4(SW2)}, s70 offen")
    a("s_mov_b32 exec_hi, 0x0000ffff")
    a(f"buffer_load_dword v251, v{t}, {S4(SW2)}, s71 offen")
    a("s_mov_b32 exec_hi, -1")
def touch_w2_8(a):
    if MAP2 == 18:
        a("v_lshrrev_b32 v15, 2, v2")
        a("v_lshlrev_b32 v15, 12, v15")
        a("v_and_b32 v7, 3, v2")
        a("v_lshl_add_u32 v15, v7, 7, v15")
        a(f"s_lshl_b32 s70, s{sIDX}, 3")
        a(f"s_add_u32 s70, s70, s{sWAVE}")
        a(f"s_mul_i32 s70, s70, {7*4096}")
        a(f"s_lshl_b32 s71, s{sXCD}, 9")
        a("s_add_u32 s70, s70, s71")
        a("s_mov_b64 exec, 0x0fffffff")
        a(f"buffer_load_dword v1, v15, {S4(SW2)}, s70 offen")
        a("s_mov_b64 exec, -1")
        return
    a("v_lshrrev_b32 v15, 3, v2")
    a("v_lshlrev_b32 v15, 12, v15")
    a("v_and_b32 v7, 7, v2")
    a("v_lshl_add_u32 v15, v7, 7, v15")
    a(f"s_lshl_b32 s70, s{sIDX}, 3")
    a(f"s_add_u32 s70, s70, s{sWAVE}")
    a(f"s_mul_i32 s70, s70, {7*4096}")
    a(f"s_lshr_b32 s71, s{sXCD}, 1")
    a("s_lshl_b32 s71, s71, 10")
    a("s_add_u32 s70, s70, s71")
    a("s_mov_b32 exec_hi, 0x00ffffff")
    a(f"buffer_load_dword v1, v15, {S4(SW2)}, s70 offen")
    a("s_mov_b32 exec_hi, -1")
def tag_ready(a):
    a("s_waitcnt lgkmcnt(0)")
    a(f"s_add_u32 s{sTAG}, s{sTAG}, 0x9e3779b9")

def gate(a):
    L = uid("nogate")
    a(f"s_bitcmp1_b32 s{sIDX}, {TBIT}")
    a.fence()
    a(f"s_cbranch_scc1 {L}")
    snap = a.snapshot()
    F = lambda r, e: LF + 8 * r + e
    P = lambda r, e: LP + 8 * r + e
    G, S_ = 16, 100
    R = range(4)
    for q in range(4): unpack(a, G + 2*q, G + 2*q + 1, LGW + q)
    for e in range(8):
        for r in R: a(f"v_mul_f32 v{P(r,e)}, v{F(r,e)}, v{G+e}")
    for p in range(2):
        for e in range(8):
            t = 24 + (e & 3)
            a(f"v_cvt_pk_bf16_f32 v{t}, v{P(2*p,e)}, v{P(2*p+1,e)}")
            unpack(a, P(2*p, e), P(2*p+1, e), t)
    for r in R: a(f"v_add_f32 v{S_+r}, v{P(r,0)}, v{P(r,1)}")
    for e in range(2, 8):
        for r in R: a(f"v_add_f32 v{S_+r}, v{S_+r}, v{P(r,e)}")
    dpp_reduce(a, [S_ + r for r in R])
    def rnd4(X):
        for p in range(2): a(f"v_cvt_pk_bf16_f32 v{104+p}, v{X+2*p}, v{X+2*p+1}")
        for p in range(2): unpack(a, X + 2*p, X + 2*p + 1, 104 + p)
    rnd4(S_)
    for r in R: a(f"v_mul_f32 v{S_+r}, 0xbfb8aa3b, v{S_+r}")
    for r in R: a(f"v_exp_f32 v{S_+r}, v{S_+r}")
    for r in R: a(f"v_add_f32 v{S_+r}, 1.0, v{S_+r}")
    for r in R: a(f"v_rcp_f32 v{S_+r}, v{S_+r}")
    rnd4(S_)
    a(f"s_lshl_b32 s73, s{sC2}, 6")
    a(f"s_add_u32 s73, s73, s{sN2}")
    a("s_lshl_b32 s73, s73, 6")
    a(f"s_and_b32 s79, s{sWAVE}, 3")
    a("s_lshl_b32 s79, s79, 4")
    a("s_add_u32 s78, s73, s79")
    a(f"s_add_u32 s78, s78, {WS_G}")
    a(f"s_add_u32 s73, s73, {F_G}")
    a("v_mov_b32 v104, 0")
    a("s_mov_b32 exec_lo, 0")
    a("s_mov_b32 exec_hi, 0x80000000")
    a(f"buffer_store_dwordx4 {vr(S_,4)}, v104, {S4(SWS)}, s78 offen {ST}")
    a("s_mov_b64 exec, -1")
    arrive(a, 2, [73], 0, 4, lowprio=True)
    a.fence()
    a.label(L)
    a.restore(snap)

def arrive(a, cnt, flags, nvm, nw, t=(12, 13), st=78, lowprio=False):
    L = uid("arr")
    a(f"s_waitcnt vmcnt({nvm})")
    stamp(a, f'arr{cnt}')
    a(f"v_mov_b32 v{t[0]}, {CNT + 4*cnt}")
    a(f"v_mov_b32 v{t[1]}, 1")
    a("s_mov_b64 exec, 1")
    a(f"ds_add_rtn_u32 v{t[1]}, v{t[0]}, v{t[1]}")
    a("s_mov_b64 exec, -1")
    a("s_waitcnt lgkmcnt(0)")
    a(f"v_readfirstlane_b32 s{st}, v{t[1]}")
    a(f"s_cmp_lg_u32 s{st}, {nw-1}")
    a(f"s_cbranch_scc1 {L}")
    snap = a.snapshot()
    if lowprio: a("s_setprio 3")
    a(f"v_mov_b32 v{t[1]}, s{sTAG}")
    a(f"v_lshlrev_b32 v{t[0]}, 17, v2")
    a(f"v_add_u32 v{t[0]}, {WS_FLG}, v{t[0]}")
    a(f"s_mov_b64 exec, {(1 << NREP) - 1}")
    for f in flags: a(f"buffer_store_dword v{t[1]}, v{t[0]}, {S4(SWS)}, s{f} offen {PM}")
    a("s_mov_b64 exec, -1")
    if lowprio: a("s_setprio 0")
    a.fence()
    a.label(L)
    a.restore(snap)
def wait_word(a, vaddr, val, tv=13, st=78, sleep=2):
    L, Ld = uid("wc"), uid("wcd")
    a("s_mov_b32 s79, 200000")
    a.wait_all(vm=False); a.fence()
    a.label(L)
    a.auto_wait = False
    a(f"ds_read_b32 v{tv}, v{vaddr}")
    a("s_waitcnt lgkmcnt(0)")
    a(f"v_readfirstlane_b32 s{st}, v{tv}")
    a(f"s_cmp_ge_u32 s{st}, {val}")
    a(f"s_cbranch_scc1 {Ld}")
    a("s_sub_u32 s79, s79, 1")
    a(f"s_cbranch_scc1 {Ld}")
    if sleep: a(f"s_sleep {sleep}")
    a(f"s_branch {L}")
    a.label(Ld)
    a.auto_wait = True

def phase1_fft(a, ti):
    M = "v_mfma_f32_16x16x32_bf16"
    a(f"s_and_b32 s65, s{sWAVE}, 3")
    a("s_lshl_b32 s66, s65, 10")
    for j in range(3):
        a(f"s_add_u32 s67, s66, {4096*j}")
        if j == 2: a("s_min_u32 s67, s67, 9216")
        a(f"s_add_u32 m0, s67, {P1_TB}")
        a(f"s_add_u32 s67, s67, TABLES-{NAME}")
        d2 = a(f"buffer_load_dwordx4 v3, {S4(STB)}, s67 offen lds")
    a("v_and_b32 v9, 15, v2")
    stamp(a, 'ea0')
    a("s_barrier")
    a("v_lshrrev_b32 v4, 4, v2")
    a("v_lshlrev_b32 v5, 9, v4")
    a("v_lshlrev_b32 v4, 8, v4")
    a("v_lshl_add_u32 v4, v9, 3, v4")
    a("v_add_u32 v4, s64, v4")
    a("v_lshl_add_u32 v5, v9, 2, v5")
    a("v_add_u32 v5, s64, v5")
    a(f"v_add_u32 v14, {P1_TB}, v3")
    a("v_bfe_u32 v7, v0, 2, 6")
    a("v_and_b32 v6, 3, v2")
    a("v_and_b32 v15, 1, v2")
    a("v_cmp_eq_u32 vcc, 1, v15")
    a("v_bfe_u32 v10, v2, 1, 1")
    a("v_lshlrev_b32 v10, 13, v10")
    a(f"v_add_u32 v10, {P1_EX}, v10")
    for z in range(4):
        a(f"v_add_u32 v11, {64*z}, v7")
        a(f"v_sub_u32 v12, {512 - 64*z}, v7")
        if z == 0:
            a("v_mov_b32 v13, 256")
            a("v_cmp_eq_u32 s[76:77], 0, v7")
            a("v_cndmask_b32 v12, v12, v13, s[76:77]")
        a("v_cndmask_b32 v11, v11, v12, vcc")
        a(f"v_lshl_add_u32 v{136+z}, v11, 2, v10")
    a("v_lshlrev_b32 v8, 13, v7")
    a("v_lshl_add_u32 v8, v6, 4, v8")
    a(f"s_lshl_b32 s72, s{sC2}, 6")
    a(f"s_add_u32 s72, s72, s{sN2}")
    a("s_lshl_b32 s72, s72, 6")
    a(f"s_add_u32 s70, s72, {WS_Z}")
    a(f"s_add_u32 s72, s72, {F_Z}")
    a.wait_tok(d2)
    stamp(a, 'xin')
    hbar(a, 9, 4)
    AF_ = lambda p, r: 56 + 8 * p + 4 * r
    for p in range(2):
        for r in range(2):
            for u in range(2):
                a(f"ds_read_b64_tr_b16 {vr(AF_(p, r) + 2*u, 2)}, v4 offset:{2048*p + 1024*r + 128*u}")
        if p == 0:
            T = {}
            for n in ['COS0', 'NSIN0', 'SIN0', 'COS1', 'NSIN1', 'SIN1']:
                idx = ti[n]; r_ = 16 + 4 * idx; T[n] = r_
                a(f"ds_read_b128 {vr(r_,4)}, v14 offset:{idx*1024}")
    for n in ['TW0', 'TW1', 'ARE', 'AIM']:
        idx = ti[n]; r_ = 16 + 4 * idx; T[n] = r_
        a(f"ds_read_b128 {vr(r_,4)}, v14 offset:{idx*1024}")
    TR = lambda p, jh, x: 72 + 16 * p + 8 * jh + (0 if x == 're' else 4)
    for p in range(2):
        for jh in range(2):
            a(f"{M} {vr(TR(p,jh,'re'),4)}, {vr(AF_(p,0),4)}, {vr(T[f'COS{jh}'],4)}, 0")
            a(f"{M} {vr(TR(p,jh,'im'),4)}, {vr(AF_(p,0),4)}, {vr(T[f'NSIN{jh}'],4)}, 0")
            a(f"{M} {vr(TR(p,jh,'re'),4)}, {vr(AF_(p,1),4)}, {vr(T[f'SIN{jh}'],4)}, {vr(TR(p,jh,'re'),4)}")
            a(f"{M} {vr(TR(p,jh,'im'),4)}, {vr(AF_(p,1),4)}, {vr(T[f'COS{jh}'],4)}, {vr(TR(p,jh,'im'),4)}")
    for p in range(2):
        for jh in range(2):
            o = 120 + 8 * jh
            for i in range(4):
                tw = T[f'TW{jh}'] + i; re = TR(p, jh, 're') + i; im = TR(p, jh, 'im') + i
                a(f"v_fma_mix_f32 v{o+i}, v{re}, v{tw}, 0 {MIXC}")
                a(f"v_fma_mix_f32 v{o+4+i}, v{im}, v{tw}, 0 {MIXC}")
                a(f"v_fma_mix_f32 v{o+i}, v{im}, v{tw}, v{o+i} {MIXS}")
                a(f"v_fma_mix_f32 v{o+4+i}, -v{re}, v{tw}, v{o+4+i} {MIXS}")
            B = 104 + 8 * p + 4 * jh
            for q in range(4): a(f"v_cvt_pk_bf16_f32 v{B+q}, v{o+2*q}, v{o+2*q+1}")
            a(f"{M} {vr(TR(p,jh,'re'),4)}, {vr(T['ARE'],4)}, {vr(B,4)}, 0")
            a(f"{M} {vr(TR(p,jh,'im'),4)}, {vr(T['AIM'],4)}, {vr(B,4)}, 0")
    for p in range(2):
        for jh in range(2):
            for i in range(4):
                r = 56 + 8 * p + 4 * jh + i
                a(f"v_cvt_pk_bf16_f32 v{r}, v{TR(p,jh,'re')+i}, v{TR(p,jh,'im')+i}")
                a(f"ds_write_b32 v5, v{r} offset:{2048*p + (16*jh + 32*i) * 4}")
    stamp(a, 'p1c')
    hbar(a, 8, 4)
    for z in range(4):
        for hh in range(2):
            a(f"ds_read2st64_b32 {vr(96 + 4*z + 2*hh, 2)}, v{136+z} offset0:{16*hh} offset1:{16*hh+8}")
    for z in range(4):
        a(f"buffer_store_dwordx4 {vr(96 + 4*z, 4)}, v8, {S4(SWS)}, s70 offen {ST}")
        if z < 3: a(f"s_add_u32 s70, s70, {64*8192}")
    stamp(a, 'p1st')
    lds_inc(a, 11)
    tag_ready(a)
    arrive(a, 0, [72], 0, 4)

def g_prologue(a):
    L1, L2 = uid("gw"), uid("gw")
    a(f"s_bitcmp1_b32 s{sIDX}, {TBIT}")
    a.fence()
    a(f"s_cbranch_scc1 {L1}")
    a("s_lshr_b32 s66, s62, 10")
    a("s_mul_i32 s67, s66, 514")
    a("s_and_b32 s67, s67, 0xfffffff0")
    a(f"s_mul_i32 s69, s{sWAVE}, 2112")
    a("s_mov_b32 exec_hi, 1")
    for r in range(4):
        for (srd_, base) in ((SWR, P1_WR), (SWI, P1_WI)):
            a(f"s_add_u32 m0, s69, {base + 528*r}")
            a(f"buffer_load_dwordx4 v3, {S4(srd_)}, s67 offen lds")
        if r < 3: a(f"s_add_u32 s67, s67, {64*514}")
    a("s_mov_b32 exec_hi, -1")
    if WJOBH:
        touch_w1_issue(a)
        a("s_waitcnt vmcnt(1)")
        lds_inc(a, 10)
        tag_ready(a)
        a("s_waitcnt vmcnt(0)")
        a.fence()
        a(f"s_branch {L2}")
    a("v_and_b32 v9, 15, v2")
    w_special_pre(a)
    a("v_bfe_u32 v7, v0, 2, 6")
    a("v_and_b32 v6, 3, v2")
    a("v_lshlrev_b32 v8, 13, v7")
    a("v_lshl_add_u32 v8, v6, 4, v8")
    a(f"s_lshl_b32 s72, s{sC2}, 6")
    a(f"s_add_u32 s72, s72, s{sN2}")
    a("s_lshl_b32 s72, s72, 6")
    a(f"s_add_u32 s72, s72, {F_Z}")
    a("s_mov_b64 s[64:65], s[70:71]")
    a("s_waitcnt vmcnt(0)")
    hbar(a, 10, 4)
    w_relayout(a)
    tag_ready(a)
    if TOUCH_FR == 0:
        a("s_mov_b64 s[70:71], s[64:65]")
        touch_w1_issue(a)
    hbar(a, 10, 8)
    a.fence()
    a(f"s_branch {L2}")
    a.label(L1)
    a.reset_state()
    touch_w1_issue(a)
    if TOUCH_FR:
        a(f"s_sub_u32 s70, s70, {64*3584*(1 << TBIT)}")
        touch_w1_issue(a)
    if CODEPF:
        a(f"s_cmp_lg_u32 s{sIDX}, 1")
        a("s_cbranch_scc1 L_nocpf")
        a("v_lshlrev_b32 v152, 7, v2")
        a(f"s_lshl_b32 s73, s{sWAVE}, 13")
        for j in range(2):
            a(f"buffer_load_dword v153, v152, {S4(STB)}, s73 offen")
            if j < 1: a("s_add_u32 s73, s73, 32768")
        a.fence()
        a.label("L_nocpf")
        a.reset_state()
    tag_ready(a)
    a("s_waitcnt vmcnt(0)")
    a.fence()
    a.label(L2)
    a.reset_state()
    stamp(a, 'ea1')
    a(f"v_mov_b32 v12, {CNT + 44}")
    wait_word(a, 12, 4)

def w_arrive(a, nvm):
    L = uid("nowa")
    a(f"s_bitcmp1_b32 s{sIDX}, {TBIT}")
    a.fence()
    a(f"s_cbranch_scc1 {L}")
    snap = a.snapshot()
    arrive(a, 3, [69], nvm, 4)
    a.fence()
    a.label(L)
    a.restore(snap)
def w_special_pre(a):
    SP = SPB
    a(f"s_lshl_b32 s66, s{sC2}, 10")
    a(f"s_add_u32 s66, s66, s{sN2}")
    a("v_lshlrev_b32 v10, 6, v9")
    a("v_add_u32 v10, s66, v10")
    a("v_sub_u32 v11, 2048, v10")
    a("v_and_b32 v11, 2047, v11")
    a(f"v_bfe_u32 v{SPB+4}, v2, 4, 1")
    a(f"v_lshlrev_b32 v{SPB+5}, 9, v{SPB+4}")
    a("s_movk_i32 s68, 514")
    a(f"v_mad_u32_u24 v11, v11, s68, v{SPB+5}")
    for i in range(4): a(f"v_mov_b32 v{SP+i}, 0")
    a(f"s_cmp_eq_u32 s{sWAVE}, {4 if WJOBH else 0}")
    a("s_cselect_b32 s68, 0, 0x7fffffff")
    a("s_mov_b32 exec_hi, 0")
    a(f"buffer_load_short_d16_hi v{SP+2}, v11, {S4(SWR)}, s68 offen")
    a(f"buffer_load_short_d16_hi v{SP+3}, v11, {S4(SWI)}, s68 offen")
    a("s_mov_b32 exec_hi, -1")
def w_relayout(a, WR=16, WI=32, flagbase=None):
    SP = SPB
    if flagbase is None: flagbase = F_Z
    a(f"s_lshl_b32 s67, s{sN2}, 1")
    a("s_and_b32 s67, s67, 15")
    a("v_mul_u32_u24 v14, 2112, v6")
    a("v_lshl_add_u32 v14, v7, 1, v14")
    a("v_add_u32 v14, s67, v14")
    a("v_mul_u32_u24 v10, 528, v9")
    a(f"v_add_u32 v10, v10, v{SPB+5}")
    a("v_add_u32 v10, s67, v10")
    for i in range(16): a(f"v_mov_b32 v{WI+i}, 0")
    for z in range(4):
        for e in range(4):
            a(f"ds_read_u16 v{WR+4*z+e}, v14 offset:{P1_WR + e*528 + 128*z}")
            a(f"ds_read_u16_d16_hi v{WI+4*z+e}, v14 offset:{P1_WI + e*528 + 128*z}")
    a(f"ds_read_u16_d16_hi v{SP}, v10 offset:{P1_WR}")
    a(f"ds_read_u16_d16_hi v{SP+1}, v10 offset:{P1_WI}")
    a(f"s_sub_u32 s69, s72, {flagbase}")
    a(f"s_add_u32 s70, s69, {WS_WT}")
    a(f"s_add_u32 s69, s69, {F_W}")
    for i in range(16): a(f"v_or_b32 v{WR+i}, v{WR+i}, v{WI+i}")
    if WJOBH:
        a.wait_all(vm=False)
        lds_inc(a, 9, t=(13, 15))
    for z in (1, 2, 3):
        a(f"s_add_u32 s71, s70, {z*64*8192}")
        a(f"buffer_store_dwordx4 {vr(WR+4*z,4)}, v8, {S4(SWS)}, s71 offen {ST}")
    a("v_cmp_ne_u32 vcc, 0, v7")
    a("s_and_saveexec_b64 s[76:77], vcc")
    a(f"buffer_store_dwordx4 {vr(WR,4)}, v8, {S4(SWS)}, s70 offen {ST}")
    a("s_mov_b64 exec, s[76:77]")
    a(f"v_add_f32 v{SP}, v{SP}, v{SP+2}")
    a(f"v_sub_f32 v{SP+1}, v{SP+1}, v{SP+3}")
    a(f"ds_swizzle_b32 v{SP+2}, v{SP} offset:0x401F")
    a(f"ds_swizzle_b32 v{SP+3}, v{SP+1} offset:0x401F")
    a(f"v_lshlrev_b32 v15, 31, v{SPB+4}")
    a(f"v_xor_b32 v{SP}, v15, v{SP}")
    a(f"v_xor_b32 v{SP+1}, v15, v{SP+1}")
    a(f"v_add_f32 v{SP}, v{SP}, v{SP+2}")
    a(f"v_add_f32 v{SP+1}, v{SP+1}, v{SP+3}")
    a(f"v_mul_f32 v{SP}, 0x3e800000, v{SP}")
    a(f"v_mul_f32 v{SP+1}, 0x3e800000, v{SP+1}")
    a(f"v_cvt_pk_bf16_f32 v{SP+2}, v{SP}, v{SP+1}")
    a(f"v_lshlrev_b32 v14, 21, v{SPB+4}")
    a("v_lshl_add_u32 v14, v9, 2, v14")
    a("s_add_u32 s68, s68, s70")
    a("s_mov_b32 exec_hi, 0")
    a(f"buffer_store_dword v{SP+2}, v14, {S4(SWS)}, s68 offen {ST}")
    a("s_mov_b32 exec_hi, -1")

def wait_vm_untracked(a, toks):
    a.wait_tok(*toks)

def part_write(a, base_v0, base_v1, off0):
    pass

def flag_g(a):
    a(f"s_lshl_b32 s73, s{sC2}, 6")
    a(f"s_add_u32 s73, s73, s{sN2}")
    a("s_lshl_b32 s73, s73, 6")
    a(f"s_and_b32 s78, s{sIDX}, 1")
    a("s_lshl_b32 s78, s78, 13")
    a("s_add_u32 s73, s73, s78")
    a(f"s_add_u32 s73, s73, {F_G}")

def gen(a):
    tb1, ti1 = table_dwords(1); tb2, ti2 = table_dwords(2)
    TB2OFF = len(tb1) * 4
    a.raw(f".globl {NAME}\n.p2align 8\n.type {NAME},@function\n{NAME}:")
    a("s_cmp_ge_u32 s2, 256")
    a("s_cbranch_scc1 L_end")
    if STAMPS:
        for i in range(11): a(f"s_mov_b64 s[{80+2*i}:{81+2*i}], 0")
        stamp(a, 'start')
    a("s_load_dwordx16 s[64:79], s[0:1], 0")
    a("s_load_dwordx4 s[4:7], s[0:1], 64")
    a("s_load_dwordx2 s[60:61], s[0:1], 88")
    a(f"s_getpc_b64 s[{STB}:{STB+1}]")
    a.raw("Lpc0:")
    a(f"s_sub_u32 s{STB}, s{STB}, Lpc0-{NAME}")
    a(f"s_subb_u32 s{STB+1}, s{STB+1}, 0")
    a(f"s_and_b32 s{STB+1}, s{STB+1}, 0xffff")
    a(f"s_mov_b32 s{STB+2}, TABLES-{NAME}+{(len(tb1) + len(tb2)) * 4}")
    a(f"s_mov_b32 s{STB+3}, 0x00020000")
    a("v_lshrrev_b32 v1, 6, v0")
    a("v_and_b32 v2, 63, v0")
    a(f"v_readfirstlane_b32 s{sWAVE}, v1")
    a("v_lshlrev_b32 v3, 4, v2")
    for r in range(4, 16): a(f"v_mov_b32 v{r}, 0")
    a(f"s_and_b32 s{sXCD}, s2, 7")
    a(f"s_lshr_b32 s{sIDX}, s2, 3")
    a(f"s_lshl_b32 s{sN2}, s{sXCD}, 3")
    if TBIT == 0:
        a("s_bfe_u32 s3, s2, 0x30004")
        a(f"s_lshr_b32 s{sC2}, s2, 7")
    else:
        a("s_bfe_u32 s3, s2, 0x30003")
        a(f"s_bfe_u32 s{sC2}, s2, 0x10006")
    a(f"s_add_u32 s{sN2}, s{sN2}, s3")
    a(f"s_sub_u32 s3, s{sIDX}, 4")
    if TBIT == 0:
        a(f"s_lshr_b32 s59, s{sIDX}, 1")
        a(f"s_cmp_lt_u32 s{sIDX}, 8")
        a("s_cselect_b32 s3, s59, s3")
    else:
        a(f"s_cmp_lt_u32 s{sIDX}, 16")
        a(f"s_cselect_b32 s3, s{sIDX}, s3")
    if MAP1 == 24:
        a(f"s_mul_i32 s{sDT1}, s3, 37")
        a(f"s_lshr_b32 s{sDT1}, s{sDT1}, 8")
        a(f"s_mul_i32 s{sFT1}, s{sDT1}, 7")
        a(f"s_sub_u32 s{sFT1}, s3, s{sFT1}")
        a(f"s_lshl_b32 s58, s{sDT1}, 1")
        a(f"s_mul_i32 s59, s{sFT1}, {ROT2}")
        a("s_add_u32 s58, s58, s59")
        a(f"s_mul_i32 s58, s58, {2 * ROT}")
        a(f"s_and_b32 s3, s{sXCD}, 1")
        a("s_lshl_b32 s3, s3, 2")
        a(f"s_add_u32 s{sDT1}, s{sDT1}, s3")
    else:
        a(f"s_and_b32 s59, s{sXCD}, 1")
        a("s_lshl_b32 s59, s59, 2")
        a("s_lshr_b32 s58, s3, 3")
        a(f"s_add_u32 s{sFT1}, s58, s59")
        a(f"s_and_b32 s{sDT1}, s3, 7")
        a(f"s_add_u32 s59, s59, s{sDT1}")
        a("s_cmp_ge_u32 s3, 24")
        a(f"s_cselect_b32 s{sFT1}, 3, s{sFT1}")
        a(f"s_cselect_b32 s{sDT1}, s59, s{sDT1}")
        a("s_lshl_b32 s58, s58, 1")
        a(f"s_add_u32 s58, s58, s{sDT1}")
        a(f"s_mul_i32 s58, s58, {2 * ROT}")
    a(f"s_lshr_b32 s3, s{sXCD}, 1")
    a("s_mul_i32 s3, s3, 7")
    a(f"s_add_u32 s{sFT1}, s{sFT1}, s3")
    if MAP2 == 24:
        a(f"s_and_b32 s3, s{sXCD}, 1")
        a("s_lshl_b32 s3, s3, 2")
        a(f"s_lshr_b32 s{sDT2}, s{sIDX}, 3")
        a(f"s_add_u32 s{sDT2}, s{sDT2}, s3")
        a(f"s_lshr_b32 s3, s{sXCD}, 1")
        a(f"s_lshl_b32 s{sST2}, s3, 3")
        a(f"s_and_b32 s3, s{sIDX}, 7")
        a(f"s_add_u32 s{sST2}, s{sST2}, s3")
    else:
        a(f"s_and_b32 s{sDT2}, s{sIDX}, 7")
        a(f"s_lshl_b32 s{sST2}, s{sXCD}, 2")
        a(f"s_lshr_b32 s3, s{sIDX}, 3")
        a(f"s_add_u32 s{sST2}, s{sST2}, s3")
    if TBIT == 0: a(f"s_and_b32 s3, s{sIDX}, 0x19")
    else:
        a(f"s_lshr_b32 s3, s{sIDX}, 2")
        a("s_sub_u32 s3, s3, 3")
    a(f"s_lshl_b32 s62, s{sC2}, 10")
    a(f"s_add_u32 s62, s62, s{sN2}")
    a(f"s_and_b32 s59, s{sWAVE}, 3")
    a("s_lshl_b32 s63, s59, 8")
    a("s_add_u32 s62, s62, s63")
    a("s_lshl_b32 s62, s62, 10")
    a("s_lshl_b32 s59, s59, 12")
    a(f"s_add_u32 s59, s59, {P1_XR}")
    srd(a, SX, 64, S * D * 2)
    a(f"s_cmp_lt_u32 s{sWAVE}, 4")
    a("s_cbranch_scc1 L_xdone")
    a("s_setprio 3")
    a(f"s_bitcmp1_b32 s{sIDX}, {TBIT}")
    a("s_cbranch_scc1 L_xdma")
    for r in range(4):
        a(f"s_add_u32 s63, s62, {65536*r}")
        a(f"buffer_load_dwordx4 {vr(LX + 4*r, 4)}, v3, {S4(SX)}, s63 offen")
    a("s_branch L_xdone")
    snapx = a.snapshot()
    a.label("L_xdma")
    for r in range(4):
        a(f"s_add_u32 s63, s62, {65536*r}")
        a(f"s_add_u32 m0, s59, {1024*r}")
        a(f"buffer_load_dwordx4 v3, {S4(SX)}, s63 offen lds")
    a.label("L_xdone")
    a.restore(snapx)
    srd(a, SGW, 4, 1024)
    srd(a, SWR, 66, S * 514)
    srd(a, SWI, 68, S * 514)
    srd(a, SW1, 72, S * F * 2)
    srd(a, SW2, 76, S * F * 2)
    srd(a, SB2, 78, S * 2)
    srd(a, SOUT, 6, S * D * 2)
    srd(a, SWS, 60, WS_BYTES)
    a("s_mov_b64 s[4:5], s[74:75]")
    a(f"s_add_u32 s6, s60, {WS_FLG + F_EP}")
    a("s_addc_u32 s7, s61, 0")
    a(f"v_mov_b32 v100, {CNT}")
    for q in range(4): a(f"ds_write_b128 v100, v[4:7] offset:{16*q}")
    a(f"s_and_b32 s{sROT}, s58, 15")
    a("s_mov_b32 s64, s59")
    a(f"s_lshl_b32 s58, s{sFT1}, 7")
    a(f"s_lshl_b32 s63, s{sWAVE}, 4")
    a("s_add_u32 s63, s63, s58")
    a("s_add_u32 s4, s4, s63")
    a("s_addc_u32 s5, s5, 0")
    a.wait_all(vm=False)
    a(f"s_load_dword s{sTAG}, s[6:7], 0")
    a(f"s_and_b32 s5{8}, s2, {NREP - 1}")
    a("s_nop 0")
    a("s_lshl_b32 s6, s58, 17")
    a(f"s_cmp_lt_u32 s{sWAVE}, 4")
    a.fence()
    a("s_cbranch_scc1 L_gwave")
    a(f"s_bitcmp1_b32 s{sIDX}, {TBIT}")
    a("s_cbranch_scc1 L_p1fft")
    snap = a.snapshot()
    phase1_ln(a)
    a.fence()
    a("s_branch L_p1done")
    a.restore(snap)
    a.label("L_p1fft")
    phase1_fft(a, ti1)
    a.fence()
    a.label("L_p1done")
    a.reset_state()
    a("s_cmp_eq_u32 s3, 1")
    a("s_cbranch_scc1 L_fft")
    a("s_branch L_g1help")
    a.label("L_gwave")
    a.reset_state()
    touch_w1(a, t=(150, 151))
    stamp(a, 'ea0')
    a("s_barrier")
    a("s_cmp_lg_u32 s3, 1")
    a("s_cbranch_scc1 L_g1")
    if FFT_T1: touch_w1_issue(a)
    a(f"v_mov_b32 v12, {CNT + TBWAIT}")
    wait_word(a, 12, 4)
    a(f"s_lshl_b32 s72, s{sWAVE}, 10")
    for j in range(15):
        if j == 14: a("s_min_u32 s72, s72, 1024")
        a(f"s_add_u32 m0, s72, {FB_TB + j*4096}")
        a(f"s_add_u32 s73, s72, TABLES-{NAME}+{TB2OFF + j*4096}")
        a(f"buffer_load_dwordx4 v3, {S4(STB)}, s73 offen lds")
    if CODEPF2:
        a("v_lshlrev_b32 v152, 7, v2")
        a(f"s_lshl_b32 s73, s{sWAVE}, 13")
        a(f"s_add_u32 s73, s73, L_fft2-{NAME}")
        a(f"buffer_load_dword v153, v152, {S4(STB)}, s73 offen")
    tag_ready(a)
    a.fence()
    a("s_branch L_fft2")
    a.label("L_g1")
    a.reset_state()
    g_prologue(a)
    a("s_load_dwordx4 s[64:67], s[4:5], 0")
    gemm_lane_consts(a, 64 * 3584)
    a(f"s_mul_i32 s62, s{sWAVE}, {512*3584}")
    a(f"s_lshl_b32 s63, s{sFT1}, 7")
    a("s_add_u32 s62, s62, s63")
    a(f"s_lshl_b32 s{sA0}, s{sDT1}, 18")
    a(f"s_lshl_b32 s63, s{sWAVE}, 16")
    a(f"s_add_u32 s{sA0}, s{sA0}, s63")
    if WS_HT: a(f"s_add_u32 s{sA0}, s{sA0}, {WS_HT}")
    slots1 = [(x + 4) % 8 for x in range(16)]
    NR = min(NREG, NR1)
    kinds1 = ['pre'] * 8 + ['reg'] * NR + ['dma'] * (8 - NR)
    g1 = Gemm(a, 16, slots1, kinds1, SW1, 62, 3584, 4 * 3584, True)
    for sg in range(8 + NR - NB1 - NB2):
        g1.emit_w(sg)
        if sg == 1 and not WJOBH: w_arrive(a, 8)
        if sg == 3 and WJOBH:
            L = uid("wfree")
            a(f"s_bitcmp1_b32 s{sIDX}, {TBIT}")
            a.fence()
            a(f"s_cbranch_scc1 {L}")
            a(f"v_mov_b32 v12, {CNT + 36}")
            wait_word(a, 12, 4)
            a.label(L)
    stamp(a, 'pre4')
    a(f"s_lshr_b32 s72, s{sWAVE}, 1")
    a("s_lshl_b32 s72, s72, 12")
    a(f"s_add_u32 s72, s72, {WS_FLG + F_H}")
    a.vm = a.vm[-8:]
    g1.tok = {}
    beh = (lambda: [g1.emit_w(sg) for sg in range(8 + NR - NB1 - NB2, 8 + NR - NB2)]) if NB1 else None
    if HPOLL2:
        a(f"s_bitcmp1_b32 s{sWAVE}, 0")
        a.fence()
        a("s_cbranch_scc1 L_g1odd")
        sn = a.snapshot()
        gpoll(a, [(72, 64)], vt=(12, 13, 16, 17), behind=beh)
        a(f"s_lshl_b32 s72, s{sWAVE}, 1")
        a(f"s_add_u32 s72, s72, {CNT + 48}")
        a("v_mov_b32 v12, s72")
        a("ds_write_b32 v12, v12")
        a.wait_all(vm=False); a.fence()
        a("s_branch L_g1go")
        en = a.snapshot()
        a.restore(sn)
        a.label("L_g1odd")
        if beh: beh()
        a(f"s_lshl_b32 s72, s{sWAVE}, 1")
        a(f"s_add_u32 s72, s72, {CNT + 46}")
        a("v_mov_b32 v12, s72")
        wait_word(a, 12, 1, sleep=1)
        a.fence()
        a.label("L_g1go")
        a.restore(en)
    else:
        gpoll(a, [(72, 64)], vt=(12, 13, 16, 17), behind=beh)
    stamp(a, 'b4')
    slots2 = [4, 5, 6, 7, 0, 1, 2, 3, 4, 5, 6, 7, 0, 1]
    kinds2 = ['pre'] * 8 + ['reg'] * NREG + ['dma'] * (6 - NREG)
    g2 = Gemm(a, 14, slots2, kinds2, SW2, 63, 8 * 4096, 32 * 4096, False, vw=(14, 15), rot=77)
    def w2_consts():
        wlane(a, 14, 15, 4096, 12, 13)
        a(f"s_and_b32 s76, s{sWAVE}, 3")
        a(f"s_lshl_b32 s{sRING}, s76, 15")
        a(f"s_mul_i32 s63, s76, {448*4096}")
        a(f"s_lshl_b32 s76, s{sST2}, 7")
        a("s_add_u32 s63, s63, s76")
        a(f"s_and_b32 s77, s{sDT2 if MAP2 == 24 else sST2}, 3")
        a("s_lshl_b32 s77, s77, 1")
        a(f"s_and_b32 s76, s{sST2 if MAP2 == 24 else sDT2}, 7")
        a(f"s_mul_i32 s76, s76, {ROT2}")
        a("s_add_u32 s77, s77, s76")
        a(f"s_mul_i32 s77, s77, {7 * ROT}")
        a("s_lshr_b32 s77, s77, 2")
        a("s_sub_u32 s76, s77, 14")
        a("s_min_u32 s77, s77, s76")
    w2_consts()
    a(f"s_lshl_b32 s76, s{sWAVE}, 2")
    a(f"s_add_u32 s76, s76, {CNT + 16}")
    a("v_mov_b32 v12, s76")
    def extra(sig):
        if SPREAD and sig < NB2: return [(lambda jj=jj: g1.emit_w(8 + NR - NB2 + sig, [jj])) for jj in range(4)]
        if sig == W2SIG: return [lambda: a("ds_write_b32 v12, v12")]
        return []
    g1.run(extra, post=(None if SPREAD else lambda: [g1.emit_w(sg) for sg in range(8 + NR - NB2, 8 + NR)]),
           pwrite=lambda blk: f"ds_write_b128 v7, {vr(ACC + blk*4, 4)} offset:{16384 + blk*1024}")
    stamp(a, 'loop1')
    a.wait_all(vm=False)
    a.fence()
    a("s_branch L_g1red")
    a.label("L_g1help")
    a.reset_state()
    a("s_load_dwordx4 s[64:67], s[4:5], 0")
    if PFH: prefetch_h(a)
    a("s_setprio 0")
    gate(a)
    g_gen(a)
    w2_consts()
    a(f"s_lshl_b32 s76, s{sWAVE}, 2")
    a(f"s_add_u32 s76, s76, {CNT}")
    a("v_mov_b32 v12, s76")
    wait_word(a, 12, 1)
    touch_w2(a)
    a.fence()
    a.label("L_g1red")
    a.reset_state()
    a("s_waitcnt lgkmcnt(0)")
    a("s_barrier")
    stamp(a, 'b5')
    a(f"s_lshr_b32 s68, s{sWAVE}, 1")
    a("s_lshl_b32 s68, s68, 12")
    a(f"s_and_b32 s69, s{sWAVE}, 1")
    a("s_lshl_b32 s69, s69, 9")
    a("s_add_u32 s68, s68, s69")
    a("v_lshrrev_b32 v12, 4, v2")
    a("v_lshlrev_b32 v12, 10, v12")
    a("v_and_b32 v13, 15, v2")
    a("v_lshl_add_u32 v12, v13, 4, v12")
    a("v_add_u32 v12, s68, v12")
    a(f"v_add_u32 v13, {2*RING}, v12")
    E = 16
    for w in range(4):
        for hh in range(2):
            a(f"ds_read_b128 {vr(E + w*8 + hh*4, 4)}, v{12 + (w >> 1)} offset:{(w & 1)*RING + 16384 + hh*256}")
    for e in range(4):
        a(f"s_lshl_b32 s{68+2*e}, s{64+e}, 16")
        a(f"s_and_b32 s{69+2*e}, s{64+e}, 0xffff0000")
    P2 = lambda r: f"v[{r}:{r+1}]"
    def pk(op, d, x, y, z=None):
        for q in range(4):
            o = lambda r: (r if isinstance(r, str) else P2(r + 2*q))
            a(f"v_pk_{op}_f32 {P2(d + 2*q)}, {o(x)}, {o(y)}" + (f", {o(z)}" if z is not None else ""))
    pk("add", E, E, E + 8); pk("add", E + 16, E + 16, E + 24); pk("add", E, E, E + 16)
    def rnd(X, T):
        for q in range(4): a(f"v_cvt_pk_bf16_f32 v{T+q}, v{X+2*q}, v{X+2*q+1}")
        for q in range(4): unpack(a, X + 2*q, X + 2*q + 1, T + q)
    rnd(E, E + 8)
    for q in range(4): a(f"v_pk_add_f32 {P2(E + 2*q)}, {P2(E + 2*q)}, s[{68+2*q}:{69+2*q}]")
    c0 = -2.0 * math.log2(math.e) * math.sqrt(2.0 / math.pi); c1 = c0 * 0.044715
    for r, c in ((24, c0), (25, c0), (26, c1), (27, c1), (28, 1.0), (29, 1.0)): a(f"v_mov_b32 v{E+r}, 0x{f2u(c):08x}")
    rnd(E, E + 8)
    pk("mul", E + 8, E, E)
    pk("fma", E + 8, E + 8, P2(E + 26), P2(E + 24))
    pk("mul", E + 8, E + 8, E)
    for e in range(8): a(f"v_exp_f32 v{E+8+e}, v{E+8+e}")
    pk("add", E + 8, E + 8, P2(E + 28))
    for e in range(8): a(f"v_rcp_f32 v{E+8+e}, v{E+8+e}")
    pk("mul", E, E, E + 8)
    for q in range(4): a(f"v_cvt_pk_bf16_f32 v{E+8+q}, v{E+2*q}, v{E+2*q+1}")
    a(f"s_mul_i32 s68, s{sDT1}, {224*1024}")
    a(f"s_lshl_b32 s69, s{sFT1}, 3")
    a(f"s_add_u32 s69, s69, s{sWAVE}")
    a("s_lshl_b32 s69, s69, 10")
    a("s_add_u32 s68, s68, s69")
    a(f"s_add_u32 s68, s68, {WS_UT}")
    a(f"buffer_store_dwordx4 {vr(E+8,4)}, v3, {S4(SWS)}, s68 offen {ST}")
    a(f"s_lshl_b32 s72, s{sDT1}, 5")
    a(f"s_add_u32 s72, s72, s{sFT1}")
    a("s_lshl_b32 s72, s72, 6")
    a(f"s_add_u32 s72, s72, {F_U}")
    stamp(a, 'ust')
    a("s_barrier")
    a.fence()
    a("s_branch L_pub2")
    a.label("L_fft")
    a.reset_state()
    a("s_setprio 0")
    a.fence()
    a.label("L_fft2")
    a.reset_state()
    fft_block(a, ti2, TB2OFF)
    w2_consts()
    a(f"s_cmp_ge_u32 s{sWAVE}, 4")
    a("s_cbranch_scc1 L_fhelp")
    gemm_lane_consts(a, 4096)
    g2.tok = {}
    for sg in range(8, 10): g2.emit_w(sg)
    arrive(a, 1, [72], 8, 8, lowprio=True)
    for sg in range(10, 8 + NREG): g2.emit_w(sg)
    a(f"v_mov_b32 v12, {CNT + 24}")
    wait_word(a, 12, 8)
    for sg in range(8): g2.emit_w(sg)
    a.fence()
    a("s_branch L_pub3")
    a.label("L_fhelp")
    arrive(a, 1, [72], 0, 8, lowprio=True)
    g_gen(a)
    a.fence()
    a("s_branch L_g2help2")
    a.label("L_pub2")
    a.reset_state()
    a(f"s_cmp_ge_u32 s{sWAVE}, 4")
    a("s_cbranch_scc1 L_g2help")
    snap3 = a.snapshot()
    g2.tok = {}
    for sg in range(0, 2): g2.emit_w(sg)
    arrive(a, 1, [72], 8, 8, lowprio=True)
    for sg in range(2, 8 + NREG): g2.emit_w(sg)
    a.fence()
    a.label("L_pub3")
    a.reset_state()
    a(f"s_mul_i32 s{sA0}, s{sDT2}, {224*1024}")
    a(f"s_mul_i32 s61, s{sWAVE}, {56*1024}")
    a(f"s_add_u32 s{sA0}, s{sA0}, s61")
    a(f"s_add_u32 s{sA0}, s{sA0}, {WS_UT}")
    stamp(a, 'pre7')
    a("s_barrier")
    a(f"s_lshl_b32 s72, s{sDT2}, 11")
    a(f"s_mul_i32 s73, s{sWAVE}, {7*64}")
    a("s_add_u32 s72, s72, s73")
    a(f"s_add_u32 s72, s72, {WS_FLG + F_U}")
    a.vm = a.vm[-8:]
    gpoll(a, [(72, 7)], vt=(12, 13, 16, 17), behind=(lambda: [g2.emit_w(sg) for sg in range(8 + NREG - NB3 - NB4, 8 + NREG - NB4)]) if NB3 else None)
    g2.tok = {}
    stamp(a, 'b7')
    gb_load(a, 12, 13, 16)
    a("v_lshrrev_b32 v4, 5, v2")
    a("v_lshlrev_b32 v4, 6, v4")
    a("v_xor_b32 v4, v4, v7")
    a("v_xor_b32 v5, 128, v4")
    g2.run(post=lambda: [g2.emit_w(sg) for sg in range(8 + NREG - NB4, 8 + NREG)],
           pwrite=lambda blk: f"ds_write_b128 v{4 + ((blk >> 2) & 1)}, {vr(ACC + blk*4, 4)} offset:{8192 + blk*1024}")
    stamp(a, 'loop2')
    a("v_mov_b32 v10, v12")
    a("v_mov_b32 v11, v13")
    a.wait_all(vm=False)
    a.fence()
    a("s_branch L_g2red")
    a.restore(snap3)
    a.label("L_g2help")
    a("s_setprio 3")
    arrive(a, 1, [72], 0, 8)
    a.fence()
    a.label("L_g2help2")
    a.reset_state()
    fg_poll(a)
    if PFU:
        a("s_setprio 3")
        prefetch_u(a)
    a(f"s_setprio {DFTPRIO}")
    a("s_barrier")
    dft_part(a)
    a("s_setprio 0")
    a.fence()
    a.label("L_g2red")
    a.reset_state()
    a("v_lshrrev_b32 v4, 3, v0")
    a(f"s_lshl_b32 s68, s{sST2}, 6")
    a("v_add_u32 v5, s68, v4")
    a("v_and_b32 v6, 7, v0")
    a("v_lshrrev_b32 v7, 1, v6")
    a("v_lshlrev_b32 v7, 12, v7")
    a("v_lshrrev_b32 v8, 4, v4")
    a("v_lshl_add_u32 v7, v8, 10, v7")
    a("v_and_b32 v8, 1, v6")
    a("v_lshl_add_u32 v7, v8, 9, v7")
    a("v_and_b32 v8, 3, v6")
    a("v_lshlrev_b32 v8, 2, v8")
    a("v_and_b32 v9, 15, v4")
    a("v_xor_b32 v8, v8, v9")
    a("v_lshl_add_u32 v7, v8, 4, v7")
    a(f"v_add_u32 v8, {2*RING}, v7")
    a(f"v_add_u32 v12, {AP}, v7")
    a("v_lshlrev_b32 v9, 10, v5")
    a("v_lshl_add_u32 v9, v6, 4, v9")
    a(f"s_lshl_b32 s70, s{sDT2}, 7")
    a("s_barrier")
    stamp(a, 'b8')
    B_, A_ = 16, 48
    for w in range(4):
        for hh in range(2):
            a(f"ds_read_b128 {vr(B_ + w*8 + hh*4, 4)}, v{7 + (w >> 1)} offset:{(w & 1)*RING + 8192 + hh*256}")
    for w in range(2):
        for hh in range(2):
            a(f"ds_read_b128 {vr(A_ + w*8 + hh*4, 4)}, v12 offset:{w*16384 + hh*256}")
    a("v_sub_f32 v68, 1.0, v10")
    a("v_cvt_pk_bf16_f32 v68, v68, v68")
    a("v_lshlrev_b32 v68, 16, v68")
    a("v_mov_b32 v69, v68")
    a("v_mov_b32 v70, v10"); a("v_mov_b32 v71, v10")
    a("v_mov_b32 v72, v11"); a("v_mov_b32 v73, v11")
    a("v_mov_b32 v74, 0x36000000"); a("v_mov_b32 v75, 0x36000000")
    pk("add", B_, B_, B_ + 8); pk("add", B_ + 16, B_ + 16, B_ + 24); pk("add", B_, B_, B_ + 16)
    pk("add", A_, A_, A_ + 8)
    rnd(B_, B_ + 8)
    pk("mul", A_, A_, P2(74))
    pk("add", B_, B_, P2(72))
    rnd(A_, A_ + 8)
    rnd(B_, B_ + 8)
    pk("mul", A_, A_, P2(70))
    pk("mul", B_, B_, P2(68))
    rnd(A_, A_ + 8)
    rnd(B_, B_ + 8)
    pk("add", A_, A_, B_)
    for q in range(4): a(f"v_cvt_pk_bf16_f32 v{B_+q}, v{A_+2*q}, v{A_+2*q+1}")
    a(f"buffer_store_dwordx4 {vr(B_,4)}, v9, {S4(SOUT)}, s70 offen {OST}")
    a(f"s_or_b32 s71, s2, s{sWAVE}")
    a("s_cmp_lg_u32 s71, 0")
    a("s_cbranch_scc1 L_noep")
    a(f"s_mov_b32 s72, {F_EP}")
    set_flag(a, 72)
    a.fence()
    a.label("L_noep")
    stamp_flush(a)
    a.label("L_end")
    a("s_endpgm")
    return np.concatenate([tb1, tb2])

def fg_off(a, d):
    a(f"s_lshr_b32 s{d}, s{sST2}, 4")
    a(f"s_lshl_b32 s{d}, s{d}, 12")
    a(f"s_add_u32 s{d}, s{d}, {WS_FLG + F_G}")
def fg_poll(a):
    L = uid("nofg")
    a(f"s_cmp_lg_u32 s{sWAVE}, 7")
    a.fence()
    a(f"s_cbranch_scc1 {L}")
    fg_off(a, 62)
    gpoll(a, [(62, 64)], vt=(12, 13, 4, 5))
    a.fence()
    a.label(L)
    a.reset_state()
def gb_load(a, vg, vb, t):
    a(f"v_lshrrev_b32 v{t}, 3, v0")
    a(f"s_lshr_b32 s69, s{sST2}, 4")
    a("s_lshl_b32 s69, s69, 12")
    a(f"s_and_b32 s70, s{sST2}, 15")
    a("s_lshl_b32 s70, s70, 2")
    a("s_add_u32 s69, s69, s70")
    a(f"s_add_u32 s69, s69, {WS_G}")
    a(f"v_lshlrev_b32 v{t+1}, 6, v{t}")
    a(f"buffer_load_dword v{vg}, v{t+1}, {S4(SWS)}, s69 offen {LD}")
    a(f"v_mov_b32 v{vb}, 0")
    a(f"v_lshlrev_b32 v{t}, 1, v{t}")
    a(f"s_lshl_b32 s70, s{sST2}, 7")
    a(f"buffer_load_short_d16_hi v{vb}, v{t}, {S4(SB2)}, s70 offen")
YF, GF, AC = 48, 112, 16
def g_gen(a):
    a(f"s_bfe_u32 s70, s{sWAVE}, 0x10001")
    a(f"s_and_b32 s71, s{sWAVE}, 1")
    a("v_and_b32 v4, 15, v2")
    a("v_lshrrev_b32 v5, 4, v2")
    a(f"s_lshl_b32 s62, s{sDT2}, 6")
    a("v_add_u32 v7, s62, v4")
    a("v_cvt_f32_u32 v8, v7")
    a("v_mul_f32 v8, 0x3b000000, v8")
    for mt in range(1, 4): a(f"v_add_f32 v{8+mt}, 0x3d000000, v{7+mt}")
    a("s_lshl_b32 s62, s70, 7")
    a("v_lshlrev_b32 v12, 2, v5")
    a("v_add_u32 v12, s62, v12")
    a("v_cvt_f32_u32 v12, v12")
    ANG, D13 = 240, 244
    for mt in range(4):
        a(f"v_mul_f32 v{ANG+mt}, v{8+mt}, v12")
        a(f"v_mul_f32 v{D13+mt}, 0x41500000, v{8+mt}")
    for ks in range(8):
        for e in range(4):
            for mt in range(4):
                t0 = 248 + 2 * mt
                a(f"v_cos_f32 v{t0}, v{ANG+mt}")
                a(f"v_sin_f32 v{t0+1}, v{ANG+mt}")
                if not (ks == 7 and e == 3): a(f"v_add_f32 v{ANG+mt}, v{ANG+mt}, v{(D13 if e == 3 else 8) + mt}")
            for mt in range(4):
                t0 = 248 + 2 * mt
                a(f"v_cvt_pk_bf16_f32 v{GF + (ks*4+mt)*4 + e}, v{t0}, -v{t0+1}")
        if ks == 0:
            a("v_and_b32 v13, 1, v2")
            a("v_lshlrev_b32 v13, 31, v13")
            a("v_or_b32 v13, 0x3f003f00, v13")
            a("s_cmp_eq_u32 s70, 0")
            a("s_cselect_b32 s76, 0xffff, 0")
            a("s_mov_b32 s77, 0")
            for mt in range(4): a(f"v_cndmask_b32 v{GF + mt*4}, v{GF + mt*4}, v13, s[76:77]")
def dft_part(a):
    M = "v_mfma_f32_16x16x32_bf16"
    a(f"s_bfe_u32 s64, s{sWAVE}, 0x10001")
    a(f"s_and_b32 s65, s{sWAVE}, 1")
    a("v_and_b32 v4, 15, v2")
    a("v_lshrrev_b32 v5, 4, v2")
    a("v_lshlrev_b32 v6, 15, v5")
    a("v_lshl_add_u32 v6, v4, 4, v6")
    a("s_lshl_b32 s62, s64, 10")
    a(f"s_add_u32 s62, s62, {F_Y}")
    a("s_lshl_b32 s66, s64, 20")
    a(f"s_lshl_b32 s67, s{sST2}, 10")
    a("s_add_u32 s66, s66, s67")
    a("s_lshl_b32 s67, s65, 9")
    a("s_add_u32 s66, s66, s67")
    a(f"s_add_u32 s66, s66, {WS_Y1}")
    a(f"s_add_u32 s62, s62, {WS_FLG}")
    if YSLEEP0: a(f"s_sleep {YSLEEP0}")
    gpoll(a, [(62, 16)], vt=(12, 13, 14, 15), sleep=YSLEEP)
    stamp(a, 'loop2')
    gb_load(a, 10, 11, 12)
    for ks in range(8):
        for t in range(2):
            a(f"buffer_load_dwordx4 {vr(YF + (ks*2+t)*4, 4)}, v6, {S4(SWS)}, s66 offen offset:{t*256} {LD}")
        if ks < 7: a("s_add_u32 s66, s66, 131072")
    for ks in range(8):
        for mt in range(4):
            for t in range(2):
                acc = vr(AC + (mt*2+t)*4, 4)
                a(f"{M} {acc}, {vr(GF + (ks*4+mt)*4, 4)}, {vr(YF + (ks*2+t)*4, 4)}, {'0' if ks == 0 else acc}")
    a("s_lshl_b32 s66, s64, 14")
    a("s_lshl_b32 s67, s65, 11")
    a("s_add_u32 s66, s66, s67")
    a(f"s_add_u32 s66, s66, {AP}")
    a("v_lshrrev_b32 v12, 5, v2")
    a("v_lshlrev_b32 v12, 6, v12")
    a("v_xor_b32 v12, v12, v3")
    a("v_add_u32 v12, s66, v12")
    a("v_xor_b32 v13, 128, v12")
    for mt in range(4):
        for t in range(2):
            a(f"ds_write_b128 v{12 + (mt & 1)}, {vr(AC + (mt*2+t)*4, 4)} offset:{(mt*4+t)*1024}")
    a.wait_all()

def fft_block(a, ti, tboff):
    M = "v_mfma_f32_32x32x16_bf16"
    PK, VA, VB, VT, CF, TMP = 16, 48, 112, 176, 208, 240
    a(f"s_lshl_b32 s62, s{sXCD}, 2")
    a(f"s_lshr_b32 s63, s{sIDX}, 1" if TBIT == 0 else f"s_and_b32 s63, s{sIDX}, 3")
    a("s_add_u32 s62, s62, s63")
    a("s_lshl_b32 s63, s62, 3")
    a(f"s_add_u32 s63, s63, s{sWAVE}")
    a("v_and_b32 v4, 31, v2")
    a("v_lshrrev_b32 v5, 5, v2")
    a(f"s_lshl_b32 s66, s{sWAVE}, 13")
    a("v_lshrrev_b32 v6, 4, v2")
    a("v_xor_b32 v6, v6, v2")
    a("v_and_b32 v6, 3, v6")
    a("v_lshlrev_b32 v6, 4, v6")
    a("v_lshrrev_b32 v7, 2, v2")
    a("v_lshl_add_u32 v6, v7, 6, v6")
    a("v_bfe_u32 v7, v2, 2, 2")
    a("v_xor_b32 v8, v7, v5")
    a("v_lshlrev_b32 v8, 4, v8")
    a("v_lshl_add_u32 v8, v4, 6, v8")
    a("v_add_u32 v8, s66, v8")
    a("v_xor_b32 v9, 32, v8")
    a(f"v_add_u32 v10, {FB_TB}, v3")
    a("s_cmp_eq_u32 s63, 0")
    a(f"s_cselect_b32 s67, {(ti['P1re0'] - ti['S1re0']) * 1024}, 0")
    a("v_add_u32 v14, s67, v10")
    a("v_lshlrev_b32 v11, 10, v5")
    a("v_lshl_add_u32 v11, v4, 2, v11")
    a("v_add_u32 v11, s66, v11")
    def dma8(base, ks, ldsbase="s66"):
        a(f"s_lshl_b32 s68, s{ks}, 13")
        a(f"s_add_u32 s68, s68, {base}")
        t = []
        for j in range(8):
            a(f"s_add_u32 m0, {ldsbase}, {j*1024}")
            t.append(a(f"buffer_load_dwordx4 v6, {S4(SWS)}, s68 offen {LD} lds"))
            if j < 7: a("s_add_u32 s68, s68, 1024")
        return t
    tab = lambda reg, nm, base=10: f"ds_read_b128 {vr(reg,4)}, v{base} offset:{ti[nm]*1024}"
    TWO = TMP + 14
    a(f"s_cmp_lt_u32 s{sWAVE}, 4")
    a(f"s_cselect_b32 s68, {FB_WG}, 0")
    a("v_add_u32 v12, s68, v8")
    a("v_add_u32 v13, s68, v9")
    a(f"s_cmp_eq_u32 s{sWAVE}, 4")
    a.fence()
    a("s_cbranch_scc1 L_fpollz")
    a(f"s_cmp_eq_u32 s{sWAVE}, 5")
    a("s_cbranch_scc1 L_fpollw")
    a(f"s_cmp_ge_u32 s{sWAVE}, 4")
    a("s_cbranch_scc1 L_fgo")
    a("s_waitcnt vmcnt(0)")
    lds_inc(a, 15, t=(20, 21))
    a.fence()
    a("s_branch L_fgo")
    a.label("L_fpollw")
    a.reset_state()
    a(f"s_mov_b32 s68, {F_W}")
    poll(a, 68, 128, vt=20)
    a(f"v_mov_b32 v20, {CNT}")
    wait_word(a, 20, 4, tv=21)
    lds_inc(a, 13, t=(20, 21))
    for w in range(4):
        a(f"s_sub_u32 s69, s63, {5 - w}")
        a(f"s_mov_b32 s70, {FB_WG + w*8192}")
        dma8(WS_WT, 69, "s70")
    a.fence()
    a("s_branch L_fgo")
    a.label("L_fpollz")
    a.reset_state()
    a(f"s_mov_b32 s68, {F_Z}")
    poll(a, 68, 128, vt=20)
    lds_inc(a, 14, t=(20, 21))
    a.fence()
    a.label("L_fgo")
    a.reset_state()
    stamp(a, 'pre4')
    a(f"v_mov_b32 v20, {CNT + 60}")
    wait_word(a, 20, 4, tv=21, sleep=1)
    a(f"v_mov_b32 v20, {CNT + 56}")
    wait_word(a, 20, 1, tv=21, sleep=1)
    stamp(a, 'b4')
    tz = dma8(WS_Z, 63)
    for c in range(4):
        a(tab(CF + c * 4, f'S1re{c}', 14)); a(tab(CF + 16 + c * 4, f'S1im{c}', 14))
    for mt in range(2):
        for pr in range(4): a(tab(VT + (mt * 4 + pr) * 4, f'F1_{mt}_{pr}'))
    for c in range(4):
        a.wait_tok(*tz[(c >> 1) * 4: (c >> 1) * 4 + 4])
        for mt in range(2):
            a(f"ds_read_b128 {vr(PK + (mt*4+c)*4, 4)}, v{8 + (c & 1)} offset:{(c >> 1)*4096 + mt*2048}")
    a(f"s_cmp_eq_u32 s{sWAVE}, 5")
    a.wait_all(); a.fence()
    a("s_cbranch_scc0 L_fnot5")
    lds_inc(a, 15 - 8, t=(240, 241))
    a.fence()
    a.label("L_fnot5")
    a(f"s_cmp_lt_u32 s{sWAVE}, 4")
    a("s_cbranch_scc1 L_fcomp")
    a(f"v_mov_b32 v240, {CNT + 52}")
    wait_word(a, 240, 1, tv=241, sleep=0)
    dma8(WS_WT, 63)
    a.fence()
    a.label("L_fcomp")
    a.reset_state()
    D = lambda base, x, ri: base + (x * 2 + ri) * 16
    for c in range(4):
        for mt in range(2):
            for ri in range(2):
                acc = vr(D(VA, mt, ri), 16)
                a(f"{M} {acc}, {vr(PK + (mt*4+c)*4, 4)}, {vr(CF + ri*16 + c*4, 4)}, {'0' if c == 0 else acc}")
    PKR = lambda x, ri, u: PK + ((x * 2 + ri) * 2 + u) * 4
    WSL = [[0, 4, 1, 5], [2, 6, 3, 7]]
    Wr = lambda p, i: VT + 4 * WSL[p][i >> 2] + (i & 3)
    P2 = lambda r: f"v[{r}:{r+1}]"
    NEG0 = "neg_lo:[1,0,0] neg_hi:[1,0,0]"; NEG2 = "neg_lo:[0,0,1] neg_hi:[0,0,1]"
    a(f"v_mov_b32 v{TWO}, 2.0"); a(f"v_mov_b32 v{TWO+1}, 2.0")
    G2 = [('E', 0, 0), ('OF', 1, 0), ('E', 0, 1), ('OF', 1, 1)]
    G3 = [('E', 0, 0), ('E', 0, 1), ('OI', 1, 0), ('OI', 1, 1)]
    G4 = G2
    groups = [(g, 2) for g in G2] + [(g, 3) for g in G3] + [(g, 4) for g in G4]
    def cload(k):
        if k >= len(groups): return []
        (t, x, u), st = groups[k]
        return [tab(CF + (k & 1) * 12 + 4 * n, f'{t}{y}{u}') for n, y in enumerate('csn')]
    seen = set()
    def mgroup(k):
        (t, x, u), st = groups[k]
        out = VB if st in (2, 4) else VA
        inv = st != 2
        fr = lambda y: vr(CF + (k & 1) * 12 + 4 * 'csn'.index(y), 4)
        r = []
        for (ro, cx, ri) in ((0, 'c', 0), (1, 's' if inv else 'n', 0), (0, 'n' if inv else 's', 1), (1, 'c', 1)):
            acc = vr(D(out, x, ro), 16); dat = vr(PKR(x, ri, u), 4)
            A_, B_ = (dat, fr(cx)) if st == 3 else (fr(cx), dat)
            c = acc if (st, x, ro) in seen else '0'
            seen.add((st, x, ro))
            r.append(f"{M} {acc}, {A_}, {B_}, {c}")
        return r
    def mix(ks, valu):
        ms = []
        for k in ks: ms += [(m, (k if i == 3 else None)) for i, m in enumerate(mgroup(k))]
        n = len(ms); per = -(-len(valu) // n) if valu else 0
        vi = 0
        for m, k in ms:
            a(m)
            if k is not None:
                for l in cload(k + 2): a(l)
            for l in valu[vi:vi + per]: a(l)
            vi += per
    def pack(base, x, u):
        return [f"v_cvt_pk_bf16_f32 v{PKR(x, ri, u) + q}, v{D(base, x, ri) + 8*u + 2*q}, v{D(base, x, ri) + 8*u + 2*q + 1}"
                for ri in range(2) for q in range(4)]
    def wread1(p, q, off=0): return f"ds_read_b128 {vr(Wr(p, 4*q), 4)}, v{12 + (q & 1)} offset:{off + (q >> 1)*4096 + p*2048}"
    def twx(u, inv, refill):
        o = []
        sg = lambda fwd: (NEG0 if (fwd != inv) else "")
        for pr in range(4):
            i = 8 * u + 2 * pr
            t0r, t0i, t1r, t1i = (P2(D(VA, x, ri) + i) for x in range(2) for ri in range(2))
            if inv: s0 = s1 = Wr(u, 4 * pr)
            else: s0, s1 = VT + 4 * pr, VT + 16 + 4 * pr
            c0, sn0, c1, sn1 = P2(s0), P2(s0 + 2), P2(s1), P2(s1 + 2)
            A, B = P2(TMP + 4 * (pr & 1)), P2(TMP + 4 * (pr & 1) + 2)
            o += [f"v_pk_mul_f32 {A}, {t0r}, {c0}", f"v_pk_mul_f32 {B}, {t0i}, {c0}",
                  f"v_pk_fma_f32 {A}, {t0i}, {sn0}, {A} {sg(False)}", f"v_pk_fma_f32 {B}, {t0r}, {sn0}, {B} {sg(True)}",
                  f"v_pk_fma_f32 {t0r}, {t1r}, {c1}, {A}", f"v_pk_fma_f32 {t0i}, {t1i}, {c1}, {B}",
                  f"v_pk_fma_f32 {t0r}, {t1i}, {sn1}, {t0r} {sg(False)}", f"v_pk_fma_f32 {t0i}, {t1r}, {sn1}, {t0i} {sg(True)}",
                  f"v_pk_fma_f32 {t1r}, {A}, {P2(TWO)}, {t0r} {NEG2}", f"v_pk_fma_f32 {t1i}, {B}, {P2(TWO)}, {t0i} {NEG2}"]
            o += refill(pr)
            o += [f"v_cvt_pk_bf16_f32 v{PKR(x, ri, u) + pr}, v{D(VA, x, ri) + i}, v{D(VA, x, ri) + i + 1}" for x in range(2) for ri in range(2)]
        return o
    def tw1(u):
        if u == 0: return twx(0, False, lambda pr: [tab(VT + (mt * 4 + pr) * 4, f'F1_{mt}_{4 + pr}') for mt in range(2)])
        return twx(1, False, lambda pr: [])
    def tw2(u): return twx(u, True, lambda pr: [])
    def xw(p, t2=True, packit=True):
        o = []
        for pr in range(8):
            i = 2 * pr
            xr, xi, w = P2(D(VB, p, 0) + i), P2(D(VB, p, 1) + i), Wr(p, i)
            b = TMP + 6 * (pr & 1)
            wr, wi, t = P2(b), P2(b + 2), P2(b + 4)
            o += [f"v_lshlrev_b32 v{b}, 16, v{w}", f"v_lshlrev_b32 v{b+1}, 16, v{w+1}",
                  f"v_and_b32 v{b+2}, 0xffff0000, v{w}", f"v_and_b32 v{b+3}, 0xffff0000, v{w+1}",
                  f"v_pk_mul_f32 {t}, {xr}, {wi}", f"v_pk_mul_f32 {xr}, {xr}, {wr}",
                  f"v_pk_fma_f32 {xr}, {xi}, {wi}, {xr} {NEG0}", f"v_pk_fma_f32 {xi}, {xi}, {wr}, {t}"]
            if t2 and (pr & 1): o.append(tab(Wr(p, i & ~3), f'F2_{4 * p + (pr >> 1)}'))
            if packit:
                o += [f"v_cvt_pk_bf16_f32 v{PKR(p, ri, pr >> 2) + (pr & 3)}, v{D(VB, p, ri) + i}, v{D(VB, p, ri) + i + 1}" for ri in range(2)]
        return o
    def wread(p): return [wread1(p, q) for q in range(4)]
    for l in cload(0) + cload(1): a(l)
    stamp(a, 'zin')
    for l in tw1(0): a(l)
    mix([0, 1], tw1(1))
    a("s_waitcnt vmcnt(0)")
    a(f"v_mov_b32 v15, {CNT + 28}")
    wait_word(a, 15, 1, tv=7, sleep=0)
    stamp(a, 'win')
    for l in wread(0) + wread(1): a(l)
    if FFT_W2:
        touch_w2_8(a)
    a("s_cmp_lg_u32 s67, 0")
    a.wait_all(vm=False); a.fence()
    a("s_cbranch_scc1 L_fspecial")
    snap = a.snapshot(); seen0 = set(seen)
    x0 = xw(0)
    mix([2], [])
    mix([3], x0[:24])
    for l in x0[24:]: a(l)
    stamp(a, 'loop1')
    mix([4, 5], xw(1))
    mix([6, 7], [])
    a.wait_all(vm=False); a.fence()
    a("s_branch L_fjoin")
    a.restore(snap); seen.clear(); seen.update(seen0)
    a.label("L_fspecial")
    a("s_movk_i32 s71, 256")
    a(f"s_mov_b32 s72, {FB_WG}")
    dma8(WS_WT, 71, "s72")
    mix([2, 3], [])
    a("v_lshlrev_b32 v15, 8, v5")
    a("v_add_u32 v15, v15, v4")
    a("v_lshlrev_b32 v15, 2, v15")
    joff = lambda p, i: (32 * p + 64 * (8 * (i >> 2) + (i & 3))) * 4
    MAXO = joff(1, 15)
    a(f"v_sub_u32 v7, {8192 - MAXO}, v15")
    a("v_cmp_eq_u32 vcc, 0, v2")
    for ri in range(2):
        for p in range(2):
            for i in range(16): a(f"ds_write_b32 v15, v{D(VB,p,ri)+i} offset:{joff(p, i)}")
        a.wait_all(vm=False)
        for p in range(2):
            for i in range(16): a(f"ds_read_b32 v{D(VA,p,ri)+i}, v7 offset:{MAXO - joff(p, i)}")
        a.wait_all(vm=False)
        a(f"v_cndmask_b32 v{D(VA,0,ri)}, v{D(VA,0,ri)}, v{D(VB,0,ri)}, vcc")
    for l in xw(0, False, False) + xw(1, False, False): a(l)
    a("s_waitcnt vmcnt(0)")
    for l in wread(0) + wread(1): a(l)
    for p in range(2):
        for pr in range(8):
            i = 2 * pr
            vr_, vi_, w = P2(D(VB, p, 0) + i), P2(D(VB, p, 1) + i), Wr(p, i)
            mr, mi = P2(D(VA, p, 0) + i), P2(D(VA, p, 1) + i)
            b = TMP + 4 * (pr & 1)
            wr, wi = P2(b), P2(b + 2)
            for l in [f"v_lshlrev_b32 v{b}, 16, v{w}", f"v_lshlrev_b32 v{b+1}, 16, v{w+1}",
                      f"v_and_b32 v{b+2}, 0xffff0000, v{w}", f"v_and_b32 v{b+3}, 0xffff0000, v{w+1}",
                      f"v_pk_fma_f32 {vr_}, {mr}, {wr}, {vr_}", f"v_pk_fma_f32 {vi_}, {mr}, {wi}, {vi_}",
                      f"v_pk_fma_f32 {vr_}, {mi}, {wi}, {vr_}", f"v_pk_fma_f32 {vi_}, {mi}, {wr}, {vi_} {NEG0}"]: a(l)
            if pr & 1: a(tab(Wr(p, i & ~3), f'F2_{4 * p + (pr >> 1)}'))
    for x in range(2):
        for u in range(2):
            for l in pack(VB, x, u): a(l)
    stamp(a, 'loop1')
    mix([4, 5, 6, 7], [])
    a.wait_all(vm=False); a.fence()
    a.label("L_fjoin")
    a.reset_state()
    for l in tw2(0): a(l)
    mix([8, 9], tw2(1))
    def outp(nt):
        o = []
        for i in range(16):
            r = TMP + (i & 7)
            o += [f"v_cvt_pk_bf16_f32 v{r}, v{D(VB,nt,0)+i}, v{D(VB,nt,1)+i}",
                  f"ds_write_b32 v11, v{r} offset:{(64*(8*(i>>2) + (i&3)) + 32*nt)*4}"]
        return o
    mix([10], [])
    o0 = outp(0)
    mix([11], o0[:16])
    for l in o0[16:] + outp(1): a(l)
    a.wait_all(vm=False)
    stamp(a, 'f2')
    a(f"s_lshr_b32 s69, s{sWAVE}, 2")
    a("s_lshl_b32 s70, s69, 2")
    a(f"s_add_u32 s70, s70, {CNT + 16}")
    a("v_mov_b32 v12, s70")
    a("v_mov_b32 v13, 1")
    a("s_mov_b64 exec, 1")
    a("ds_add_u32 v12, v13")
    a("s_mov_b64 exec, -1")
    a("v_and_b32 v14, 255, v0")
    a("s_lshl_b32 s70, s69, 15")
    a("v_lshlrev_b32 v15, 4, v14")
    a("v_lshlrev_b32 v14, 2, v14")
    a("v_add_u32 v14, s70, v14")
    a("s_lshl_b32 s68, s62, 16")
    a("s_add_u32 s68, s68, s70")
    a(f"s_add_u32 s68, s68, {WS_Y1}")
    a("s_setprio 3")
    wait_word(a, 12, 4, sleep=0)
    for z in range(8):
        o = z * 4
        a(f"ds_read2st64_b32 {vr(64 + z*4, 2)}, v14 offset0:{o} offset1:{o+32}")
        a(f"ds_read2st64_b32 {vr(66 + z*4, 2)}, v14 offset0:{o+64} offset1:{o+96}")
    for z in range(8):
        a(f"buffer_store_dwordx4 {vr(64 + z*4, 4)}, v15, {S4(SWS)}, s68 offen {ST}")
        if z < 7: a("s_add_u32 s68, s68, 4096")
    a("s_setprio 0")
    lds_inc(a, 6)
    a("s_lshl_b32 s72, s62, 6")
    a(f"s_add_u32 s72, s72, {F_Y}")
    stamp(a, 'ust')
    a.fence()

def build():
    a = Asm()
    head = HEADER + ("; CFG " + os.environ.get("CFG", "") + "\n" if os.environ.get("CFG") else "") + (f"; STK {','.join(STK)}\n" if STAMPS else "") + f"; @launch grid=(256,1,1) block=(512,1,1) lds={LDS_TOTAL}\n"
    head += '.amdgcn_target "amdgcn-amd-amdhsa--gfx950"\n.text\n'
    tb = gen(a)
    body = a.text() + ".p2align 8\nTABLES:\n"
    for i in range(0, len(tb), 8):
        body += ".long " + ",".join(f"0x{x:x}" for x in tb[i:i+8]) + "\n"
    body += f""".section .rodata,"a"
.p2align 6
.amdhsa_kernel {NAME}
  .amdhsa_next_free_vgpr 256
  .amdhsa_next_free_sgpr 102
  .amdhsa_accum_offset 256
  .amdhsa_group_segment_fixed_size 0
  .amdhsa_kernarg_size 96
  .amdhsa_user_sgpr_count 2
  .amdhsa_user_sgpr_kernarg_segment_ptr 1
  .amdhsa_system_sgpr_workgroup_id_x 1
.end_amdhsa_kernel
"""
    return head + body, a.stats
if __name__ == "__main__":
    t, st = build()
    open(sys.argv[1], "w").write(t)
    print(len(t), "bytes", st)
```

```python
import sys, os, math, struct
sys.path.insert(0, "work")
from asmlib import *
from design import *

NAME = "gated_mix__spectral_gfnet__mixer_token_mlp__prompt_kernel"
HEADER = open("gated_mix__spectral_gfnet__mixer_token_mlp__prompt.s.ref").read().split("; @launch")[0]
ENV = lambda k, d: type(d)(os.environ.get(k, d))
STAMPS = ENV("STAMPS", 0)
ST = ENV("STMOD", "sc1").replace("_", " ")
LD = ENV("LDMOD", "sc1").replace("_", " ")
PA = ENV("PA", 3)
NREG = 9 - PA
W2_EARLY = ENV("W2_EARLY", 1)
POLL_MAX = 50000
EARLYW2 = ENV('EARLYW2', 0)
COOPH = ENV('COOPH', 0)
COOPU = ENV('COOPU', 0)
MF32 = ENV('MF32', 0)
STAGE = ENV('STAGE', 0)
EDMA = ENV('EDMA', 0)
_g1e = []
W2T = ENV('W2T', 'late')
NOWAIT = ENV('NOWAIT', 0)
NOTW = ENV('NOTW', 0)
WJOB_FR = ENV('WJOB_FR', 0)
XSW = ENV('XSW', 0)
CODEPF2 = ENV('CODEPF2', 1)
WJOBH = ENV('WJOBH', 0)
SPB = 208
HPOLL2 = ENV('HPOLL2', 1)
NREP = ENV('NREP', 8)
OST = ENV('OST', '').replace('_', ' ')
TBIT = ENV('TBIT', 0)
SPREAD = ENV('SPREAD', 0)
PFH = ENV('PFH', 0)
PFU = ENV('PFU', 0)
HSLEEP = ENV('HSLEEP', 12)
USLEEP = ENV('USLEEP', 12)
TBWAIT = ENV('TBWAIT', 0)
FFT_T1 = ENV('FFT_T1', 1)
MAP1 = ENV('MAP1', 24)
MAP2 = ENV('MAP2', 18)
YSLEEP0 = ENV('YSLEEP0', 0)
TOUCH_FR = ENV('TOUCH_FR', 0)
DRY = ENV('DRY', 4)
ZLD = ENV('ZLD', ' ')
CODEPF = ENV('CODEPF', 0)
HALF_T = ENV('HALF_T', 1)
W_AFTER = ENV('W_AFTER', 1)
YSLEEP = ENV('YSLEEP', 40)
FFT_W2 = ENV('FFT_W2', 1)
PM = ENV('PM', 'sc1').replace('_', ' ')
PSLEEP = ENV('PSLEEP', 2)
DFTPRIO = ENV('DFTPRIO', 0)
W2SIG = ENV('W2SIG', 13)
NB1 = ENV('NB1', 0)
NB2 = ENV('NB2', 0)
NB3 = 0
NB4 = 0
EARLY2 = ENV('EARLY2', 1)
NR1 = ENV('NR1', 99)
FFT_PUB_FIRST = ENV('FFT_PUB_FIRST', 0)
WS_FLG = 0xC00000
F_H, F_Z, F_U, F_Y, F_EP, F_W, F_G, F_X = 0, 8192, 16384, 32768, 40960, 49152, 57344, 65536
WS_DBG = 0x8000000
WS_BYTES = 0x10000000
MIXC = "op_sel_hi:[0,1,0]"
MIXS = "op_sel:[0,1,0] op_sel_hi:[0,1,0]"
f2u = lambda f: struct.unpack("<I", struct.pack("<f", f))[0]
SX, SWR, SWI, SGW, SWS, STB, SW1, SW2, SOUT, SB2 = 8, 12, 16, 20, 24, 28, 32, 36, 40, 44
sWAVE, sXCD, sIDX, sTAG, sN2, sC2, sDT1, sFT1, sDT2, sST2 = 48, 49, 50, 51, 52, 53, 54, 55, 56, 57
RING = 32768
TREG, TB_ = (sXCD, 2) if TBIT == 9 else (sIDX, TBIT)
AP = 4 * RING
LDS_TOTAL = 163840
FB_TB, FB_WG = 65536, 65536 + 59392

def srd(a, d, base, nbytes):
    a(f"s_mov_b32 s{d}, s{base}")
    a(f"s_and_b32 s{d+1}, s{base+1}, 0xffff")
    a(f"s_mov_b32 s{d+2}, {nbytes}")
    a(f"s_mov_b32 s{d+3}, 0x00020000")
def S4(d): return f"s[{d}:{d+3}]"
STK = ENV("STK", "start,xin,p1c,p1st,pre4,b4,loop1,ust,pre7,loop2,end").split(",")
def stamp(a, n):
    if STAMPS and n in STK:
        i = STK.index(n)
        a(f"s_memrealtime s[{80+2*i}:{81+2*i}]")
def stamp_flush(a):
    if not STAMPS: return
    a("s_waitcnt vmcnt(0)")
    stamp(a, 'end')
    a("s_waitcnt lgkmcnt(0)")
    for i in range(11): a(f"v_mov_b32 v{240+i}, s{80+2*i}")
    a("s_lshl_b32 s60, s2, 3")
    a(f"s_add_u32 s60, s60, s{sWAVE}")
    a("s_lshl_b32 s60, s60, 6")
    a(f"s_add_u32 s60, s60, {WS_DBG}")
    a("v_mov_b32 v239, 0")
    if ENV("DBG", 0):
        a("s_load_dwordx2 s[64:65], s[0:1], 80")
        a("s_waitcnt lgkmcnt(0)")
        srd(a, 68, 64, 256)
        a("v_not_b32 v238, v240")
        a("s_mov_b64 exec, 1")
        a(f"buffer_atomic_umax v238, v239, s[68:71], 0 offen")
        for i in range(1, 11): a(f"buffer_atomic_umax v{240+i}, v239, s[68:71], 0 offen offset:{4*i}")
        a(f"buffer_atomic_umax v240, v239, s[68:71], 0 offen offset:44")
        a("s_mov_b64 exec, -1")
        return
    a("s_mov_b64 exec, 1")
    for q in range(3): a(f"buffer_store_dwordx4 v[{240+4*q}:{243+4*q}], v239, {S4(SWS)}, s60 offen offset:{16*q}")
    a("s_mov_b64 exec, -1")
def dpp_reduce(a, regs):
    for mod in ("quad_perm:[1,0,3,2] row_mask:0xf bank_mask:0xf", "quad_perm:[2,3,0,1] row_mask:0xf bank_mask:0xf",
                "row_half_mirror row_mask:0xf bank_mask:0xf", "row_mirror row_mask:0xf bank_mask:0xf",
                "row_bcast:15 row_mask:0xa bank_mask:0xf", "row_bcast:31 row_mask:0xc bank_mask:0xf"):
        for r in regs: a(f"v_add_f32_dpp v{r}, v{r}, v{r} {mod}")
def unpack(a, lo, hi, src):
    a(f"v_lshlrev_b32 v{lo}, 16, v{src}")
    a(f"v_and_b32 v{hi}, 0xffff0000, v{src}")
_uid = [0]
def uid(p): _uid[0] += 1; return f"L_{p}_{_uid[0]}"

def set_flag(a, off_s):
    a(f"s_add_u32 s{off_s}, s{off_s}, {WS_FLG}")
    a(f"v_mov_b32 v13, s{sTAG}")
    a("v_mov_b32 v14, 0")
    a("s_mov_b64 exec, 1")
    a(f"buffer_store_dword v13, v14, {S4(SWS)}, s{off_s} offen {PM}")
    a("s_mov_b64 exec, -1")

def poll(a, off_s, nflags, vt=13):
    L, Ld = uid("poll"), uid("polld")
    a(f"s_add_u32 s{off_s}, s{off_s}, {WS_FLG}")
    n1 = min(nflags, 64)
    a(f"v_min_u32 v{vt}, {n1-1}, v2")
    a(f"v_lshlrev_b32 v{vt}, 6, v{vt}")
    a(f"v_add_u32 v{vt}, s6, v{vt}")
    a(f"s_mov_b32 s79, {POLL_MAX}")
    if nflags > 64: a(f"s_add_u32 s78, s{off_s}, 4096")
    a.wait_all(vm=False); a.fence()
    snap_vm = list(a.vm)
    a.label(L)
    a.auto_wait = False
    a(f"buffer_load_dword v{vt+1}, v{vt}, {S4(SWS)}, s{off_s} offen {PM}")
    if nflags > 64: a(f"buffer_load_dword v{vt+2}, v{vt}, {S4(SWS)}, s78 offen {PM}")
    a("s_sub_u32 s79, s79, 1")
    a("s_waitcnt vmcnt(0)")
    a(f"v_cmp_ne_u32 vcc, s{sTAG}, v{vt+1}")
    if nflags > 64:
        a(f"v_cmp_ne_u32 s[76:77], s{sTAG}, v{vt+2}")
        a("s_nop 1")
        a("s_or_b64 vcc, vcc, s[76:77]")
    else:
        a("s_nop 1")
    a("s_cmp_eq_u64 vcc, 0")
    a(f"s_cbranch_scc1 {Ld}")
    a("s_cmp_eq_u32 s79, 0")
    a(f"s_cbranch_scc1 {Ld}")
    a(f"s_sleep {PSLEEP}")
    a(f"s_branch {L}")
    a.label(Ld)
    a.auto_wait = True
    a.reset_state()

vW0, vW1, vA, vT, vL16 = 4, 5, 6, 8, 3
ACC, WF, AF, RS = 16, 80, 112, 112 + 16 * PA
sRING, sW, sA0, sA, sROT, sSL = 58, 59, 60, 61, 74, 75
ROT = ENV('ROT', 0)
ROT2 = ENV('ROT2', 0)

def poll_pre(a, off, vt):
    a(f"v_lshlrev_b32 v{vt}, 6, v2")
    a(f"s_mov_b32 s78, {WS_FLG + off}")
    a(f"s_mov_b32 s79, {WS_FLG + off + 4096}")
    a(f"buffer_load_dword v{vt+1}, v{vt}, {S4(SWS)}, s78 offen {PM}")
    a(f"buffer_load_dword v{vt+2}, v{vt}, {S4(SWS)}, s79 offen {PM}")
def poll_fin(a, off, vt, off_s):
    L = uid("pf")
    a(f"v_cmp_ne_u32 vcc, s{sTAG}, v{vt+1}")
    a(f"v_cmp_ne_u32 s[76:77], s{sTAG}, v{vt+2}")
    a("s_or_b64 vcc, vcc, s[76:77]")
    a("s_cmp_eq_u64 vcc, 0")
    a.wait_all(); a.fence()
    a(f"s_cbranch_scc1 {L}")
    a(f"s_mov_b32 s{off_s}, {off}")
    poll(a, off_s, 128, vt=vt)
    a.label(L)
    a.reset_state()

def gpoll(a, groups, vt=(12, 13, 250, 251), sleep=None, behind=None, need=None, lanes=None):
    L, Ld = uid("gp"), uid("gpd")
    for k, (so, n) in enumerate(groups):
        a(f"v_min_u32 v{vt[k]}, {n-1}, v2")
        a(f"v_lshlrev_b32 v{vt[k]}, 6, v{vt[k]}")
        a(f"v_add_u32 v{vt[k]}, s6, v{vt[k]}")
    L2 = uid("gpc")
    after = []
    if behind:
        for k, (so, n) in enumerate(groups):
            a(f"buffer_load_dword v{vt[2+k]}, v{vt[k]}, {S4(SWS)}, s{so} offen {PM}")
        n0 = len(a.vm)
        behind()
        after = a.vm[n0:] if len(a.vm) < 63 else None
        assert after is not None
        a(f"s_waitcnt vmcnt({len(after)})")
        a(f"s_mov_b32 s79, {POLL_MAX}")
        a.wait_all(vm=False); a.fence()
        a(f"s_branch {L2}")
    else:
        a(f"s_mov_b32 s79, {POLL_MAX}")
        a.wait_all(vm=False); a.fence()
    if lanes: a(f"s_mov_b64 exec, {lanes}")
    a.label(L)
    a.auto_wait = False
    for k, (so, n) in enumerate(groups):
        a(f"buffer_load_dword v{vt[2+k]}, v{vt[k]}, {S4(SWS)}, s{so} offen {PM}")
    a("s_sub_u32 s79, s79, 1")
    a("s_waitcnt vmcnt(0)")
    a.label(L2)
    a(f"v_cmp_ne_u32 vcc, s{sTAG}, v{vt[2]}")
    if len(groups) > 1:
        a(f"v_cmp_ne_u32 s[70:71], s{sTAG}, v{vt[3]}")
        a("s_nop 1")
        a("s_or_b64 vcc, vcc, s[70:71]")
    else:
        a("s_nop 1")
    if need:
        a("s_mov_b64 s[70:71], vcc")
        a(f"s_and_b32 s78, vcc_lo, {need}")
        a(f"s_cbranch_scc0 {Ld}")
    else:
        a("s_cmp_eq_u64 vcc, 0")
        a(f"s_cbranch_scc1 {Ld}")
    a("s_cmp_eq_u32 s79, 0")
    a(f"s_cbranch_scc1 {Ld}")
    a("s_mov_b64 exec, vcc")
    a(f"s_sleep {PSLEEP if sleep is None else sleep}")
    a(f"s_branch {L}")
    a.label(Ld)
    a("s_mov_b64 exec, -1")
    a.auto_wait = True
    a.reset_state()
    a.vm = list(after)

def prefetch_loop(a, groups, sleep):
    L, Ld = uid("pl"), uid("pld")
    a(f"s_mov_b32 s79, {POLL_MAX}")
    a.wait_all(vm=False); a.fence()
    a.label(L)
    a.auto_wait = False
    for k, (pd, vf, sf, vd, sd) in enumerate(groups):
        Ls = uid("pls")
        a(f"s_mov_b64 exec, s[{pd}:{pd+1}]")
        a(f"s_cbranch_execz {Ls}")
        a(f"buffer_load_dword v{14+k}, v{vf}, {S4(SWS)}, s{sf} offen {PM}")
        a.label(Ls)
    a("s_waitcnt vmcnt(0)")
    for k, (pd, vf, sf, vd, sd) in enumerate(groups):
        Ls = uid("pls")
        a(f"s_mov_b64 exec, s[{pd}:{pd+1}]")
        a(f"v_cmp_eq_u32 vcc, s{sTAG}, v{14+k}")
        a("s_nop 1")
        a(f"s_andn2_b64 s[{pd}:{pd+1}], s[{pd}:{pd+1}], vcc")
        a("s_mov_b64 exec, vcc")
        a(f"s_cbranch_execz {Ls}")
        a(f"buffer_load_dword v1, v{vd}, {S4(SWS)}, s{sd} offen")
        a.label(Ls)
    a("s_mov_b64 exec, -1")
    if len(groups) > 1: a(f"s_or_b64 vcc, s[{groups[0][0]}:{groups[0][0]+1}], s[{groups[1][0]}:{groups[1][0]+1}]")
    else: a(f"s_mov_b64 vcc, s[{groups[0][0]}:{groups[0][0]+1}]")
    a("s_cmp_eq_u64 vcc, 0")
    a(f"s_cbranch_scc1 {Ld}")
    a("s_sub_u32 s79, s79, 1")
    a(f"s_cbranch_scc1 {Ld}")
    a(f"s_sleep {sleep}")
    a(f"s_branch {L}")
    a.label(Ld)
    a.auto_wait = True
    a.reset_state()

def prefetch_h(a):
    a(f"s_lshr_b32 s62, s{sXCD}, 1")
    a("s_mul_i32 s62, s62, 7")
    a(f"s_sub_u32 s62, s{sFT1}, s62")
    a("v_lshrrev_b32 v4, 3, v2")
    a("v_mul_u32_u24 v4, 7, v4")
    a("v_add_u32 v4, s62, v4")
    a("v_and_b32 v5, 7, v2")
    a("v_lshlrev_b32 v5, 7, v5")
    a("v_lshlrev_b32 v6, 6, v4")
    a("v_lshl_add_u32 v7, v4, 10, v5")
    a("v_cmp_gt_u32 vcc, 8, v4")
    a("s_mov_b64 s[70:71], -1")
    a("s_mov_b64 s[72:73], vcc")
    a(f"s_bfe_u32 s63, s{sWAVE}, 0x10001")
    a("s_lshl_b32 s63, s63, 12")
    a(f"s_add_u32 s63, s63, {WS_FLG + F_H}")
    a(f"s_add_u32 s68, s63, {56*64}")
    a(f"s_lshl_b32 s69, s{sDT1}, 18")
    a(f"s_and_b32 s76, s{sWAVE}, 3")
    a("s_lshl_b32 s76, s76, 16")
    a("s_add_u32 s69, s69, s76")
    if WS_HT: a(f"s_add_u32 s69, s69, {WS_HT}")
    a(f"s_add_u32 s76, s69, {56*1024}")
    prefetch_loop(a, [(70, 6, 63, 7, 69), (72, 6, 68, 7, 76)], HSLEEP)

def prefetch_u(a):
    a("v_lshrrev_b32 v4, 3, v2")
    a("v_and_b32 v5, 7, v2")
    a("v_lshlrev_b32 v5, 7, v5")
    a("v_lshlrev_b32 v6, 6, v4")
    a("v_lshl_add_u32 v7, v4, 13, v5")
    a("s_mov_b32 s70, -1")
    a("s_mov_b32 s71, 0x00ffffff")
    a(f"s_and_b32 s76, s{sWAVE}, 3")
    a(f"s_lshl_b32 s63, s{sDT2}, 11")
    a(f"s_mul_i32 s68, s76, {7*64}")
    a("s_add_u32 s63, s63, s68")
    a(f"s_add_u32 s63, s63, {WS_FLG + F_U}")
    a(f"s_mul_i32 s69, s{sDT2}, {224*1024}")
    a(f"s_mul_i32 s68, s76, {56*1024}")
    a("s_add_u32 s69, s69, s68")
    a(f"s_and_b32 s68, s{sST2}, 7")
    a("s_lshl_b32 s68, s68, 10")
    a("s_add_u32 s69, s69, s68")
    a(f"s_add_u32 s69, s69, {WS_UT}")
    prefetch_loop(a, [(70, 6, 63, 7, 69)], USLEEP)

def wlane(a, r0, r1, rowstride, t0, t1):
    a(f"v_lshrrev_b32 v{t0}, 3, v2")
    a(f"s_mov_b32 s79, {rowstride}")
    a(f"v_mul_lo_u32 v{r0}, v{t0}, s79")
    if MF32:
        a(f"v_lshlrev_b32 v{t0}, 4, v2")
        a(f"v_and_b32 v{t0}, 0x70, v{t0}")
        a(f"v_lshlrev_b32 v{t1}, 2, v2")
        a(f"v_and_b32 v{t1}, 64, v{t1}")
        a(f"v_xor_b32 v{t0}, v{t0}, v{t1}")
        a(f"v_add_u32 v{r0}, v{r0}, v{t0}")
        a(f"v_mov_b32 v{r1}, v{r0}")
        return
    a(f"v_bfe_u32 v{t0}, v2, 1, 2")
    a(f"v_bfe_u32 v{t1}, v2, 4, 1")
    a(f"v_xor_b32 v{t0}, v{t0}, v{t1}")
    a(f"v_lshl_add_u32 v{r0}, v{t0}, 5, v{r0}")
    a(f"v_and_b32 v{t0}, 1, v2")
    a(f"v_lshl_add_u32 v{r0}, v{t0}, 4, v{r0}")
    a(f"v_xor_b32 v{r1}, 64, v{r0}")
def gemm_lane_consts(a, rowstride):
    t0, t1 = 12, 13
    a(f"s_lshl_b32 s{sRING}, s{sWAVE}, 15")
    wlane(a, vW0, vW1, rowstride, t0, t1)
    if MF32:
        a(f"v_lshrrev_b32 v{t1}, 5, v2")
        a(f"v_lshlrev_b32 v{vA}, 10, v{t1}")
        a(f"v_and_b32 v{t0}, 31, v2")
        a(f"v_lshl_add_u32 v{vA}, v{t0}, 4, v{vA}")
        a(f"v_lshlrev_b32 v{vT}, 10, v{t1}")
        a(f"v_bfe_u32 v{t0}, v2, 2, 2")
        a(f"v_lshl_add_u32 v{vT}, v{t0}, 7, v{vT}")
        a(f"v_bfe_u32 v{t0}, v2, 3, 1")
        a(f"v_lshl_add_u32 v{vT}, v{t0}, 6, v{vT}")
        a(f"v_bfe_u32 v{t0}, v2, 4, 1")
        a(f"v_lshl_add_u32 v{vT}, v{t0}, 5, v{vT}")
        a(f"v_and_b32 v{t0}, 3, v2")
        a(f"v_lshl_add_u32 v{vT}, v{t0}, 3, v{vT}")
        a(f"v_add_u32 v{vT}, s{sRING}, v{vT}")
        a(f"v_xor_b32 v{vT+1}, 64, v{vT}")
        a(f"v_add_u32 v7, s{sRING}, v{vL16}")
        return
    a(f"v_lshrrev_b32 v{t1}, 4, v2")
    a(f"v_lshlrev_b32 v{vA}, 10, v{t1}")
    a(f"v_and_b32 v{t0}, 15, v2")
    a(f"v_lshl_add_u32 v{vA}, v{t0}, 4, v{vA}")
    a(f"v_lshlrev_b32 v{vT}, 10, v{t1}")
    a(f"v_bfe_u32 v{t0}, v2, 2, 2")
    a(f"v_lshl_add_u32 v{vT}, v{t0}, 7, v{vT}")
    a(f"v_bfe_u32 v{t0}, v2, 3, 2")
    a(f"v_lshl_add_u32 v{vT}, v{t0}, 5, v{vT}")
    a(f"v_and_b32 v{t0}, 3, v2")
    a(f"v_lshl_add_u32 v{vT}, v{t0}, 3, v{vT}")
    a(f"v_add_u32 v{vT}, s{sRING}, v{vT}")
    for t in range(1, 4): a(f"v_xor_b32 v{vT+t}, {32*t}, v{vT}")
    a(f"v_add_u32 v7, s{sRING}, v{vL16}")

class Gemm:
    def __init__(s, a, nslab, slots, kinds, srdW, wbase_s, jstep, sstep, w_is_A, vw=(4, 5), rot=74):
        s.vw, s.rot = vw, rot
        s.a, s.n, s.slots, s.kinds, s.srdW, s.wb, s.jstep, s.sstep, s.w_is_A = a, nslab, slots, kinds, srdW, wbase_s, jstep, sstep, w_is_A
        s.tok = {}
        s.regidx = {sg: i for i, sg in enumerate([x for x in range(nslab) if kinds[x] == 'reg'])}
    def wload(s, sig, jj):
        v = s.vw[jj % 2]
        o = []
        if jj == 0:
            o += s.actual(sig, sSL, sW) + [f"s_mul_i32 s{sSL}, s{sSL}, {s.sstep}", f"s_add_u32 s{sSL}, s{sSL}, s{s.wb}"]
        o.append(f"s_add_u32 s{sW}, s{sSL}, {jj * s.jstep}")
        if s.kinds[sig] == 'reg':
            r = RS + s.regidx[sig] * 16 + jj * 4
            o.append(f"buffer_load_dwordx4 {vr(r,4)}, v{v}, {S4(s.srdW)}, s{sW} offen")
        else:
            o.append(f"s_add_u32 m0, s{sRING}, {s.slots[sig]*4096 + jj*1024}")
            o.append(f"buffer_load_dwordx4 v{v}, {S4(s.srdW)}, s{sW} offen lds")
        return o
    def actual(s, sig, d, tmp):
        o = [f"s_add_u32 s{d}, s{s.rot}, {sig}"]
        if s.n == 16: o.append(f"s_and_b32 s{d}, s{d}, 15")
        else: o += [f"s_sub_u32 s{tmp}, s{d}, {s.n}", f"s_min_u32 s{d}, s{d}, s{tmp}"]
        return o
    def emit_w(s, sig, jjs=range(4)):
        if s.w_is_A: stamp(s.a, f"w{sig}")
        for jj in jjs:
            for l in s.wload(sig, jj):
                ins = s.a(l)
                if 'lds' in l and 'buffer' in l: s.tok.setdefault(sig, []).append(ins)
    def aload(s, sig, mt):
        r = AF + (sig % PA) * 16 + mt * 4
        o = []
        if mt == 0: o += s.actual(sig, sA, 73) + [f"s_lshl_b32 s{sA}, s{sA}, 12", f"s_add_u32 s{sA}, s{sA}, s{sA0}"]
        o.append(f"buffer_load_dwordx4 {vr(r,4)}, v{vA}, {S4(SWS)}, s{sA} offen offset:{(mt >> 1) * 2048 + (mt & 1) * 512 if MF32 else mt*256} {LD}")
        return o
    def trreads(s, sig):
        out = []
        for t in range(4):
            for u in range(2):
                r = WF + (sig & 1) * 16 + t * 4 + 2 * u
                if MF32:
                    out.append(f"ds_read_b64_tr_b16 {vr(r,2)}, v{vT + (t & 1)} offset:{s.slots[sig]*4096 + (t >> 1)*2048 + u*512}")
                    continue
                out.append(f"ds_read_b64_tr_b16 {vr(r,2)}, v{vT+t} offset:{s.slots[sig]*4096 + u*512}")
        return out
    def run(s, extra=None, drain_first=False, post=None, pwrite=None):
        a = s.a; M = "v_mfma_f32_16x16x32_bf16"
        for sig in range(min(PA, s.n)):
            for mt in range(4):
                for l in s.aload(sig, mt): a(l)
        if post: post()
        if drain_first: a.wait_tok(a.vm[0])
        a.wait_tok(*s.tok.get(0, []))
        rt = {0: [a(l) for l in s.trreads(0)]}
        wr = {}; done = []
        for sig in range(s.n):
            stamp(a, f"g{1 if s.w_is_A else 2}_{sig}")
            nxt = [x for x in range(sig + 1, s.n) if s.slots[x] == s.slots[sig] and s.kinds[x] != 'pre']
            fill = nxt[0] if nxt else None
            groups = [[] for _ in range(16)]
            trn = s.trreads(sig + 1) if sig + 1 < s.n else []
            for i, l in enumerate(trn): groups[6 + i].append(('tr', l))
            if fill is not None:
                for jj in range(4):
                    if s.kinds[fill] == 'reg':
                        r = RS + s.regidx[fill] * 16 + jj * 4
                        groups[jj].append(('wr', f"ds_write_b128 v7, {vr(r,4)} offset:{s.slots[fill]*4096 + jj*1024}"))
                    else:
                        groups[jj].append(('dma', jj))
            if sig + PA < s.n:
                for mt in range(4): groups[12 + mt].append(('act', mt))
            ex = extra(sig) if extra else []
            for i, g in enumerate(ex): groups[min(15, 1 + i * 14 // max(1, len(ex)))].append(('ex', g))
            if fill is not None or ex: a.wait_tok(*rt[sig])
            rt[sig + 1] = []
            if MF32:
                def do(grp):
                    for kind, x in grp:
                        if kind == 'tr':
                            if not rt[sig + 1]: a.wait_tok(*s.tok.get(sig + 1, []), *wr.get(sig + 1, []))
                            rt[sig + 1].append(a(x))
                        elif kind == 'wr': wr.setdefault(fill, []).append(a(x))
                        elif kind == 'dma': s.emit_w(fill, [x])
                        elif kind == 'act':
                            for l in s.aload(sig + PA, x): a(l)
                        elif kind == 'ex': x()
                g8 = [[] for _ in range(8)]
                for gi_, g in enumerate(groups):
                    for kind, x in g:
                        if kind == 'tr': g8[3 + (gi_ - 6) * 5 // 8].append((kind, x))
                        elif kind == 'act': g8[4 + x].append((kind, x))
                        elif kind in ('wr', 'dma'): g8[gi_].append((kind, x))
                        else: g8[gi_ // 2].append((kind, x))
                order = [(ks, t, mt) for ks in range(2) for t in range(2) for mt in range(2)]
                last = pwrite and sig == s.n - 1
                if last: order = [(ks, t, mt) for t in range(2) for mt in range(2) for ks in range(2)]
                for k, (ks, t, mt) in enumerate(order):
                    wf = vr(WF + (sig & 1) * 16 + (ks * 2 + t) * 4, 4); af = vr(AF + (sig % PA) * 16 + (ks * 2 + mt) * 4, 4)
                    bi = (t * 2 + mt) if s.w_is_A else (mt * 2 + t)
                    acc = vr(ACC + bi * 16, 16)
                    A_, B_ = (wf, af) if s.w_is_A else (af, wf)
                    a(f"v_mfma_f32_32x32x16_bf16 {acc}, {A_}, {B_}, {'0' if (sig == 0 and ks == 0) else acc}")
                    do(g8[k])
                    if last and ks == 1: done.append(bi)
                    if last and k in (6, 7):
                        for q in range(4): a(pwrite(done[k - 6] * 4 + q))
                if last:
                    for bi in done[2:]:
                        for q in range(4): a(pwrite(bi * 4 + q))
                    done = []
                continue
            k = 0
            for t in range(4):
                for mt in range(4):
                    wf = vr(WF + (sig & 1) * 16 + t * 4, 4); af = vr(AF + (sig % PA) * 16 + mt * 4, 4)
                    if s.w_is_A: acc = vr(ACC + (t * 4 + mt) * 4, 4); A_, B_ = wf, af
                    else:        acc = vr(ACC + (mt * 4 + t) * 4, 4); A_, B_ = af, wf
                    a(f"{M} {acc}, {A_}, {B_}, {'0' if sig == 0 else acc}")
                    for kind, x in groups[k]:
                        if kind == 'tr':
                            if not rt[sig + 1]: a.wait_tok(*s.tok.get(sig + 1, []), *wr.get(sig + 1, []))
                            rt[sig + 1].append(a(x))
                        elif kind == 'wr': wr.setdefault(fill, []).append(a(x))
                        elif kind == 'dma': s.emit_w(fill, [x])
                        elif kind == 'act':
                            for l in s.aload(sig + PA, x): a(l)
                        elif kind == 'ex': x()
                    if pwrite and sig == s.n - 1:
                        done.append((t * 4 + mt) if s.w_is_A else (mt * 4 + t))
                        if k >= 8: a(pwrite(done[k - 8]))
                    k += 1
        if pwrite:
            for b in done[8:]: a(pwrite(b))

P1_EX, P1_GX, CNT, P1_TB = AP, AP + 16384, LDS_TOTAL - 64, AP + 21504
P1_XR = P1_EX
P1_WR, P1_WI = 0, 32768
LX, LF, LP, LGW = 16, 32, 64, 96
def hbar(a, cnt, target):
    a.wait_all(vm=False)
    a(f"v_mov_b32 v12, {CNT + 4*cnt}")
    a("v_mov_b32 v13, 1")
    a("s_mov_b64 exec, 1")
    a("ds_add_u32 v12, v13")
    a("s_mov_b64 exec, -1")
    wait_word(a, 12, target, sleep=0)

def phase1_ln(a):
    F = lambda r, e: LF + 8 * r + e
    P = lambda r, e: LP + 8 * r + e
    R = range(4)
    a(f"buffer_load_dwordx4 {vr(LGW,4)}, v3, {S4(SGW)}, 0 offen")
    if WJOBH:
        a("v_and_b32 v9, 15, v2")
        w_special_pre(a)
    stamp(a, 'ea0')
    a("s_barrier")
    a("v_mov_b32 v108, 0x3b000000")
    a("v_lshlrev_b32 v11, 5, v2")
    a("v_add_u32 v11, s64, v11")
    a("v_and_b32 v4, 255, v0")
    a("v_lshlrev_b32 v4, 2, v4")
    a(f"v_add_u32 v4, {P1_EX}, v4")
    a(f"s_lshl_b32 s72, s{sC2}, 6")
    a(f"s_add_u32 s72, s72, s{sN2}")
    a("s_lshl_b32 s72, s72, 6")
    a("s_lshl_b32 s70, s72, 4")
    a(f"s_lshl_b32 s71, s{sC2}, 16")
    a("s_add_u32 s70, s70, s71")
    a(f"s_and_b32 s71, s{sWAVE}, 3")
    a(f"s_lshl_b32 s71, s71, 18")
    a("s_add_u32 s70, s70, s71")
    if WS_HT: a(f"s_add_u32 s70, s70, {WS_HT}")
    if F_H: a(f"s_add_u32 s72, s72, {F_H}")
    S_, T_, M_, V_, M2, V2 = 100, 104, 112, 116, 152, 160
    P2 = lambda r: f"v[{r}:{r+1}]"
    NEG1 = "neg_lo:[0,1] neg_hi:[0,1]"
    SP_ = 168
    for r in R:
        for q in range(4): unpack(a, F(r, 2*q), F(r, 2*q+1), LX + 4*r + q)
        if r == 0: stamp(a, 'xin')
        a(f"v_pk_add_f32 {P2(SP_+4*r)}, {P2(F(r,0))}, {P2(F(r,2))}")
        a(f"v_pk_add_f32 {P2(SP_+4*r+2)}, {P2(F(r,4))}, {P2(F(r,6))}")
        a(f"v_pk_add_f32 {P2(SP_+4*r)}, {P2(SP_+4*r)}, {P2(SP_+4*r+2)}")
        a(f"v_add_f32 v{S_+r}, v{SP_+4*r}, v{SP_+4*r+1}")
    dpp_reduce(a, [S_ + r for r in R])
    for r in R: a(f"v_readlane_b32 s{64+r}, v{S_+r}, 63")
    for r in R:
        a(f"v_mul_f32 v{M2+2*r}, s{64+r}, v108"); a(f"v_mul_f32 v{M2+2*r+1}, s{64+r}, v108")
    for q in range(4):
        for r in R: a(f"v_pk_add_f32 {P2(P(r,2*q))}, {P2(F(r,2*q))}, {P2(M2+2*r)} {NEG1}")
        for r in R:
            if q == 0: a(f"v_pk_mul_f32 {P2(SP_+2*r)}, {P2(P(r,0))}, {P2(P(r,0))}")
            else: a(f"v_pk_fma_f32 {P2(SP_+2*r)}, {P2(P(r,2*q))}, {P2(P(r,2*q))}, {P2(SP_+2*r)}")
    for r in R: a(f"v_add_f32 v{S_+r}, v{SP_+2*r}, v{SP_+2*r+1}")
    for r in R:
        a(f"v_cvt_pk_bf16_f32 v{T_+r}, v{M2+2*r}, v{M2+2*r}")
    for r in R: unpack(a, M2 + 2*r, M2 + 2*r + 1, T_ + r)
    dpp_reduce(a, [S_ + r for r in R])
    for r in R: a(f"v_readlane_b32 s{64+r}, v{S_+r}, 63")
    def rnd4(X):
        for p in range(2): a(f"v_cvt_pk_bf16_f32 v{T_+p}, v{X+2*p}, v{X+2*p+1}")
        for p in range(2): unpack(a, X + 2*p, X + 2*p + 1, T_ + p)
    sub = [f"v_pk_add_f32 {P2(P(r,2*q))}, {P2(F(r,2*q))}, {P2(M2+2*r)} {NEG1}" for q in range(4) for r in R]
    cv = [f"v_cvt_pk_bf16_f32 v{120 + 4*r + q}, v{P(r,2*q)}, v{P(r,2*q+1)}" for q in range(4) for r in R]
    for l in sub[:4]: a(l)
    for r in R: a(f"v_mul_f32 v{V_+r}, s{64+r}, v108")
    rnd4(V_)
    for r in R: a(f"v_add_f32 v{V_+r}, 0x3727c5ac, v{V_+r}")
    rnd4(V_)
    for r in R: a(f"v_sqrt_f32 v{V_+r}, v{V_+r}")
    for l in sub[4:8]: a(l)
    rnd4(V_)
    for r in R:
        a(f"v_rcp_f32 v{V2+2*r}, v{V_+r}"); a(f"v_rcp_f32 v{V2+2*r+1}, v{V_+r}")
    for l in sub[8:]: a(l)
    for l in cv: a(l)
    for p in range(2):
        for r in (2*p, 2*p+1):
            for q in range(4): unpack(a, P(r, 2*q), P(r, 2*q+1), 120 + 4*r + q)
            for q in range(4): a(f"v_pk_mul_f32 {P2(P(r,2*q))}, {P2(P(r,2*q))}, {P2(V2+2*r)}")
        for e in range(8): a(f"v_cvt_pk_bf16_f32 v{176 + 8*p + e}, v{P(2*p,e)}, v{P(2*p+1,e)}")
        a(f"ds_write_b128 v11, {vr(176 + 8*p, 4)} offset:{2048*p}")
        a(f"ds_write_b128 v11, {vr(180 + 8*p, 4)} offset:{2048*p + 16}")
    stamp(a, 'p1c')
    hbar(a, 8, 4)
    for dh in range(2):
        for cc in range(2):
            for hh in range(2):
                o = 32 * cc + 16 * hh + 4 * dh
                a(f"ds_read2st64_b32 {vr(136 + 8*dh + 4*cc + 2*hh, 2)}, v4 offset0:{o} offset1:{o+8}")
    for dh in range(2):
        for cc in range(2):
            a(f"s_add_u32 s71, s70, {dh * (1 << 20) + cc * 65536}")
            a(f"buffer_store_dwordx4 {vr(136 + 8*dh + 4*cc, 4)}, v3, {S4(SWS)}, s71 offen {ST}")
    stamp(a, 'p1st')
    lds_inc(a, 11)
    tag_ready(a)
    if not WJOBH:
        arrive(a, 0, [72], 0, 4)
        return
    a("v_bfe_u32 v7, v0, 2, 6")
    a("v_and_b32 v6, 3, v2")
    a("v_lshlrev_b32 v8, 13, v7")
    a("v_lshl_add_u32 v8, v6, 4, v8")
    a(f"v_mov_b32 v12, {CNT + 40}")
    wait_word(a, 12, 4, sleep=0)
    w_relayout(a, WR=176, WI=192, flagbase=F_H)
    arrive(a, 0, [72], 5, 4)
    arrive(a, 3, [69], 0, 4)

def lds_inc(a, cnt, t=(12, 13)):
    a(f"v_mov_b32 v{t[0]}, {CNT + 4*cnt}")
    a(f"v_mov_b32 v{t[1]}, 1")
    a("s_mov_b64 exec, 1")
    a(f"ds_add_u32 v{t[0]}, v{t[1]}")
    a("s_mov_b64 exec, -1")
def touch_w1(a, t=(12, 13)):
    if TBIT == 9:
        a(f"v_lshrrev_b32 v{t[0]}, 3, v2")
        a(f"v_and_b32 v{t[1]}, 7, v2")
        a(f"v_mul_u32_u24 v{t[0]}, 3584, v{t[0]}")
        a(f"v_lshl_add_u32 v{t[0]}, v{t[1]}, 7, v{t[0]}")
        a(f"s_lshl_b32 s70, s{sIDX}, 2")
        a(f"s_add_u32 s70, s70, s{sWAVE}")
        a("s_lshl_b32 s70, s70, 1")
        a(f"s_and_b32 s71, s{sXCD}, 1")
        a("s_add_u32 s70, s70, s71")
        a(f"s_mul_i32 s70, s70, {8*3584}")
        a(f"s_lshr_b32 s71, s{sXCD}, 1")
        a("s_lshl_b32 s72, s71, 10")
        a("s_cmp_eq_u32 s71, 3")
        a(f"s_cselect_b32 s72, {22*128}, s72")
        a("s_add_u32 s70, s70, s72")
        a(f"s_cmp_lt_u32 s{sXCD}, 4")
        a(f"s_cselect_b32 s71, 7, 5")
        a(f"v_cmp_ge_u32 s[100:101], s71, v{t[1]}")
        return
    if MAP1 == 18:
        a(f"v_lshrrev_b32 v{t[0]}, 2, v2")
        a(f"v_and_b32 v{t[1]}, 3, v2")
        a(f"v_mul_u32_u24 v{t[0]}, 3584, v{t[0]}")
        a(f"v_lshl_add_u32 v{t[0]}, v{t[1]}, 7, v{t[0]}")
        a(f"s_lshl_b32 s70, s{sIDX}, 2")
        a(f"s_add_u32 s70, s70, s{sWAVE}")
        a(f"s_mul_i32 s70, s70, {16*3584}")
        a(f"s_lshr_b32 s71, s{sXCD}, 1")
        a("s_mul_i32 s71, s71, 896")
        a("s_add_u32 s70, s70, s71")
        a(f"s_and_b32 s71, s{sXCD}, 1")
        a("s_mul_i32 s71, s71, 384")
        a("s_add_u32 s70, s70, s71")
        return
    a(f"v_mul_u32_u24 v{t[0]}, 37, v2")
    a(f"v_lshrrev_b32 v{t[0]}, 8, v{t[0]}")
    a(f"v_mul_u32_u24 v{t[1]}, 7, v{t[0]}")
    a(f"v_sub_u32 v{t[1]}, v2, v{t[1]}")
    a(f"v_mul_u32_u24 v{t[0]}, 3584, v{t[0]}")
    a(f"v_lshl_add_u32 v{t[0]}, v{t[1]}, 7, v{t[0]}")
    a(f"s_lshl_b32 s70, s{sIDX}, 2")
    a(f"s_add_u32 s70, s70, s{sWAVE}")
    a(f"s_mul_i32 s70, s70, {16*3584}")
    a(f"s_lshr_b32 s71, s{sXCD}, 1")
    a("s_mul_i32 s71, s71, 896")
    a("s_add_u32 s70, s70, s71")
    a(f"s_and_b32 s71, s{sXCD}, 1")
    a(f"s_mul_i32 s71, s71, {8*3584}")
    a("s_add_u32 s70, s70, s71")
    a(f"s_xor_b32 s71, s71, {8*3584}")
    a("s_add_u32 s71, s71, s70")
    a(f"s_and_b32 s72, s{sXCD}, 1")
    a(f"s_mul_i32 s72, s72, {8*3584}")
    a("s_sub_u32 s71, s71, s72")
def touch_w1_issue(a, t=(150, 151), gemm=True):
    if EDMA and gemm:
        for sg in range(EDMA): _g1e[0].emit_w(sg)
        return
    if TBIT == 9:
        a("s_mov_b64 exec, s[100:101]")
        a(f"buffer_load_dword v250, v{t[0]}, {S4(SW1)}, s70 offen")
        a("s_mov_b64 exec, -1")
        return
    if MAP1 == 24: a("s_mov_b32 exec_hi, 0x00ffffff")
    a(f"buffer_load_dword v250, v{t[0]}, {S4(SW1)}, s70 offen")
    if not HALF_T: a(f"buffer_load_dword v251, v{t[0]}, {S4(SW1)}, s71 offen")
    a("s_mov_b32 exec_hi, -1")
def touch_w2(a, t=12, dst=(250, 251)):
    if MAP2 == 18:
        a(f"v_lshrrev_b32 v{t}, 2, v2")
        a(f"v_lshlrev_b32 v{t}, 12, v{t}")
        a(f"v_and_b32 v{t+1}, 3, v2")
        a(f"v_lshl_add_u32 v{t}, v{t+1}, 7, v{t}")
        a(f"s_lshl_b32 s70, s{sIDX}, 2")
        a(f"s_and_b32 s71, s{sWAVE}, 3")
        a("s_add_u32 s70, s70, s71")
        a(f"s_mul_i32 s70, s70, {14*4096}")
        a(f"s_lshl_b32 s71, s{sXCD}, 9")
        a("s_add_u32 s70, s70, s71")
        a("s_mov_b32 exec_hi, 0x00ffffff")
        a(f"buffer_load_dword v{dst[0]}, v{t}, {S4(SW2)}, s70 offen")
        a("s_mov_b32 exec_hi, -1")
        return
    a(f"v_lshrrev_b32 v{t}, 3, v2")
    a(f"v_lshlrev_b32 v{t}, 12, v{t}")
    a(f"v_and_b32 v{t+1}, 7, v2")
    a(f"v_lshl_add_u32 v{t}, v{t+1}, 7, v{t}")
    a(f"s_lshl_b32 s70, s{sIDX}, 2")
    a(f"s_and_b32 s71, s{sWAVE}, 3")
    a("s_add_u32 s70, s70, s71")
    a(f"s_mul_i32 s70, s70, {14*4096}")
    a(f"s_lshr_b32 s71, s{sXCD}, 1")
    a("s_lshl_b32 s71, s71, 10")
    a("s_add_u32 s70, s70, s71")
    a(f"s_add_u32 s71, s70, {8*4096}")
    a(f"buffer_load_dword v{dst[0]}, v{t}, {S4(SW2)}, s70 offen")
    a("s_mov_b32 exec_hi, 0x0000ffff")
    a(f"buffer_load_dword v{dst[1]}, v{t}, {S4(SW2)}, s71 offen")
    a("s_mov_b32 exec_hi, -1")
def touch_w2_8(a):
    if W2T == 'fft':
        a("v_lshrrev_b32 v15, 2, v2")
        a("v_lshlrev_b32 v15, 12, v15")
        a("v_and_b32 v7, 3, v2")
        a("v_lshl_add_u32 v15, v7, 7, v15")
        a("s_and_b32 s70, s63, 31")
        a(f"s_mul_i32 s70, s70, {14*4096}")
        a(f"s_lshl_b32 s71, s{sXCD}, 9")
        a("s_add_u32 s70, s70, s71")
        a("s_mov_b32 exec_hi, 0x00ffffff")
        for i in range(4):
            a.raw(f"    buffer_load_dword v1, v15, {S4(SW2)}, s70 offen")
            if i < 3: a(f"s_add_u32 s70, s70, {448*4096}")
        a("s_mov_b32 exec_hi, -1")
        return
    if MAP2 == 18:
        a("v_lshrrev_b32 v15, 2, v2")
        a("v_lshlrev_b32 v15, 12, v15")
        a("v_and_b32 v7, 3, v2")
        a("v_lshl_add_u32 v15, v7, 7, v15")
        a(f"s_lshl_b32 s70, s{sIDX}, 3")
        a(f"s_add_u32 s70, s70, s{sWAVE}")
        a(f"s_mul_i32 s70, s70, {7*4096}")
        a(f"s_lshl_b32 s71, s{sXCD}, 9")
        a("s_add_u32 s70, s70, s71")
        a("s_mov_b64 exec, 0x0fffffff")
        a(f"buffer_load_dword v1, v15, {S4(SW2)}, s70 offen")
        a("s_mov_b64 exec, -1")
        return
    a("v_lshrrev_b32 v15, 3, v2")
    a("v_lshlrev_b32 v15, 12, v15")
    a("v_and_b32 v7, 7, v2")
    a("v_lshl_add_u32 v15, v7, 7, v15")
    a(f"s_lshl_b32 s70, s{sIDX}, 3")
    a(f"s_add_u32 s70, s70, s{sWAVE}")
    a(f"s_mul_i32 s70, s70, {7*4096}")
    a(f"s_lshr_b32 s71, s{sXCD}, 1")
    a("s_lshl_b32 s71, s71, 10")
    a("s_add_u32 s70, s70, s71")
    a("s_mov_b32 exec_hi, 0x00ffffff")
    a(f"buffer_load_dword v1, v15, {S4(SW2)}, s70 offen")
    a("s_mov_b32 exec_hi, -1")
def tag_ready(a):
    a("s_waitcnt lgkmcnt(0)")
    a(f"s_add_u32 s{sTAG}, s{sTAG}, 0x9e3779b9")

def gate(a):
    L = uid("nogate")
    a(f"s_bitcmp1_b32 s{TREG}, {TB_}")
    a.fence()
    a(f"s_cbranch_scc1 {L}")
    snap = a.snapshot()
    F = lambda r, e: LF + 8 * r + e
    P = lambda r, e: LP + 8 * r + e
    G, S_ = 16, 100
    R = range(4)
    for q in range(4): unpack(a, G + 2*q, G + 2*q + 1, LGW + q)
    for e in range(8):
        for r in R: a(f"v_mul_f32 v{P(r,e)}, v{F(r,e)}, v{G+e}")
    for p in range(2):
        for e in range(8):
            t = 24 + (e & 3)
            a(f"v_cvt_pk_bf16_f32 v{t}, v{P(2*p,e)}, v{P(2*p+1,e)}")
            unpack(a, P(2*p, e), P(2*p+1, e), t)
    for r in R: a(f"v_add_f32 v{S_+r}, v{P(r,0)}, v{P(r,1)}")
    for e in range(2, 8):
        for r in R: a(f"v_add_f32 v{S_+r}, v{S_+r}, v{P(r,e)}")
    dpp_reduce(a, [S_ + r for r in R])
    def rnd4(X):
        for p in range(2): a(f"v_cvt_pk_bf16_f32 v{104+p}, v{X+2*p}, v{X+2*p+1}")
        for p in range(2): unpack(a, X + 2*p, X + 2*p + 1, 104 + p)
    rnd4(S_)
    for r in R: a(f"v_mul_f32 v{S_+r}, 0xbfb8aa3b, v{S_+r}")
    for r in R: a(f"v_exp_f32 v{S_+r}, v{S_+r}")
    for r in R: a(f"v_add_f32 v{S_+r}, 1.0, v{S_+r}")
    for r in R: a(f"v_rcp_f32 v{S_+r}, v{S_+r}")
    rnd4(S_)
    a(f"s_lshl_b32 s73, s{sC2}, 6")
    a(f"s_add_u32 s73, s73, s{sN2}")
    a("s_lshl_b32 s73, s73, 6")
    a(f"s_and_b32 s79, s{sWAVE}, 3")
    a("s_lshl_b32 s79, s79, 4")
    a("s_add_u32 s78, s73, s79")
    a(f"s_add_u32 s78, s78, {WS_G}")
    a(f"s_add_u32 s73, s73, {F_G}")
    a("v_mov_b32 v104, 0")
    a("s_mov_b32 exec_lo, 0")
    a("s_mov_b32 exec_hi, 0x80000000")
    a(f"buffer_store_dwordx4 {vr(S_,4)}, v104, {S4(SWS)}, s78 offen {ST}")
    a("s_mov_b64 exec, -1")
    arrive(a, 2, [73], 0, 4, lowprio=True)
    a.fence()
    a.label(L)
    a.restore(snap)

def arrive(a, cnt, flags, nvm, nw, t=(12, 13), st=78, lowprio=False):
    L = uid("arr")
    a(f"s_waitcnt vmcnt({nvm})")
    stamp(a, f'arr{cnt}')
    a(f"v_mov_b32 v{t[0]}, {CNT + 4*cnt}")
    a(f"v_mov_b32 v{t[1]}, 1")
    a("s_mov_b64 exec, 1")
    a(f"ds_add_rtn_u32 v{t[1]}, v{t[0]}, v{t[1]}")
    a("s_mov_b64 exec, -1")
    a("s_waitcnt lgkmcnt(0)")
    a(f"v_readfirstlane_b32 s{st}, v{t[1]}")
    a(f"s_cmp_lg_u32 s{st}, {nw-1}")
    a(f"s_cbranch_scc1 {L}")
    snap = a.snapshot()
    if lowprio: a("s_setprio 3")
    a(f"v_mov_b32 v{t[1]}, s{sTAG}")
    a(f"v_lshlrev_b32 v{t[0]}, 17, v2")
    a(f"v_add_u32 v{t[0]}, {WS_FLG}, v{t[0]}")
    a(f"s_mov_b64 exec, {(1 << NREP) - 1}")
    for f in flags: a(f"buffer_store_dword v{t[1]}, v{t[0]}, {S4(SWS)}, s{f} offen {PM}")
    a("s_mov_b64 exec, -1")
    if lowprio: a("s_setprio 0")
    a.fence()
    a.label(L)
    a.restore(snap)
def wait_word(a, vaddr, val, tv=13, st=78, sleep=2):
    L, Ld = uid("wc"), uid("wcd")
    a("s_mov_b32 s79, 200000")
    a.wait_all(vm=False); a.fence()
    a.label(L)
    a.auto_wait = False
    a(f"ds_read_b32 v{tv}, v{vaddr}")
    a("s_waitcnt lgkmcnt(0)")
    a(f"v_readfirstlane_b32 s{st}, v{tv}")
    a(f"s_cmp_ge_u32 s{st}, {val}")
    a(f"s_cbranch_scc1 {Ld}")
    a("s_sub_u32 s79, s79, 1")
    a(f"s_cbranch_scc1 {Ld}")
    if sleep: a(f"s_sleep {sleep}")
    a(f"s_branch {L}")
    a.label(Ld)
    a.auto_wait = True

def phase1_fft(a, ti):
    M = "v_mfma_f32_16x16x32_bf16"
    a(f"s_and_b32 s65, s{sWAVE}, 3")
    a("s_lshl_b32 s66, s65, 10")
    for j in range(3):
        a(f"s_add_u32 s67, s66, {4096*j}")
        if j == 2: a("s_min_u32 s67, s67, 9216")
        a(f"s_add_u32 m0, s67, {P1_TB}")
        a(f"s_add_u32 s67, s67, TABLES-{NAME}")
        d2 = a(f"buffer_load_dwordx4 v3, {S4(STB)}, s67 offen lds")
    a("v_and_b32 v9, 15, v2")
    stamp(a, 'ea0')
    a("s_barrier")
    a("v_lshrrev_b32 v4, 4, v2")
    a("v_lshlrev_b32 v5, 9, v4")
    a("v_lshlrev_b32 v4, 8, v4")
    a("v_lshl_add_u32 v4, v9, 3, v4")
    a("v_add_u32 v4, s64, v4")
    a("v_lshl_add_u32 v5, v9, 2, v5")
    a("v_add_u32 v5, s64, v5")
    a(f"v_add_u32 v14, {P1_TB}, v3")
    a("v_bfe_u32 v7, v0, 2, 6")
    a("v_and_b32 v6, 3, v2")
    a("v_and_b32 v15, 1, v2")
    a("v_cmp_eq_u32 vcc, 1, v15")
    a("v_bfe_u32 v10, v2, 1, 1")
    a("v_lshlrev_b32 v10, 13, v10")
    a(f"v_add_u32 v10, {P1_EX}, v10")
    for z in range(4):
        a(f"v_add_u32 v11, {64*z}, v7")
        a(f"v_sub_u32 v12, {512 - 64*z}, v7")
        if z == 0:
            a("v_mov_b32 v13, 256")
            a("v_cmp_eq_u32 s[76:77], 0, v7")
            a("v_cndmask_b32 v12, v12, v13, s[76:77]")
        a("v_cndmask_b32 v11, v11, v12, vcc")
        a(f"v_lshl_add_u32 v{136+z}, v11, 2, v10")
    a("v_lshlrev_b32 v8, 13, v7")
    a("v_lshl_add_u32 v8, v6, 4, v8")
    a(f"s_lshl_b32 s72, s{sC2}, 6")
    a(f"s_add_u32 s72, s72, s{sN2}")
    a("s_lshl_b32 s72, s72, 6")
    a(f"s_add_u32 s70, s72, {WS_Z}")
    a(f"s_add_u32 s72, s72, {F_Z}")
    a.wait_tok(d2)
    stamp(a, 'xin')
    hbar(a, 9, 4)
    AF_ = lambda p, r: 56 + 8 * p + 4 * r
    for p in range(2):
        for r in range(2):
            for u in range(2):
                a(f"ds_read_b64_tr_b16 {vr(AF_(p, r) + 2*u, 2)}, v4 offset:{2048*p + 1024*r + 128*u}")
        if p == 0:
            T = {}
            for n in ['COS0', 'NSIN0', 'SIN0', 'COS1', 'NSIN1', 'SIN1']:
                idx = ti[n]; r_ = 16 + 4 * idx; T[n] = r_
                a(f"ds_read_b128 {vr(r_,4)}, v14 offset:{idx*1024}")
    for n in ['TW0', 'TW1', 'ARE', 'AIM']:
        idx = ti[n]; r_ = 16 + 4 * idx; T[n] = r_
        a(f"ds_read_b128 {vr(r_,4)}, v14 offset:{idx*1024}")
    TR = lambda p, jh, x: 72 + 16 * p + 8 * jh + (0 if x == 're' else 4)
    for p in range(2):
        for jh in range(2):
            a(f"{M} {vr(TR(p,jh,'re'),4)}, {vr(AF_(p,0),4)}, {vr(T[f'COS{jh}'],4)}, 0")
            a(f"{M} {vr(TR(p,jh,'im'),4)}, {vr(AF_(p,0),4)}, {vr(T[f'NSIN{jh}'],4)}, 0")
            a(f"{M} {vr(TR(p,jh,'re'),4)}, {vr(AF_(p,1),4)}, {vr(T[f'SIN{jh}'],4)}, {vr(TR(p,jh,'re'),4)}")
            a(f"{M} {vr(TR(p,jh,'im'),4)}, {vr(AF_(p,1),4)}, {vr(T[f'COS{jh}'],4)}, {vr(TR(p,jh,'im'),4)}")
    for p in range(2):
        for jh in range(2):
            o = 120 + 8 * jh
            for i in range(4):
                tw = T[f'TW{jh}'] + i; re = TR(p, jh, 're') + i; im = TR(p, jh, 'im') + i
                a(f"v_fma_mix_f32 v{o+i}, v{re}, v{tw}, 0 {MIXC}")
                a(f"v_fma_mix_f32 v{o+4+i}, v{im}, v{tw}, 0 {MIXC}")
                a(f"v_fma_mix_f32 v{o+i}, v{im}, v{tw}, v{o+i} {MIXS}")
                a(f"v_fma_mix_f32 v{o+4+i}, -v{re}, v{tw}, v{o+4+i} {MIXS}")
            B = 104 + 8 * p + 4 * jh
            for q in range(4): a(f"v_cvt_pk_bf16_f32 v{B+q}, v{o+2*q}, v{o+2*q+1}")
            a(f"{M} {vr(TR(p,jh,'re'),4)}, {vr(T['ARE'],4)}, {vr(B,4)}, 0")
            a(f"{M} {vr(TR(p,jh,'im'),4)}, {vr(T['AIM'],4)}, {vr(B,4)}, 0")
    for p in range(2):
        for jh in range(2):
            for i in range(4):
                r = 56 + 8 * p + 4 * jh + i
                a(f"v_cvt_pk_bf16_f32 v{r}, v{TR(p,jh,'re')+i}, v{TR(p,jh,'im')+i}")
                a(f"ds_write_b32 v5, v{r} offset:{2048*p + (16*jh + 32*i) * 4}")
    stamp(a, 'p1c')
    hbar(a, 8, 4)
    for z in range(4):
        for hh in range(2):
            a(f"ds_read2st64_b32 {vr(96 + 4*z + 2*hh, 2)}, v{136+z} offset0:{16*hh} offset1:{16*hh+8}")
    for z in range(4):
        a(f"buffer_store_dwordx4 {vr(96 + 4*z, 4)}, v8, {S4(SWS)}, s70 offen {ST}")
        if z < 3: a(f"s_add_u32 s70, s70, {64*8192}")
    stamp(a, 'p1st')
    lds_inc(a, 11)
    tag_ready(a)
    arrive(a, 0, [72], 0, 4)

def g_prologue(a):
    L1, L2 = uid("gw"), uid("gw")
    a(f"s_bitcmp{0 if WJOB_FR else 1}_b32 s{TREG}, {TB_}")
    a.fence()
    a(f"s_cbranch_scc1 {L1}")
    a("s_lshr_b32 s66, s62, 10")
    a("s_mul_i32 s67, s66, 514")
    a("s_and_b32 s67, s67, 0xfffffff0")
    a(f"s_mul_i32 s69, s{sWAVE}, 2112")
    a("s_mov_b32 exec_hi, 1")
    for r in range(4):
        for (srd_, base) in ((SWR, P1_WR), (SWI, P1_WI)):
            a(f"s_add_u32 m0, s69, {base + 528*r}")
            a(f"buffer_load_dwordx4 v3, {S4(srd_)}, s67 offen lds")
        if r < 3: a(f"s_add_u32 s67, s67, {64*514}")
    a("s_mov_b32 exec_hi, -1")
    if WJOBH:
        touch_w1_issue(a)
        a("s_waitcnt vmcnt(1)")
        lds_inc(a, 10)
        tag_ready(a)
        a("s_waitcnt vmcnt(0)")
        a.fence()
        a(f"s_branch {L2}")
    a("v_and_b32 v9, 15, v2")
    w_special_pre(a)
    a("v_bfe_u32 v7, v0, 2, 6")
    a("v_and_b32 v6, 3, v2")
    a("v_lshlrev_b32 v8, 13, v7")
    a("v_lshl_add_u32 v8, v6, 4, v8")
    a(f"s_lshl_b32 s72, s{sC2}, 6")
    a(f"s_add_u32 s72, s72, s{sN2}")
    a("s_lshl_b32 s72, s72, 6")
    a(f"s_add_u32 s72, s72, {F_Z}")
    a("s_mov_b64 s[64:65], s[70:71]")
    a("s_waitcnt vmcnt(0)")
    hbar(a, 10, 4)
    w_relayout(a)
    tag_ready(a)
    if TOUCH_FR == 0:
        a("s_mov_b64 s[70:71], s[64:65]")
        touch_w1_issue(a)
    hbar(a, 10, 8)
    a.fence()
    a(f"s_branch {L2}")
    a.label(L1)
    a.reset_state()
    touch_w1_issue(a)
    if TOUCH_FR:
        a(f"s_sub_u32 s70, s70, {64*3584*(1 << TBIT)}")
        touch_w1_issue(a)
    if CODEPF:
        a(f"s_cmp_lg_u32 s{sIDX}, 1")
        a("s_cbranch_scc1 L_nocpf")
        a("v_lshlrev_b32 v152, 7, v2")
        a(f"s_lshl_b32 s73, s{sWAVE}, 13")
        for j in range(2):
            a(f"buffer_load_dword v153, v152, {S4(STB)}, s73 offen")
            if j < 1: a("s_add_u32 s73, s73, 32768")
        a.fence()
        a.label("L_nocpf")
        a.reset_state()
    tag_ready(a)
    if not NOTW: a("s_waitcnt vmcnt(0)")
    a.fence()
    a.label(L2)
    a.reset_state()
    stamp(a, 'ea1')
    if W2T == 'early': touch_w2(a, dst=(1, 1))
    if not NOWAIT:
        a(f"v_mov_b32 v12, {CNT + 44}")
        wait_word(a, 12, 4)

def w_arrive(a, nvm):
    L = uid("nowa")
    a(f"s_bitcmp{0 if WJOB_FR else 1}_b32 s{TREG}, {TB_}")
    a.fence()
    a(f"s_cbranch_scc1 {L}")
    snap = a.snapshot()
    arrive(a, 3, [69], nvm, 4)
    a.fence()
    a.label(L)
    a.restore(snap)
def w_special_pre(a):
    SP = SPB
    a(f"s_lshl_b32 s66, s{sC2}, 10")
    a(f"s_add_u32 s66, s66, s{sN2}")
    a("v_lshlrev_b32 v10, 6, v9")
    a("v_add_u32 v10, s66, v10")
    a("v_sub_u32 v11, 2048, v10")
    a("v_and_b32 v11, 2047, v11")
    a(f"v_bfe_u32 v{SPB+4}, v2, 4, 1")
    a(f"v_lshlrev_b32 v{SPB+5}, 9, v{SPB+4}")
    a("s_movk_i32 s68, 514")
    a(f"v_mad_u32_u24 v11, v11, s68, v{SPB+5}")
    for i in range(4): a(f"v_mov_b32 v{SP+i}, 0")
    a(f"s_cmp_eq_u32 s{sWAVE}, {4 if WJOBH else 0}")
    a("s_cselect_b32 s68, 0, 0x7fffffff")
    a("s_mov_b32 exec_hi, 0")
    a(f"buffer_load_short_d16_hi v{SP+2}, v11, {S4(SWR)}, s68 offen")
    a(f"buffer_load_short_d16_hi v{SP+3}, v11, {S4(SWI)}, s68 offen")
    a("s_mov_b32 exec_hi, -1")
def w_relayout(a, WR=16, WI=32, flagbase=None):
    SP = SPB
    if flagbase is None: flagbase = F_Z
    a(f"s_lshl_b32 s67, s{sN2}, 1")
    a("s_and_b32 s67, s67, 15")
    a("v_mul_u32_u24 v14, 2112, v6")
    a("v_lshl_add_u32 v14, v7, 1, v14")
    a("v_add_u32 v14, s67, v14")
    a("v_mul_u32_u24 v10, 528, v9")
    a(f"v_add_u32 v10, v10, v{SPB+5}")
    a("v_add_u32 v10, s67, v10")
    for i in range(16): a(f"v_mov_b32 v{WI+i}, 0")
    for z in range(4):
        for e in range(4):
            a(f"ds_read_u16 v{WR+4*z+e}, v14 offset:{P1_WR + e*528 + 128*z}")
            a(f"ds_read_u16_d16_hi v{WI+4*z+e}, v14 offset:{P1_WI + e*528 + 128*z}")
    a(f"ds_read_u16_d16_hi v{SP}, v10 offset:{P1_WR}")
    a(f"ds_read_u16_d16_hi v{SP+1}, v10 offset:{P1_WI}")
    a(f"s_sub_u32 s69, s72, {flagbase}")
    a(f"s_add_u32 s70, s69, {WS_WT}")
    a(f"s_add_u32 s69, s69, {F_W}")
    for i in range(16): a(f"v_or_b32 v{WR+i}, v{WR+i}, v{WI+i}")
    if WJOBH:
        a.wait_all(vm=False)
        lds_inc(a, 9, t=(13, 15))
    for z in (1, 2, 3):
        a(f"s_add_u32 s71, s70, {z*64*8192}")
        a(f"buffer_store_dwordx4 {vr(WR+4*z,4)}, v8, {S4(SWS)}, s71 offen {ST}")
    a("v_cmp_ne_u32 vcc, 0, v7")
    a("s_and_saveexec_b64 s[76:77], vcc")
    a(f"buffer_store_dwordx4 {vr(WR,4)}, v8, {S4(SWS)}, s70 offen {ST}")
    a("s_mov_b64 exec, s[76:77]")
    a(f"v_add_f32 v{SP}, v{SP}, v{SP+2}")
    a(f"v_sub_f32 v{SP+1}, v{SP+1}, v{SP+3}")
    a(f"ds_swizzle_b32 v{SP+2}, v{SP} offset:0x401F")
    a(f"ds_swizzle_b32 v{SP+3}, v{SP+1} offset:0x401F")
    a(f"v_lshlrev_b32 v15, 31, v{SPB+4}")
    a(f"v_xor_b32 v{SP}, v15, v{SP}")
    a(f"v_xor_b32 v{SP+1}, v15, v{SP+1}")
    a(f"v_add_f32 v{SP}, v{SP}, v{SP+2}")
    a(f"v_add_f32 v{SP+1}, v{SP+1}, v{SP+3}")
    a(f"v_mul_f32 v{SP}, 0x3e800000, v{SP}")
    a(f"v_mul_f32 v{SP+1}, 0x3e800000, v{SP+1}")
    a(f"v_cvt_pk_bf16_f32 v{SP+2}, v{SP}, v{SP+1}")
    a(f"v_lshlrev_b32 v14, 21, v{SPB+4}")
    a("v_lshl_add_u32 v14, v9, 2, v14")
    a("s_add_u32 s68, s68, s70")
    a("s_mov_b32 exec_hi, 0")
    a(f"buffer_store_dword v{SP+2}, v14, {S4(SWS)}, s68 offen {ST}")
    a("s_mov_b32 exec_hi, -1")

def wait_vm_untracked(a, toks):
    a.wait_tok(*toks)

def part_write(a, base_v0, base_v1, off0):
    pass

def flag_g(a):
    a(f"s_lshl_b32 s73, s{sC2}, 6")
    a(f"s_add_u32 s73, s73, s{sN2}")
    a("s_lshl_b32 s73, s73, 6")
    a(f"s_and_b32 s78, s{sIDX}, 1")
    a("s_lshl_b32 s78, s78, 13")
    a("s_add_u32 s73, s73, s78")
    a(f"s_add_u32 s73, s73, {F_G}")

def gen(a):
    tb1, ti1 = table_dwords(1); tb2, ti2 = table_dwords(2)
    TB2OFF = len(tb1) * 4
    a.raw(f".globl {NAME}\n.p2align 8\n.type {NAME},@function\n{NAME}:")
    a("s_cmp_ge_u32 s2, 256")
    a("s_cbranch_scc1 L_end")
    if STAMPS:
        for i in range(11): a(f"s_mov_b64 s[{80+2*i}:{81+2*i}], 0")
        stamp(a, 'start')
    a("s_load_dwordx16 s[64:79], s[0:1], 0")
    a("s_load_dwordx4 s[4:7], s[0:1], 64")
    a("s_load_dwordx2 s[60:61], s[0:1], 88")
    a(f"s_getpc_b64 s[{STB}:{STB+1}]")
    a.raw("Lpc0:")
    a(f"s_sub_u32 s{STB}, s{STB}, Lpc0-{NAME}")
    a(f"s_subb_u32 s{STB+1}, s{STB+1}, 0")
    a(f"s_and_b32 s{STB+1}, s{STB+1}, 0xffff")
    a(f"s_mov_b32 s{STB+2}, TABLES-{NAME}+{(len(tb1) + len(tb2)) * 4}")
    a(f"s_mov_b32 s{STB+3}, 0x00020000")
    a("v_lshrrev_b32 v1, 6, v0")
    a("v_and_b32 v2, 63, v0")
    a(f"v_readfirstlane_b32 s{sWAVE}, v1")
    a("v_lshlrev_b32 v3, 4, v2")
    for r in range(4, 16): a(f"v_mov_b32 v{r}, 0")
    if XSW: a(f"s_xor_b32 s2, s2, {XSW}")
    a(f"s_and_b32 s{sXCD}, s2, 7")
    a(f"s_lshr_b32 s{sIDX}, s2, 3")
    a(f"s_lshl_b32 s{sN2}, s{sXCD}, 3")
    if TBIT == 0:
        a("s_bfe_u32 s3, s2, 0x30004")
        a(f"s_lshr_b32 s{sC2}, s2, 7")
    elif TBIT == 9:
        a(f"s_and_b32 s{sN2}, s{sXCD}, 3")
        a(f"s_lshl_b32 s{sN2}, s{sN2}, 4")
        a(f"s_and_b32 s3, s{sIDX}, 15")
        a(f"s_lshr_b32 s{sC2}, s{sIDX}, 4")
    else:
        a("s_bfe_u32 s3, s2, 0x30003")
        a(f"s_bfe_u32 s{sC2}, s2, 0x10006")
    a(f"s_add_u32 s{sN2}, s{sN2}, s3")
    if TBIT == 9:
        a(f"s_max_u32 s3, s{sIDX}, 8")
        a("s_sub_u32 s3, s3, 8")
        a(f"s_cmp_lt_u32 s{sXCD}, 4")
        a(f"s_cselect_b32 s3, s{sIDX}, s3")
        a(f"s_and_b32 s{sDT1}, s3, 3")
        a(f"s_lshr_b32 s{sFT1}, s3, 2")
        a(f"s_mul_i32 s58, s{sDT1}, {4 * ROT}")
        a(f"s_and_b32 s3, s{sXCD}, 1")
        a("s_lshl_b32 s3, s3, 2")
        a(f"s_add_u32 s{sDT1}, s{sDT1}, s3")
        a(f"s_lshr_b32 s3, s{sXCD}, 1")
        a("s_lshl_b32 s59, s3, 3")
        a("s_cmp_eq_u32 s3, 3")
        a("s_cselect_b32 s59, 22, s59")
        a(f"s_add_u32 s{sFT1}, s{sFT1}, s59")
    else:
        a(f"s_sub_u32 s3, s{sIDX}, 4")
        if TBIT == 0:
            a(f"s_lshr_b32 s59, s{sIDX}, 1")
            a(f"s_cmp_lt_u32 s{sIDX}, 8")
            a("s_cselect_b32 s3, s59, s3")
        else:
            a(f"s_cmp_lt_u32 s{sIDX}, 16")
            a(f"s_cselect_b32 s3, s{sIDX}, s3")
        if MAP1 == 24:
            a(f"s_mul_i32 s{sDT1}, s3, 37")
            a(f"s_lshr_b32 s{sDT1}, s{sDT1}, 8")
            a(f"s_mul_i32 s{sFT1}, s{sDT1}, 7")
            a(f"s_sub_u32 s{sFT1}, s3, s{sFT1}")
            a(f"s_lshl_b32 s58, s{sDT1}, 1")
            a(f"s_mul_i32 s59, s{sFT1}, {ROT2}")
            a("s_add_u32 s58, s58, s59")
            a(f"s_mul_i32 s58, s58, {2 * ROT}")
            a(f"s_and_b32 s3, s{sXCD}, 1")
            a("s_lshl_b32 s3, s3, 2")
            a(f"s_add_u32 s{sDT1}, s{sDT1}, s3")
        else:
            a(f"s_and_b32 s59, s{sXCD}, 1")
            a("s_lshl_b32 s59, s59, 2")
            a("s_lshr_b32 s58, s3, 3")
            a(f"s_add_u32 s{sFT1}, s58, s59")
            a(f"s_and_b32 s{sDT1}, s3, 7")
            a(f"s_add_u32 s59, s59, s{sDT1}")
            a("s_cmp_ge_u32 s3, 24")
            a(f"s_cselect_b32 s{sFT1}, 3, s{sFT1}")
            a(f"s_cselect_b32 s{sDT1}, s59, s{sDT1}")
            a("s_lshl_b32 s58, s58, 1")
            a(f"s_add_u32 s58, s58, s{sDT1}")
            a(f"s_mul_i32 s58, s58, {2 * ROT}")
        a(f"s_lshr_b32 s3, s{sXCD}, 1")
        a("s_mul_i32 s3, s3, 7")
        a(f"s_add_u32 s{sFT1}, s{sFT1}, s3")
    if MAP2 == 24:
        a(f"s_and_b32 s3, s{sXCD}, 1")
        a("s_lshl_b32 s3, s3, 2")
        a(f"s_lshr_b32 s{sDT2}, s{sIDX}, 3")
        a(f"s_add_u32 s{sDT2}, s{sDT2}, s3")
        a(f"s_lshr_b32 s3, s{sXCD}, 1")
        a(f"s_lshl_b32 s{sST2}, s3, 3")
        a(f"s_and_b32 s3, s{sIDX}, 7")
        a(f"s_add_u32 s{sST2}, s{sST2}, s3")
    else:
        a(f"s_and_b32 s{sDT2}, s{sIDX}, 7")
        a(f"s_lshl_b32 s{sST2}, s{sXCD}, 2")
        a(f"s_lshr_b32 s3, s{sIDX}, 3")
        a(f"s_add_u32 s{sST2}, s{sST2}, s3")
    if TBIT == 0: a(f"s_and_b32 s3, s{sIDX}, 0x19")
    elif TBIT == 9:
        a("s_and_b32 s3, s2, 0xc4")
        a("s_lshr_b32 s3, s3, 2")
    else:
        a(f"s_lshr_b32 s3, s{sIDX}, 2")
        a("s_sub_u32 s3, s3, 3")
    a(f"s_lshl_b32 s62, s{sC2}, 10")
    a(f"s_add_u32 s62, s62, s{sN2}")
    a(f"s_and_b32 s59, s{sWAVE}, 3")
    a("s_lshl_b32 s63, s59, 8")
    a("s_add_u32 s62, s62, s63")
    a("s_lshl_b32 s62, s62, 10")
    a("s_lshl_b32 s59, s59, 12")
    a(f"s_add_u32 s59, s59, {P1_XR}")
    srd(a, SX, 64, S * D * 2)
    a(f"s_cmp_lt_u32 s{sWAVE}, 4")
    a("s_cbranch_scc1 L_xdone")
    a("s_setprio 3")
    a(f"s_bitcmp1_b32 s{TREG}, {TB_}")
    a("s_cbranch_scc1 L_xdma")
    for r in range(4):
        a(f"s_add_u32 s63, s62, {65536*r}")
        a(f"buffer_load_dwordx4 {vr(LX + 4*r, 4)}, v3, {S4(SX)}, s63 offen")
    a("s_branch L_xdone")
    snapx = a.snapshot()
    a.label("L_xdma")
    for r in range(4):
        a(f"s_add_u32 s63, s62, {65536*r}")
        a(f"s_add_u32 m0, s59, {1024*r}")
        a(f"buffer_load_dwordx4 v3, {S4(SX)}, s63 offen lds")
    a.label("L_xdone")
    a.restore(snapx)
    srd(a, SGW, 4, 1024)
    srd(a, SWR, 66, S * 514)
    srd(a, SWI, 68, S * 514)
    srd(a, SW1, 72, S * F * 2)
    srd(a, SW2, 76, S * F * 2)
    srd(a, SB2, 78, S * 2)
    srd(a, SOUT, 6, S * D * 2)
    srd(a, SWS, 60, WS_BYTES)
    a("s_mov_b64 s[4:5], s[74:75]")
    a(f"s_add_u32 s6, s60, {WS_FLG + F_EP}")
    a("s_addc_u32 s7, s61, 0")
    a(f"v_mov_b32 v100, {CNT}")
    for q in range(4): a(f"ds_write_b128 v100, v[4:7] offset:{16*q}")
    a(f"s_and_b32 s{sROT}, s58, 15")
    a("s_mov_b32 s64, s59")
    a(f"s_lshl_b32 s58, s{sFT1}, 7")
    a(f"s_lshl_b32 s63, s{sWAVE}, 4")
    a("s_add_u32 s63, s63, s58")
    a("s_add_u32 s4, s4, s63")
    a("s_addc_u32 s5, s5, 0")
    a.wait_all(vm=False)
    a(f"s_load_dword s{sTAG}, s[6:7], 0")
    a(f"s_and_b32 s5{8}, s2, {NREP - 1}")
    a("s_nop 0")
    a("s_lshl_b32 s6, s58, 17")
    a(f"s_cmp_lt_u32 s{sWAVE}, 4")
    a.fence()
    a("s_cbranch_scc1 L_gwave")
    a(f"s_bitcmp1_b32 s{TREG}, {TB_}")
    a("s_cbranch_scc1 L_p1fft")
    snap = a.snapshot()
    phase1_ln(a)
    a.fence()
    a("s_branch L_p1done")
    a.restore(snap)
    a.label("L_p1fft")
    phase1_fft(a, ti1)
    a.fence()
    a.label("L_p1done")
    a.reset_state()
    a("s_cmp_eq_u32 s3, 1")
    a("s_cbranch_scc1 L_fft")
    a("s_branch L_g1help")
    a.label("L_gwave")
    a.reset_state()
    touch_w1(a, t=(150, 151))
    if EDMA:
        wlane(a, 154, 155, 64 * 3584, 156, 157)
        a(f"s_lshl_b32 s{sRING}, s{sWAVE}, 15")
        a(f"s_mul_i32 s60, s{sWAVE}, {512*3584}")
        a(f"s_lshl_b32 s61, s{sFT1}, 7")
        a("s_add_u32 s60, s60, s61")
        if EDMA == 2:
            a(f"s_and_b32 s61, s{sXCD}, 1")
            a("s_lshl_b32 s61, s61, 1")
            a(f"s_add_u32 s{sROT}, s{sROT}, s61")
        _g1e.append(Gemm(a, 16, [(x + 4) % 8 for x in range(16)], ['pre'] * 16, SW1, 60, 3584, 4 * 3584, True, vw=(154, 155)))
    stamp(a, 'ea0')
    a("s_barrier")
    a("s_cmp_lg_u32 s3, 1")
    a("s_cbranch_scc1 L_g1")
    if WJOB_FR: g_prologue(a)
    elif FFT_T1: touch_w1_issue(a, gemm=False)
    a(f"v_mov_b32 v12, {CNT + TBWAIT}")
    wait_word(a, 12, 4)
    a(f"s_lshl_b32 s72, s{sWAVE}, 10")
    for j in range(15):
        if WJOB_FR and j == 4: arrive(a, 3, [69], 4, 4)
        if j == 14: a("s_min_u32 s72, s72, 1024")
        a(f"s_add_u32 m0, s72, {FB_TB + j*4096}")
        a(f"s_add_u32 s73, s72, TABLES-{NAME}+{TB2OFF + j*4096}")
        a(f"buffer_load_dwordx4 v3, {S4(STB)}, s73 offen lds")
    if CODEPF2:
        a("v_lshlrev_b32 v152, 7, v2")
        a(f"s_lshl_b32 s73, s{sWAVE}, 13")
        a(f"s_add_u32 s73, s73, L_fft2-{NAME}")
        a(f"buffer_load_dword v153, v152, {S4(STB)}, s73 offen")
    tag_ready(a)
    a.fence()
    a("s_branch L_fft2")
    a.label("L_g1")
    a.reset_state()
    g_prologue(a)
    a("s_load_dwordx4 s[64:67], s[4:5], 0")
    gemm_lane_consts(a, 64 * 3584)
    a(f"s_mul_i32 s62, s{sWAVE}, {512*3584}")
    a(f"s_lshl_b32 s63, s{sFT1}, 7")
    a("s_add_u32 s62, s62, s63")
    a(f"s_lshl_b32 s{sA0}, s{sDT1}, 18")
    a(f"s_lshl_b32 s63, s{sWAVE}, 16")
    a(f"s_add_u32 s{sA0}, s{sA0}, s63")
    if WS_HT: a(f"s_add_u32 s{sA0}, s{sA0}, {WS_HT}")
    slots1 = [(x + 4) % 8 for x in range(16)]
    NR = min(NREG, NR1)
    kinds1 = ['pre'] * 8 + ['reg'] * NR + ['dma'] * (8 - NR)
    g1 = Gemm(a, 16, slots1, kinds1, SW1, 62, 3584, 4 * 3584, True)
    for sg in range(EDMA, 8 + NR - NB1 - NB2):
        g1.emit_w(sg)
        if sg == EDMA + 1 and not WJOBH: w_arrive(a, 8)
        if sg == 3 and WJOBH:
            L = uid("wfree")
            a(f"s_bitcmp1_b32 s{TREG}, {TB_}")
            a.fence()
            a(f"s_cbranch_scc1 {L}")
            a(f"v_mov_b32 v12, {CNT + 36}")
            wait_word(a, 12, 4)
            a.label(L)
    if COOPH:
        a(f"s_lshr_b32 s72, s{sXCD}, 1")
        a("s_mul_i32 s72, s72, 7")
        a(f"s_sub_u32 s72, s{sFT1}, s72")
        a("v_lshrrev_b32 v18, 3, v2")
        a("v_mul_u32_u24 v18, 7, v18")
        a("v_add_u32 v18, s72, v18")
        a("v_cmp_gt_u32 s[68:69], 8, v18")
        a("v_and_b32 v19, 7, v2")
        a("v_lshlrev_b32 v19, 7, v19")
        a("v_lshl_add_u32 v18, v18, 10, v19")
    stamp(a, 'pre4')
    a(f"s_lshr_b32 s72, s{sWAVE}, 1")
    a("s_lshl_b32 s72, s72, 12")
    a(f"s_add_u32 s72, s72, {WS_FLG + F_H}")
    a.vm = a.vm[-8:]
    g1.tok = {}
    beh = (lambda: [g1.emit_w(sg) for sg in range(8 + NR - NB1 - NB2, 8 + NR - NB2)]) if NB1 else None
    if HPOLL2:
        a(f"s_bitcmp1_b32 s{sWAVE}, 0")
        a.fence()
        a("s_cbranch_scc1 L_g1odd")
        sn = a.snapshot()
        gpoll(a, [(72, 64)], vt=(12, 13, 16, 17), behind=beh)
        a(f"s_lshl_b32 s72, s{sWAVE}, 1")
        a(f"s_add_u32 s72, s72, {CNT + 48}")
        a("v_mov_b32 v12, s72")
        a("ds_write_b32 v12, v12")
        a.wait_all(vm=False); a.fence()
        a("s_branch L_g1go")
        en = a.snapshot()
        a.restore(sn)
        a.label("L_g1odd")
        if beh: beh()
        a(f"s_lshl_b32 s72, s{sWAVE}, 1")
        a(f"s_add_u32 s72, s72, {CNT + 46}")
        a("v_mov_b32 v12, s72")
        wait_word(a, 12, 1, sleep=1)
        a.fence()
        a.label("L_g1go")
        a.restore(en)
    else:
        gpoll(a, [(72, 64)], vt=(12, 13, 16, 17), behind=beh)
    stamp(a, 'b4')
    if COOPH:
        a(f"buffer_load_dword v1, v18, {S4(SWS)}, s{sA0} offen {LD}")
        a(f"s_add_u32 s72, s{sA0}, {56*1024}")
        a("s_mov_b64 exec, s[68:69]")
        a("s_cbranch_execz L_nocoopb")
        a.raw(f"    buffer_load_dword v1, v18, {S4(SWS)}, s72 offen {LD}")
        a.label("L_nocoopb")
        a("s_mov_b64 exec, -1")
    slots2 = [4, 5, 6, 7, 0, 1, 2, 3, 4, 5, 6, 7, 0, 1]
    kinds2 = ['pre'] * 8 + ['reg'] * NREG + ['dma'] * (6 - NREG)
    g2 = Gemm(a, 14, slots2, kinds2, SW2, 63, 8 * 4096, 32 * 4096, False, vw=(14, 15), rot=77)
    def w2_consts():
        wlane(a, 14, 15, 4096, 12, 13)
        a(f"s_and_b32 s76, s{sWAVE}, 3")
        a(f"s_lshl_b32 s{sRING}, s76, 15")
        a(f"s_mul_i32 s63, s76, {448*4096}")
        a(f"s_lshl_b32 s76, s{sST2}, 7")
        a("s_add_u32 s63, s63, s76")
        a(f"s_and_b32 s77, s{sDT2 if MAP2 == 24 else sST2}, 3")
        a("s_lshl_b32 s77, s77, 1")
        a(f"s_and_b32 s76, s{sST2 if MAP2 == 24 else sDT2}, 7")
        a(f"s_mul_i32 s76, s76, {ROT2}")
        a("s_add_u32 s77, s77, s76")
        a(f"s_mul_i32 s77, s77, {7 * ROT}")
        a("s_lshr_b32 s77, s77, 2")
        a("s_sub_u32 s76, s77, 14")
        a("s_min_u32 s77, s77, s76")
    w2_consts()
    a(f"s_lshl_b32 s76, s{sWAVE}, 2")
    a(f"s_add_u32 s76, s76, {CNT + 16}")
    a("v_mov_b32 v12, s76")
    def extra(sig):
        if SPREAD and sig < NB2: return [(lambda jj=jj: g1.emit_w(8 + NR - NB2 + sig, [jj])) for jj in range(4)]
        o = []
        if sig == W2SIG: o.append(lambda: a("ds_write_b32 v12, v12"))
        if EARLYW2 and sig >= 13:
            for sg in (8 + 2 * (sig - 13), 9 + 2 * (sig - 13)):
                if sg < 8 + NREG: o += [(lambda jj=jj, sg=sg: g2.emit_w(sg, [jj])) for jj in range(4)]
        return o
    g1.run(extra, post=(None if SPREAD else lambda: [g1.emit_w(sg) for sg in range(8 + NR - NB2, 8 + NR)]),
           pwrite=lambda blk: f"ds_write_b128 v7, {vr(ACC + blk*4, 4)} offset:{16384 + blk*1024}")
    stamp(a, 'loop1')
    if EARLYW2:
        for sg in range(4, 8): g2.emit_w(sg)
    a.wait_all(vm=False)
    a.fence()
    a("s_branch L_g1red")
    a.label("L_g1help")
    a.reset_state()
    a("s_load_dwordx4 s[64:67], s[4:5], 0")
    if PFH: prefetch_h(a)
    a("s_setprio 0")
    if W2T == 'mid0': touch_w2(a, dst=(1, 1))
    gate(a)
    if W2T == 'mid': touch_w2(a, dst=(1, 1))
    g_gen(a)
    if W2T == 'mid2': touch_w2(a, dst=(1, 1))
    if W2T == 'late':
        a(f"s_lshl_b32 s76, s{sWAVE}, 2")
        a(f"s_add_u32 s76, s76, {CNT}")
        a("v_mov_b32 v12, s76")
        wait_word(a, 12, 1)
        touch_w2(a)
    a.fence()
    a.label("L_g1red")
    a.reset_state()
    a("s_waitcnt lgkmcnt(0)")
    a("s_barrier")
    stamp(a, 'b5')
    if MF32:
        a(f"s_lshr_b32 s68, s{sWAVE}, 2")
        a("s_lshl_b32 s68, s68, 13")
        a(f"s_and_b32 s69, s{sWAVE}, 3")
        a("s_lshl_b32 s69, s69, 10")
        a("s_add_u32 s68, s68, s69")
        a("v_lshrrev_b32 v12, 5, v2")
        a("v_lshlrev_b32 v12, 12, v12")
        a("v_and_b32 v13, 31, v2")
    else:
        a(f"s_lshr_b32 s68, s{sWAVE}, 1")
        a("s_lshl_b32 s68, s68, 12")
        a(f"s_and_b32 s69, s{sWAVE}, 1")
        a("s_lshl_b32 s69, s69, 9")
        a("s_add_u32 s68, s68, s69")
        a("v_lshrrev_b32 v12, 4, v2")
        a("v_lshlrev_b32 v12, 10, v12")
        a("v_and_b32 v13, 15, v2")
    a("v_lshl_add_u32 v12, v13, 4, v12")
    a("v_add_u32 v12, s68, v12")
    a(f"v_add_u32 v13, {2*RING}, v12")
    E = 16
    for w in range(4):
        for hh in range(2):
            a(f"ds_read_b128 {vr(E + w*8 + hh*4, 4)}, v{12 + (w >> 1)} offset:{(w & 1)*RING + 16384 + hh*(512 if MF32 else 256)}")
    for e in range(4):
        a(f"s_lshl_b32 s{68+2*e}, s{64+e}, 16")
        a(f"s_and_b32 s{69+2*e}, s{64+e}, 0xffff0000")
    P2 = lambda r: f"v[{r}:{r+1}]"
    def pk(op, d, x, y, z=None):
        for q in range(4):
            o = lambda r: (r if isinstance(r, str) else P2(r + 2*q))
            a(f"v_pk_{op}_f32 {P2(d + 2*q)}, {o(x)}, {o(y)}" + (f", {o(z)}" if z is not None else ""))
    pk("add", E, E, E + 8); pk("add", E + 16, E + 16, E + 24); pk("add", E, E, E + 16)
    def rnd(X, T):
        for q in range(4): a(f"v_cvt_pk_bf16_f32 v{T+q}, v{X+2*q}, v{X+2*q+1}")
        for q in range(4): unpack(a, X + 2*q, X + 2*q + 1, T + q)
    rnd(E, E + 8)
    for q in range(4): a(f"v_pk_add_f32 {P2(E + 2*q)}, {P2(E + 2*q)}, s[{68+2*q}:{69+2*q}]")
    c0 = -2.0 * math.log2(math.e) * math.sqrt(2.0 / math.pi); c1 = c0 * 0.044715
    for r, c in ((24, c0), (25, c0), (26, c1), (27, c1), (28, 1.0), (29, 1.0)): a(f"v_mov_b32 v{E+r}, 0x{f2u(c):08x}")
    rnd(E, E + 8)
    pk("mul", E + 8, E, E)
    pk("fma", E + 8, E + 8, P2(E + 26), P2(E + 24))
    pk("mul", E + 8, E + 8, E)
    for e in range(8): a(f"v_exp_f32 v{E+8+e}, v{E+8+e}")
    pk("add", E + 8, E + 8, P2(E + 28))
    for e in range(8): a(f"v_rcp_f32 v{E+8+e}, v{E+8+e}")
    pk("mul", E, E, E + 8)
    for q in range(4): a(f"v_cvt_pk_bf16_f32 v{E+8+q}, v{E+2*q}, v{E+2*q+1}")
    a(f"s_mul_i32 s68, s{sDT1}, {224*1024}")
    a(f"s_lshl_b32 s69, s{sFT1}, 3")
    a(f"s_add_u32 s69, s69, s{sWAVE}")
    a("s_lshl_b32 s69, s69, 10")
    a("s_add_u32 s68, s68, s69")
    a(f"s_add_u32 s68, s68, {WS_UT}")
    a(f"buffer_store_dwordx4 {vr(E+8,4)}, v3, {S4(SWS)}, s68 offen {ST}")
    a(f"s_lshl_b32 s72, s{sDT1}, 5")
    a(f"s_add_u32 s72, s72, s{sFT1}")
    a("s_lshl_b32 s72, s72, 6")
    a(f"s_add_u32 s72, s72, {F_U}")
    stamp(a, 'ust')
    a("s_barrier")
    a.fence()
    a("s_branch L_pub2")
    a.label("L_fft")
    a.reset_state()
    a("s_setprio 0")
    a.fence()
    a.label("L_fft2")
    a.reset_state()
    fft_block(a, ti2, TB2OFF)
    w2_consts()
    a(f"s_cmp_ge_u32 s{sWAVE}, 4")
    a("s_cbranch_scc1 L_fhelp")
    gemm_lane_consts(a, 4096)
    g2.tok = {}
    for sg in range(8, 10): g2.emit_w(sg)
    arrive(a, 1, [72], 8, 8, lowprio=True)
    for sg in range(10, 8 + NREG): g2.emit_w(sg)
    a(f"v_mov_b32 v12, {CNT + 24}")
    wait_word(a, 12, 8)
    for sg in range(8): g2.emit_w(sg)
    a.fence()
    a("s_branch L_pub3")
    a.label("L_fhelp")
    arrive(a, 1, [72], 0, 8, lowprio=True)
    g_gen(a)
    a.fence()
    a("s_branch L_g2help2")
    a.label("L_pub2")
    a.reset_state()
    a(f"s_cmp_ge_u32 s{sWAVE}, 4")
    a("s_cbranch_scc1 L_g2help")
    snap3 = a.snapshot()
    g2.tok = {}
    for sg in range(0, 2): g2.emit_w(sg)
    arrive(a, 1, [72], 8, 8, lowprio=True)
    for sg in range(2, 4 if EARLYW2 else 8 + NREG): g2.emit_w(sg)
    a.fence()
    a.label("L_pub3")
    a.reset_state()
    a(f"s_mul_i32 s{sA0}, s{sDT2}, {224*1024}")
    a(f"s_mul_i32 s61, s{sWAVE}, {56*1024}")
    a(f"s_add_u32 s{sA0}, s{sA0}, s61")
    a(f"s_add_u32 s{sA0}, s{sA0}, {WS_UT}")
    stamp(a, 'pre7')
    a("s_barrier")
    a(f"s_lshl_b32 s72, s{sDT2}, 11")
    a(f"s_mul_i32 s73, s{sWAVE}, {7*64}")
    a("s_add_u32 s72, s72, s73")
    a(f"s_add_u32 s72, s72, {WS_FLG + F_U}")
    a.vm = a.vm[-8:]
    if not ENV('SKIPU', 0): gpoll(a, [(72, 7)], vt=(12, 13, 16, 17), need=((1 << STAGE) - 1) if STAGE and not ROT else None, lanes="0x7f")
    a("s_mov_b64 s[66:67], s[70:71]")
    def extra2(sig):
        if STAGE and not ROT and sig == 2 * STAGE - PA:
            def late():
                L = uid("late")
                a("s_cmp_eq_u64 s[66:67], 0")
                a.fence()
                a(f"s_cbranch_scc1 {L}")
                sn = a.snapshot()
                gpoll(a, [(72, 7)], vt=(14, 15, 15, 15), lanes="s[66:67]")
                a.fence()
                a.label(L)
                a.restore(sn)
            return [late]
        return []
    g2.tok = {}
    stamp(a, 'b7')
    if COOPU:
        a("v_lshrrev_b32 v18, 3, v2")
        a("v_and_b32 v19, 7, v2")
        a("v_lshlrev_b32 v19, 7, v19")
        a("v_lshl_add_u32 v18, v18, 13, v19")
        a(f"s_and_b32 s72, s{sST2}, 7")
        a("s_lshl_b32 s72, s72, 10")
        a(f"s_add_u32 s72, s72, s{sA0}")
        a("s_mov_b32 exec_hi, 0x00ffffff")
        a(f"buffer_load_dword v1, v18, {S4(SWS)}, s72 offen {LD}")
        a("s_mov_b32 exec_hi, -1")
    gb_load(a, 12, 13, 16)
    a("v_lshrrev_b32 v4, 5, v2")
    a("v_lshlrev_b32 v4, 6, v4")
    a("v_xor_b32 v4, v4, v7")
    a("v_xor_b32 v5, 128, v4")
    if MF32:
        a("v_xor_b32 v4, 64, v7"); a("v_xor_b32 v5, 128, v7"); a("v_xor_b32 v10, 192, v7")
    g2.run(extra2, post=lambda: [g2.emit_w(sg) for sg in range(8 + NREG - NB4, 8 + NREG)],
           pwrite=lambda blk: f"ds_write_b128 v{(7, 4, 5, 10)[blk & 3] if MF32 else 4 + ((blk >> 2) & 1)}, {vr(ACC + blk*4, 4)} offset:{8192 + blk*1024}")
    stamp(a, 'loop2')
    a("v_mov_b32 v10, v12")
    a("v_mov_b32 v11, v13")
    a.wait_all(vm=False)
    a.fence()
    a("s_branch L_g2red")
    a.restore(snap3)
    a.label("L_g2help")
    a("s_setprio 3")
    if W2T == 'post':
        touch_w2(a, dst=(1, 1))
        arrive(a, 1, [72], 1 if MAP2 == 18 else 2, 8)
    else: arrive(a, 1, [72], 0, 8)
    a.fence()
    a.label("L_g2help2")
    a.reset_state()
    fg_poll(a)
    if PFU:
        a("s_setprio 3")
        prefetch_u(a)
    a(f"s_setprio {DFTPRIO}")
    a("s_barrier")
    dft_part(a)
    a("s_setprio 0")
    a.fence()
    a.label("L_g2red")
    a.reset_state()
    a("v_lshrrev_b32 v4, 3, v0")
    a(f"s_lshl_b32 s68, s{sST2}, 6")
    a("v_add_u32 v5, s68, v4")
    a("v_and_b32 v6, 7, v0")
    a("v_lshrrev_b32 v7, 1, v6")
    a("v_lshlrev_b32 v7, 12, v7")
    a("v_lshrrev_b32 v8, 4, v4")
    a("v_lshl_add_u32 v7, v8, 10, v7")
    a("v_and_b32 v8, 1, v6")
    a("v_lshl_add_u32 v7, v8, 9, v7")
    a("v_and_b32 v8, 3, v6")
    a("v_lshlrev_b32 v8, 2, v8")
    a("v_and_b32 v9, 15, v4")
    a("v_xor_b32 v8, v8, v9")
    a("v_lshl_add_u32 v7, v8, 4, v7")
    a(f"v_add_u32 v12, {AP}, v7")
    if MF32:
        a("v_lshrrev_b32 v7, 2, v6")
        a("v_lshlrev_b32 v7, 13, v7")
        a("v_lshrrev_b32 v8, 5, v4")
        a("v_lshl_add_u32 v7, v8, 12, v7")
        a("v_and_b32 v8, 3, v6")
        a("v_lshl_add_u32 v7, v8, 10, v7")
        a("v_lshlrev_b32 v8, 2, v8")
        a("v_and_b32 v9, 31, v4")
        a("v_xor_b32 v8, v8, v9")
        a("v_lshl_add_u32 v7, v8, 4, v7")
    a(f"v_add_u32 v8, {2*RING}, v7")
    a("v_lshlrev_b32 v9, 10, v5")
    a("v_lshl_add_u32 v9, v6, 4, v9")
    a(f"s_lshl_b32 s70, s{sDT2}, 7")
    a("s_barrier")
    stamp(a, 'b8')
    B_, A_ = 16, 48
    for w in range(4):
        for hh in range(2):
            a(f"ds_read_b128 {vr(B_ + w*8 + hh*4, 4)}, v{7 + (w >> 1)} offset:{(w & 1)*RING + 8192 + hh*(512 if MF32 else 256)}")
    for w in range(2):
        for hh in range(2):
            a(f"ds_read_b128 {vr(A_ + w*8 + hh*4, 4)}, v12 offset:{w*16384 + hh*256}")
    a("v_sub_f32 v68, 1.0, v10")
    a("v_cvt_pk_bf16_f32 v68, v68, v68")
    a("v_lshlrev_b32 v68, 16, v68")
    a("v_mov_b32 v69, v68")
    a("v_mov_b32 v70, v10"); a("v_mov_b32 v71, v10")
    a("v_mov_b32 v72, v11"); a("v_mov_b32 v73, v11")
    a("v_mov_b32 v74, 0x36000000"); a("v_mov_b32 v75, 0x36000000")
    pk("add", B_, B_, B_ + 8); pk("add", B_ + 16, B_ + 16, B_ + 24); pk("add", B_, B_, B_ + 16)
    pk("add", A_, A_, A_ + 8)
    rnd(B_, B_ + 8)
    pk("mul", A_, A_, P2(74))
    pk("add", B_, B_, P2(72))
    rnd(A_, A_ + 8)
    rnd(B_, B_ + 8)
    pk("mul", A_, A_, P2(70))
    pk("mul", B_, B_, P2(68))
    rnd(A_, A_ + 8)
    rnd(B_, B_ + 8)
    pk("add", A_, A_, B_)
    for q in range(4): a(f"v_cvt_pk_bf16_f32 v{B_+q}, v{A_+2*q}, v{A_+2*q+1}")
    a(f"buffer_store_dwordx4 {vr(B_,4)}, v9, {S4(SOUT)}, s70 offen {OST}")
    a(f"s_or_b32 s71, s2, s{sWAVE}")
    a("s_cmp_lg_u32 s71, 0")
    a("s_cbranch_scc1 L_noep")
    a(f"s_mov_b32 s72, {F_EP}")
    set_flag(a, 72)
    a.fence()
    a.label("L_noep")
    stamp_flush(a)
    a.label("L_end")
    a("s_endpgm")
    return np.concatenate([tb1, tb2])

def fg_off(a, d):
    a(f"s_lshr_b32 s{d}, s{sST2}, 4")
    a(f"s_lshl_b32 s{d}, s{d}, 12")
    a(f"s_add_u32 s{d}, s{d}, {WS_FLG + F_G}")
def fg_poll(a):
    L = uid("nofg")
    a(f"s_cmp_lg_u32 s{sWAVE}, 7")
    a.fence()
    a(f"s_cbranch_scc1 {L}")
    fg_off(a, 62)
    gpoll(a, [(62, 64)], vt=(12, 13, 4, 5))
    a.fence()
    a.label(L)
    a.reset_state()
def gb_load(a, vg, vb, t):
    a(f"v_lshrrev_b32 v{t}, 3, v0")
    a(f"s_lshr_b32 s69, s{sST2}, 4")
    a("s_lshl_b32 s69, s69, 12")
    a(f"s_and_b32 s70, s{sST2}, 15")
    a("s_lshl_b32 s70, s70, 2")
    a("s_add_u32 s69, s69, s70")
    a(f"s_add_u32 s69, s69, {WS_G}")
    a(f"v_lshlrev_b32 v{t+1}, 6, v{t}")
    a(f"buffer_load_dword v{vg}, v{t+1}, {S4(SWS)}, s69 offen {LD}")
    a(f"v_mov_b32 v{vb}, 0")
    a(f"v_lshlrev_b32 v{t}, 1, v{t}")
    a(f"s_lshl_b32 s70, s{sST2}, 7")
    a(f"buffer_load_short_d16_hi v{vb}, v{t}, {S4(SB2)}, s70 offen")
YF, GF, AC = 48, 112, 16
def g_gen(a):
    a(f"s_bfe_u32 s70, s{sWAVE}, 0x10001")
    a(f"s_and_b32 s71, s{sWAVE}, 1")
    a("v_and_b32 v4, 15, v2")
    a("v_lshrrev_b32 v5, 4, v2")
    a(f"s_lshl_b32 s62, s{sDT2}, 6")
    a("v_add_u32 v7, s62, v4")
    a("v_cvt_f32_u32 v8, v7")
    a("v_mul_f32 v8, 0x3b000000, v8")
    for mt in range(1, 4): a(f"v_add_f32 v{8+mt}, 0x3d000000, v{7+mt}")
    a("s_lshl_b32 s62, s70, 7")
    a("v_lshlrev_b32 v12, 2, v5")
    a("v_add_u32 v12, s62, v12")
    a("v_cvt_f32_u32 v12, v12")
    ANG, D13 = 240, 244
    for mt in range(4):
        a(f"v_mul_f32 v{ANG+mt}, v{8+mt}, v12")
        a(f"v_mul_f32 v{D13+mt}, 0x41500000, v{8+mt}")
    for ks in range(8):
        for e in range(4):
            for mt in range(4):
                t0 = 248 + 2 * mt
                a(f"v_cos_f32 v{t0}, v{ANG+mt}")
                a(f"v_sin_f32 v{t0+1}, v{ANG+mt}")
                if not (ks == 7 and e == 3): a(f"v_add_f32 v{ANG+mt}, v{ANG+mt}, v{(D13 if e == 3 else 8) + mt}")
            for mt in range(4):
                t0 = 248 + 2 * mt
                a(f"v_cvt_pk_bf16_f32 v{GF + (ks*4+mt)*4 + e}, v{t0}, -v{t0+1}")
        if ks == 0:
            a("v_and_b32 v13, 1, v2")
            a("v_lshlrev_b32 v13, 31, v13")
            a("v_or_b32 v13, 0x3f003f00, v13")
            a("s_cmp_eq_u32 s70, 0")
            a("s_cselect_b32 s76, 0xffff, 0")
            a("s_mov_b32 s77, 0")
            for mt in range(4): a(f"v_cndmask_b32 v{GF + mt*4}, v{GF + mt*4}, v13, s[76:77]")
def dft_part(a):
    M = "v_mfma_f32_16x16x32_bf16"
    a(f"s_bfe_u32 s64, s{sWAVE}, 0x10001")
    a(f"s_and_b32 s65, s{sWAVE}, 1")
    a("v_and_b32 v4, 15, v2")
    a("v_lshrrev_b32 v5, 4, v2")
    a("v_lshlrev_b32 v6, 15, v5")
    a("v_lshl_add_u32 v6, v4, 4, v6")
    a("s_lshl_b32 s62, s64, 10")
    a(f"s_add_u32 s62, s62, {F_Y}")
    a("s_lshl_b32 s66, s64, 20")
    a(f"s_lshl_b32 s67, s{sST2}, 10")
    a("s_add_u32 s66, s66, s67")
    a("s_lshl_b32 s67, s65, 9")
    a("s_add_u32 s66, s66, s67")
    a(f"s_add_u32 s66, s66, {WS_Y1}")
    a(f"s_add_u32 s62, s62, {WS_FLG}")
    if YSLEEP0: a(f"s_sleep {YSLEEP0}")
    if not ENV('SKIPY', 0): gpoll(a, [(62, 16)], vt=(12, 13, 14, 15), sleep=YSLEEP)
    stamp(a, 'loop2')
    gb_load(a, 10, 11, 12)
    for ks in range(8):
        for t in range(2):
            a(f"buffer_load_dwordx4 {vr(YF + (ks*2+t)*4, 4)}, v6, {S4(SWS)}, s66 offen offset:{t*256} {LD}")
        if ks < 7: a("s_add_u32 s66, s66, 131072")
    for ks in range(8):
        for mt in range(4):
            for t in range(2):
                acc = vr(AC + (mt*2+t)*4, 4)
                a(f"{M} {acc}, {vr(GF + (ks*4+mt)*4, 4)}, {vr(YF + (ks*2+t)*4, 4)}, {'0' if ks == 0 else acc}")
    a("s_lshl_b32 s66, s64, 14")
    a("s_lshl_b32 s67, s65, 11")
    a("s_add_u32 s66, s66, s67")
    a(f"s_add_u32 s66, s66, {AP}")
    a("v_lshrrev_b32 v12, 5, v2")
    a("v_lshlrev_b32 v12, 6, v12")
    a("v_xor_b32 v12, v12, v3")
    a("v_add_u32 v12, s66, v12")
    a("v_xor_b32 v13, 128, v12")
    for mt in range(4):
        for t in range(2):
            a(f"ds_write_b128 v{12 + (mt & 1)}, {vr(AC + (mt*2+t)*4, 4)} offset:{(mt*4+t)*1024}")
    a.wait_all()

def fft_block(a, ti, tboff):
    M = "v_mfma_f32_32x32x16_bf16"
    PK, VA, VB, VT, CF, TMP = 16, 48, 112, 176, 208, 240
    if TBIT == 9:
        a(f"s_and_b32 s62, s{sXCD}, 3")
        a("s_lshl_b32 s62, s62, 3")
        a(f"s_add_u32 s62, s62, s{sIDX}")
    else:
        a(f"s_lshl_b32 s62, s{sXCD}, 2")
        a(f"s_lshr_b32 s63, s{sIDX}, 1" if TBIT == 0 else f"s_and_b32 s63, s{sIDX}, 3")
        a("s_add_u32 s62, s62, s63")
    a("s_lshl_b32 s63, s62, 3")
    a(f"s_add_u32 s63, s63, s{sWAVE}")
    a("v_and_b32 v4, 31, v2")
    a("v_lshrrev_b32 v5, 5, v2")
    a(f"s_lshl_b32 s66, s{sWAVE}, 13")
    a("v_lshrrev_b32 v6, 4, v2")
    a("v_xor_b32 v6, v6, v2")
    a("v_and_b32 v6, 3, v6")
    a("v_lshlrev_b32 v6, 4, v6")
    a("v_lshrrev_b32 v7, 2, v2")
    a("v_lshl_add_u32 v6, v7, 6, v6")
    a("v_bfe_u32 v7, v2, 2, 2")
    a("v_xor_b32 v8, v7, v5")
    a("v_lshlrev_b32 v8, 4, v8")
    a("v_lshl_add_u32 v8, v4, 6, v8")
    a("v_add_u32 v8, s66, v8")
    a("v_xor_b32 v9, 32, v8")
    a(f"v_add_u32 v10, {FB_TB}, v3")
    a("s_cmp_eq_u32 s63, 0")
    a(f"s_cselect_b32 s67, {(ti['P1re0'] - ti['S1re0']) * 1024}, 0")
    a("v_add_u32 v14, s67, v10")
    a("v_lshlrev_b32 v11, 10, v5")
    a("v_lshl_add_u32 v11, v4, 2, v11")
    a("v_add_u32 v11, s66, v11")
    def dma8(base, ks, ldsbase="s66"):
        a(f"s_lshl_b32 s68, s{ks}, 13")
        a(f"s_add_u32 s68, s68, {base}")
        t = []
        for j in range(8):
            a(f"s_add_u32 m0, {ldsbase}, {j*1024}")
            t.append(a(f"buffer_load_dwordx4 v6, {S4(SWS)}, s68 offen {LD} lds"))
            if j < 7: a("s_add_u32 s68, s68, 1024")
        return t
    tab = lambda reg, nm, base=10: f"ds_read_b128 {vr(reg,4)}, v{base} offset:{ti[nm]*1024}"
    TWO = TMP + 14
    a(f"s_cmp_lt_u32 s{sWAVE}, 4")
    a(f"s_cselect_b32 s68, {FB_WG}, 0")
    a("v_add_u32 v12, s68, v8")
    a("v_add_u32 v13, s68, v9")
    a(f"s_cmp_eq_u32 s{sWAVE}, 4")
    a.fence()
    a("s_cbranch_scc1 L_fpollz")
    a(f"s_cmp_eq_u32 s{sWAVE}, 5")
    a("s_cbranch_scc1 L_fpollw")
    a(f"s_cmp_ge_u32 s{sWAVE}, 4")
    a("s_cbranch_scc1 L_fgo")
    a("s_waitcnt vmcnt(0)")
    lds_inc(a, 15, t=(20, 21))
    a.fence()
    a("s_branch L_fgo")
    a.label("L_fpollw")
    a.reset_state()
    a(f"s_mov_b32 s68, {F_W}")
    poll(a, 68, 128, vt=20)
    a(f"v_mov_b32 v20, {CNT}")
    wait_word(a, 20, 4, tv=21)
    lds_inc(a, 13, t=(20, 21))
    for w in range(4):
        a(f"s_sub_u32 s69, s63, {5 - w}")
        a(f"s_mov_b32 s70, {FB_WG + w*8192}")
        dma8(WS_WT, 69, "s70")
    a.fence()
    a("s_branch L_fgo")
    a.label("L_fpollz")
    a.reset_state()
    a(f"s_mov_b32 s68, {F_Z}")
    poll(a, 68, 128, vt=20)
    lds_inc(a, 14, t=(20, 21))
    a.fence()
    a.label("L_fgo")
    a.reset_state()
    stamp(a, 'pre4')
    a(f"v_mov_b32 v20, {CNT + 60}")
    wait_word(a, 20, 4, tv=21, sleep=1)
    a(f"v_mov_b32 v20, {CNT + 56}")
    wait_word(a, 20, 1, tv=21, sleep=1)
    stamp(a, 'b4')
    tz = dma8(WS_Z, 63)
    for c in range(4):
        a(tab(CF + c * 4, f'S1re{c}', 14)); a(tab(CF + 16 + c * 4, f'S1im{c}', 14))
    for mt in range(2):
        for pr in range(4): a(tab(VT + (mt * 4 + pr) * 4, f'F1_{mt}_{pr}'))
    for c in range(4):
        a.wait_tok(*tz[(c >> 1) * 4: (c >> 1) * 4 + 4])
        for mt in range(2):
            a(f"ds_read_b128 {vr(PK + (mt*4+c)*4, 4)}, v{8 + (c & 1)} offset:{(c >> 1)*4096 + mt*2048}")
    a(f"s_cmp_eq_u32 s{sWAVE}, 5")
    a.wait_all(); a.fence()
    a("s_cbranch_scc0 L_fnot5")
    lds_inc(a, 15 - 8, t=(240, 241))
    a.fence()
    a.label("L_fnot5")
    a(f"s_cmp_lt_u32 s{sWAVE}, 4")
    a("s_cbranch_scc1 L_fcomp")
    a(f"v_mov_b32 v240, {CNT + 52}")
    wait_word(a, 240, 1, tv=241, sleep=0)
    dma8(WS_WT, 63)
    a.fence()
    a.label("L_fcomp")
    a.reset_state()
    if FFT_W2 == 2: touch_w2_8(a)
    D = lambda base, x, ri: base + (x * 2 + ri) * 16
    for c in range(4):
        for mt in range(2):
            for ri in range(2):
                acc = vr(D(VA, mt, ri), 16)
                a(f"{M} {acc}, {vr(PK + (mt*4+c)*4, 4)}, {vr(CF + ri*16 + c*4, 4)}, {'0' if c == 0 else acc}")
    PKR = lambda x, ri, u: PK + ((x * 2 + ri) * 2 + u) * 4
    WSL = [[0, 4, 1, 5], [2, 6, 3, 7]]
    Wr = lambda p, i: VT + 4 * WSL[p][i >> 2] + (i & 3)
    P2 = lambda r: f"v[{r}:{r+1}]"
    NEG0 = "neg_lo:[1,0,0] neg_hi:[1,0,0]"; NEG2 = "neg_lo:[0,0,1] neg_hi:[0,0,1]"
    a(f"v_mov_b32 v{TWO}, 2.0"); a(f"v_mov_b32 v{TWO+1}, 2.0")
    G2 = [('E', 0, 0), ('OF', 1, 0), ('E', 0, 1), ('OF', 1, 1)]
    G3 = [('E', 0, 0), ('E', 0, 1), ('OI', 1, 0), ('OI', 1, 1)]
    G4 = G2
    groups = [(g, 2) for g in G2] + [(g, 3) for g in G3] + [(g, 4) for g in G4]
    def cload(k):
        if k >= len(groups): return []
        (t, x, u), st = groups[k]
        return [tab(CF + (k & 1) * 12 + 4 * n, f'{t}{y}{u}') for n, y in enumerate('csn')]
    seen = set()
    def mgroup(k):
        (t, x, u), st = groups[k]
        out = VB if st in (2, 4) else VA
        inv = st != 2
        fr = lambda y: vr(CF + (k & 1) * 12 + 4 * 'csn'.index(y), 4)
        r = []
        for (ro, cx, ri) in ((0, 'c', 0), (1, 's' if inv else 'n', 0), (0, 'n' if inv else 's', 1), (1, 'c', 1)):
            acc = vr(D(out, x, ro), 16); dat = vr(PKR(x, ri, u), 4)
            A_, B_ = (dat, fr(cx)) if st == 3 else (fr(cx), dat)
            c = acc if (st, x, ro) in seen else '0'
            seen.add((st, x, ro))
            r.append(f"{M} {acc}, {A_}, {B_}, {c}")
        return r
    def mix(ks, valu):
        ms = []
        for k in ks: ms += [(m, (k if i == 3 else None)) for i, m in enumerate(mgroup(k))]
        n = len(ms); per = -(-len(valu) // n) if valu else 0
        vi = 0
        for m, k in ms:
            a(m)
            if k is not None:
                for l in cload(k + 2): a(l)
            for l in valu[vi:vi + per]: a(l)
            vi += per
    def pack(base, x, u):
        return [f"v_cvt_pk_bf16_f32 v{PKR(x, ri, u) + q}, v{D(base, x, ri) + 8*u + 2*q}, v{D(base, x, ri) + 8*u + 2*q + 1}"
                for ri in range(2) for q in range(4)]
    def wread1(p, q, off=0): return f"ds_read_b128 {vr(Wr(p, 4*q), 4)}, v{12 + (q & 1)} offset:{off + (q >> 1)*4096 + p*2048}"
    def twx(u, inv, refill):
        o = []
        sg = lambda fwd: (NEG0 if (fwd != inv) else "")
        for pr in range(4):
            i = 8 * u + 2 * pr
            t0r, t0i, t1r, t1i = (P2(D(VA, x, ri) + i) for x in range(2) for ri in range(2))
            if inv: s0 = s1 = Wr(u, 4 * pr)
            else: s0, s1 = VT + 4 * pr, VT + 16 + 4 * pr
            c0, sn0, c1, sn1 = P2(s0), P2(s0 + 2), P2(s1), P2(s1 + 2)
            A, B = P2(TMP + 4 * (pr & 1)), P2(TMP + 4 * (pr & 1) + 2)
            o += [f"v_pk_mul_f32 {A}, {t0r}, {c0}", f"v_pk_mul_f32 {B}, {t0i}, {c0}",
                  f"v_pk_fma_f32 {A}, {t0i}, {sn0}, {A} {sg(False)}", f"v_pk_fma_f32 {B}, {t0r}, {sn0}, {B} {sg(True)}",
                  f"v_pk_fma_f32 {t0r}, {t1r}, {c1}, {A}", f"v_pk_fma_f32 {t0i}, {t1i}, {c1}, {B}",
                  f"v_pk_fma_f32 {t0r}, {t1i}, {sn1}, {t0r} {sg(False)}", f"v_pk_fma_f32 {t0i}, {t1r}, {sn1}, {t0i} {sg(True)}",
                  f"v_pk_fma_f32 {t1r}, {A}, {P2(TWO)}, {t0r} {NEG2}", f"v_pk_fma_f32 {t1i}, {B}, {P2(TWO)}, {t0i} {NEG2}"]
            o += refill(pr)
            o += [f"v_cvt_pk_bf16_f32 v{PKR(x, ri, u) + pr}, v{D(VA, x, ri) + i}, v{D(VA, x, ri) + i + 1}" for x in range(2) for ri in range(2)]
        return o
    def tw1(u):
        if u == 0: return twx(0, False, lambda pr: [tab(VT + (mt * 4 + pr) * 4, f'F1_{mt}_{4 + pr}') for mt in range(2)])
        return twx(1, False, lambda pr: [])
    def tw2(u): return twx(u, True, lambda pr: [])
    def xw(p, t2=True, packit=True):
        o = []
        for pr in range(8):
            i = 2 * pr
            xr, xi, w = P2(D(VB, p, 0) + i), P2(D(VB, p, 1) + i), Wr(p, i)
            b = TMP + 6 * (pr & 1)
            wr, wi, t = P2(b), P2(b + 2), P2(b + 4)
            o += [f"v_lshlrev_b32 v{b}, 16, v{w}", f"v_lshlrev_b32 v{b+1}, 16, v{w+1}",
                  f"v_and_b32 v{b+2}, 0xffff0000, v{w}", f"v_and_b32 v{b+3}, 0xffff0000, v{w+1}",
                  f"v_pk_mul_f32 {t}, {xr}, {wi}", f"v_pk_mul_f32 {xr}, {xr}, {wr}",
                  f"v_pk_fma_f32 {xr}, {xi}, {wi}, {xr} {NEG0}", f"v_pk_fma_f32 {xi}, {xi}, {wr}, {t}"]
            if t2 and (pr & 1): o.append(tab(Wr(p, i & ~3), f'F2_{4 * p + (pr >> 1)}'))
            if packit:
                o += [f"v_cvt_pk_bf16_f32 v{PKR(p, ri, pr >> 2) + (pr & 3)}, v{D(VB, p, ri) + i}, v{D(VB, p, ri) + i + 1}" for ri in range(2)]
        return o
    def wread(p): return [wread1(p, q) for q in range(4)]
    for l in cload(0) + cload(1): a(l)
    stamp(a, 'zin')
    for l in tw1(0): a(l)
    mix([0, 1], tw1(1))
    a("s_waitcnt vmcnt(0)")
    a(f"v_mov_b32 v15, {CNT + 28}")
    wait_word(a, 15, 1, tv=7, sleep=0)
    stamp(a, 'win')
    for l in wread(0) + wread(1): a(l)
    if FFT_W2 == 1:
        touch_w2_8(a)
    a("s_cmp_lg_u32 s67, 0")
    a.wait_all(vm=False); a.fence()
    a("s_cbranch_scc1 L_fspecial")
    snap = a.snapshot(); seen0 = set(seen)
    x0 = xw(0)
    mix([2], [])
    mix([3], x0[:24])
    for l in x0[24:]: a(l)
    stamp(a, 'loop1')
    mix([4, 5], xw(1))
    mix([6, 7], [])
    a.wait_all(vm=False); a.fence()
    a("s_branch L_fjoin")
    a.restore(snap); seen.clear(); seen.update(seen0)
    a.label("L_fspecial")
    a("s_movk_i32 s71, 256")
    a(f"s_mov_b32 s72, {FB_WG}")
    dma8(WS_WT, 71, "s72")
    mix([2, 3], [])
    a("v_lshlrev_b32 v15, 8, v5")
    a("v_add_u32 v15, v15, v4")
    a("v_lshlrev_b32 v15, 2, v15")
    joff = lambda p, i: (32 * p + 64 * (8 * (i >> 2) + (i & 3))) * 4
    MAXO = joff(1, 15)
    a(f"v_sub_u32 v7, {8192 - MAXO}, v15")
    a("v_cmp_eq_u32 vcc, 0, v2")
    for ri in range(2):
        for p in range(2):
            for i in range(16): a(f"ds_write_b32 v15, v{D(VB,p,ri)+i} offset:{joff(p, i)}")
        a.wait_all(vm=False)
        for p in range(2):
            for i in range(16): a(f"ds_read_b32 v{D(VA,p,ri)+i}, v7 offset:{MAXO - joff(p, i)}")
        a.wait_all(vm=False)
        a(f"v_cndmask_b32 v{D(VA,0,ri)}, v{D(VA,0,ri)}, v{D(VB,0,ri)}, vcc")
    for l in xw(0, False, False) + xw(1, False, False): a(l)
    a("s_waitcnt vmcnt(0)")
    for l in wread(0) + wread(1): a(l)
    for p in range(2):
        for pr in range(8):
            i = 2 * pr
            vr_, vi_, w = P2(D(VB, p, 0) + i), P2(D(VB, p, 1) + i), Wr(p, i)
            mr, mi = P2(D(VA, p, 0) + i), P2(D(VA, p, 1) + i)
            b = TMP + 4 * (pr & 1)
            wr, wi = P2(b), P2(b + 2)
            for l in [f"v_lshlrev_b32 v{b}, 16, v{w}", f"v_lshlrev_b32 v{b+1}, 16, v{w+1}",
                      f"v_and_b32 v{b+2}, 0xffff0000, v{w}", f"v_and_b32 v{b+3}, 0xffff0000, v{w+1}",
                      f"v_pk_fma_f32 {vr_}, {mr}, {wr}, {vr_}", f"v_pk_fma_f32 {vi_}, {mr}, {wi}, {vi_}",
                      f"v_pk_fma_f32 {vr_}, {mi}, {wi}, {vr_}", f"v_pk_fma_f32 {vi_}, {mi}, {wr}, {vi_} {NEG0}"]: a(l)
            if pr & 1: a(tab(Wr(p, i & ~3), f'F2_{4 * p + (pr >> 1)}'))
    for x in range(2):
        for u in range(2):
            for l in pack(VB, x, u): a(l)
    stamp(a, 'loop1')
    mix([4, 5, 6, 7], [])
    a.wait_all(vm=False); a.fence()
    a.label("L_fjoin")
    a.reset_state()
    for l in tw2(0): a(l)
    mix([8, 9], tw2(1))
    a("v_add_u32 v15, 128, v11")
    def outp(nt):
        o = []
        for i in range(0, 16, 2):
            r = TMP + (i & 7); off = 8 * (i >> 2) + (i & 3)
            o += [f"v_cvt_pk_bf16_f32 v{r}, v{D(VB,nt,0)+i}, v{D(VB,nt,1)+i}",
                  f"v_cvt_pk_bf16_f32 v{r+1}, v{D(VB,nt,0)+i+1}, v{D(VB,nt,1)+i+1}",
                  f"ds_write2st64_b32 v{15 if nt else 11}, v{r}, v{r+1} offset0:{off} offset1:{off+1}"]
        return o
    mix([10], [])
    o0 = outp(0)
    mix([11], o0[:12])
    for l in o0[12:] + outp(1): a(l)
    a.wait_all(vm=False)
    stamp(a, 'f2')
    a(f"s_lshr_b32 s69, s{sWAVE}, 2")
    a("s_lshl_b32 s70, s69, 2")
    a(f"s_add_u32 s70, s70, {CNT + 16}")
    a("v_mov_b32 v12, s70")
    a("v_mov_b32 v13, 1")
    a("s_mov_b64 exec, 1")
    a("ds_add_u32 v12, v13")
    a("s_mov_b64 exec, -1")
    a("v_and_b32 v14, 255, v0")
    a("s_lshl_b32 s70, s69, 15")
    a("v_lshlrev_b32 v15, 4, v14")
    a("v_lshlrev_b32 v14, 2, v14")
    a("v_add_u32 v14, s70, v14")
    a("s_lshl_b32 s68, s62, 16")
    a("s_add_u32 s68, s68, s70")
    a(f"s_add_u32 s68, s68, {WS_Y1}")
    a("s_setprio 3")
    wait_word(a, 12, 4, sleep=0)
    for z in range(8):
        o = z * 4
        a(f"ds_read2st64_b32 {vr(64 + z*4, 2)}, v14 offset0:{o} offset1:{o+32}")
        a(f"ds_read2st64_b32 {vr(66 + z*4, 2)}, v14 offset0:{o+64} offset1:{o+96}")
    for z in range(8):
        a(f"buffer_store_dwordx4 {vr(64 + z*4, 4)}, v15, {S4(SWS)}, s68 offen {ST}")
        if z < 7: a("s_add_u32 s68, s68, 4096")
    a("s_setprio 0")
    lds_inc(a, 6)
    a("s_lshl_b32 s72, s62, 6")
    a(f"s_add_u32 s72, s72, {F_Y}")
    stamp(a, 'ust')
    a.fence()

def build():
    a = Asm()
    head = HEADER + ("; CFG " + os.environ.get("CFG", "") + "\n" if os.environ.get("CFG") else "") + (f"; STK {','.join(STK)}\n" if STAMPS else "") + f"; @launch grid=(256,1,1) block=(512,1,1) lds={LDS_TOTAL}\n"
    head += '.amdgcn_target "amdgcn-amd-amdhsa--gfx950"\n.text\n'
    tb = gen(a)
    body = a.text() + ".p2align 8\nTABLES:\n"
    for i in range(0, len(tb), 8):
        body += ".long " + ",".join(f"0x{x:x}" for x in tb[i:i+8]) + "\n"
    body += f""".section .rodata,"a"
.p2align 6
.amdhsa_kernel {NAME}
  .amdhsa_next_free_vgpr 256
  .amdhsa_next_free_sgpr 102
  .amdhsa_accum_offset 256
  .amdhsa_group_segment_fixed_size 0
  .amdhsa_kernarg_size 96
  .amdhsa_user_sgpr_count 2
  .amdhsa_user_sgpr_kernarg_segment_ptr 1
  .amdhsa_system_sgpr_workgroup_id_x 1
.end_amdhsa_kernel
"""
    return head + body, a.stats
if __name__ == "__main__":
    t, st = build()
    open(sys.argv[1], "w").write(t)
    print(len(t), "bytes", st)
```

```python
import sys, os, math, struct
sys.path.insert(0, "work")
from asmlib import *
from design import *

NAME = "gated_mix__spectral_gfnet__mixer_token_mlp__prompt_kernel"
HEADER = open("gated_mix__spectral_gfnet__mixer_token_mlp__prompt.s.ref").read().split("; @launch")[0]
ENV = lambda k, d: type(d)(os.environ.get(k, d))
STAMPS = ENV("STAMPS", 0)
ST = ENV("STMOD", "sc1").replace("_", " ")
LD = ENV("LDMOD", "sc1").replace("_", " ")
PA = ENV("PA", 3)
NREG = 9 - PA
W2_EARLY = ENV("W2_EARLY", 1)
POLL_MAX = 50000
EARLYW2 = ENV('EARLYW2', 0)
COOPH = ENV('COOPH', 0)
COOPU = ENV('COOPU', 0)
MF32 = ENV('MF32', 0)
STAGE = ENV('STAGE', 0)
ETOUCH = ENV('ETOUCH', 1)
FGEN_LATE = ENV('FGEN_LATE', 1)
WARR = ENV('WARR', 2)
EDMA = ENV('EDMA', 0)
_g1e = []
W2T = ENV('W2T', 'late')
NOWAIT = ENV('NOWAIT', 0)
NOTW = ENV('NOTW', 0)
WJOB_FR = ENV('WJOB_FR', 0)
XSW = ENV('XSW', 0)
CODEPF2 = ENV('CODEPF2', 1)
WJOBH = ENV('WJOBH', 0)
SPB = 208
HPOLL2 = ENV('HPOLL2', 1)
NREP = ENV('NREP', 8)
OST = ENV('OST', '').replace('_', ' ')
TBIT = ENV('TBIT', 0)
SPREAD = ENV('SPREAD', 0)
PFH = ENV('PFH', 0)
PFU = ENV('PFU', 0)
HSLEEP = ENV('HSLEEP', 12)
USLEEP = ENV('USLEEP', 12)
TBWAIT = ENV('TBWAIT', 0)
FFT_T1 = ENV('FFT_T1', 1)
MAP1 = ENV('MAP1', 18)
MAP2 = ENV('MAP2', 18)
YSLEEP0 = ENV('YSLEEP0', 0)
TOUCH_FR = ENV('TOUCH_FR', 2)
DRY = ENV('DRY', 4)
ZLD = ENV('ZLD', ' ')
CODEPF = ENV('CODEPF', 0)
HALF_T = ENV('HALF_T', 1)
W_AFTER = ENV('W_AFTER', 1)
YSLEEP = ENV('YSLEEP', 40)
FFT_W2 = ENV('FFT_W2', 1)
PM = ENV('PM', 'sc1').replace('_', ' ')
PSLEEP = ENV('PSLEEP', 2)
DFTPRIO = ENV('DFTPRIO', 0)
W2SIG = ENV('W2SIG', 13)
NB1 = ENV('NB1', 0)
NB2 = ENV('NB2', 0)
NB3 = 0
NB4 = 0
EARLY2 = ENV('EARLY2', 1)
NR1 = ENV('NR1', 99)
FFT_PUB_FIRST = ENV('FFT_PUB_FIRST', 0)
WS_FLG = 0xC00000
F_H, F_Z, F_U, F_Y, F_EP, F_W, F_G, F_X = 0, 8192, 16384, 32768, 40960, 49152, 57344, 65536
WS_DBG = 0x8000000
WS_BYTES = 0x10000000
MIXC = "op_sel_hi:[0,1,0]"
MIXS = "op_sel:[0,1,0] op_sel_hi:[0,1,0]"
f2u = lambda f: struct.unpack("<I", struct.pack("<f", f))[0]
SX, SWR, SWI, SGW, SWS, STB, SW1, SW2, SOUT, SB2 = 8, 12, 16, 20, 24, 28, 32, 36, 40, 44
sWAVE, sXCD, sIDX, sTAG, sN2, sC2, sDT1, sFT1, sDT2, sST2 = 48, 49, 50, 51, 52, 53, 54, 55, 56, 57
RING = 32768
TREG, TB_ = (sXCD, 2) if TBIT == 9 else (sIDX, TBIT)
AP = 4 * RING
LDS_TOTAL = 163840
FB_TB, FB_WG = 65536, 65536 + 59392

def srd(a, d, base, nbytes):
    a(f"s_mov_b32 s{d}, s{base}")
    a(f"s_and_b32 s{d+1}, s{base+1}, 0xffff")
    a(f"s_mov_b32 s{d+2}, {nbytes}")
    a(f"s_mov_b32 s{d+3}, 0x00020000")
def S4(d): return f"s[{d}:{d+3}]"
STK = ENV("STK", "start,xin,p1c,p1st,pre4,b4,loop1,ust,pre7,loop2,end").split(",")
def stamp(a, n):
    if STAMPS and n in STK:
        i = STK.index(n)
        a(f"s_memrealtime s[{80+2*i}:{81+2*i}]")
def stamp_flush(a):
    if not STAMPS: return
    a("s_waitcnt vmcnt(0)")
    stamp(a, 'end')
    a("s_waitcnt lgkmcnt(0)")
    for i in range(11): a(f"v_mov_b32 v{240+i}, s{80+2*i}")
    a("s_lshl_b32 s60, s2, 3")
    a(f"s_add_u32 s60, s60, s{sWAVE}")
    a("s_lshl_b32 s60, s60, 6")
    a(f"s_add_u32 s60, s60, {WS_DBG}")
    a("v_mov_b32 v239, 0")
    if ENV("DBG", 0):
        a("s_load_dwordx2 s[64:65], s[0:1], 80")
        a("s_waitcnt lgkmcnt(0)")
        srd(a, 68, 64, 256)
        a("v_not_b32 v238, v240")
        a("s_mov_b64 exec, 1")
        a(f"buffer_atomic_umax v238, v239, s[68:71], 0 offen")
        for i in range(1, 11): a(f"buffer_atomic_umax v{240+i}, v239, s[68:71], 0 offen offset:{4*i}")
        a(f"buffer_atomic_umax v240, v239, s[68:71], 0 offen offset:44")
        a("s_mov_b64 exec, -1")
        return
    a("s_mov_b64 exec, 1")
    for q in range(3): a(f"buffer_store_dwordx4 v[{240+4*q}:{243+4*q}], v239, {S4(SWS)}, s60 offen offset:{16*q}")
    a("s_mov_b64 exec, -1")
def dpp_reduce(a, regs):
    for mod in ("quad_perm:[1,0,3,2] row_mask:0xf bank_mask:0xf", "quad_perm:[2,3,0,1] row_mask:0xf bank_mask:0xf",
                "row_half_mirror row_mask:0xf bank_mask:0xf", "row_mirror row_mask:0xf bank_mask:0xf",
                "row_bcast:15 row_mask:0xa bank_mask:0xf", "row_bcast:31 row_mask:0xc bank_mask:0xf"):
        for r in regs: a(f"v_add_f32_dpp v{r}, v{r}, v{r} {mod}")
def unpack(a, lo, hi, src):
    a(f"v_lshlrev_b32 v{lo}, 16, v{src}")
    a(f"v_and_b32 v{hi}, 0xffff0000, v{src}")
_uid = [0]
def uid(p): _uid[0] += 1; return f"L_{p}_{_uid[0]}"

def set_flag(a, off_s):
    a(f"s_add_u32 s{off_s}, s{off_s}, {WS_FLG}")
    a(f"v_mov_b32 v13, s{sTAG}")
    a("v_mov_b32 v14, 0")
    a("s_mov_b64 exec, 1")
    a(f"buffer_store_dword v13, v14, {S4(SWS)}, s{off_s} offen {PM}")
    a("s_mov_b64 exec, -1")

def poll(a, off_s, nflags, vt=13):
    L, Ld = uid("poll"), uid("polld")
    a(f"s_add_u32 s{off_s}, s{off_s}, {WS_FLG}")
    n1 = min(nflags, 64)
    a(f"v_min_u32 v{vt}, {n1-1}, v2")
    a(f"v_lshlrev_b32 v{vt}, 6, v{vt}")
    a(f"v_add_u32 v{vt}, s6, v{vt}")
    a(f"s_mov_b32 s79, {POLL_MAX}")
    if nflags > 64: a(f"s_add_u32 s78, s{off_s}, 4096")
    a.wait_all(vm=False); a.fence()
    snap_vm = list(a.vm)
    a.label(L)
    a.auto_wait = False
    a(f"buffer_load_dword v{vt+1}, v{vt}, {S4(SWS)}, s{off_s} offen {PM}")
    if nflags > 64: a(f"buffer_load_dword v{vt+2}, v{vt}, {S4(SWS)}, s78 offen {PM}")
    a("s_sub_u32 s79, s79, 1")
    a("s_waitcnt vmcnt(0)")
    a(f"v_cmp_ne_u32 vcc, s{sTAG}, v{vt+1}")
    if nflags > 64:
        a(f"v_cmp_ne_u32 s[76:77], s{sTAG}, v{vt+2}")
        a("s_nop 1")
        a("s_or_b64 vcc, vcc, s[76:77]")
    else:
        a("s_nop 1")
    a("s_cmp_eq_u64 vcc, 0")
    a(f"s_cbranch_scc1 {Ld}")
    a("s_cmp_eq_u32 s79, 0")
    a(f"s_cbranch_scc1 {Ld}")
    a(f"s_sleep {PSLEEP}")
    a(f"s_branch {L}")
    a.label(Ld)
    a.auto_wait = True
    a.reset_state()

vW0, vW1, vA, vT, vL16 = 4, 5, 6, 8, 3
ACC, WF, AF, RS = 16, 80, 112, 112 + 16 * PA
sRING, sW, sA0, sA, sROT, sSL = 58, 59, 60, 61, 74, 75
ROT = ENV('ROT', 0)
ROT2 = ENV('ROT2', 0)

def poll_pre(a, off, vt):
    a(f"v_lshlrev_b32 v{vt}, 6, v2")
    a(f"s_mov_b32 s78, {WS_FLG + off}")
    a(f"s_mov_b32 s79, {WS_FLG + off + 4096}")
    a(f"buffer_load_dword v{vt+1}, v{vt}, {S4(SWS)}, s78 offen {PM}")
    a(f"buffer_load_dword v{vt+2}, v{vt}, {S4(SWS)}, s79 offen {PM}")
def poll_fin(a, off, vt, off_s):
    L = uid("pf")
    a(f"v_cmp_ne_u32 vcc, s{sTAG}, v{vt+1}")
    a(f"v_cmp_ne_u32 s[76:77], s{sTAG}, v{vt+2}")
    a("s_or_b64 vcc, vcc, s[76:77]")
    a("s_cmp_eq_u64 vcc, 0")
    a.wait_all(); a.fence()
    a(f"s_cbranch_scc1 {L}")
    a(f"s_mov_b32 s{off_s}, {off}")
    poll(a, off_s, 128, vt=vt)
    a.label(L)
    a.reset_state()

def gpoll(a, groups, vt=(12, 13, 250, 251), sleep=None, behind=None, need=None, lanes=None):
    L, Ld = uid("gp"), uid("gpd")
    for k, (so, n) in enumerate(groups):
        a(f"v_min_u32 v{vt[k]}, {n-1}, v2")
        a(f"v_lshlrev_b32 v{vt[k]}, 6, v{vt[k]}")
        a(f"v_add_u32 v{vt[k]}, s6, v{vt[k]}")
    L2 = uid("gpc")
    after = []
    if behind:
        for k, (so, n) in enumerate(groups):
            a(f"buffer_load_dword v{vt[2+k]}, v{vt[k]}, {S4(SWS)}, s{so} offen {PM}")
        n0 = len(a.vm)
        behind()
        after = a.vm[n0:] if len(a.vm) < 63 else None
        assert after is not None
        a(f"s_waitcnt vmcnt({len(after)})")
        a(f"s_mov_b32 s79, {POLL_MAX}")
        a.wait_all(vm=False); a.fence()
        a(f"s_branch {L2}")
    else:
        a(f"s_mov_b32 s79, {POLL_MAX}")
        a.wait_all(vm=False); a.fence()
    if lanes: a(f"s_mov_b64 exec, {lanes}")
    a.label(L)
    a.auto_wait = False
    for k, (so, n) in enumerate(groups):
        a(f"buffer_load_dword v{vt[2+k]}, v{vt[k]}, {S4(SWS)}, s{so} offen {PM}")
    a("s_sub_u32 s79, s79, 1")
    a("s_waitcnt vmcnt(0)")
    a.label(L2)
    a(f"v_cmp_ne_u32 vcc, s{sTAG}, v{vt[2]}")
    if len(groups) > 1:
        a(f"v_cmp_ne_u32 s[70:71], s{sTAG}, v{vt[3]}")
        a("s_nop 1")
        a("s_or_b64 vcc, vcc, s[70:71]")
    else:
        a("s_nop 1")
    if need:
        a("s_mov_b64 s[70:71], vcc")
        a(f"s_and_b32 s78, vcc_lo, {need}")
        a(f"s_cbranch_scc0 {Ld}")
    else:
        a("s_cmp_eq_u64 vcc, 0")
        a(f"s_cbranch_scc1 {Ld}")
    a("s_cmp_eq_u32 s79, 0")
    a(f"s_cbranch_scc1 {Ld}")
    a("s_mov_b64 exec, vcc")
    a(f"s_sleep {PSLEEP if sleep is None else sleep}")
    a(f"s_branch {L}")
    a.label(Ld)
    a("s_mov_b64 exec, -1")
    a.auto_wait = True
    a.reset_state()
    a.vm = list(after)

def prefetch_loop(a, groups, sleep):
    L, Ld = uid("pl"), uid("pld")
    a(f"s_mov_b32 s79, {POLL_MAX}")
    a.wait_all(vm=False); a.fence()
    a.label(L)
    a.auto_wait = False
    for k, (pd, vf, sf, vd, sd) in enumerate(groups):
        Ls = uid("pls")
        a(f"s_mov_b64 exec, s[{pd}:{pd+1}]")
        a(f"s_cbranch_execz {Ls}")
        a(f"buffer_load_dword v{14+k}, v{vf}, {S4(SWS)}, s{sf} offen {PM}")
        a.label(Ls)
    a("s_waitcnt vmcnt(0)")
    for k, (pd, vf, sf, vd, sd) in enumerate(groups):
        Ls = uid("pls")
        a(f"s_mov_b64 exec, s[{pd}:{pd+1}]")
        a(f"v_cmp_eq_u32 vcc, s{sTAG}, v{14+k}")
        a("s_nop 1")
        a(f"s_andn2_b64 s[{pd}:{pd+1}], s[{pd}:{pd+1}], vcc")
        a("s_mov_b64 exec, vcc")
        a(f"s_cbranch_execz {Ls}")
        a(f"buffer_load_dword v1, v{vd}, {S4(SWS)}, s{sd} offen")
        a.label(Ls)
    a("s_mov_b64 exec, -1")
    if len(groups) > 1: a(f"s_or_b64 vcc, s[{groups[0][0]}:{groups[0][0]+1}], s[{groups[1][0]}:{groups[1][0]+1}]")
    else: a(f"s_mov_b64 vcc, s[{groups[0][0]}:{groups[0][0]+1}]")
    a("s_cmp_eq_u64 vcc, 0")
    a(f"s_cbranch_scc1 {Ld}")
    a("s_sub_u32 s79, s79, 1")
    a(f"s_cbranch_scc1 {Ld}")
    a(f"s_sleep {sleep}")
    a(f"s_branch {L}")
    a.label(Ld)
    a.auto_wait = True
    a.reset_state()

def prefetch_h(a):
    a(f"s_lshr_b32 s62, s{sXCD}, 1")
    a("s_mul_i32 s62, s62, 7")
    a(f"s_sub_u32 s62, s{sFT1}, s62")
    a("v_lshrrev_b32 v4, 3, v2")
    a("v_mul_u32_u24 v4, 7, v4")
    a("v_add_u32 v4, s62, v4")
    a("v_and_b32 v5, 7, v2")
    a("v_lshlrev_b32 v5, 7, v5")
    a("v_lshlrev_b32 v6, 6, v4")
    a("v_lshl_add_u32 v7, v4, 10, v5")
    a("v_cmp_gt_u32 vcc, 8, v4")
    a("s_mov_b64 s[70:71], -1")
    a("s_mov_b64 s[72:73], vcc")
    a(f"s_bfe_u32 s63, s{sWAVE}, 0x10001")
    a("s_lshl_b32 s63, s63, 12")
    a(f"s_add_u32 s63, s63, {WS_FLG + F_H}")
    a(f"s_add_u32 s68, s63, {56*64}")
    a(f"s_lshl_b32 s69, s{sDT1}, 18")
    a(f"s_and_b32 s76, s{sWAVE}, 3")
    a("s_lshl_b32 s76, s76, 16")
    a("s_add_u32 s69, s69, s76")
    if WS_HT: a(f"s_add_u32 s69, s69, {WS_HT}")
    a(f"s_add_u32 s76, s69, {56*1024}")
    prefetch_loop(a, [(70, 6, 63, 7, 69), (72, 6, 68, 7, 76)], HSLEEP)

def prefetch_u(a):
    a("v_lshrrev_b32 v4, 3, v2")
    a("v_and_b32 v5, 7, v2")
    a("v_lshlrev_b32 v5, 7, v5")
    a("v_lshlrev_b32 v6, 6, v4")
    a("v_lshl_add_u32 v7, v4, 13, v5")
    a("s_mov_b32 s70, -1")
    a("s_mov_b32 s71, 0x00ffffff")
    a(f"s_and_b32 s76, s{sWAVE}, 3")
    a(f"s_lshl_b32 s63, s{sDT2}, 11")
    a(f"s_mul_i32 s68, s76, {7*64}")
    a("s_add_u32 s63, s63, s68")
    a(f"s_add_u32 s63, s63, {WS_FLG + F_U}")
    a(f"s_mul_i32 s69, s{sDT2}, {224*1024}")
    a(f"s_mul_i32 s68, s76, {56*1024}")
    a("s_add_u32 s69, s69, s68")
    a(f"s_and_b32 s68, s{sST2}, 7")
    a("s_lshl_b32 s68, s68, 10")
    a("s_add_u32 s69, s69, s68")
    a(f"s_add_u32 s69, s69, {WS_UT}")
    prefetch_loop(a, [(70, 6, 63, 7, 69)], USLEEP)

def wlane(a, r0, r1, rowstride, t0, t1):
    a(f"v_lshrrev_b32 v{t0}, 3, v2")
    a(f"s_mov_b32 s79, {rowstride}")
    a(f"v_mul_lo_u32 v{r0}, v{t0}, s79")
    if MF32:
        a(f"v_lshlrev_b32 v{t0}, 4, v2")
        a(f"v_and_b32 v{t0}, 0x70, v{t0}")
        a(f"v_lshlrev_b32 v{t1}, 2, v2")
        a(f"v_and_b32 v{t1}, 64, v{t1}")
        a(f"v_xor_b32 v{t0}, v{t0}, v{t1}")
        a(f"v_add_u32 v{r0}, v{r0}, v{t0}")
        a(f"v_mov_b32 v{r1}, v{r0}")
        return
    a(f"v_bfe_u32 v{t0}, v2, 1, 2")
    a(f"v_bfe_u32 v{t1}, v2, 4, 1")
    a(f"v_xor_b32 v{t0}, v{t0}, v{t1}")
    a(f"v_lshl_add_u32 v{r0}, v{t0}, 5, v{r0}")
    a(f"v_and_b32 v{t0}, 1, v2")
    a(f"v_lshl_add_u32 v{r0}, v{t0}, 4, v{r0}")
    a(f"v_xor_b32 v{r1}, 64, v{r0}")
def gemm_lane_consts(a, rowstride):
    t0, t1 = 12, 13
    a(f"s_lshl_b32 s{sRING}, s{sWAVE}, 15")
    wlane(a, vW0, vW1, rowstride, t0, t1)
    if MF32:
        a(f"v_lshrrev_b32 v{t1}, 5, v2")
        a(f"v_lshlrev_b32 v{vA}, 10, v{t1}")
        a(f"v_and_b32 v{t0}, 31, v2")
        a(f"v_lshl_add_u32 v{vA}, v{t0}, 4, v{vA}")
        a(f"v_lshlrev_b32 v{vT}, 10, v{t1}")
        a(f"v_bfe_u32 v{t0}, v2, 2, 2")
        a(f"v_lshl_add_u32 v{vT}, v{t0}, 7, v{vT}")
        a(f"v_bfe_u32 v{t0}, v2, 3, 1")
        a(f"v_lshl_add_u32 v{vT}, v{t0}, 6, v{vT}")
        a(f"v_bfe_u32 v{t0}, v2, 4, 1")
        a(f"v_lshl_add_u32 v{vT}, v{t0}, 5, v{vT}")
        a(f"v_and_b32 v{t0}, 3, v2")
        a(f"v_lshl_add_u32 v{vT}, v{t0}, 3, v{vT}")
        a(f"v_add_u32 v{vT}, s{sRING}, v{vT}")
        a(f"v_xor_b32 v{vT+1}, 64, v{vT}")
        a(f"v_add_u32 v7, s{sRING}, v{vL16}")
        return
    a(f"v_lshrrev_b32 v{t1}, 4, v2")
    a(f"v_lshlrev_b32 v{vA}, 10, v{t1}")
    a(f"v_and_b32 v{t0}, 15, v2")
    a(f"v_lshl_add_u32 v{vA}, v{t0}, 4, v{vA}")
    a(f"v_lshlrev_b32 v{vT}, 10, v{t1}")
    a(f"v_bfe_u32 v{t0}, v2, 2, 2")
    a(f"v_lshl_add_u32 v{vT}, v{t0}, 7, v{vT}")
    a(f"v_bfe_u32 v{t0}, v2, 3, 2")
    a(f"v_lshl_add_u32 v{vT}, v{t0}, 5, v{vT}")
    a(f"v_and_b32 v{t0}, 3, v2")
    a(f"v_lshl_add_u32 v{vT}, v{t0}, 3, v{vT}")
    a(f"v_add_u32 v{vT}, s{sRING}, v{vT}")
    for t in range(1, 4): a(f"v_xor_b32 v{vT+t}, {32*t}, v{vT}")
    a(f"v_add_u32 v7, s{sRING}, v{vL16}")

class Gemm:
    def __init__(s, a, nslab, slots, kinds, srdW, wbase_s, jstep, sstep, w_is_A, vw=(4, 5), rot=74):
        s.vw, s.rot = vw, rot
        s.a, s.n, s.slots, s.kinds, s.srdW, s.wb, s.jstep, s.sstep, s.w_is_A = a, nslab, slots, kinds, srdW, wbase_s, jstep, sstep, w_is_A
        s.tok = {}
        s.regidx = {sg: i for i, sg in enumerate([x for x in range(nslab) if kinds[x] == 'reg'])}
    def wload(s, sig, jj):
        v = s.vw[jj % 2]
        o = []
        if jj == 0:
            o += s.actual(sig, sSL, sW) + [f"s_mul_i32 s{sSL}, s{sSL}, {s.sstep}", f"s_add_u32 s{sSL}, s{sSL}, s{s.wb}"]
        o.append(f"s_add_u32 s{sW}, s{sSL}, {jj * s.jstep}")
        if s.kinds[sig] == 'reg':
            r = RS + s.regidx[sig] * 16 + jj * 4
            o.append(f"buffer_load_dwordx4 {vr(r,4)}, v{v}, {S4(s.srdW)}, s{sW} offen")
        else:
            o.append(f"s_add_u32 m0, s{sRING}, {s.slots[sig]*4096 + jj*1024}")
            o.append(f"buffer_load_dwordx4 v{v}, {S4(s.srdW)}, s{sW} offen lds")
        return o
    def actual(s, sig, d, tmp):
        o = [f"s_add_u32 s{d}, s{s.rot}, {sig}"]
        if s.n == 16: o.append(f"s_and_b32 s{d}, s{d}, 15")
        else: o += [f"s_sub_u32 s{tmp}, s{d}, {s.n}", f"s_min_u32 s{d}, s{d}, s{tmp}"]
        return o
    def emit_w(s, sig, jjs=range(4)):
        if s.w_is_A: stamp(s.a, f"w{sig}")
        for jj in jjs:
            for l in s.wload(sig, jj):
                ins = s.a(l)
                if 'lds' in l and 'buffer' in l: s.tok.setdefault(sig, []).append(ins)
    def aload(s, sig, mt):
        r = AF + (sig % PA) * 16 + mt * 4
        o = []
        if mt == 0: o += s.actual(sig, sA, 73) + [f"s_lshl_b32 s{sA}, s{sA}, 12", f"s_add_u32 s{sA}, s{sA}, s{sA0}"]
        o.append(f"buffer_load_dwordx4 {vr(r,4)}, v{vA}, {S4(SWS)}, s{sA} offen offset:{(mt >> 1) * 2048 + (mt & 1) * 512 if MF32 else mt*256} {LD}")
        return o
    def trreads(s, sig):
        out = []
        for t in range(4):
            for u in range(2):
                r = WF + (sig & 1) * 16 + t * 4 + 2 * u
                if MF32:
                    out.append(f"ds_read_b64_tr_b16 {vr(r,2)}, v{vT + (t & 1)} offset:{s.slots[sig]*4096 + (t >> 1)*2048 + u*512}")
                    continue
                out.append(f"ds_read_b64_tr_b16 {vr(r,2)}, v{vT+t} offset:{s.slots[sig]*4096 + u*512}")
        return out
    def run(s, extra=None, drain_first=False, post=None, pwrite=None):
        a = s.a; M = "v_mfma_f32_16x16x32_bf16"
        for sig in range(min(PA, s.n)):
            for mt in range(4):
                for l in s.aload(sig, mt): a(l)
        if post: post()
        if drain_first: a.wait_tok(a.vm[0])
        a.wait_tok(*s.tok.get(0, []))
        rt = {0: [a(l) for l in s.trreads(0)]}
        wr = {}; done = []
        for sig in range(s.n):
            stamp(a, f"g{1 if s.w_is_A else 2}_{sig}")
            nxt = [x for x in range(sig + 1, s.n) if s.slots[x] == s.slots[sig] and s.kinds[x] != 'pre']
            fill = nxt[0] if nxt else None
            groups = [[] for _ in range(16)]
            trn = s.trreads(sig + 1) if sig + 1 < s.n else []
            for i, l in enumerate(trn): groups[6 + i].append(('tr', l))
            if fill is not None:
                for jj in range(4):
                    if s.kinds[fill] == 'reg':
                        r = RS + s.regidx[fill] * 16 + jj * 4
                        groups[jj].append(('wr', f"ds_write_b128 v7, {vr(r,4)} offset:{s.slots[fill]*4096 + jj*1024}"))
                    else:
                        groups[jj].append(('dma', jj))
            if sig + PA < s.n:
                for mt in range(4): groups[12 + mt].append(('act', mt))
            ex = extra(sig) if extra else []
            for i, g in enumerate(ex): groups[min(15, 1 + i * 14 // max(1, len(ex)))].append(('ex', g))
            if fill is not None or ex: a.wait_tok(*rt[sig])
            rt[sig + 1] = []
            if MF32:
                def do(grp):
                    for kind, x in grp:
                        if kind == 'tr':
                            if not rt[sig + 1]: a.wait_tok(*s.tok.get(sig + 1, []), *wr.get(sig + 1, []))
                            rt[sig + 1].append(a(x))
                        elif kind == 'wr': wr.setdefault(fill, []).append(a(x))
                        elif kind == 'dma': s.emit_w(fill, [x])
                        elif kind == 'act':
                            for l in s.aload(sig + PA, x): a(l)
                        elif kind == 'ex': x()
                g8 = [[] for _ in range(8)]
                for gi_, g in enumerate(groups):
                    for kind, x in g:
                        if kind == 'tr': g8[3 + (gi_ - 6) * 5 // 8].append((kind, x))
                        elif kind == 'act': g8[4 + x].append((kind, x))
                        elif kind in ('wr', 'dma'): g8[gi_].append((kind, x))
                        else: g8[gi_ // 2].append((kind, x))
                order = [(ks, t, mt) for ks in range(2) for t in range(2) for mt in range(2)]
                last = pwrite and sig == s.n - 1
                if last: order = [(ks, t, mt) for t in range(2) for mt in range(2) for ks in range(2)]
                for k, (ks, t, mt) in enumerate(order):
                    wf = vr(WF + (sig & 1) * 16 + (ks * 2 + t) * 4, 4); af = vr(AF + (sig % PA) * 16 + (ks * 2 + mt) * 4, 4)
                    bi = (t * 2 + mt) if s.w_is_A else (mt * 2 + t)
                    acc = vr(ACC + bi * 16, 16)
                    A_, B_ = (wf, af) if s.w_is_A else (af, wf)
                    a(f"v_mfma_f32_32x32x16_bf16 {acc}, {A_}, {B_}, {'0' if (sig == 0 and ks == 0) else acc}")
                    do(g8[k])
                    if last and ks == 1: done.append(bi)
                    if last and k in (6, 7):
                        for q in range(4): a(pwrite(done[k - 6] * 4 + q))
                if last:
                    for bi in done[2:]:
                        for q in range(4): a(pwrite(bi * 4 + q))
                    done = []
                continue
            k = 0
            for t in range(4):
                for mt in range(4):
                    wf = vr(WF + (sig & 1) * 16 + t * 4, 4); af = vr(AF + (sig % PA) * 16 + mt * 4, 4)
                    if s.w_is_A: acc = vr(ACC + (t * 4 + mt) * 4, 4); A_, B_ = wf, af
                    else:        acc = vr(ACC + (mt * 4 + t) * 4, 4); A_, B_ = af, wf
                    a(f"{M} {acc}, {A_}, {B_}, {'0' if sig == 0 else acc}")
                    for kind, x in groups[k]:
                        if kind == 'tr':
                            if not rt[sig + 1]: a.wait_tok(*s.tok.get(sig + 1, []), *wr.get(sig + 1, []))
                            rt[sig + 1].append(a(x))
                        elif kind == 'wr': wr.setdefault(fill, []).append(a(x))
                        elif kind == 'dma': s.emit_w(fill, [x])
                        elif kind == 'act':
                            for l in s.aload(sig + PA, x): a(l)
                        elif kind == 'ex': x()
                    if pwrite and sig == s.n - 1:
                        done.append((t * 4 + mt) if s.w_is_A else (mt * 4 + t))
                        if k >= 8: a(pwrite(done[k - 8]))
                    k += 1
        if pwrite:
            for b in done[8:]: a(pwrite(b))

P1_EX, P1_GX, CNT, P1_TB = AP, AP + 16384, LDS_TOTAL - 64, AP + 21504
P1_XR = P1_EX
P1_WR, P1_WI = 0, 32768
LX, LF, LP, LGW = 16, 32, 64, 96
def hbar(a, cnt, target):
    a.wait_all(vm=False)
    a(f"v_mov_b32 v12, {CNT + 4*cnt}")
    a("v_mov_b32 v13, 1")
    a("s_mov_b64 exec, 1")
    a("ds_add_u32 v12, v13")
    a("s_mov_b64 exec, -1")
    wait_word(a, 12, target, sleep=0)

def phase1_ln(a):
    F = lambda r, e: LF + 8 * r + e
    P = lambda r, e: LP + 8 * r + e
    R = range(4)
    a(f"buffer_load_dwordx4 {vr(LGW,4)}, v3, {S4(SGW)}, 0 offen")
    if WJOBH:
        a("v_and_b32 v9, 15, v2")
        w_special_pre(a)
    stamp(a, 'ea0')
    a("s_barrier")
    a("v_mov_b32 v108, 0x3b000000")
    a("v_lshlrev_b32 v11, 5, v2")
    a("v_add_u32 v11, s64, v11")
    a("v_and_b32 v4, 255, v0")
    a("v_lshlrev_b32 v4, 2, v4")
    a(f"v_add_u32 v4, {P1_EX}, v4")
    a(f"s_lshl_b32 s72, s{sC2}, 6")
    a(f"s_add_u32 s72, s72, s{sN2}")
    a("s_lshl_b32 s72, s72, 6")
    a("s_lshl_b32 s70, s72, 4")
    a(f"s_lshl_b32 s71, s{sC2}, 16")
    a("s_add_u32 s70, s70, s71")
    a(f"s_and_b32 s71, s{sWAVE}, 3")
    a(f"s_lshl_b32 s71, s71, 18")
    a("s_add_u32 s70, s70, s71")
    if WS_HT: a(f"s_add_u32 s70, s70, {WS_HT}")
    if F_H: a(f"s_add_u32 s72, s72, {F_H}")
    S_, T_, M_, V_, M2, V2 = 100, 104, 112, 116, 152, 160
    P2 = lambda r: f"v[{r}:{r+1}]"
    NEG1 = "neg_lo:[0,1] neg_hi:[0,1]"
    SP_ = 168
    for r in R:
        for q in range(4): unpack(a, F(r, 2*q), F(r, 2*q+1), LX + 4*r + q)
        if r == 0: stamp(a, 'xin')
        a(f"v_pk_add_f32 {P2(SP_+4*r)}, {P2(F(r,0))}, {P2(F(r,2))}")
        a(f"v_pk_add_f32 {P2(SP_+4*r+2)}, {P2(F(r,4))}, {P2(F(r,6))}")
        a(f"v_pk_add_f32 {P2(SP_+4*r)}, {P2(SP_+4*r)}, {P2(SP_+4*r+2)}")
        a(f"v_add_f32 v{S_+r}, v{SP_+4*r}, v{SP_+4*r+1}")
    dpp_reduce(a, [S_ + r for r in R])
    for r in R: a(f"v_readlane_b32 s{64+r}, v{S_+r}, 63")
    for r in R:
        a(f"v_mul_f32 v{M2+2*r}, s{64+r}, v108"); a(f"v_mul_f32 v{M2+2*r+1}, s{64+r}, v108")
    for q in range(4):
        for r in R: a(f"v_pk_add_f32 {P2(P(r,2*q))}, {P2(F(r,2*q))}, {P2(M2+2*r)} {NEG1}")
        for r in R:
            if q == 0: a(f"v_pk_mul_f32 {P2(SP_+2*r)}, {P2(P(r,0))}, {P2(P(r,0))}")
            else: a(f"v_pk_fma_f32 {P2(SP_+2*r)}, {P2(P(r,2*q))}, {P2(P(r,2*q))}, {P2(SP_+2*r)}")
    for r in R: a(f"v_add_f32 v{S_+r}, v{SP_+2*r}, v{SP_+2*r+1}")
    for r in R:
        a(f"v_cvt_pk_bf16_f32 v{T_+r}, v{M2+2*r}, v{M2+2*r}")
    for r in R: unpack(a, M2 + 2*r, M2 + 2*r + 1, T_ + r)
    dpp_reduce(a, [S_ + r for r in R])
    for r in R: a(f"v_readlane_b32 s{64+r}, v{S_+r}, 63")
    def rnd4(X):
        for p in range(2): a(f"v_cvt_pk_bf16_f32 v{T_+p}, v{X+2*p}, v{X+2*p+1}")
        for p in range(2): unpack(a, X + 2*p, X + 2*p + 1, T_ + p)
    sub = [f"v_pk_add_f32 {P2(P(r,2*q))}, {P2(F(r,2*q))}, {P2(M2+2*r)} {NEG1}" for q in range(4) for r in R]
    cv = [f"v_cvt_pk_bf16_f32 v{120 + 4*r + q}, v{P(r,2*q)}, v{P(r,2*q+1)}" for q in range(4) for r in R]
    for l in sub[:4]: a(l)
    for r in R: a(f"v_mul_f32 v{V_+r}, s{64+r}, v108")
    rnd4(V_)
    for r in R: a(f"v_add_f32 v{V_+r}, 0x3727c5ac, v{V_+r}")
    rnd4(V_)
    for r in R: a(f"v_sqrt_f32 v{V_+r}, v{V_+r}")
    for l in sub[4:8]: a(l)
    rnd4(V_)
    for r in R:
        a(f"v_rcp_f32 v{V2+2*r}, v{V_+r}"); a(f"v_rcp_f32 v{V2+2*r+1}, v{V_+r}")
    for l in sub[8:]: a(l)
    for l in cv: a(l)
    for p in range(2):
        for r in (2*p, 2*p+1):
            for q in range(4): unpack(a, P(r, 2*q), P(r, 2*q+1), 120 + 4*r + q)
            for q in range(4): a(f"v_pk_mul_f32 {P2(P(r,2*q))}, {P2(P(r,2*q))}, {P2(V2+2*r)}")
        for e in range(8): a(f"v_cvt_pk_bf16_f32 v{176 + 8*p + e}, v{P(2*p,e)}, v{P(2*p+1,e)}")
        a(f"ds_write_b128 v11, {vr(176 + 8*p, 4)} offset:{2048*p}")
        a(f"ds_write_b128 v11, {vr(180 + 8*p, 4)} offset:{2048*p + 16}")
    stamp(a, 'p1c')
    hbar(a, 8, 4)
    for dh in range(2):
        for cc in range(2):
            for hh in range(2):
                o = 32 * cc + 16 * hh + 4 * dh
                a(f"ds_read2st64_b32 {vr(136 + 8*dh + 4*cc + 2*hh, 2)}, v4 offset0:{o} offset1:{o+8}")
    for dh in range(2):
        for cc in range(2):
            a(f"s_add_u32 s71, s70, {dh * (1 << 20) + cc * 65536}")
            a(f"buffer_store_dwordx4 {vr(136 + 8*dh + 4*cc, 4)}, v3, {S4(SWS)}, s71 offen {ST}")
    stamp(a, 'p1st')
    lds_inc(a, 11)
    tag_ready(a)
    if not WJOBH:
        arrive(a, 0, [72], 0, 4)
        return
    a("v_bfe_u32 v7, v0, 2, 6")
    a("v_and_b32 v6, 3, v2")
    a("v_lshlrev_b32 v8, 13, v7")
    a("v_lshl_add_u32 v8, v6, 4, v8")
    a(f"v_mov_b32 v12, {CNT + 40}")
    wait_word(a, 12, 4, sleep=0)
    w_relayout(a, WR=176, WI=192, flagbase=F_H)
    arrive(a, 0, [72], 5, 4)
    arrive(a, 3, [69], 0, 4)

def lds_inc(a, cnt, t=(12, 13)):
    a(f"v_mov_b32 v{t[0]}, {CNT + 4*cnt}")
    a(f"v_mov_b32 v{t[1]}, 1")
    a("s_mov_b64 exec, 1")
    a(f"ds_add_u32 v{t[0]}, v{t[1]}")
    a("s_mov_b64 exec, -1")
def touch_w1(a, t=(12, 13)):
    if TBIT == 9:
        a(f"v_lshrrev_b32 v{t[0]}, 3, v2")
        a(f"v_and_b32 v{t[1]}, 7, v2")
        a(f"v_mul_u32_u24 v{t[0]}, 3584, v{t[0]}")
        a(f"v_lshl_add_u32 v{t[0]}, v{t[1]}, 7, v{t[0]}")
        a(f"s_lshl_b32 s70, s{sIDX}, 2")
        a(f"s_add_u32 s70, s70, s{sWAVE}")
        a("s_lshl_b32 s70, s70, 1")
        a(f"s_and_b32 s71, s{sXCD}, 1")
        a("s_add_u32 s70, s70, s71")
        a(f"s_mul_i32 s70, s70, {8*3584}")
        a(f"s_lshr_b32 s71, s{sXCD}, 1")
        a("s_lshl_b32 s72, s71, 10")
        a("s_cmp_eq_u32 s71, 3")
        a(f"s_cselect_b32 s72, {22*128}, s72")
        a("s_add_u32 s70, s70, s72")
        a(f"s_cmp_lt_u32 s{sXCD}, 4")
        a(f"s_cselect_b32 s71, 7, 5")
        a(f"v_cmp_ge_u32 s[100:101], s71, v{t[1]}")
        return
    if MAP1 == 18:
        a(f"v_lshrrev_b32 v{t[0]}, 2, v2")
        a(f"v_and_b32 v{t[1]}, 3, v2")
        a(f"v_mul_u32_u24 v{t[0]}, 3584, v{t[0]}")
        a(f"v_lshl_add_u32 v{t[0]}, v{t[1]}, 7, v{t[0]}")
        a(f"s_lshl_b32 s70, s{sIDX}, 2")
        a(f"s_add_u32 s70, s70, s{sWAVE}")
        a(f"s_mul_i32 s70, s70, {16*3584}")
        a(f"s_lshr_b32 s71, s{sXCD}, 1")
        a("s_mul_i32 s71, s71, 896")
        a("s_add_u32 s70, s70, s71")
        a(f"s_and_b32 s71, s{sXCD}, 1")
        a("s_mul_i32 s71, s71, 384")
        a("s_add_u32 s70, s70, s71")
        return
    a(f"v_mul_u32_u24 v{t[0]}, 37, v2")
    a(f"v_lshrrev_b32 v{t[0]}, 8, v{t[0]}")
    a(f"v_mul_u32_u24 v{t[1]}, 7, v{t[0]}")
    a(f"v_sub_u32 v{t[1]}, v2, v{t[1]}")
    a(f"v_mul_u32_u24 v{t[0]}, 3584, v{t[0]}")
    a(f"v_lshl_add_u32 v{t[0]}, v{t[1]}, 7, v{t[0]}")
    a(f"s_lshl_b32 s70, s{sIDX}, 2")
    a(f"s_add_u32 s70, s70, s{sWAVE}")
    a(f"s_mul_i32 s70, s70, {16*3584}")
    a(f"s_lshr_b32 s71, s{sXCD}, 1")
    a("s_mul_i32 s71, s71, 896")
    a("s_add_u32 s70, s70, s71")
    a(f"s_and_b32 s71, s{sXCD}, 1")
    a(f"s_mul_i32 s71, s71, {8*3584}")
    a("s_add_u32 s70, s70, s71")
    a(f"s_xor_b32 s71, s71, {8*3584}")
    a("s_add_u32 s71, s71, s70")
    a(f"s_and_b32 s72, s{sXCD}, 1")
    a(f"s_mul_i32 s72, s72, {8*3584}")
    a("s_sub_u32 s71, s71, s72")
def touch_w1_issue(a, t=(150, 151), gemm=True):
    if EDMA and gemm:
        if ETOUCH: touch_w1_issue(a, t, gemm=False)
        for sg in range(EDMA): _g1e[0].emit_w(sg)
        return
    if TBIT == 9:
        a("s_mov_b64 exec, s[100:101]")
        a(f"buffer_load_dword v250, v{t[0]}, {S4(SW1)}, s70 offen")
        a("s_mov_b64 exec, -1")
        return
    if MAP1 == 24: a("s_mov_b32 exec_hi, 0x00ffffff")
    a(f"buffer_load_dword v250, v{t[0]}, {S4(SW1)}, s70 offen")
    if not HALF_T and MAP1 == 24: a(f"buffer_load_dword v251, v{t[0]}, {S4(SW1)}, s71 offen")
    a("s_mov_b32 exec_hi, -1")
def touch_w2(a, t=12, dst=(250, 251)):
    if MAP2 == 18:
        a(f"v_lshrrev_b32 v{t}, 2, v2")
        a(f"v_lshlrev_b32 v{t}, 12, v{t}")
        a(f"v_and_b32 v{t+1}, 3, v2")
        a(f"v_lshl_add_u32 v{t}, v{t+1}, 7, v{t}")
        a(f"s_lshl_b32 s70, s{sIDX}, 2")
        a(f"s_and_b32 s71, s{sWAVE}, 3")
        a("s_add_u32 s70, s70, s71")
        a(f"s_mul_i32 s70, s70, {14*4096}")
        a(f"s_lshl_b32 s71, s{sXCD}, 9")
        a("s_add_u32 s70, s70, s71")
        a("s_mov_b32 exec_hi, 0x00ffffff")
        a(f"buffer_load_dword v{dst[0]}, v{t}, {S4(SW2)}, s70 offen")
        a("s_mov_b32 exec_hi, -1")
        return
    a(f"v_lshrrev_b32 v{t}, 3, v2")
    a(f"v_lshlrev_b32 v{t}, 12, v{t}")
    a(f"v_and_b32 v{t+1}, 7, v2")
    a(f"v_lshl_add_u32 v{t}, v{t+1}, 7, v{t}")
    a(f"s_lshl_b32 s70, s{sIDX}, 2")
    a(f"s_and_b32 s71, s{sWAVE}, 3")
    a("s_add_u32 s70, s70, s71")
    a(f"s_mul_i32 s70, s70, {14*4096}")
    a(f"s_lshr_b32 s71, s{sXCD}, 1")
    a("s_lshl_b32 s71, s71, 10")
    a("s_add_u32 s70, s70, s71")
    a(f"s_add_u32 s71, s70, {8*4096}")
    a(f"buffer_load_dword v{dst[0]}, v{t}, {S4(SW2)}, s70 offen")
    a("s_mov_b32 exec_hi, 0x0000ffff")
    a(f"buffer_load_dword v{dst[1]}, v{t}, {S4(SW2)}, s71 offen")
    a("s_mov_b32 exec_hi, -1")
def touch_w2_8(a):
    if W2T == 'fft':
        a("v_lshrrev_b32 v15, 2, v2")
        a("v_lshlrev_b32 v15, 12, v15")
        a("v_and_b32 v7, 3, v2")
        a("v_lshl_add_u32 v15, v7, 7, v15")
        a("s_and_b32 s70, s63, 31")
        a(f"s_mul_i32 s70, s70, {14*4096}")
        a(f"s_lshl_b32 s71, s{sXCD}, 9")
        a("s_add_u32 s70, s70, s71")
        a("s_mov_b32 exec_hi, 0x00ffffff")
        for i in range(4):
            a.raw(f"    buffer_load_dword v1, v15, {S4(SW2)}, s70 offen")
            if i < 3: a(f"s_add_u32 s70, s70, {448*4096}")
        a("s_mov_b32 exec_hi, -1")
        return
    if MAP2 == 18:
        a("v_lshrrev_b32 v15, 2, v2")
        a("v_lshlrev_b32 v15, 12, v15")
        a("v_and_b32 v7, 3, v2")
        a("v_lshl_add_u32 v15, v7, 7, v15")
        a(f"s_lshl_b32 s70, s{sIDX}, 3")
        a(f"s_add_u32 s70, s70, s{sWAVE}")
        a(f"s_mul_i32 s70, s70, {7*4096}")
        a(f"s_lshl_b32 s71, s{sXCD}, 9")
        a("s_add_u32 s70, s70, s71")
        a("s_mov_b64 exec, 0x0fffffff")
        a(f"buffer_load_dword v1, v15, {S4(SW2)}, s70 offen")
        a("s_mov_b64 exec, -1")
        return
    a("v_lshrrev_b32 v15, 3, v2")
    a("v_lshlrev_b32 v15, 12, v15")
    a("v_and_b32 v7, 7, v2")
    a("v_lshl_add_u32 v15, v7, 7, v15")
    a(f"s_lshl_b32 s70, s{sIDX}, 3")
    a(f"s_add_u32 s70, s70, s{sWAVE}")
    a(f"s_mul_i32 s70, s70, {7*4096}")
    a(f"s_lshr_b32 s71, s{sXCD}, 1")
    a("s_lshl_b32 s71, s71, 10")
    a("s_add_u32 s70, s70, s71")
    a("s_mov_b32 exec_hi, 0x00ffffff")
    a(f"buffer_load_dword v1, v15, {S4(SW2)}, s70 offen")
    a("s_mov_b32 exec_hi, -1")
def tag_ready(a):
    a("s_waitcnt lgkmcnt(0)")
    a(f"s_add_u32 s{sTAG}, s{sTAG}, 0x9e3779b9")

def gate(a):
    L = uid("nogate")
    a(f"s_bitcmp1_b32 s{TREG}, {TB_}")
    a.fence()
    a(f"s_cbranch_scc1 {L}")
    snap = a.snapshot()
    F = lambda r, e: LF + 8 * r + e
    P = lambda r, e: LP + 8 * r + e
    G, S_ = 16, 100
    R = range(4)
    for q in range(4): unpack(a, G + 2*q, G + 2*q + 1, LGW + q)
    for e in range(8):
        for r in R: a(f"v_mul_f32 v{P(r,e)}, v{F(r,e)}, v{G+e}")
    for p in range(2):
        for e in range(8):
            t = 24 + (e & 3)
            a(f"v_cvt_pk_bf16_f32 v{t}, v{P(2*p,e)}, v{P(2*p+1,e)}")
            unpack(a, P(2*p, e), P(2*p+1, e), t)
    for r in R: a(f"v_add_f32 v{S_+r}, v{P(r,0)}, v{P(r,1)}")
    for e in range(2, 8):
        for r in R: a(f"v_add_f32 v{S_+r}, v{S_+r}, v{P(r,e)}")
    dpp_reduce(a, [S_ + r for r in R])
    def rnd4(X):
        for p in range(2): a(f"v_cvt_pk_bf16_f32 v{104+p}, v{X+2*p}, v{X+2*p+1}")
        for p in range(2): unpack(a, X + 2*p, X + 2*p + 1, 104 + p)
    rnd4(S_)
    for r in R: a(f"v_mul_f32 v{S_+r}, 0xbfb8aa3b, v{S_+r}")
    for r in R: a(f"v_exp_f32 v{S_+r}, v{S_+r}")
    for r in R: a(f"v_add_f32 v{S_+r}, 1.0, v{S_+r}")
    for r in R: a(f"v_rcp_f32 v{S_+r}, v{S_+r}")
    rnd4(S_)
    a(f"s_lshl_b32 s73, s{sC2}, 6")
    a(f"s_add_u32 s73, s73, s{sN2}")
    a("s_lshl_b32 s73, s73, 6")
    a(f"s_and_b32 s79, s{sWAVE}, 3")
    a("s_lshl_b32 s79, s79, 4")
    a("s_add_u32 s78, s73, s79")
    a(f"s_add_u32 s78, s78, {WS_G}")
    a(f"s_add_u32 s73, s73, {F_G}")
    a("v_mov_b32 v104, 0")
    a("s_mov_b32 exec_lo, 0")
    a("s_mov_b32 exec_hi, 0x80000000")
    a(f"buffer_store_dwordx4 {vr(S_,4)}, v104, {S4(SWS)}, s78 offen {ST}")
    a("s_mov_b64 exec, -1")
    arrive(a, 2, [73], 0, 4, lowprio=True)
    a.fence()
    a.label(L)
    a.restore(snap)

def arrive(a, cnt, flags, nvm, nw, t=(12, 13), st=78, lowprio=False):
    L = uid("arr")
    a(f"s_waitcnt vmcnt({nvm})")
    stamp(a, f'arr{cnt}')
    a(f"v_mov_b32 v{t[0]}, {CNT + 4*cnt}")
    a(f"v_mov_b32 v{t[1]}, 1")
    a("s_mov_b64 exec, 1")
    a(f"ds_add_rtn_u32 v{t[1]}, v{t[0]}, v{t[1]}")
    a("s_mov_b64 exec, -1")
    a("s_waitcnt lgkmcnt(0)")
    a(f"v_readfirstlane_b32 s{st}, v{t[1]}")
    a(f"s_cmp_lg_u32 s{st}, {nw-1}")
    a(f"s_cbranch_scc1 {L}")
    snap = a.snapshot()
    if lowprio: a("s_setprio 3")
    a(f"v_mov_b32 v{t[1]}, s{sTAG}")
    a(f"v_lshlrev_b32 v{t[0]}, 17, v2")
    a(f"v_add_u32 v{t[0]}, {WS_FLG}, v{t[0]}")
    a(f"s_mov_b64 exec, {(1 << NREP) - 1}")
    for f in flags: a(f"buffer_store_dword v{t[1]}, v{t[0]}, {S4(SWS)}, s{f} offen {PM}")
    a("s_mov_b64 exec, -1")
    if lowprio: a("s_setprio 0")
    a.fence()
    a.label(L)
    a.restore(snap)
def wait_word(a, vaddr, val, tv=13, st=78, sleep=2):
    L, Ld = uid("wc"), uid("wcd")
    a("s_mov_b32 s79, 200000")
    a.wait_all(vm=False); a.fence()
    a.label(L)
    a.auto_wait = False
    a(f"ds_read_b32 v{tv}, v{vaddr}")
    a("s_waitcnt lgkmcnt(0)")
    a(f"v_readfirstlane_b32 s{st}, v{tv}")
    a(f"s_cmp_ge_u32 s{st}, {val}")
    a(f"s_cbranch_scc1 {Ld}")
    a("s_sub_u32 s79, s79, 1")
    a(f"s_cbranch_scc1 {Ld}")
    if sleep: a(f"s_sleep {sleep}")
    a(f"s_branch {L}")
    a.label(Ld)
    a.auto_wait = True

def phase1_fft(a, ti):
    M = "v_mfma_f32_16x16x32_bf16"
    a(f"s_and_b32 s65, s{sWAVE}, 3")
    a("s_lshl_b32 s66, s65, 10")
    for j in range(3):
        a(f"s_add_u32 s67, s66, {4096*j}")
        if j == 2: a("s_min_u32 s67, s67, 9216")
        a(f"s_add_u32 m0, s67, {P1_TB}")
        a(f"s_add_u32 s67, s67, TABLES-{NAME}")
        d2 = a(f"buffer_load_dwordx4 v3, {S4(STB)}, s67 offen lds")
    a("v_and_b32 v9, 15, v2")
    stamp(a, 'ea0')
    a("s_barrier")
    a("v_lshrrev_b32 v4, 4, v2")
    a("v_lshlrev_b32 v5, 9, v4")
    a("v_lshlrev_b32 v4, 8, v4")
    a("v_lshl_add_u32 v4, v9, 3, v4")
    a("v_add_u32 v4, s64, v4")
    a("v_lshl_add_u32 v5, v9, 2, v5")
    a("v_add_u32 v5, s64, v5")
    a(f"v_add_u32 v14, {P1_TB}, v3")
    a("v_bfe_u32 v7, v0, 2, 6")
    a("v_and_b32 v6, 3, v2")
    a("v_and_b32 v15, 1, v2")
    a("v_cmp_eq_u32 vcc, 1, v15")
    a("v_bfe_u32 v10, v2, 1, 1")
    a("v_lshlrev_b32 v10, 13, v10")
    a(f"v_add_u32 v10, {P1_EX}, v10")
    for z in range(4):
        a(f"v_add_u32 v11, {64*z}, v7")
        a(f"v_sub_u32 v12, {512 - 64*z}, v7")
        if z == 0:
            a("v_mov_b32 v13, 256")
            a("v_cmp_eq_u32 s[76:77], 0, v7")
            a("v_cndmask_b32 v12, v12, v13, s[76:77]")
        a("v_cndmask_b32 v11, v11, v12, vcc")
        a(f"v_lshl_add_u32 v{136+z}, v11, 2, v10")
    a("v_lshlrev_b32 v8, 13, v7")
    a("v_lshl_add_u32 v8, v6, 4, v8")
    a(f"s_lshl_b32 s72, s{sC2}, 6")
    a(f"s_add_u32 s72, s72, s{sN2}")
    a("s_lshl_b32 s72, s72, 6")
    a(f"s_add_u32 s70, s72, {WS_Z}")
    a(f"s_add_u32 s72, s72, {F_Z}")
    a.wait_tok(d2)
    stamp(a, 'xin')
    hbar(a, 9, 4)
    AF_ = lambda p, r: 56 + 8 * p + 4 * r
    for p in range(2):
        for r in range(2):
            for u in range(2):
                a(f"ds_read_b64_tr_b16 {vr(AF_(p, r) + 2*u, 2)}, v4 offset:{2048*p + 1024*r + 128*u}")
        if p == 0:
            T = {}
            for n in ['COS0', 'NSIN0', 'SIN0', 'COS1', 'NSIN1', 'SIN1']:
                idx = ti[n]; r_ = 16 + 4 * idx; T[n] = r_
                a(f"ds_read_b128 {vr(r_,4)}, v14 offset:{idx*1024}")
    for n in ['TW0', 'TW1', 'ARE', 'AIM']:
        idx = ti[n]; r_ = 16 + 4 * idx; T[n] = r_
        a(f"ds_read_b128 {vr(r_,4)}, v14 offset:{idx*1024}")
    TR = lambda p, jh, x: 72 + 16 * p + 8 * jh + (0 if x == 're' else 4)
    for p in range(2):
        for jh in range(2):
            a(f"{M} {vr(TR(p,jh,'re'),4)}, {vr(AF_(p,0),4)}, {vr(T[f'COS{jh}'],4)}, 0")
            a(f"{M} {vr(TR(p,jh,'im'),4)}, {vr(AF_(p,0),4)}, {vr(T[f'NSIN{jh}'],4)}, 0")
            a(f"{M} {vr(TR(p,jh,'re'),4)}, {vr(AF_(p,1),4)}, {vr(T[f'SIN{jh}'],4)}, {vr(TR(p,jh,'re'),4)}")
            a(f"{M} {vr(TR(p,jh,'im'),4)}, {vr(AF_(p,1),4)}, {vr(T[f'COS{jh}'],4)}, {vr(TR(p,jh,'im'),4)}")
    for p in range(2):
        for jh in range(2):
            o = 120 + 8 * jh
            for i in range(4):
                tw = T[f'TW{jh}'] + i; re = TR(p, jh, 're') + i; im = TR(p, jh, 'im') + i
                a(f"v_fma_mix_f32 v{o+i}, v{re}, v{tw}, 0 {MIXC}")
                a(f"v_fma_mix_f32 v{o+4+i}, v{im}, v{tw}, 0 {MIXC}")
                a(f"v_fma_mix_f32 v{o+i}, v{im}, v{tw}, v{o+i} {MIXS}")
                a(f"v_fma_mix_f32 v{o+4+i}, -v{re}, v{tw}, v{o+4+i} {MIXS}")
            B = 104 + 8 * p + 4 * jh
            for q in range(4): a(f"v_cvt_pk_bf16_f32 v{B+q}, v{o+2*q}, v{o+2*q+1}")
            a(f"{M} {vr(TR(p,jh,'re'),4)}, {vr(T['ARE'],4)}, {vr(B,4)}, 0")
            a(f"{M} {vr(TR(p,jh,'im'),4)}, {vr(T['AIM'],4)}, {vr(B,4)}, 0")
    for p in range(2):
        for jh in range(2):
            for i in range(4):
                r = 56 + 8 * p + 4 * jh + i
                a(f"v_cvt_pk_bf16_f32 v{r}, v{TR(p,jh,'re')+i}, v{TR(p,jh,'im')+i}")
                a(f"ds_write_b32 v5, v{r} offset:{2048*p + (16*jh + 32*i) * 4}")
    stamp(a, 'p1c')
    hbar(a, 8, 4)
    for z in range(4):
        for hh in range(2):
            a(f"ds_read2st64_b32 {vr(96 + 4*z + 2*hh, 2)}, v{136+z} offset0:{16*hh} offset1:{16*hh+8}")
    for z in range(4):
        a(f"buffer_store_dwordx4 {vr(96 + 4*z, 4)}, v8, {S4(SWS)}, s70 offen {ST}")
        if z < 3: a(f"s_add_u32 s70, s70, {64*8192}")
    stamp(a, 'p1st')
    lds_inc(a, 11)
    tag_ready(a)
    arrive(a, 0, [72], 0, 4)

def g_prologue(a):
    L1, L2 = uid("gw"), uid("gw")
    a(f"s_bitcmp{0 if WJOB_FR else 1}_b32 s{TREG}, {TB_}")
    a.fence()
    a(f"s_cbranch_scc1 {L1}")
    a("s_lshr_b32 s66, s62, 10")
    a("s_mul_i32 s67, s66, 514")
    a("s_and_b32 s67, s67, 0xfffffff0")
    a(f"s_mul_i32 s69, s{sWAVE}, 2112")
    a("s_mov_b32 exec_hi, 1")
    for r in range(4):
        for (srd_, base) in ((SWR, P1_WR), (SWI, P1_WI)):
            a(f"s_add_u32 m0, s69, {base + 528*r}")
            a(f"buffer_load_dwordx4 v3, {S4(srd_)}, s67 offen lds")
        if r < 3: a(f"s_add_u32 s67, s67, {64*514}")
    a("s_mov_b32 exec_hi, -1")
    if WJOBH:
        touch_w1_issue(a)
        a("s_waitcnt vmcnt(1)")
        lds_inc(a, 10)
        tag_ready(a)
        a("s_waitcnt vmcnt(0)")
        a.fence()
        a(f"s_branch {L2}")
    a("v_and_b32 v9, 15, v2")
    w_special_pre(a)
    a("v_bfe_u32 v7, v0, 2, 6")
    a("v_and_b32 v6, 3, v2")
    a("v_lshlrev_b32 v8, 13, v7")
    a("v_lshl_add_u32 v8, v6, 4, v8")
    a(f"s_lshl_b32 s72, s{sC2}, 6")
    a(f"s_add_u32 s72, s72, s{sN2}")
    a("s_lshl_b32 s72, s72, 6")
    a(f"s_add_u32 s72, s72, {F_Z}")
    a("s_mov_b64 s[64:65], s[70:71]")
    if TOUCH_FR == 2:
        touch_w1_issue(a)
        a(f"s_waitcnt vmcnt({(ETOUCH + 4 * EDMA) if EDMA else (1 if (HALF_T or MAP1 == 18) else 2)})")
    else: a("s_waitcnt vmcnt(0)")
    hbar(a, 10, 4)
    w_relayout(a)
    tag_ready(a)
    if TOUCH_FR == 0:
        a("s_mov_b64 s[70:71], s[64:65]")
        touch_w1_issue(a)
    hbar(a, 10, 8)
    a.fence()
    a(f"s_branch {L2}")
    a.label(L1)
    a.reset_state()
    touch_w1_issue(a)
    if TOUCH_FR == 1:
        a(f"s_sub_u32 s70, s70, {64*3584*(1 << TBIT)}")
        touch_w1_issue(a)
    if CODEPF:
        a(f"s_cmp_lg_u32 s{sIDX}, 1")
        a("s_cbranch_scc1 L_nocpf")
        a("v_lshlrev_b32 v152, 7, v2")
        a(f"s_lshl_b32 s73, s{sWAVE}, 13")
        for j in range(2):
            a(f"buffer_load_dword v153, v152, {S4(STB)}, s73 offen")
            if j < 1: a("s_add_u32 s73, s73, 32768")
        a.fence()
        a.label("L_nocpf")
        a.reset_state()
    tag_ready(a)
    if not NOTW: a("s_waitcnt vmcnt(0)")
    a.fence()
    a.label(L2)
    a.reset_state()
    stamp(a, 'ea1')
    if W2T == 'early': touch_w2(a, dst=(1, 1))
    if not NOWAIT:
        a(f"v_mov_b32 v12, {CNT + 44}")
        wait_word(a, 12, 4)

def w_arrive(a, nvm):
    L = uid("nowa")
    a(f"s_bitcmp{0 if WJOB_FR else 1}_b32 s{TREG}, {TB_}")
    a.fence()
    a(f"s_cbranch_scc1 {L}")
    snap = a.snapshot()
    arrive(a, 3, [69], nvm, 4)
    a.fence()
    a.label(L)
    a.restore(snap)
def w_special_pre(a):
    SP = SPB
    a(f"s_lshl_b32 s66, s{sC2}, 10")
    a(f"s_add_u32 s66, s66, s{sN2}")
    a("v_lshlrev_b32 v10, 6, v9")
    a("v_add_u32 v10, s66, v10")
    a("v_sub_u32 v11, 2048, v10")
    a("v_and_b32 v11, 2047, v11")
    a(f"v_bfe_u32 v{SPB+4}, v2, 4, 1")
    a(f"v_lshlrev_b32 v{SPB+5}, 9, v{SPB+4}")
    a("s_movk_i32 s68, 514")
    a(f"v_mad_u32_u24 v11, v11, s68, v{SPB+5}")
    for i in range(4): a(f"v_mov_b32 v{SP+i}, 0")
    a(f"s_cmp_eq_u32 s{sWAVE}, {4 if WJOBH else 0}")
    a("s_cselect_b32 s68, 0, 0x7fffffff")
    a("s_mov_b32 exec_hi, 0")
    a(f"buffer_load_short_d16_hi v{SP+2}, v11, {S4(SWR)}, s68 offen")
    a(f"buffer_load_short_d16_hi v{SP+3}, v11, {S4(SWI)}, s68 offen")
    a("s_mov_b32 exec_hi, -1")
def w_relayout(a, WR=16, WI=32, flagbase=None):
    SP = SPB
    if flagbase is None: flagbase = F_Z
    a(f"s_lshl_b32 s67, s{sN2}, 1")
    a("s_and_b32 s67, s67, 15")
    a("v_mul_u32_u24 v14, 2112, v6")
    a("v_lshl_add_u32 v14, v7, 1, v14")
    a("v_add_u32 v14, s67, v14")
    a("v_mul_u32_u24 v10, 528, v9")
    a(f"v_add_u32 v10, v10, v{SPB+5}")
    a("v_add_u32 v10, s67, v10")
    for i in range(16): a(f"v_mov_b32 v{WI+i}, 0")
    for z in range(4):
        for e in range(4):
            a(f"ds_read_u16 v{WR+4*z+e}, v14 offset:{P1_WR + e*528 + 128*z}")
            a(f"ds_read_u16_d16_hi v{WI+4*z+e}, v14 offset:{P1_WI + e*528 + 128*z}")
    a(f"ds_read_u16_d16_hi v{SP}, v10 offset:{P1_WR}")
    a(f"ds_read_u16_d16_hi v{SP+1}, v10 offset:{P1_WI}")
    a(f"s_sub_u32 s69, s72, {flagbase}")
    a(f"s_add_u32 s70, s69, {WS_WT}")
    a(f"s_add_u32 s69, s69, {F_W}")
    for i in range(16): a(f"v_or_b32 v{WR+i}, v{WR+i}, v{WI+i}")
    if WJOBH:
        a.wait_all(vm=False)
        lds_inc(a, 9, t=(13, 15))
    for z in (1, 2, 3):
        a(f"s_add_u32 s71, s70, {z*64*8192}")
        a(f"buffer_store_dwordx4 {vr(WR+4*z,4)}, v8, {S4(SWS)}, s71 offen {ST}")
    a("v_cmp_ne_u32 vcc, 0, v7")
    a("s_and_saveexec_b64 s[76:77], vcc")
    a(f"buffer_store_dwordx4 {vr(WR,4)}, v8, {S4(SWS)}, s70 offen {ST}")
    a("s_mov_b64 exec, s[76:77]")
    a(f"v_add_f32 v{SP}, v{SP}, v{SP+2}")
    a(f"v_sub_f32 v{SP+1}, v{SP+1}, v{SP+3}")
    a(f"ds_swizzle_b32 v{SP+2}, v{SP} offset:0x401F")
    a(f"ds_swizzle_b32 v{SP+3}, v{SP+1} offset:0x401F")
    a(f"v_lshlrev_b32 v15, 31, v{SPB+4}")
    a(f"v_xor_b32 v{SP}, v15, v{SP}")
    a(f"v_xor_b32 v{SP+1}, v15, v{SP+1}")
    a(f"v_add_f32 v{SP}, v{SP}, v{SP+2}")
    a(f"v_add_f32 v{SP+1}, v{SP+1}, v{SP+3}")
    a(f"v_mul_f32 v{SP}, 0x3e800000, v{SP}")
    a(f"v_mul_f32 v{SP+1}, 0x3e800000, v{SP+1}")
    a(f"v_cvt_pk_bf16_f32 v{SP+2}, v{SP}, v{SP+1}")
    a(f"v_lshlrev_b32 v14, 21, v{SPB+4}")
    a("v_lshl_add_u32 v14, v9, 2, v14")
    a("s_add_u32 s68, s68, s70")
    a("s_mov_b32 exec_hi, 0")
    a(f"buffer_store_dword v{SP+2}, v14, {S4(SWS)}, s68 offen {ST}")
    a("s_mov_b32 exec_hi, -1")

def wait_vm_untracked(a, toks):
    a.wait_tok(*toks)

def part_write(a, base_v0, base_v1, off0):
    pass

def flag_g(a):
    a(f"s_lshl_b32 s73, s{sC2}, 6")
    a(f"s_add_u32 s73, s73, s{sN2}")
    a("s_lshl_b32 s73, s73, 6")
    a(f"s_and_b32 s78, s{sIDX}, 1")
    a("s_lshl_b32 s78, s78, 13")
    a("s_add_u32 s73, s73, s78")
    a(f"s_add_u32 s73, s73, {F_G}")

def gen(a):
    tb1, ti1 = table_dwords(1); tb2, ti2 = table_dwords(2)
    TB2OFF = len(tb1) * 4
    a.raw(f".globl {NAME}\n.p2align 8\n.type {NAME},@function\n{NAME}:")
    a("s_cmp_ge_u32 s2, 256")
    a("s_cbranch_scc1 L_end")
    if STAMPS:
        for i in range(11): a(f"s_mov_b64 s[{80+2*i}:{81+2*i}], 0")
        stamp(a, 'start')
    a("s_load_dwordx16 s[64:79], s[0:1], 0")
    a("s_load_dwordx4 s[4:7], s[0:1], 64")
    a("s_load_dwordx2 s[60:61], s[0:1], 88")
    a(f"s_getpc_b64 s[{STB}:{STB+1}]")
    a.raw("Lpc0:")
    a(f"s_sub_u32 s{STB}, s{STB}, Lpc0-{NAME}")
    a(f"s_subb_u32 s{STB+1}, s{STB+1}, 0")
    a(f"s_and_b32 s{STB+1}, s{STB+1}, 0xffff")
    a(f"s_mov_b32 s{STB+2}, TABLES-{NAME}+{(len(tb1) + len(tb2)) * 4}")
    a(f"s_mov_b32 s{STB+3}, 0x00020000")
    a("v_lshrrev_b32 v1, 6, v0")
    a("v_and_b32 v2, 63, v0")
    a(f"v_readfirstlane_b32 s{sWAVE}, v1")
    a("v_lshlrev_b32 v3, 4, v2")
    for r in range(4, 16): a(f"v_mov_b32 v{r}, 0")
    if XSW: a(f"s_xor_b32 s2, s2, {XSW}")
    a(f"s_and_b32 s{sXCD}, s2, 7")
    a(f"s_lshr_b32 s{sIDX}, s2, 3")
    a(f"s_lshl_b32 s{sN2}, s{sXCD}, 3")
    if TBIT == 0:
        a("s_bfe_u32 s3, s2, 0x30004")
        a(f"s_lshr_b32 s{sC2}, s2, 7")
    elif TBIT == 9:
        a(f"s_and_b32 s{sN2}, s{sXCD}, 3")
        a(f"s_lshl_b32 s{sN2}, s{sN2}, 4")
        a(f"s_and_b32 s3, s{sIDX}, 15")
        a(f"s_lshr_b32 s{sC2}, s{sIDX}, 4")
    else:
        a("s_bfe_u32 s3, s2, 0x30003")
        a(f"s_bfe_u32 s{sC2}, s2, 0x10006")
    a(f"s_add_u32 s{sN2}, s{sN2}, s3")
    if TBIT == 9:
        a(f"s_max_u32 s3, s{sIDX}, 8")
        a("s_sub_u32 s3, s3, 8")
        a(f"s_cmp_lt_u32 s{sXCD}, 4")
        a(f"s_cselect_b32 s3, s{sIDX}, s3")
        a(f"s_and_b32 s{sDT1}, s3, 3")
        a(f"s_lshr_b32 s{sFT1}, s3, 2")
        a(f"s_mul_i32 s58, s{sDT1}, {4 * ROT}")
        a(f"s_and_b32 s3, s{sXCD}, 1")
        a("s_lshl_b32 s3, s3, 2")
        a(f"s_add_u32 s{sDT1}, s{sDT1}, s3")
        a(f"s_lshr_b32 s3, s{sXCD}, 1")
        a("s_lshl_b32 s59, s3, 3")
        a("s_cmp_eq_u32 s3, 3")
        a("s_cselect_b32 s59, 22, s59")
        a(f"s_add_u32 s{sFT1}, s{sFT1}, s59")
    else:
        a(f"s_sub_u32 s3, s{sIDX}, 4")
        if TBIT == 0:
            a(f"s_lshr_b32 s59, s{sIDX}, 1")
            a(f"s_cmp_lt_u32 s{sIDX}, 8")
            a("s_cselect_b32 s3, s59, s3")
        else:
            a(f"s_cmp_lt_u32 s{sIDX}, 16")
            a(f"s_cselect_b32 s3, s{sIDX}, s3")
        if MAP1 == 24:
            a(f"s_mul_i32 s{sDT1}, s3, 37")
            a(f"s_lshr_b32 s{sDT1}, s{sDT1}, 8")
            a(f"s_mul_i32 s{sFT1}, s{sDT1}, 7")
            a(f"s_sub_u32 s{sFT1}, s3, s{sFT1}")
            a(f"s_lshl_b32 s58, s{sDT1}, 1")
            a(f"s_mul_i32 s59, s{sFT1}, {ROT2}")
            a("s_add_u32 s58, s58, s59")
            a(f"s_mul_i32 s58, s58, {2 * ROT}")
            a(f"s_and_b32 s3, s{sXCD}, 1")
            a("s_lshl_b32 s3, s3, 2")
            a(f"s_add_u32 s{sDT1}, s{sDT1}, s3")
        else:
            a(f"s_and_b32 s59, s{sXCD}, 1")
            a("s_lshl_b32 s59, s59, 2")
            a("s_lshr_b32 s58, s3, 3")
            a(f"s_add_u32 s{sFT1}, s58, s59")
            a(f"s_and_b32 s{sDT1}, s3, 7")
            a(f"s_add_u32 s59, s59, s{sDT1}")
            a("s_cmp_ge_u32 s3, 24")
            a(f"s_cselect_b32 s{sFT1}, 3, s{sFT1}")
            a(f"s_cselect_b32 s{sDT1}, s59, s{sDT1}")
            a("s_lshl_b32 s58, s58, 1")
            a(f"s_add_u32 s58, s58, s{sDT1}")
            a(f"s_mul_i32 s58, s58, {2 * ROT}")
        a(f"s_lshr_b32 s3, s{sXCD}, 1")
        a("s_mul_i32 s3, s3, 7")
        a(f"s_add_u32 s{sFT1}, s{sFT1}, s3")
    if MAP2 == 24:
        a(f"s_and_b32 s3, s{sXCD}, 1")
        a("s_lshl_b32 s3, s3, 2")
        a(f"s_lshr_b32 s{sDT2}, s{sIDX}, 3")
        a(f"s_add_u32 s{sDT2}, s{sDT2}, s3")
        a(f"s_lshr_b32 s3, s{sXCD}, 1")
        a(f"s_lshl_b32 s{sST2}, s3, 3")
        a(f"s_and_b32 s3, s{sIDX}, 7")
        a(f"s_add_u32 s{sST2}, s{sST2}, s3")
    else:
        a(f"s_and_b32 s{sDT2}, s{sIDX}, 7")
        a(f"s_lshl_b32 s{sST2}, s{sXCD}, 2")
        a(f"s_lshr_b32 s3, s{sIDX}, 3")
        a(f"s_add_u32 s{sST2}, s{sST2}, s3")
    if TBIT == 0: a(f"s_and_b32 s3, s{sIDX}, 0x19")
    elif TBIT == 9:
        a("s_and_b32 s3, s2, 0xc4")
        a("s_lshr_b32 s3, s3, 2")
    else:
        a(f"s_lshr_b32 s3, s{sIDX}, 2")
        a("s_sub_u32 s3, s3, 3")
    a(f"s_lshl_b32 s62, s{sC2}, 10")
    a(f"s_add_u32 s62, s62, s{sN2}")
    a(f"s_and_b32 s59, s{sWAVE}, 3")
    a("s_lshl_b32 s63, s59, 8")
    a("s_add_u32 s62, s62, s63")
    a("s_lshl_b32 s62, s62, 10")
    a("s_lshl_b32 s59, s59, 12")
    a(f"s_add_u32 s59, s59, {P1_XR}")
    srd(a, SX, 64, S * D * 2)
    a(f"s_cmp_lt_u32 s{sWAVE}, 4")
    a("s_cbranch_scc1 L_xdone")
    a("s_setprio 3")
    a(f"s_bitcmp1_b32 s{TREG}, {TB_}")
    a("s_cbranch_scc1 L_xdma")
    for r in range(4):
        a(f"s_add_u32 s63, s62, {65536*r}")
        a(f"buffer_load_dwordx4 {vr(LX + 4*r, 4)}, v3, {S4(SX)}, s63 offen")
    a("s_branch L_xdone")
    snapx = a.snapshot()
    a.label("L_xdma")
    for r in range(4):
        a(f"s_add_u32 s63, s62, {65536*r}")
        a(f"s_add_u32 m0, s59, {1024*r}")
        a(f"buffer_load_dwordx4 v3, {S4(SX)}, s63 offen lds")
    a.label("L_xdone")
    a.restore(snapx)
    srd(a, SGW, 4, 1024)
    srd(a, SWR, 66, S * 514)
    srd(a, SWI, 68, S * 514)
    srd(a, SW1, 72, S * F * 2)
    srd(a, SW2, 76, S * F * 2)
    srd(a, SB2, 78, S * 2)
    srd(a, SOUT, 6, S * D * 2)
    srd(a, SWS, 60, WS_BYTES)
    a("s_mov_b64 s[4:5], s[74:75]")
    a(f"s_add_u32 s6, s60, {WS_FLG + F_EP}")
    a("s_addc_u32 s7, s61, 0")
    a(f"v_mov_b32 v100, {CNT}")
    for q in range(4): a(f"ds_write_b128 v100, v[4:7] offset:{16*q}")
    a(f"s_and_b32 s{sROT}, s58, 15")
    a("s_mov_b32 s64, s59")
    a(f"s_lshl_b32 s58, s{sFT1}, 7")
    a(f"s_lshl_b32 s63, s{sWAVE}, 4")
    a("s_add_u32 s63, s63, s58")
    a("s_add_u32 s4, s4, s63")
    a("s_addc_u32 s5, s5, 0")
    a.wait_all(vm=False)
    a(f"s_load_dword s{sTAG}, s[6:7], 0")
    a(f"s_and_b32 s5{8}, s2, {NREP - 1}")
    a("s_nop 0")
    a("s_lshl_b32 s6, s58, 17")
    a(f"s_cmp_lt_u32 s{sWAVE}, 4")
    a.fence()
    a("s_cbranch_scc1 L_gwave")
    a(f"s_bitcmp1_b32 s{TREG}, {TB_}")
    a("s_cbranch_scc1 L_p1fft")
    snap = a.snapshot()
    phase1_ln(a)
    a.fence()
    a("s_branch L_p1done")
    a.restore(snap)
    a.label("L_p1fft")
    phase1_fft(a, ti1)
    a.fence()
    a.label("L_p1done")
    a.reset_state()
    a("s_cmp_eq_u32 s3, 1")
    a("s_cbranch_scc1 L_fft")
    a("s_branch L_g1help")
    a.label("L_gwave")
    a.reset_state()
    touch_w1(a, t=(150, 151))
    if EDMA:
        wlane(a, 154, 155, 64 * 3584, 156, 157)
        a(f"s_lshl_b32 s{sRING}, s{sWAVE}, 15")
        a(f"s_mul_i32 s60, s{sWAVE}, {512*3584}")
        a(f"s_lshl_b32 s61, s{sFT1}, 7")
        a("s_add_u32 s60, s60, s61")
        if EDMA == 2 and MAP1 == 24:
            a(f"s_and_b32 s61, s{sXCD}, 1")
            a("s_lshl_b32 s61, s61, 1")
            a(f"s_add_u32 s{sROT}, s{sROT}, s61")
        _g1e.append(Gemm(a, 16, [(x + 4) % 8 for x in range(16)], ['pre'] * 16, SW1, 60, 3584, 4 * 3584, True, vw=(154, 155)))
    stamp(a, 'ea0')
    a("s_barrier")
    a("s_cmp_lg_u32 s3, 1")
    a("s_cbranch_scc1 L_g1")
    if WJOB_FR: g_prologue(a)
    elif FFT_T1: touch_w1_issue(a, gemm=False)
    a(f"v_mov_b32 v12, {CNT + TBWAIT}")
    wait_word(a, 12, 4)
    a(f"s_lshl_b32 s72, s{sWAVE}, 10")
    for j in range(15):
        if WJOB_FR and j == 4: arrive(a, 3, [69], 4, 4)
        if j == 14: a("s_min_u32 s72, s72, 1024")
        a(f"s_add_u32 m0, s72, {FB_TB + j*4096}")
        a(f"s_add_u32 s73, s72, TABLES-{NAME}+{TB2OFF + j*4096}")
        a(f"buffer_load_dwordx4 v3, {S4(STB)}, s73 offen lds")
    if CODEPF2:
        a("v_lshlrev_b32 v152, 7, v2")
        a(f"s_lshl_b32 s73, s{sWAVE}, 13")
        a(f"s_add_u32 s73, s73, L_fft2-{NAME}")
        a(f"buffer_load_dword v153, v152, {S4(STB)}, s73 offen")
    tag_ready(a)
    a.fence()
    a("s_branch L_fft2")
    a.label("L_g1")
    a.reset_state()
    g_prologue(a)
    a("s_load_dwordx4 s[64:67], s[4:5], 0")
    gemm_lane_consts(a, 64 * 3584)
    a(f"s_mul_i32 s62, s{sWAVE}, {512*3584}")
    a(f"s_lshl_b32 s63, s{sFT1}, 7")
    a("s_add_u32 s62, s62, s63")
    a(f"s_lshl_b32 s{sA0}, s{sDT1}, 18")
    a(f"s_lshl_b32 s63, s{sWAVE}, 16")
    a(f"s_add_u32 s{sA0}, s{sA0}, s63")
    if WS_HT: a(f"s_add_u32 s{sA0}, s{sA0}, {WS_HT}")
    slots1 = [(x + 4) % 8 for x in range(16)]
    NR = min(NREG, NR1)
    kinds1 = ['pre'] * 8 + ['reg'] * NR + ['dma'] * (8 - NR)
    g1 = Gemm(a, 16, slots1, kinds1, SW1, 62, 3584, 4 * 3584, True)
    for sg in range(EDMA, 8 + NR - NB1 - NB2):
        g1.emit_w(sg)
        if sg == EDMA + WARR - 1 and not WJOBH: w_arrive(a, 4 * WARR)
        if sg == 3 and WJOBH:
            L = uid("wfree")
            a(f"s_bitcmp1_b32 s{TREG}, {TB_}")
            a.fence()
            a(f"s_cbranch_scc1 {L}")
            a(f"v_mov_b32 v12, {CNT + 36}")
            wait_word(a, 12, 4)
            a.label(L)
    if COOPH:
        a(f"s_lshr_b32 s72, s{sXCD}, 1")
        a("s_mul_i32 s72, s72, 7")
        a(f"s_sub_u32 s72, s{sFT1}, s72")
        a("v_lshrrev_b32 v18, 3, v2")
        a("v_mul_u32_u24 v18, 7, v18")
        a("v_add_u32 v18, s72, v18")
        a("v_cmp_gt_u32 s[68:69], 8, v18")
        a("v_and_b32 v19, 7, v2")
        a("v_lshlrev_b32 v19, 7, v19")
        a("v_lshl_add_u32 v18, v18, 10, v19")
    stamp(a, 'pre4')
    a(f"s_lshr_b32 s72, s{sWAVE}, 1")
    a("s_lshl_b32 s72, s72, 12")
    a(f"s_add_u32 s72, s72, {WS_FLG + F_H}")
    a.vm = a.vm[-8:]
    g1.tok = {}
    beh = (lambda: [g1.emit_w(sg) for sg in range(8 + NR - NB1 - NB2, 8 + NR - NB2)]) if NB1 else None
    if ENV('SKIPH', 0): pass
    elif HPOLL2:
        a(f"s_bitcmp1_b32 s{sWAVE}, 0")
        a.fence()
        a("s_cbranch_scc1 L_g1odd")
        sn = a.snapshot()
        gpoll(a, [(72, 64)], vt=(12, 13, 16, 17), behind=beh)
        a(f"s_lshl_b32 s72, s{sWAVE}, 1")
        a(f"s_add_u32 s72, s72, {CNT + 48}")
        a("v_mov_b32 v12, s72")
        a("ds_write_b32 v12, v12")
        a.wait_all(vm=False); a.fence()
        a("s_branch L_g1go")
        en = a.snapshot()
        a.restore(sn)
        a.label("L_g1odd")
        if beh: beh()
        a(f"s_lshl_b32 s72, s{sWAVE}, 1")
        a(f"s_add_u32 s72, s72, {CNT + 46}")
        a("v_mov_b32 v12, s72")
        wait_word(a, 12, 1, sleep=1)
        a.fence()
        a.label("L_g1go")
        a.restore(en)
    else:
        gpoll(a, [(72, 64)], vt=(12, 13, 16, 17), behind=beh)
    stamp(a, 'b4')
    if COOPH:
        a(f"buffer_load_dword v1, v18, {S4(SWS)}, s{sA0} offen {LD}")
        a(f"s_add_u32 s72, s{sA0}, {56*1024}")
        a("s_mov_b64 exec, s[68:69]")
        a("s_cbranch_execz L_nocoopb")
        a.raw(f"    buffer_load_dword v1, v18, {S4(SWS)}, s72 offen {LD}")
        a.label("L_nocoopb")
        a("s_mov_b64 exec, -1")
    slots2 = [4, 5, 6, 7, 0, 1, 2, 3, 4, 5, 6, 7, 0, 1]
    kinds2 = ['pre'] * 8 + ['reg'] * NREG + ['dma'] * (6 - NREG)
    g2 = Gemm(a, 14, slots2, kinds2, SW2, 63, 8 * 4096, 32 * 4096, False, vw=(14, 15), rot=77)
    def w2_consts():
        wlane(a, 14, 15, 4096, 12, 13)
        a(f"s_and_b32 s76, s{sWAVE}, 3")
        a(f"s_lshl_b32 s{sRING}, s76, 15")
        a(f"s_mul_i32 s63, s76, {448*4096}")
        a(f"s_lshl_b32 s76, s{sST2}, 7")
        a("s_add_u32 s63, s63, s76")
        a(f"s_and_b32 s77, s{sDT2 if MAP2 == 24 else sST2}, 3")
        a("s_lshl_b32 s77, s77, 1")
        a(f"s_and_b32 s76, s{sST2 if MAP2 == 24 else sDT2}, 7")
        a(f"s_mul_i32 s76, s76, {ROT2}")
        a("s_add_u32 s77, s77, s76")
        a(f"s_mul_i32 s77, s77, {7 * ROT}")
        a("s_lshr_b32 s77, s77, 2")
        a("s_sub_u32 s76, s77, 14")
        a("s_min_u32 s77, s77, s76")
    w2_consts()
    a(f"s_lshl_b32 s76, s{sWAVE}, 2")
    a(f"s_add_u32 s76, s76, {CNT + 16}")
    a("v_mov_b32 v12, s76")
    def extra(sig):
        if SPREAD and sig < NB2: return [(lambda jj=jj: g1.emit_w(8 + NR - NB2 + sig, [jj])) for jj in range(4)]
        o = []
        if sig == W2SIG: o.append(lambda: a("ds_write_b32 v12, v12"))
        if EARLYW2 and sig >= 13:
            for sg in (8 + 2 * (sig - 13), 9 + 2 * (sig - 13)):
                if sg < 8 + NREG: o += [(lambda jj=jj, sg=sg: g2.emit_w(sg, [jj])) for jj in range(4)]
        return o
    g1.run(extra, post=(None if SPREAD else lambda: [g1.emit_w(sg) for sg in range(8 + NR - NB2, 8 + NR)]),
           pwrite=lambda blk: f"ds_write_b128 v7, {vr(ACC + blk*4, 4)} offset:{16384 + blk*1024}")
    stamp(a, 'loop1')
    if EARLYW2:
        for sg in range(4, 8): g2.emit_w(sg)
    a.wait_all(vm=False)
    a.fence()
    a("s_branch L_g1red")
    a.label("L_g1help")
    a.reset_state()
    a("s_load_dwordx4 s[64:67], s[4:5], 0")
    if PFH: prefetch_h(a)
    a("s_setprio 0")
    if W2T == 'mid0': touch_w2(a, dst=(1, 1))
    gate(a)
    if W2T == 'mid': touch_w2(a, dst=(1, 1))
    g_gen(a)
    if W2T == 'mid2': touch_w2(a, dst=(1, 1))
    if W2T == 'late':
        a(f"s_lshl_b32 s76, s{sWAVE}, 2")
        a(f"s_add_u32 s76, s76, {CNT}")
        a("v_mov_b32 v12, s76")
        wait_word(a, 12, 1)
        touch_w2(a)
    a.fence()
    a.label("L_g1red")
    a.reset_state()
    a("s_waitcnt lgkmcnt(0)")
    a("s_barrier")
    stamp(a, 'b5')
    if MF32:
        a(f"s_lshr_b32 s68, s{sWAVE}, 2")
        a("s_lshl_b32 s68, s68, 13")
        a(f"s_and_b32 s69, s{sWAVE}, 3")
        a("s_lshl_b32 s69, s69, 10")
        a("s_add_u32 s68, s68, s69")
        a("v_lshrrev_b32 v12, 5, v2")
        a("v_lshlrev_b32 v12, 12, v12")
        a("v_and_b32 v13, 31, v2")
    else:
        a(f"s_lshr_b32 s68, s{sWAVE}, 1")
        a("s_lshl_b32 s68, s68, 12")
        a(f"s_and_b32 s69, s{sWAVE}, 1")
        a("s_lshl_b32 s69, s69, 9")
        a("s_add_u32 s68, s68, s69")
        a("v_lshrrev_b32 v12, 4, v2")
        a("v_lshlrev_b32 v12, 10, v12")
        a("v_and_b32 v13, 15, v2")
    a("v_lshl_add_u32 v12, v13, 4, v12")
    a("v_add_u32 v12, s68, v12")
    a(f"v_add_u32 v13, {2*RING}, v12")
    E = 16
    for w in range(4):
        for hh in range(2):
            a(f"ds_read_b128 {vr(E + w*8 + hh*4, 4)}, v{12 + (w >> 1)} offset:{(w & 1)*RING + 16384 + hh*(512 if MF32 else 256)}")
    for e in range(4):
        a(f"s_lshl_b32 s{68+2*e}, s{64+e}, 16")
        a(f"s_and_b32 s{69+2*e}, s{64+e}, 0xffff0000")
    P2 = lambda r: f"v[{r}:{r+1}]"
    def pk(op, d, x, y, z=None):
        for q in range(4):
            o = lambda r: (r if isinstance(r, str) else P2(r + 2*q))
            a(f"v_pk_{op}_f32 {P2(d + 2*q)}, {o(x)}, {o(y)}" + (f", {o(z)}" if z is not None else ""))
    pk("add", E, E, E + 8); pk("add", E + 16, E + 16, E + 24); pk("add", E, E, E + 16)
    def rnd(X, T):
        for q in range(4): a(f"v_cvt_pk_bf16_f32 v{T+q}, v{X+2*q}, v{X+2*q+1}")
        for q in range(4): unpack(a, X + 2*q, X + 2*q + 1, T + q)
    rnd(E, E + 8)
    for q in range(4): a(f"v_pk_add_f32 {P2(E + 2*q)}, {P2(E + 2*q)}, s[{68+2*q}:{69+2*q}]")
    c0 = -2.0 * math.log2(math.e) * math.sqrt(2.0 / math.pi); c1 = c0 * 0.044715
    for r, c in ((24, c0), (25, c0), (26, c1), (27, c1), (28, 1.0), (29, 1.0)): a(f"v_mov_b32 v{E+r}, 0x{f2u(c):08x}")
    rnd(E, E + 8)
    pk("mul", E + 8, E, E)
    pk("fma", E + 8, E + 8, P2(E + 26), P2(E + 24))
    pk("mul", E + 8, E + 8, E)
    for e in range(8): a(f"v_exp_f32 v{E+8+e}, v{E+8+e}")
    pk("add", E + 8, E + 8, P2(E + 28))
    for e in range(8): a(f"v_rcp_f32 v{E+8+e}, v{E+8+e}")
    pk("mul", E, E, E + 8)
    for q in range(4): a(f"v_cvt_pk_bf16_f32 v{E+8+q}, v{E+2*q}, v{E+2*q+1}")
    a(f"s_mul_i32 s68, s{sDT1}, {224*1024}")
    a(f"s_lshl_b32 s69, s{sFT1}, 3")
    a(f"s_add_u32 s69, s69, s{sWAVE}")
    a("s_lshl_b32 s69, s69, 10")
    a("s_add_u32 s68, s68, s69")
    a(f"s_add_u32 s68, s68, {WS_UT}")
    a(f"buffer_store_dwordx4 {vr(E+8,4)}, v3, {S4(SWS)}, s68 offen {ST}")
    a(f"s_lshl_b32 s72, s{sDT1}, 5")
    a(f"s_add_u32 s72, s72, s{sFT1}")
    a("s_lshl_b32 s72, s72, 6")
    a(f"s_add_u32 s72, s72, {F_U}")
    stamp(a, 'ust')
    a("s_barrier")
    a.fence()
    a("s_branch L_pub2")
    a.label("L_fft")
    a.reset_state()
    a("s_setprio 0")
    a.fence()
    a.label("L_fft2")
    a.reset_state()
    fft_block(a, ti2, TB2OFF)
    w2_consts()
    a(f"s_cmp_ge_u32 s{sWAVE}, 4")
    a("s_cbranch_scc1 L_fhelp")
    gemm_lane_consts(a, 4096)
    g2.tok = {}
    for sg in range(8, 10): g2.emit_w(sg)
    arrive(a, 1, [72], 8, 8, lowprio=True)
    for sg in range(10, 8 + NREG): g2.emit_w(sg)
    a(f"v_mov_b32 v12, {CNT + 24}")
    wait_word(a, 12, 8)
    for sg in range(8): g2.emit_w(sg)
    a.fence()
    a("s_branch L_pub3")
    a.label("L_fhelp")
    arrive(a, 1, [72], 0, 8, lowprio=True)
    if FGEN_LATE:
        fg_poll(a)
        a("s_barrier")
        g_gen(a)
        a.fence()
        a("s_branch L_g2help3")
    else:
        g_gen(a)
        a.fence()
        a("s_branch L_g2help2")
    a.label("L_pub2")
    a.reset_state()
    a(f"s_cmp_ge_u32 s{sWAVE}, 4")
    a("s_cbranch_scc1 L_g2help")
    snap3 = a.snapshot()
    g2.tok = {}
    for sg in range(0, 2): g2.emit_w(sg)
    arrive(a, 1, [72], 8, 8, lowprio=True)
    for sg in range(2, 4 if EARLYW2 else 8 + NREG): g2.emit_w(sg)
    a.fence()
    a.label("L_pub3")
    a.reset_state()
    a(f"s_mul_i32 s{sA0}, s{sDT2}, {224*1024}")
    a(f"s_mul_i32 s61, s{sWAVE}, {56*1024}")
    a(f"s_add_u32 s{sA0}, s{sA0}, s61")
    a(f"s_add_u32 s{sA0}, s{sA0}, {WS_UT}")
    stamp(a, 'pre7')
    a("s_barrier")
    a(f"s_lshl_b32 s72, s{sDT2}, 11")
    a(f"s_mul_i32 s73, s{sWAVE}, {7*64}")
    a("s_add_u32 s72, s72, s73")
    a(f"s_add_u32 s72, s72, {WS_FLG + F_U}")
    a.vm = a.vm[-8:]
    if not ENV('SKIPU', 0): gpoll(a, [(72, 7)], vt=(12, 13, 16, 17), need=((1 << STAGE) - 1) if STAGE and not ROT else None, lanes="0x7f")
    a("s_mov_b64 s[66:67], s[70:71]")
    def extra2(sig):
        if STAGE and not ROT and sig == 2 * STAGE - PA:
            def late():
                L = uid("late")
                a("s_cmp_eq_u64 s[66:67], 0")
                a.fence()
                a(f"s_cbranch_scc1 {L}")
                sn = a.snapshot()
                gpoll(a, [(72, 7)], vt=(14, 15, 15, 15), lanes="s[66:67]")
                a.fence()
                a.label(L)
                a.restore(sn)
            return [late]
        return []
    g2.tok = {}
    stamp(a, 'b7')
    if COOPU:
        a("v_lshrrev_b32 v18, 3, v2")
        a("v_and_b32 v19, 7, v2")
        a("v_lshlrev_b32 v19, 7, v19")
        a("v_lshl_add_u32 v18, v18, 13, v19")
        a(f"s_and_b32 s72, s{sST2}, 7")
        a("s_lshl_b32 s72, s72, 10")
        a(f"s_add_u32 s72, s72, s{sA0}")
        a("s_mov_b32 exec_hi, 0x00ffffff")
        a(f"buffer_load_dword v1, v18, {S4(SWS)}, s72 offen {LD}")
        a("s_mov_b32 exec_hi, -1")
    gb_load(a, 12, 13, 16)
    a("v_lshrrev_b32 v4, 5, v2")
    a("v_lshlrev_b32 v4, 6, v4")
    a("v_xor_b32 v4, v4, v7")
    a("v_xor_b32 v5, 128, v4")
    if MF32:
        a("v_xor_b32 v4, 64, v7"); a("v_xor_b32 v5, 128, v7"); a("v_xor_b32 v10, 192, v7")
    g2.run(extra2, post=lambda: [g2.emit_w(sg) for sg in range(8 + NREG - NB4, 8 + NREG)],
           pwrite=lambda blk: f"ds_write_b128 v{(7, 4, 5, 10)[blk & 3] if MF32 else 4 + ((blk >> 2) & 1)}, {vr(ACC + blk*4, 4)} offset:{8192 + blk*1024}")
    stamp(a, 'loop2')
    a("v_mov_b32 v10, v12")
    a("v_mov_b32 v11, v13")
    a.wait_all(vm=False)
    a.fence()
    a("s_branch L_g2red")
    a.restore(snap3)
    a.label("L_g2help")
    a("s_setprio 3")
    if W2T == 'post':
        touch_w2(a, dst=(1, 1))
        arrive(a, 1, [72], 1 if MAP2 == 18 else 2, 8)
    else: arrive(a, 1, [72], 0, 8)
    a.fence()
    a.label("L_g2help2")
    a.reset_state()
    fg_poll(a)
    if PFU:
        a("s_setprio 3")
        prefetch_u(a)
    a(f"s_setprio {DFTPRIO}")
    a("s_barrier")
    a.label("L_g2help3")
    dft_part(a)
    a("s_setprio 0")
    a.fence()
    a.label("L_g2red")
    a.reset_state()
    a("v_lshrrev_b32 v4, 3, v0")
    a(f"s_lshl_b32 s68, s{sST2}, 6")
    a("v_add_u32 v5, s68, v4")
    a("v_and_b32 v6, 7, v0")
    a("v_lshrrev_b32 v7, 1, v6")
    a("v_lshlrev_b32 v7, 12, v7")
    a("v_lshrrev_b32 v8, 4, v4")
    a("v_lshl_add_u32 v7, v8, 10, v7")
    a("v_and_b32 v8, 1, v6")
    a("v_lshl_add_u32 v7, v8, 9, v7")
    a("v_and_b32 v8, 3, v6")
    a("v_lshlrev_b32 v8, 2, v8")
    a("v_and_b32 v9, 15, v4")
    a("v_xor_b32 v8, v8, v9")
    a("v_lshl_add_u32 v7, v8, 4, v7")
    a(f"v_add_u32 v12, {AP}, v7")
    if MF32:
        a("v_lshrrev_b32 v7, 2, v6")
        a("v_lshlrev_b32 v7, 13, v7")
        a("v_lshrrev_b32 v8, 5, v4")
        a("v_lshl_add_u32 v7, v8, 12, v7")
        a("v_and_b32 v8, 3, v6")
        a("v_lshl_add_u32 v7, v8, 10, v7")
        a("v_lshlrev_b32 v8, 2, v8")
        a("v_and_b32 v9, 31, v4")
        a("v_xor_b32 v8, v8, v9")
        a("v_lshl_add_u32 v7, v8, 4, v7")
    a(f"v_add_u32 v8, {2*RING}, v7")
    a("v_lshlrev_b32 v9, 10, v5")
    a("v_lshl_add_u32 v9, v6, 4, v9")
    a(f"s_lshl_b32 s70, s{sDT2}, 7")
    a("s_barrier")
    stamp(a, 'b8')
    B_, A_ = 16, 48
    for w in range(4):
        for hh in range(2):
            a(f"ds_read_b128 {vr(B_ + w*8 + hh*4, 4)}, v{7 + (w >> 1)} offset:{(w & 1)*RING + 8192 + hh*(512 if MF32 else 256)}")
    for w in range(2):
        for hh in range(2):
            a(f"ds_read_b128 {vr(A_ + w*8 + hh*4, 4)}, v12 offset:{w*16384 + hh*256}")
    a("v_sub_f32 v68, 1.0, v10")
    a("v_cvt_pk_bf16_f32 v68, v68, v68")
    a("v_lshlrev_b32 v68, 16, v68")
    a("v_mov_b32 v69, v68")
    a("v_mov_b32 v70, v10"); a("v_mov_b32 v71, v10")
    a("v_mov_b32 v72, v11"); a("v_mov_b32 v73, v11")
    a("v_mov_b32 v74, 0x36000000"); a("v_mov_b32 v75, 0x36000000")
    pk("add", B_, B_, B_ + 8); pk("add", B_ + 16, B_ + 16, B_ + 24); pk("add", B_, B_, B_ + 16)
    pk("add", A_, A_, A_ + 8)
    rnd(B_, B_ + 8)
    pk("mul", A_, A_, P2(74))
    pk("add", B_, B_, P2(72))
    rnd(A_, A_ + 8)
    rnd(B_, B_ + 8)
    pk("mul", A_, A_, P2(70))
    pk("mul", B_, B_, P2(68))
    rnd(A_, A_ + 8)
    rnd(B_, B_ + 8)
    pk("add", A_, A_, B_)
    for q in range(4): a(f"v_cvt_pk_bf16_f32 v{B_+q}, v{A_+2*q}, v{A_+2*q+1}")
    a(f"buffer_store_dwordx4 {vr(B_,4)}, v9, {S4(SOUT)}, s70 offen {OST}")
    a(f"s_or_b32 s71, s2, s{sWAVE}")
    a("s_cmp_lg_u32 s71, 0")
    a("s_cbranch_scc1 L_noep")
    a(f"s_mov_b32 s72, {F_EP}")
    set_flag(a, 72)
    a.fence()
    a.label("L_noep")
    stamp_flush(a)
    a.label("L_end")
    a("s_endpgm")
    return np.concatenate([tb1, tb2])

def fg_off(a, d):
    a(f"s_lshr_b32 s{d}, s{sST2}, 4")
    a(f"s_lshl_b32 s{d}, s{d}, 12")
    a(f"s_add_u32 s{d}, s{d}, {WS_FLG + F_G}")
def fg_poll(a):
    L = uid("nofg")
    a(f"s_cmp_lg_u32 s{sWAVE}, 7")
    a.fence()
    a(f"s_cbranch_scc1 {L}")
    fg_off(a, 62)
    gpoll(a, [(62, 64)], vt=(12, 13, 4, 5))
    a.fence()
    a.label(L)
    a.reset_state()
def gb_load(a, vg, vb, t):
    a(f"v_lshrrev_b32 v{t}, 3, v0")
    a(f"s_lshr_b32 s69, s{sST2}, 4")
    a("s_lshl_b32 s69, s69, 12")
    a(f"s_and_b32 s70, s{sST2}, 15")
    a("s_lshl_b32 s70, s70, 2")
    a("s_add_u32 s69, s69, s70")
    a(f"s_add_u32 s69, s69, {WS_G}")
    a(f"v_lshlrev_b32 v{t+1}, 6, v{t}")
    a(f"buffer_load_dword v{vg}, v{t+1}, {S4(SWS)}, s69 offen {LD}")
    a(f"v_mov_b32 v{vb}, 0")
    a(f"v_lshlrev_b32 v{t}, 1, v{t}")
    a(f"s_lshl_b32 s70, s{sST2}, 7")
    a(f"buffer_load_short_d16_hi v{vb}, v{t}, {S4(SB2)}, s70 offen")
YF, GF, AC = 48, 112, 16
def g_gen(a):
    a(f"s_bfe_u32 s70, s{sWAVE}, 0x10001")
    a(f"s_and_b32 s71, s{sWAVE}, 1")
    a("v_and_b32 v4, 15, v2")
    a("v_lshrrev_b32 v5, 4, v2")
    a(f"s_lshl_b32 s62, s{sDT2}, 6")
    a("v_add_u32 v7, s62, v4")
    a("v_cvt_f32_u32 v8, v7")
    a("v_mul_f32 v8, 0x3b000000, v8")
    for mt in range(1, 4): a(f"v_add_f32 v{8+mt}, 0x3d000000, v{7+mt}")
    a("s_lshl_b32 s62, s70, 7")
    a("v_lshlrev_b32 v12, 2, v5")
    a("v_add_u32 v12, s62, v12")
    a("v_cvt_f32_u32 v12, v12")
    ANG, D13 = 240, 244
    for mt in range(4):
        a(f"v_mul_f32 v{ANG+mt}, v{8+mt}, v12")
        a(f"v_mul_f32 v{D13+mt}, 0x41500000, v{8+mt}")
    for ks in range(8):
        for e in range(4):
            for mt in range(4):
                t0 = 248 + 2 * mt
                a(f"v_cos_f32 v{t0}, v{ANG+mt}")
                a(f"v_sin_f32 v{t0+1}, v{ANG+mt}")
                if not (ks == 7 and e == 3): a(f"v_add_f32 v{ANG+mt}, v{ANG+mt}, v{(D13 if e == 3 else 8) + mt}")
            for mt in range(4):
                t0 = 248 + 2 * mt
                a(f"v_cvt_pk_bf16_f32 v{GF + (ks*4+mt)*4 + e}, v{t0}, -v{t0+1}")
        if ks == 0:
            a("v_and_b32 v13, 1, v2")
            a("v_lshlrev_b32 v13, 31, v13")
            a("v_or_b32 v13, 0x3f003f00, v13")
            a("s_cmp_eq_u32 s70, 0")
            a("s_cselect_b32 s76, 0xffff, 0")
            a("s_mov_b32 s77, 0")
            for mt in range(4): a(f"v_cndmask_b32 v{GF + mt*4}, v{GF + mt*4}, v13, s[76:77]")
def dft_part(a):
    M = "v_mfma_f32_16x16x32_bf16"
    a(f"s_bfe_u32 s64, s{sWAVE}, 0x10001")
    a(f"s_and_b32 s65, s{sWAVE}, 1")
    a("v_and_b32 v4, 15, v2")
    a("v_lshrrev_b32 v5, 4, v2")
    a("v_lshlrev_b32 v6, 15, v5")
    a("v_lshl_add_u32 v6, v4, 4, v6")
    a("s_lshl_b32 s62, s64, 10")
    a(f"s_add_u32 s62, s62, {F_Y}")
    a("s_lshl_b32 s66, s64, 20")
    a(f"s_lshl_b32 s67, s{sST2}, 10")
    a("s_add_u32 s66, s66, s67")
    a("s_lshl_b32 s67, s65, 9")
    a("s_add_u32 s66, s66, s67")
    a(f"s_add_u32 s66, s66, {WS_Y1}")
    a(f"s_add_u32 s62, s62, {WS_FLG}")
    if YSLEEP0: a(f"s_sleep {YSLEEP0}")
    if not ENV('SKIPY', 0): gpoll(a, [(62, 16)], vt=(12, 13, 14, 15), sleep=YSLEEP)
    stamp(a, 'loop2')
    gb_load(a, 10, 11, 12)
    for ks in range(8):
        for t in range(2):
            a(f"buffer_load_dwordx4 {vr(YF + (ks*2+t)*4, 4)}, v6, {S4(SWS)}, s66 offen offset:{t*256} {LD}")
        if ks < 7: a("s_add_u32 s66, s66, 131072")
    for ks in range(8):
        for mt in range(4):
            for t in range(2):
                acc = vr(AC + (mt*2+t)*4, 4)
                a(f"{M} {acc}, {vr(GF + (ks*4+mt)*4, 4)}, {vr(YF + (ks*2+t)*4, 4)}, {'0' if ks == 0 else acc}")
    a("s_lshl_b32 s66, s64, 14")
    a("s_lshl_b32 s67, s65, 11")
    a("s_add_u32 s66, s66, s67")
    a(f"s_add_u32 s66, s66, {AP}")
    a("v_lshrrev_b32 v12, 5, v2")
    a("v_lshlrev_b32 v12, 6, v12")
    a("v_xor_b32 v12, v12, v3")
    a("v_add_u32 v12, s66, v12")
    a("v_xor_b32 v13, 128, v12")
    for mt in range(4):
        for t in range(2):
            a(f"ds_write_b128 v{12 + (mt & 1)}, {vr(AC + (mt*2+t)*4, 4)} offset:{(mt*4+t)*1024}")
    a.wait_all()

def fft_block(a, ti, tboff):
    M = "v_mfma_f32_32x32x16_bf16"
    PK, VA, VB, VT, CF, TMP = 16, 48, 112, 176, 208, 240
    if TBIT == 9:
        a(f"s_and_b32 s62, s{sXCD}, 3")
        a("s_lshl_b32 s62, s62, 3")
        a(f"s_add_u32 s62, s62, s{sIDX}")
    else:
        a(f"s_lshl_b32 s62, s{sXCD}, 2")
        a(f"s_lshr_b32 s63, s{sIDX}, 1" if TBIT == 0 else f"s_and_b32 s63, s{sIDX}, 3")
        a("s_add_u32 s62, s62, s63")
    a("s_lshl_b32 s63, s62, 3")
    a(f"s_add_u32 s63, s63, s{sWAVE}")
    a("v_and_b32 v4, 31, v2")
    a("v_lshrrev_b32 v5, 5, v2")
    a(f"s_lshl_b32 s66, s{sWAVE}, 13")
    a("v_lshrrev_b32 v6, 4, v2")
    a("v_xor_b32 v6, v6, v2")
    a("v_and_b32 v6, 3, v6")
    a("v_lshlrev_b32 v6, 4, v6")
    a("v_lshrrev_b32 v7, 2, v2")
    a("v_lshl_add_u32 v6, v7, 6, v6")
    a("v_bfe_u32 v7, v2, 2, 2")
    a("v_xor_b32 v8, v7, v5")
    a("v_lshlrev_b32 v8, 4, v8")
    a("v_lshl_add_u32 v8, v4, 6, v8")
    a("v_add_u32 v8, s66, v8")
    a("v_xor_b32 v9, 32, v8")
    a(f"v_add_u32 v10, {FB_TB}, v3")
    a("s_cmp_eq_u32 s63, 0")
    a(f"s_cselect_b32 s67, {(ti['P1re0'] - ti['S1re0']) * 1024}, 0")
    a("v_add_u32 v14, s67, v10")
    a("v_lshlrev_b32 v11, 10, v5")
    a("v_lshl_add_u32 v11, v4, 2, v11")
    a("v_add_u32 v11, s66, v11")
    def dma8(base, ks, ldsbase="s66"):
        a(f"s_lshl_b32 s68, s{ks}, 13")
        a(f"s_add_u32 s68, s68, {base}")
        t = []
        for j in range(8):
            a(f"s_add_u32 m0, {ldsbase}, {j*1024}")
            t.append(a(f"buffer_load_dwordx4 v6, {S4(SWS)}, s68 offen {LD} lds"))
            if j < 7: a("s_add_u32 s68, s68, 1024")
        return t
    tab = lambda reg, nm, base=10: f"ds_read_b128 {vr(reg,4)}, v{base} offset:{ti[nm]*1024}"
    TWO = TMP + 14
    a(f"s_cmp_lt_u32 s{sWAVE}, 4")
    a(f"s_cselect_b32 s68, {FB_WG}, 0")
    a("v_add_u32 v12, s68, v8")
    a("v_add_u32 v13, s68, v9")
    a(f"s_cmp_eq_u32 s{sWAVE}, 4")
    a.fence()
    a("s_cbranch_scc1 L_fpollz")
    a(f"s_cmp_eq_u32 s{sWAVE}, 5")
    a("s_cbranch_scc1 L_fpollw")
    a(f"s_cmp_ge_u32 s{sWAVE}, 4")
    a("s_cbranch_scc1 L_fgo")
    a("s_waitcnt vmcnt(0)")
    lds_inc(a, 15, t=(20, 21))
    a.fence()
    a("s_branch L_fgo")
    a.label("L_fpollw")
    a.reset_state()
    a(f"s_mov_b32 s68, {F_W}")
    poll(a, 68, 128, vt=20)
    a(f"v_mov_b32 v20, {CNT}")
    wait_word(a, 20, 4, tv=21)
    lds_inc(a, 13, t=(20, 21))
    for w in range(4):
        a(f"s_sub_u32 s69, s63, {5 - w}")
        a(f"s_mov_b32 s70, {FB_WG + w*8192}")
        dma8(WS_WT, 69, "s70")
    a.fence()
    a("s_branch L_fgo")
    a.label("L_fpollz")
    a.reset_state()
    a(f"s_mov_b32 s68, {F_Z}")
    poll(a, 68, 128, vt=20)
    lds_inc(a, 14, t=(20, 21))
    a.fence()
    a.label("L_fgo")
    a.reset_state()
    stamp(a, 'pre4')
    a(f"v_mov_b32 v20, {CNT + 60}")
    wait_word(a, 20, 4, tv=21, sleep=1)
    a(f"v_mov_b32 v20, {CNT + 56}")
    wait_word(a, 20, 1, tv=21, sleep=1)
    stamp(a, 'b4')
    tz = dma8(WS_Z, 63)
    for c in range(4):
        a(tab(CF + c * 4, f'S1re{c}', 14)); a(tab(CF + 16 + c * 4, f'S1im{c}', 14))
    for mt in range(2):
        for pr in range(4): a(tab(VT + (mt * 4 + pr) * 4, f'F1_{mt}_{pr}'))
    for c in range(4):
        a.wait_tok(*tz[(c >> 1) * 4: (c >> 1) * 4 + 4])
        for mt in range(2):
            a(f"ds_read_b128 {vr(PK + (mt*4+c)*4, 4)}, v{8 + (c & 1)} offset:{(c >> 1)*4096 + mt*2048}")
    a(f"s_cmp_eq_u32 s{sWAVE}, 5")
    a.wait_all(); a.fence()
    a("s_cbranch_scc0 L_fnot5")
    lds_inc(a, 15 - 8, t=(240, 241))
    a.fence()
    a.label("L_fnot5")
    a(f"s_cmp_lt_u32 s{sWAVE}, 4")
    a("s_cbranch_scc1 L_fcomp")
    a(f"v_mov_b32 v240, {CNT + 52}")
    wait_word(a, 240, 1, tv=241, sleep=0)
    dma8(WS_WT, 63)
    a.fence()
    a.label("L_fcomp")
    a.reset_state()
    if FFT_W2 == 2: touch_w2_8(a)
    D = lambda base, x, ri: base + (x * 2 + ri) * 16
    for c in range(4):
        for mt in range(2):
            for ri in range(2):
                acc = vr(D(VA, mt, ri), 16)
                a(f"{M} {acc}, {vr(PK + (mt*4+c)*4, 4)}, {vr(CF + ri*16 + c*4, 4)}, {'0' if c == 0 else acc}")
    PKR = lambda x, ri, u: PK + ((x * 2 + ri) * 2 + u) * 4
    WSL = [[0, 4, 1, 5], [2, 6, 3, 7]]
    Wr = lambda p, i: VT + 4 * WSL[p][i >> 2] + (i & 3)
    P2 = lambda r: f"v[{r}:{r+1}]"
    NEG0 = "neg_lo:[1,0,0] neg_hi:[1,0,0]"; NEG2 = "neg_lo:[0,0,1] neg_hi:[0,0,1]"
    a(f"v_mov_b32 v{TWO}, 2.0"); a(f"v_mov_b32 v{TWO+1}, 2.0")
    G2 = [('E', 0, 0), ('OF', 1, 0), ('E', 0, 1), ('OF', 1, 1)]
    G3 = [('E', 0, 0), ('E', 0, 1), ('OI', 1, 0), ('OI', 1, 1)]
    G4 = G2
    groups = [(g, 2) for g in G2] + [(g, 3) for g in G3] + [(g, 4) for g in G4]
    def cload(k):
        if k >= len(groups): return []
        (t, x, u), st = groups[k]
        return [tab(CF + (k & 1) * 12 + 4 * n, f'{t}{y}{u}') for n, y in enumerate('csn')]
    seen = set()
    def mgroup(k):
        (t, x, u), st = groups[k]
        out = VB if st in (2, 4) else VA
        inv = st != 2
        fr = lambda y: vr(CF + (k & 1) * 12 + 4 * 'csn'.index(y), 4)
        r = []
        for (ro, cx, ri) in ((0, 'c', 0), (1, 's' if inv else 'n', 0), (0, 'n' if inv else 's', 1), (1, 'c', 1)):
            acc = vr(D(out, x, ro), 16); dat = vr(PKR(x, ri, u), 4)
            A_, B_ = (dat, fr(cx)) if st == 3 else (fr(cx), dat)
            c = acc if (st, x, ro) in seen else '0'
            seen.add((st, x, ro))
            r.append(f"{M} {acc}, {A_}, {B_}, {c}")
        return r
    def mix(ks, valu):
        ms = []
        for k in ks: ms += [(m, (k if i == 3 else None)) for i, m in enumerate(mgroup(k))]
        n = len(ms); per = -(-len(valu) // n) if valu else 0
        vi = 0
        for m, k in ms:
            a(m)
            if k is not None:
                for l in cload(k + 2): a(l)
            for l in valu[vi:vi + per]: a(l)
            vi += per
    def pack(base, x, u):
        return [f"v_cvt_pk_bf16_f32 v{PKR(x, ri, u) + q}, v{D(base, x, ri) + 8*u + 2*q}, v{D(base, x, ri) + 8*u + 2*q + 1}"
                for ri in range(2) for q in range(4)]
    def wread1(p, q, off=0): return f"ds_read_b128 {vr(Wr(p, 4*q), 4)}, v{12 + (q & 1)} offset:{off + (q >> 1)*4096 + p*2048}"
    def twx(u, inv, refill):
        o = []
        sg = lambda fwd: (NEG0 if (fwd != inv) else "")
        for pr in range(4):
            i = 8 * u + 2 * pr
            t0r, t0i, t1r, t1i = (P2(D(VA, x, ri) + i) for x in range(2) for ri in range(2))
            if inv: s0 = s1 = Wr(u, 4 * pr)
            else: s0, s1 = VT + 4 * pr, VT + 16 + 4 * pr
            c0, sn0, c1, sn1 = P2(s0), P2(s0 + 2), P2(s1), P2(s1 + 2)
            A, B = P2(TMP + 4 * (pr & 1)), P2(TMP + 4 * (pr & 1) + 2)
            o += [f"v_pk_mul_f32 {A}, {t0r}, {c0}", f"v_pk_mul_f32 {B}, {t0i}, {c0}",
                  f"v_pk_fma_f32 {A}, {t0i}, {sn0}, {A} {sg(False)}", f"v_pk_fma_f32 {B}, {t0r}, {sn0}, {B} {sg(True)}",
                  f"v_pk_fma_f32 {t0r}, {t1r}, {c1}, {A}", f"v_pk_fma_f32 {t0i}, {t1i}, {c1}, {B}",
                  f"v_pk_fma_f32 {t0r}, {t1i}, {sn1}, {t0r} {sg(False)}", f"v_pk_fma_f32 {t0i}, {t1r}, {sn1}, {t0i} {sg(True)}",
                  f"v_pk_fma_f32 {t1r}, {A}, {P2(TWO)}, {t0r} {NEG2}", f"v_pk_fma_f32 {t1i}, {B}, {P2(TWO)}, {t0i} {NEG2}"]
            o += refill(pr)
            o += [f"v_cvt_pk_bf16_f32 v{PKR(x, ri, u) + pr}, v{D(VA, x, ri) + i}, v{D(VA, x, ri) + i + 1}" for x in range(2) for ri in range(2)]
        return o
    def tw1(u):
        if u == 0: return twx(0, False, lambda pr: [tab(VT + (mt * 4 + pr) * 4, f'F1_{mt}_{4 + pr}') for mt in range(2)])
        return twx(1, False, lambda pr: [])
    def tw2(u): return twx(u, True, lambda pr: [])
    def xw(p, t2=True, packit=True):
        o = []
        for pr in range(8):
            i = 2 * pr
            xr, xi, w = P2(D(VB, p, 0) + i), P2(D(VB, p, 1) + i), Wr(p, i)
            b = TMP + 6 * (pr & 1)
            wr, wi, t = P2(b), P2(b + 2), P2(b + 4)
            o += [f"v_lshlrev_b32 v{b}, 16, v{w}", f"v_lshlrev_b32 v{b+1}, 16, v{w+1}",
                  f"v_and_b32 v{b+2}, 0xffff0000, v{w}", f"v_and_b32 v{b+3}, 0xffff0000, v{w+1}",
                  f"v_pk_mul_f32 {t}, {xr}, {wi}", f"v_pk_mul_f32 {xr}, {xr}, {wr}",
                  f"v_pk_fma_f32 {xr}, {xi}, {wi}, {xr} {NEG0}", f"v_pk_fma_f32 {xi}, {xi}, {wr}, {t}"]
            if t2 and (pr & 1): o.append(tab(Wr(p, i & ~3), f'F2_{4 * p + (pr >> 1)}'))
            if packit:
                o += [f"v_cvt_pk_bf16_f32 v{PKR(p, ri, pr >> 2) + (pr & 3)}, v{D(VB, p, ri) + i}, v{D(VB, p, ri) + i + 1}" for ri in range(2)]
        return o
    def wread(p): return [wread1(p, q) for q in range(4)]
    for l in cload(0) + cload(1): a(l)
    stamp(a, 'zin')
    for l in tw1(0): a(l)
    mix([0, 1], tw1(1))
    a("s_waitcnt vmcnt(0)")
    a(f"v_mov_b32 v15, {CNT + 28}")
    wait_word(a, 15, 1, tv=7, sleep=0)
    stamp(a, 'win')
    for l in wread(0) + wread(1): a(l)
    if FFT_W2 == 1:
        touch_w2_8(a)
    a("s_cmp_lg_u32 s67, 0")
    a.wait_all(vm=False); a.fence()
    a("s_cbranch_scc1 L_fspecial")
    snap = a.snapshot(); seen0 = set(seen)
    x0 = xw(0)
    mix([2], [])
    mix([3], x0[:24])
    for l in x0[24:]: a(l)
    stamp(a, 'loop1')
    mix([4, 5], xw(1))
    mix([6, 7], [])
    a.wait_all(vm=False); a.fence()
    a("s_branch L_fjoin")
    a.restore(snap); seen.clear(); seen.update(seen0)
    a.label("L_fspecial")
    a("s_movk_i32 s71, 256")
    a(f"s_mov_b32 s72, {FB_WG}")
    dma8(WS_WT, 71, "s72")
    mix([2, 3], [])
    a("v_lshlrev_b32 v15, 8, v5")
    a("v_add_u32 v15, v15, v4")
    a("v_lshlrev_b32 v15, 2, v15")
    joff = lambda p, i: (32 * p + 64 * (8 * (i >> 2) + (i & 3))) * 4
    MAXO = joff(1, 15)
    a(f"v_sub_u32 v7, {8192 - MAXO}, v15")
    a("v_cmp_eq_u32 vcc, 0, v2")
    for ri in range(2):
        for p in range(2):
            for i in range(16): a(f"ds_write_b32 v15, v{D(VB,p,ri)+i} offset:{joff(p, i)}")
        a.wait_all(vm=False)
        for p in range(2):
            for i in range(16): a(f"ds_read_b32 v{D(VA,p,ri)+i}, v7 offset:{MAXO - joff(p, i)}")
        a.wait_all(vm=False)
        a(f"v_cndmask_b32 v{D(VA,0,ri)}, v{D(VA,0,ri)}, v{D(VB,0,ri)}, vcc")
    for l in xw(0, False, False) + xw(1, False, False): a(l)
    a("s_waitcnt vmcnt(0)")
    for l in wread(0) + wread(1): a(l)
    for p in range(2):
        for pr in range(8):
            i = 2 * pr
            vr_, vi_, w = P2(D(VB, p, 0) + i), P2(D(VB, p, 1) + i), Wr(p, i)
            mr, mi = P2(D(VA, p, 0) + i), P2(D(VA, p, 1) + i)
            b = TMP + 4 * (pr & 1)
            wr, wi = P2(b), P2(b + 2)
            for l in [f"v_lshlrev_b32 v{b}, 16, v{w}", f"v_lshlrev_b32 v{b+1}, 16, v{w+1}",
                      f"v_and_b32 v{b+2}, 0xffff0000, v{w}", f"v_and_b32 v{b+3}, 0xffff0000, v{w+1}",
                      f"v_pk_fma_f32 {vr_}, {mr}, {wr}, {vr_}", f"v_pk_fma_f32 {vi_}, {mr}, {wi}, {vi_}",
                      f"v_pk_fma_f32 {vr_}, {mi}, {wi}, {vr_}", f"v_pk_fma_f32 {vi_}, {mi}, {wr}, {vi_} {NEG0}"]: a(l)
            if pr & 1: a(tab(Wr(p, i & ~3), f'F2_{4 * p + (pr >> 1)}'))
    for x in range(2):
        for u in range(2):
            for l in pack(VB, x, u): a(l)
    stamp(a, 'loop1')
    mix([4, 5, 6, 7], [])
    a.wait_all(vm=False); a.fence()
    a.label("L_fjoin")
    a.reset_state()
    for l in tw2(0): a(l)
    mix([8, 9], tw2(1))
    a("v_add_u32 v15, 128, v11")
    def outp(nt):
        o = []
        for i in range(0, 16, 2):
            r = TMP + (i & 7); off = 8 * (i >> 2) + (i & 3)
            o += [f"v_cvt_pk_bf16_f32 v{r}, v{D(VB,nt,0)+i}, v{D(VB,nt,1)+i}",
                  f"v_cvt_pk_bf16_f32 v{r+1}, v{D(VB,nt,0)+i+1}, v{D(VB,nt,1)+i+1}",
                  f"ds_write2st64_b32 v{15 if nt else 11}, v{r}, v{r+1} offset0:{off} offset1:{off+1}"]
        return o
    mix([10], [])
    o0 = outp(0)
    mix([11], o0[:12])
    for l in o0[12:] + outp(1): a(l)
    a.wait_all(vm=False)
    stamp(a, 'f2')
    a(f"s_lshr_b32 s69, s{sWAVE}, 2")
    a("s_lshl_b32 s70, s69, 2")
    a(f"s_add_u32 s70, s70, {CNT + 16}")
    a("v_mov_b32 v12, s70")
    a("v_mov_b32 v13, 1")
    a("s_mov_b64 exec, 1")
    a("ds_add_u32 v12, v13")
    a("s_mov_b64 exec, -1")
    a("v_and_b32 v14, 255, v0")
    a("s_lshl_b32 s70, s69, 15")
    a("v_lshlrev_b32 v15, 4, v14")
    a("v_lshlrev_b32 v14, 2, v14")
    a("v_add_u32 v14, s70, v14")
    a("s_lshl_b32 s68, s62, 16")
    a("s_add_u32 s68, s68, s70")
    a(f"s_add_u32 s68, s68, {WS_Y1}")
    a("s_setprio 3")
    wait_word(a, 12, 4, sleep=0)
    for z in range(8):
        o = z * 4
        a(f"ds_read2st64_b32 {vr(64 + z*4, 2)}, v14 offset0:{o} offset1:{o+32}")
        a(f"ds_read2st64_b32 {vr(66 + z*4, 2)}, v14 offset0:{o+64} offset1:{o+96}")
    for z in range(8):
        a(f"buffer_store_dwordx4 {vr(64 + z*4, 4)}, v15, {S4(SWS)}, s68 offen {ST}")
        if z < 7: a("s_add_u32 s68, s68, 4096")
    a("s_setprio 0")
    lds_inc(a, 6)
    a("s_lshl_b32 s72, s62, 6")
    a(f"s_add_u32 s72, s72, {F_Y}")
    stamp(a, 'ust')
    a.fence()

def build():
    a = Asm()
    head = HEADER + ("; CFG " + os.environ.get("CFG", "") + "\n" if os.environ.get("CFG") else "") + (f"; STK {','.join(STK)}\n" if STAMPS else "") + f"; @launch grid=(256,1,1) block=(512,1,1) lds={LDS_TOTAL}\n"
    head += '.amdgcn_target "amdgcn-amd-amdhsa--gfx950"\n.text\n'
    tb = gen(a)
    body = a.text() + ".p2align 8\nTABLES:\n"
    for i in range(0, len(tb), 8):
        body += ".long " + ",".join(f"0x{x:x}" for x in tb[i:i+8]) + "\n"
    body += f""".section .rodata,"a"
.p2align 6
.amdhsa_kernel {NAME}
  .amdhsa_next_free_vgpr 256
  .amdhsa_next_free_sgpr 102
  .amdhsa_accum_offset 256
  .amdhsa_group_segment_fixed_size 0
  .amdhsa_kernarg_size 96
  .amdhsa_user_sgpr_count 2
  .amdhsa_user_sgpr_kernarg_segment_ptr 1
  .amdhsa_system_sgpr_workgroup_id_x 1
.end_amdhsa_kernel
"""
    return head + body, a.stats
if __name__ == "__main__":
    t, st = build()
    open(sys.argv[1], "w").write(t)
    print(len(t), "bytes", st)
```

```python
import sys, os, math, struct
sys.path.insert(0, "work")
from asmlib import *
from design import *

NAME = "gated_mix__spectral_gfnet__mixer_token_mlp__prompt_kernel"
HEADER = open("gated_mix__spectral_gfnet__mixer_token_mlp__prompt.s.ref").read().split("; @launch")[0]
ENV = lambda k, d: type(d)(os.environ.get(k, d))
STAMPS = ENV("STAMPS", 0)
ST = ENV("STMOD", "sc1").replace("_", " ")
LD = ENV("LDMOD", "sc1").replace("_", " ")
PA = ENV("PA", 3)
NREG = 9 - PA
W2_EARLY = ENV("W2_EARLY", 1)
POLL_MAX = 50000
EARLYW2 = ENV('EARLYW2', 0)
COOPH = ENV('COOPH', 0)
COOPU = ENV('COOPU', 0)
MF32 = ENV('MF32', 0)
STAGE = ENV('STAGE', 0)
BEH2 = ENV('BEH2', 1)
ETOUCH = ENV('ETOUCH', 1)
FGEN_LATE = ENV('FGEN_LATE', 1)
WARR = ENV('WARR', 2)
EDMA = ENV('EDMA', 0)
_g1e = []
W2T = ENV('W2T', 'late')
NOWAIT = ENV('NOWAIT', 0)
NOTW = ENV('NOTW', 0)
WJOB_FR = ENV('WJOB_FR', 0)
XSW = ENV('XSW', 0)
CODEPF2 = ENV('CODEPF2', 1)
WJOBH = ENV('WJOBH', 0)
SPB = 208
HPOLL2 = ENV('HPOLL2', 1)
NREP = ENV('NREP', 8)
OST = ENV('OST', '').replace('_', ' ')
TBIT = ENV('TBIT', 0)
SPREAD = ENV('SPREAD', 0)
PFH = ENV('PFH', 0)
PFU = ENV('PFU', 0)
HSLEEP = ENV('HSLEEP', 12)
USLEEP = ENV('USLEEP', 12)
TBWAIT = ENV('TBWAIT', 0)
FFT_T1 = ENV('FFT_T1', 1)
MAP1 = ENV('MAP1', 18)
MAP2 = ENV('MAP2', 18)
YSLEEP0 = ENV('YSLEEP0', 0)
TOUCH_FR = ENV('TOUCH_FR', 2)
DRY = ENV('DRY', 4)
ZLD = ENV('ZLD', ' ')
CODEPF = ENV('CODEPF', 0)
HALF_T = ENV('HALF_T', 1)
W_AFTER = ENV('W_AFTER', 1)
YSLEEP = ENV('YSLEEP', 40)
FFT_W2 = ENV('FFT_W2', 1)
PM = ENV('PM', 'sc1').replace('_', ' ')
PSLEEP = ENV('PSLEEP', 2)
DFTPRIO = ENV('DFTPRIO', 0)
W2SIG = ENV('W2SIG', 13)
NB1 = ENV('NB1', 0)
NB2 = ENV('NB2', 0)
NB3 = 0
NB4 = 0
EARLY2 = ENV('EARLY2', 1)
NR1 = ENV('NR1', 99)
FFT_PUB_FIRST = ENV('FFT_PUB_FIRST', 0)
WS_FLG = 0xC00000
F_H, F_Z, F_U, F_Y, F_EP, F_W, F_G, F_X = 0, 8192, 16384, 32768, 40960, 49152, 57344, 65536
WS_DBG = 0x8000000
WS_BYTES = 0x10000000
MIXC = "op_sel_hi:[0,1,0]"
MIXS = "op_sel:[0,1,0] op_sel_hi:[0,1,0]"
f2u = lambda f: struct.unpack("<I", struct.pack("<f", f))[0]
SX, SWR, SWI, SGW, SWS, STB, SW1, SW2, SOUT, SB2 = 8, 12, 16, 20, 24, 28, 32, 36, 40, 44
sWAVE, sXCD, sIDX, sTAG, sN2, sC2, sDT1, sFT1, sDT2, sST2 = 48, 49, 50, 51, 52, 53, 54, 55, 56, 57
RING = 32768
TREG, TB_ = (sXCD, 2) if TBIT in (9, 10) else (sIDX, TBIT)
AP = 4 * RING
LDS_TOTAL = 163840
FB_TB, FB_WG = 65536, 65536 + 59392

def srd(a, d, base, nbytes):
    a(f"s_mov_b32 s{d}, s{base}")
    a(f"s_and_b32 s{d+1}, s{base+1}, 0xffff")
    a(f"s_mov_b32 s{d+2}, {nbytes}")
    a(f"s_mov_b32 s{d+3}, 0x00020000")
def S4(d): return f"s[{d}:{d+3}]"
STK = ENV("STK", "start,xin,p1c,p1st,pre4,b4,loop1,ust,pre7,loop2,end").split(",")
def stamp(a, n):
    if STAMPS and n in STK:
        i = STK.index(n)
        a(f"s_memrealtime s[{80+2*i}:{81+2*i}]")
def stamp_flush(a):
    if not STAMPS: return
    a("s_waitcnt vmcnt(0)")
    stamp(a, 'end')
    a("s_waitcnt lgkmcnt(0)")
    for i in range(11): a(f"v_mov_b32 v{240+i}, s{80+2*i}")
    a("s_lshl_b32 s60, s2, 3")
    a(f"s_add_u32 s60, s60, s{sWAVE}")
    a("s_lshl_b32 s60, s60, 6")
    a(f"s_add_u32 s60, s60, {WS_DBG}")
    a("v_mov_b32 v239, 0")
    if ENV("DBG", 0):
        a("s_load_dwordx2 s[64:65], s[0:1], 80")
        a("s_waitcnt lgkmcnt(0)")
        srd(a, 68, 64, 256)
        a("v_not_b32 v238, v240")
        a("s_mov_b64 exec, 1")
        a(f"buffer_atomic_umax v238, v239, s[68:71], 0 offen")
        for i in range(1, 11): a(f"buffer_atomic_umax v{240+i}, v239, s[68:71], 0 offen offset:{4*i}")
        a(f"buffer_atomic_umax v240, v239, s[68:71], 0 offen offset:44")
        a("s_mov_b64 exec, -1")
        return
    a("s_mov_b64 exec, 1")
    for q in range(3): a(f"buffer_store_dwordx4 v[{240+4*q}:{243+4*q}], v239, {S4(SWS)}, s60 offen offset:{16*q}")
    a("s_mov_b64 exec, -1")
def dpp_reduce(a, regs):
    for mod in ("quad_perm:[1,0,3,2] row_mask:0xf bank_mask:0xf", "quad_perm:[2,3,0,1] row_mask:0xf bank_mask:0xf",
                "row_half_mirror row_mask:0xf bank_mask:0xf", "row_mirror row_mask:0xf bank_mask:0xf",
                "row_bcast:15 row_mask:0xa bank_mask:0xf", "row_bcast:31 row_mask:0xc bank_mask:0xf"):
        for r in regs: a(f"v_add_f32_dpp v{r}, v{r}, v{r} {mod}")
def unpack(a, lo, hi, src):
    a(f"v_lshlrev_b32 v{lo}, 16, v{src}")
    a(f"v_and_b32 v{hi}, 0xffff0000, v{src}")
_uid = [0]
def uid(p): _uid[0] += 1; return f"L_{p}_{_uid[0]}"

def set_flag(a, off_s):
    a(f"s_add_u32 s{off_s}, s{off_s}, {WS_FLG}")
    a(f"v_mov_b32 v13, s{sTAG}")
    a("v_mov_b32 v14, 0")
    a("s_mov_b64 exec, 1")
    a(f"buffer_store_dword v13, v14, {S4(SWS)}, s{off_s} offen {PM}")
    a("s_mov_b64 exec, -1")

def poll(a, off_s, nflags, vt=13):
    L, Ld = uid("poll"), uid("polld")
    a(f"s_add_u32 s{off_s}, s{off_s}, {WS_FLG}")
    n1 = min(nflags, 64)
    a(f"v_min_u32 v{vt}, {n1-1}, v2")
    a(f"v_lshlrev_b32 v{vt}, 6, v{vt}")
    a(f"v_add_u32 v{vt}, s6, v{vt}")
    a(f"s_mov_b32 s79, {POLL_MAX}")
    if nflags > 64: a(f"s_add_u32 s78, s{off_s}, 4096")
    a.wait_all(vm=False); a.fence()
    snap_vm = list(a.vm)
    a.label(L)
    a.auto_wait = False
    a(f"buffer_load_dword v{vt+1}, v{vt}, {S4(SWS)}, s{off_s} offen {PM}")
    if nflags > 64: a(f"buffer_load_dword v{vt+2}, v{vt}, {S4(SWS)}, s78 offen {PM}")
    a("s_sub_u32 s79, s79, 1")
    a("s_waitcnt vmcnt(0)")
    a(f"v_cmp_ne_u32 vcc, s{sTAG}, v{vt+1}")
    if nflags > 64:
        a(f"v_cmp_ne_u32 s[76:77], s{sTAG}, v{vt+2}")
        a("s_nop 1")
        a("s_or_b64 vcc, vcc, s[76:77]")
    else:
        a("s_nop 1")
    a("s_cmp_eq_u64 vcc, 0")
    a(f"s_cbranch_scc1 {Ld}")
    a("s_cmp_eq_u32 s79, 0")
    a(f"s_cbranch_scc1 {Ld}")
    a(f"s_sleep {PSLEEP}")
    a(f"s_branch {L}")
    a.label(Ld)
    a.auto_wait = True
    a.reset_state()

vW0, vW1, vA, vT, vL16 = 4, 5, 6, 8, 3
ACC, WF, AF, RS = 16, 80, 112, 112 + 16 * PA
sRING, sW, sA0, sA, sROT, sSL = 58, 59, 60, 61, 74, 75
ROT = ENV('ROT', 0)
ROT2 = ENV('ROT2', 0)

def poll_pre(a, off, vt):
    a(f"v_lshlrev_b32 v{vt}, 6, v2")
    a(f"s_mov_b32 s78, {WS_FLG + off}")
    a(f"s_mov_b32 s79, {WS_FLG + off + 4096}")
    a(f"buffer_load_dword v{vt+1}, v{vt}, {S4(SWS)}, s78 offen {PM}")
    a(f"buffer_load_dword v{vt+2}, v{vt}, {S4(SWS)}, s79 offen {PM}")
def poll_fin(a, off, vt, off_s):
    L = uid("pf")
    a(f"v_cmp_ne_u32 vcc, s{sTAG}, v{vt+1}")
    a(f"v_cmp_ne_u32 s[76:77], s{sTAG}, v{vt+2}")
    a("s_or_b64 vcc, vcc, s[76:77]")
    a("s_cmp_eq_u64 vcc, 0")
    a.wait_all(); a.fence()
    a(f"s_cbranch_scc1 {L}")
    a(f"s_mov_b32 s{off_s}, {off}")
    poll(a, off_s, 128, vt=vt)
    a.label(L)
    a.reset_state()

def gpoll(a, groups, vt=(12, 13, 250, 251), sleep=None, behind=None, need=None, lanes=None):
    L, Ld = uid("gp"), uid("gpd")
    for k, (so, n) in enumerate(groups):
        a(f"v_min_u32 v{vt[k]}, {n-1}, v2")
        a(f"v_lshlrev_b32 v{vt[k]}, 6, v{vt[k]}")
        a(f"v_add_u32 v{vt[k]}, s6, v{vt[k]}")
    L2 = uid("gpc")
    after = []
    if behind:
        for k, (so, n) in enumerate(groups):
            a(f"buffer_load_dword v{vt[2+k]}, v{vt[k]}, {S4(SWS)}, s{so} offen {PM}")
        n0 = len(a.vm)
        behind()
        after = a.vm[n0:] if len(a.vm) < 63 else None
        assert after is not None
        a(f"s_waitcnt vmcnt({len(after)})")
        a(f"s_mov_b32 s79, {POLL_MAX}")
        a.wait_all(vm=False); a.fence()
        a(f"s_branch {L2}")
    else:
        a(f"s_mov_b32 s79, {POLL_MAX}")
        a.wait_all(vm=False); a.fence()
    if lanes: a(f"s_mov_b64 exec, {lanes}")
    a.label(L)
    a.auto_wait = False
    for k, (so, n) in enumerate(groups):
        a(f"buffer_load_dword v{vt[2+k]}, v{vt[k]}, {S4(SWS)}, s{so} offen {PM}")
    a("s_sub_u32 s79, s79, 1")
    a("s_waitcnt vmcnt(0)")
    a.label(L2)
    a(f"v_cmp_ne_u32 vcc, s{sTAG}, v{vt[2]}")
    if len(groups) > 1:
        a(f"v_cmp_ne_u32 s[70:71], s{sTAG}, v{vt[3]}")
        a("s_nop 1")
        a("s_or_b64 vcc, vcc, s[70:71]")
    else:
        a("s_nop 1")
    if need:
        a("s_mov_b64 s[70:71], vcc")
        a(f"s_and_b32 s78, vcc_lo, {need}")
        a(f"s_cbranch_scc0 {Ld}")
    else:
        a("s_cmp_eq_u64 vcc, 0")
        a(f"s_cbranch_scc1 {Ld}")
    a("s_cmp_eq_u32 s79, 0")
    a(f"s_cbranch_scc1 {Ld}")
    a("s_mov_b64 exec, vcc")
    a(f"s_sleep {PSLEEP if sleep is None else sleep}")
    a(f"s_branch {L}")
    a.label(Ld)
    a("s_mov_b64 exec, -1")
    a.auto_wait = True
    a.reset_state()
    a.vm = list(after)

def prefetch_loop(a, groups, sleep):
    L, Ld = uid("pl"), uid("pld")
    a(f"s_mov_b32 s79, {POLL_MAX}")
    a.wait_all(vm=False); a.fence()
    a.label(L)
    a.auto_wait = False
    for k, (pd, vf, sf, vd, sd) in enumerate(groups):
        Ls = uid("pls")
        a(f"s_mov_b64 exec, s[{pd}:{pd+1}]")
        a(f"s_cbranch_execz {Ls}")
        a(f"buffer_load_dword v{14+k}, v{vf}, {S4(SWS)}, s{sf} offen {PM}")
        a.label(Ls)
    a("s_waitcnt vmcnt(0)")
    for k, (pd, vf, sf, vd, sd) in enumerate(groups):
        Ls = uid("pls")
        a(f"s_mov_b64 exec, s[{pd}:{pd+1}]")
        a(f"v_cmp_eq_u32 vcc, s{sTAG}, v{14+k}")
        a("s_nop 1")
        a(f"s_andn2_b64 s[{pd}:{pd+1}], s[{pd}:{pd+1}], vcc")
        a("s_mov_b64 exec, vcc")
        a(f"s_cbranch_execz {Ls}")
        a(f"buffer_load_dword v1, v{vd}, {S4(SWS)}, s{sd} offen")
        a.label(Ls)
    a("s_mov_b64 exec, -1")
    if len(groups) > 1: a(f"s_or_b64 vcc, s[{groups[0][0]}:{groups[0][0]+1}], s[{groups[1][0]}:{groups[1][0]+1}]")
    else: a(f"s_mov_b64 vcc, s[{groups[0][0]}:{groups[0][0]+1}]")
    a("s_cmp_eq_u64 vcc, 0")
    a(f"s_cbranch_scc1 {Ld}")
    a("s_sub_u32 s79, s79, 1")
    a(f"s_cbranch_scc1 {Ld}")
    a(f"s_sleep {sleep}")
    a(f"s_branch {L}")
    a.label(Ld)
    a.auto_wait = True
    a.reset_state()

def prefetch_h(a):
    a(f"s_lshr_b32 s62, s{sXCD}, 1")
    a("s_mul_i32 s62, s62, 7")
    a(f"s_sub_u32 s62, s{sFT1}, s62")
    a("v_lshrrev_b32 v4, 3, v2")
    a("v_mul_u32_u24 v4, 7, v4")
    a("v_add_u32 v4, s62, v4")
    a("v_and_b32 v5, 7, v2")
    a("v_lshlrev_b32 v5, 7, v5")
    a("v_lshlrev_b32 v6, 6, v4")
    a("v_lshl_add_u32 v7, v4, 10, v5")
    a("v_cmp_gt_u32 vcc, 8, v4")
    a("s_mov_b64 s[70:71], -1")
    a("s_mov_b64 s[72:73], vcc")
    a(f"s_bfe_u32 s63, s{sWAVE}, 0x10001")
    a("s_lshl_b32 s63, s63, 12")
    a(f"s_add_u32 s63, s63, {WS_FLG + F_H}")
    a(f"s_add_u32 s68, s63, {56*64}")
    a(f"s_lshl_b32 s69, s{sDT1}, 18")
    a(f"s_and_b32 s76, s{sWAVE}, 3")
    a("s_lshl_b32 s76, s76, 16")
    a("s_add_u32 s69, s69, s76")
    if WS_HT: a(f"s_add_u32 s69, s69, {WS_HT}")
    a(f"s_add_u32 s76, s69, {56*1024}")
    prefetch_loop(a, [(70, 6, 63, 7, 69), (72, 6, 68, 7, 76)], HSLEEP)

def prefetch_u(a):
    a("v_lshrrev_b32 v4, 3, v2")
    a("v_and_b32 v5, 7, v2")
    a("v_lshlrev_b32 v5, 7, v5")
    a("v_lshlrev_b32 v6, 6, v4")
    a("v_lshl_add_u32 v7, v4, 13, v5")
    a("s_mov_b32 s70, -1")
    a("s_mov_b32 s71, 0x00ffffff")
    a(f"s_and_b32 s76, s{sWAVE}, 3")
    a(f"s_lshl_b32 s63, s{sDT2}, 11")
    a(f"s_mul_i32 s68, s76, {7*64}")
    a("s_add_u32 s63, s63, s68")
    a(f"s_add_u32 s63, s63, {WS_FLG + F_U}")
    a(f"s_mul_i32 s69, s{sDT2}, {224*1024}")
    a(f"s_mul_i32 s68, s76, {56*1024}")
    a("s_add_u32 s69, s69, s68")
    a(f"s_and_b32 s68, s{sST2}, 7")
    a("s_lshl_b32 s68, s68, 10")
    a("s_add_u32 s69, s69, s68")
    a(f"s_add_u32 s69, s69, {WS_UT}")
    prefetch_loop(a, [(70, 6, 63, 7, 69)], USLEEP)

def wlane(a, r0, r1, rowstride, t0, t1):
    a(f"v_lshrrev_b32 v{t0}, 3, v2")
    a(f"s_mov_b32 s79, {rowstride}")
    a(f"v_mul_lo_u32 v{r0}, v{t0}, s79")
    if MF32:
        a(f"v_lshlrev_b32 v{t0}, 4, v2")
        a(f"v_and_b32 v{t0}, 0x70, v{t0}")
        a(f"v_lshlrev_b32 v{t1}, 2, v2")
        a(f"v_and_b32 v{t1}, 64, v{t1}")
        a(f"v_xor_b32 v{t0}, v{t0}, v{t1}")
        a(f"v_add_u32 v{r0}, v{r0}, v{t0}")
        a(f"v_mov_b32 v{r1}, v{r0}")
        return
    a(f"v_bfe_u32 v{t0}, v2, 1, 2")
    a(f"v_bfe_u32 v{t1}, v2, 4, 1")
    a(f"v_xor_b32 v{t0}, v{t0}, v{t1}")
    a(f"v_lshl_add_u32 v{r0}, v{t0}, 5, v{r0}")
    a(f"v_and_b32 v{t0}, 1, v2")
    a(f"v_lshl_add_u32 v{r0}, v{t0}, 4, v{r0}")
    a(f"v_xor_b32 v{r1}, 64, v{r0}")
def gemm_lane_consts(a, rowstride):
    t0, t1 = 12, 13
    a(f"s_lshl_b32 s{sRING}, s{sWAVE}, 15")
    wlane(a, vW0, vW1, rowstride, t0, t1)
    if MF32:
        a(f"v_lshrrev_b32 v{t1}, 5, v2")
        a(f"v_lshlrev_b32 v{vA}, 10, v{t1}")
        a(f"v_and_b32 v{t0}, 31, v2")
        a(f"v_lshl_add_u32 v{vA}, v{t0}, 4, v{vA}")
        a(f"v_lshlrev_b32 v{vT}, 10, v{t1}")
        a(f"v_bfe_u32 v{t0}, v2, 2, 2")
        a(f"v_lshl_add_u32 v{vT}, v{t0}, 7, v{vT}")
        a(f"v_bfe_u32 v{t0}, v2, 3, 1")
        a(f"v_lshl_add_u32 v{vT}, v{t0}, 6, v{vT}")
        a(f"v_bfe_u32 v{t0}, v2, 4, 1")
        a(f"v_lshl_add_u32 v{vT}, v{t0}, 5, v{vT}")
        a(f"v_and_b32 v{t0}, 3, v2")
        a(f"v_lshl_add_u32 v{vT}, v{t0}, 3, v{vT}")
        a(f"v_add_u32 v{vT}, s{sRING}, v{vT}")
        a(f"v_xor_b32 v{vT+1}, 64, v{vT}")
        a(f"v_add_u32 v7, s{sRING}, v{vL16}")
        return
    a(f"v_lshrrev_b32 v{t1}, 4, v2")
    a(f"v_lshlrev_b32 v{vA}, 10, v{t1}")
    a(f"v_and_b32 v{t0}, 15, v2")
    a(f"v_lshl_add_u32 v{vA}, v{t0}, 4, v{vA}")
    a(f"v_lshlrev_b32 v{vT}, 10, v{t1}")
    a(f"v_bfe_u32 v{t0}, v2, 2, 2")
    a(f"v_lshl_add_u32 v{vT}, v{t0}, 7, v{vT}")
    a(f"v_bfe_u32 v{t0}, v2, 3, 2")
    a(f"v_lshl_add_u32 v{vT}, v{t0}, 5, v{vT}")
    a(f"v_and_b32 v{t0}, 3, v2")
    a(f"v_lshl_add_u32 v{vT}, v{t0}, 3, v{vT}")
    a(f"v_add_u32 v{vT}, s{sRING}, v{vT}")
    for t in range(1, 4): a(f"v_xor_b32 v{vT+t}, {32*t}, v{vT}")
    a(f"v_add_u32 v7, s{sRING}, v{vL16}")

class Gemm:
    def __init__(s, a, nslab, slots, kinds, srdW, wbase_s, jstep, sstep, w_is_A, vw=(4, 5), rot=74):
        s.vw, s.rot = vw, rot
        s.a, s.n, s.slots, s.kinds, s.srdW, s.wb, s.jstep, s.sstep, s.w_is_A = a, nslab, slots, kinds, srdW, wbase_s, jstep, sstep, w_is_A
        s.tok = {}
        s.regidx = {sg: i for i, sg in enumerate([x for x in range(nslab) if kinds[x] == 'reg'])}
    def wload(s, sig, jj):
        v = s.vw[jj % 2]
        o = []
        if jj == 0:
            o += s.actual(sig, sSL, sW) + [f"s_mul_i32 s{sSL}, s{sSL}, {s.sstep}", f"s_add_u32 s{sSL}, s{sSL}, s{s.wb}"]
        o.append(f"s_add_u32 s{sW}, s{sSL}, {jj * s.jstep}")
        if s.kinds[sig] == 'reg':
            r = RS + s.regidx[sig] * 16 + jj * 4
            o.append(f"buffer_load_dwordx4 {vr(r,4)}, v{v}, {S4(s.srdW)}, s{sW} offen")
        else:
            o.append(f"s_add_u32 m0, s{sRING}, {s.slots[sig]*4096 + jj*1024}")
            o.append(f"buffer_load_dwordx4 v{v}, {S4(s.srdW)}, s{sW} offen lds")
        return o
    def actual(s, sig, d, tmp):
        o = [f"s_add_u32 s{d}, s{s.rot}, {sig}"]
        if s.n == 16: o.append(f"s_and_b32 s{d}, s{d}, 15")
        else: o += [f"s_sub_u32 s{tmp}, s{d}, {s.n}", f"s_min_u32 s{d}, s{d}, s{tmp}"]
        return o
    def emit_w(s, sig, jjs=range(4)):
        if s.w_is_A: stamp(s.a, f"w{sig}")
        for jj in jjs:
            for l in s.wload(sig, jj):
                ins = s.a(l)
                if 'lds' in l and 'buffer' in l: s.tok.setdefault(sig, []).append(ins)
    def aload(s, sig, mt):
        r = AF + (sig % PA) * 16 + mt * 4
        o = []
        if mt == 0: o += s.actual(sig, sA, 73) + [f"s_lshl_b32 s{sA}, s{sA}, 12", f"s_add_u32 s{sA}, s{sA}, s{sA0}"]
        o.append(f"buffer_load_dwordx4 {vr(r,4)}, v{vA}, {S4(SWS)}, s{sA} offen offset:{(mt >> 1) * 2048 + (mt & 1) * 512 if MF32 else mt*256} {LD}")
        return o
    def trreads(s, sig):
        out = []
        for t in range(4):
            for u in range(2):
                r = WF + (sig & 1) * 16 + t * 4 + 2 * u
                if MF32:
                    out.append(f"ds_read_b64_tr_b16 {vr(r,2)}, v{vT + (t & 1)} offset:{s.slots[sig]*4096 + (t >> 1)*2048 + u*512}")
                    continue
                out.append(f"ds_read_b64_tr_b16 {vr(r,2)}, v{vT+t} offset:{s.slots[sig]*4096 + u*512}")
        return out
    def run(s, extra=None, drain_first=False, post=None, pwrite=None):
        a = s.a; M = "v_mfma_f32_16x16x32_bf16"
        for sig in range(min(PA, s.n)):
            for mt in range(4):
                for l in s.aload(sig, mt): a(l)
        if post: post()
        if drain_first: a.wait_tok(a.vm[0])
        a.wait_tok(*s.tok.get(0, []))
        rt = {0: [a(l) for l in s.trreads(0)]}
        wr = {}; done = []
        for sig in range(s.n):
            stamp(a, f"g{1 if s.w_is_A else 2}_{sig}")
            nxt = [x for x in range(sig + 1, s.n) if s.slots[x] == s.slots[sig] and s.kinds[x] != 'pre']
            fill = nxt[0] if nxt else None
            groups = [[] for _ in range(16)]
            trn = s.trreads(sig + 1) if sig + 1 < s.n else []
            for i, l in enumerate(trn): groups[6 + i].append(('tr', l))
            if fill is not None:
                for jj in range(4):
                    if s.kinds[fill] == 'reg':
                        r = RS + s.regidx[fill] * 16 + jj * 4
                        groups[jj].append(('wr', f"ds_write_b128 v7, {vr(r,4)} offset:{s.slots[fill]*4096 + jj*1024}"))
                    else:
                        groups[jj].append(('dma', jj))
            if sig + PA < s.n:
                for mt in range(4): groups[12 + mt].append(('act', mt))
            ex = extra(sig) if extra else []
            for i, g in enumerate(ex): groups[min(15, 1 + i * 14 // max(1, len(ex)))].append(('ex', g))
            if fill is not None or ex: a.wait_tok(*rt[sig])
            rt[sig + 1] = []
            if MF32:
                def do(grp):
                    for kind, x in grp:
                        if kind == 'tr':
                            if not rt[sig + 1]: a.wait_tok(*s.tok.get(sig + 1, []), *wr.get(sig + 1, []))
                            rt[sig + 1].append(a(x))
                        elif kind == 'wr': wr.setdefault(fill, []).append(a(x))
                        elif kind == 'dma': s.emit_w(fill, [x])
                        elif kind == 'act':
                            for l in s.aload(sig + PA, x): a(l)
                        elif kind == 'ex': x()
                g8 = [[] for _ in range(8)]
                for gi_, g in enumerate(groups):
                    for kind, x in g:
                        if kind == 'tr': g8[3 + (gi_ - 6) * 5 // 8].append((kind, x))
                        elif kind == 'act': g8[4 + x].append((kind, x))
                        elif kind in ('wr', 'dma'): g8[gi_].append((kind, x))
                        else: g8[gi_ // 2].append((kind, x))
                order = [(ks, t, mt) for ks in range(2) for t in range(2) for mt in range(2)]
                last = pwrite and sig == s.n - 1
                if last: order = [(ks, t, mt) for t in range(2) for mt in range(2) for ks in range(2)]
                for k, (ks, t, mt) in enumerate(order):
                    wf = vr(WF + (sig & 1) * 16 + (ks * 2 + t) * 4, 4); af = vr(AF + (sig % PA) * 16 + (ks * 2 + mt) * 4, 4)
                    bi = (t * 2 + mt) if s.w_is_A else (mt * 2 + t)
                    acc = vr(ACC + bi * 16, 16)
                    A_, B_ = (wf, af) if s.w_is_A else (af, wf)
                    a(f"v_mfma_f32_32x32x16_bf16 {acc}, {A_}, {B_}, {'0' if (sig == 0 and ks == 0) else acc}")
                    do(g8[k])
                    if last and ks == 1: done.append(bi)
                    if last and k in (6, 7):
                        for q in range(4): a(pwrite(done[k - 6] * 4 + q))
                if last:
                    for bi in done[2:]:
                        for q in range(4): a(pwrite(bi * 4 + q))
                    done = []
                continue
            k = 0
            for t in range(4):
                for mt in range(4):
                    wf = vr(WF + (sig & 1) * 16 + t * 4, 4); af = vr(AF + (sig % PA) * 16 + mt * 4, 4)
                    if s.w_is_A: acc = vr(ACC + (t * 4 + mt) * 4, 4); A_, B_ = wf, af
                    else:        acc = vr(ACC + (mt * 4 + t) * 4, 4); A_, B_ = af, wf
                    a(f"{M} {acc}, {A_}, {B_}, {'0' if sig == 0 else acc}")
                    for kind, x in groups[k]:
                        if kind == 'tr':
                            if not rt[sig + 1]: a.wait_tok(*s.tok.get(sig + 1, []), *wr.get(sig + 1, []))
                            rt[sig + 1].append(a(x))
                        elif kind == 'wr': wr.setdefault(fill, []).append(a(x))
                        elif kind == 'dma': s.emit_w(fill, [x])
                        elif kind == 'act':
                            for l in s.aload(sig + PA, x): a(l)
                        elif kind == 'ex': x()
                    if pwrite and sig == s.n - 1:
                        done.append((t * 4 + mt) if s.w_is_A else (mt * 4 + t))
                        if k >= 8: a(pwrite(done[k - 8]))
                    k += 1
        if pwrite:
            for b in done[8:]: a(pwrite(b))

P1_EX, P1_GX, CNT, P1_TB = AP, AP + 16384, LDS_TOTAL - 64, AP + 21504
P1_XR = P1_EX
P1_WR, P1_WI = 0, 32768
LX, LF, LP, LGW = 16, 32, 64, 96
def hbar(a, cnt, target):
    a.wait_all(vm=False)
    a(f"v_mov_b32 v12, {CNT + 4*cnt}")
    a("v_mov_b32 v13, 1")
    a("s_mov_b64 exec, 1")
    a("ds_add_u32 v12, v13")
    a("s_mov_b64 exec, -1")
    wait_word(a, 12, target, sleep=0)

def phase1_ln(a):
    F = lambda r, e: LF + 8 * r + e
    P = lambda r, e: LP + 8 * r + e
    R = range(4)
    a(f"buffer_load_dwordx4 {vr(LGW,4)}, v3, {S4(SGW)}, 0 offen")
    if WJOBH:
        a("v_and_b32 v9, 15, v2")
        w_special_pre(a)
    stamp(a, 'ea0')
    a("s_barrier")
    a("v_mov_b32 v108, 0x3b000000")
    a("v_lshlrev_b32 v11, 5, v2")
    a("v_add_u32 v11, s64, v11")
    a("v_and_b32 v4, 255, v0")
    a("v_lshlrev_b32 v4, 2, v4")
    a(f"v_add_u32 v4, {P1_EX}, v4")
    a(f"s_lshl_b32 s72, s{sC2}, 6")
    a(f"s_add_u32 s72, s72, s{sN2}")
    a("s_lshl_b32 s72, s72, 6")
    a("s_lshl_b32 s70, s72, 4")
    a(f"s_lshl_b32 s71, s{sC2}, 16")
    a("s_add_u32 s70, s70, s71")
    a(f"s_and_b32 s71, s{sWAVE}, 3")
    a(f"s_lshl_b32 s71, s71, 18")
    a("s_add_u32 s70, s70, s71")
    if WS_HT: a(f"s_add_u32 s70, s70, {WS_HT}")
    if F_H: a(f"s_add_u32 s72, s72, {F_H}")
    S_, T_, M_, V_, M2, V2 = 100, 104, 112, 116, 152, 160
    P2 = lambda r: f"v[{r}:{r+1}]"
    NEG1 = "neg_lo:[0,1] neg_hi:[0,1]"
    SP_ = 168
    for r in R:
        for q in range(4): unpack(a, F(r, 2*q), F(r, 2*q+1), LX + 4*r + q)
        if r == 0: stamp(a, 'xin')
        a(f"v_pk_add_f32 {P2(SP_+4*r)}, {P2(F(r,0))}, {P2(F(r,2))}")
        a(f"v_pk_add_f32 {P2(SP_+4*r+2)}, {P2(F(r,4))}, {P2(F(r,6))}")
        a(f"v_pk_add_f32 {P2(SP_+4*r)}, {P2(SP_+4*r)}, {P2(SP_+4*r+2)}")
        a(f"v_add_f32 v{S_+r}, v{SP_+4*r}, v{SP_+4*r+1}")
    dpp_reduce(a, [S_ + r for r in R])
    for r in R: a(f"v_readlane_b32 s{64+r}, v{S_+r}, 63")
    for r in R:
        a(f"v_mul_f32 v{M2+2*r}, s{64+r}, v108"); a(f"v_mul_f32 v{M2+2*r+1}, s{64+r}, v108")
    for q in range(4):
        for r in R: a(f"v_pk_add_f32 {P2(P(r,2*q))}, {P2(F(r,2*q))}, {P2(M2+2*r)} {NEG1}")
        for r in R:
            if q == 0: a(f"v_pk_mul_f32 {P2(SP_+2*r)}, {P2(P(r,0))}, {P2(P(r,0))}")
            else: a(f"v_pk_fma_f32 {P2(SP_+2*r)}, {P2(P(r,2*q))}, {P2(P(r,2*q))}, {P2(SP_+2*r)}")
    for r in R: a(f"v_add_f32 v{S_+r}, v{SP_+2*r}, v{SP_+2*r+1}")
    for r in R:
        a(f"v_cvt_pk_bf16_f32 v{T_+r}, v{M2+2*r}, v{M2+2*r}")
    for r in R: unpack(a, M2 + 2*r, M2 + 2*r + 1, T_ + r)
    dpp_reduce(a, [S_ + r for r in R])
    for r in R: a(f"v_readlane_b32 s{64+r}, v{S_+r}, 63")
    def rnd4(X):
        for p in range(2): a(f"v_cvt_pk_bf16_f32 v{T_+p}, v{X+2*p}, v{X+2*p+1}")
        for p in range(2): unpack(a, X + 2*p, X + 2*p + 1, T_ + p)
    sub = [f"v_pk_add_f32 {P2(P(r,2*q))}, {P2(F(r,2*q))}, {P2(M2+2*r)} {NEG1}" for q in range(4) for r in R]
    cv = [f"v_cvt_pk_bf16_f32 v{120 + 4*r + q}, v{P(r,2*q)}, v{P(r,2*q+1)}" for q in range(4) for r in R]
    for l in sub[:4]: a(l)
    for r in R: a(f"v_mul_f32 v{V_+r}, s{64+r}, v108")
    rnd4(V_)
    for r in R: a(f"v_add_f32 v{V_+r}, 0x3727c5ac, v{V_+r}")
    rnd4(V_)
    for r in R: a(f"v_sqrt_f32 v{V_+r}, v{V_+r}")
    for l in sub[4:8]: a(l)
    rnd4(V_)
    for r in R:
        a(f"v_rcp_f32 v{V2+2*r}, v{V_+r}"); a(f"v_rcp_f32 v{V2+2*r+1}, v{V_+r}")
    for l in sub[8:]: a(l)
    for l in cv: a(l)
    for p in range(2):
        for r in (2*p, 2*p+1):
            for q in range(4): unpack(a, P(r, 2*q), P(r, 2*q+1), 120 + 4*r + q)
            for q in range(4): a(f"v_pk_mul_f32 {P2(P(r,2*q))}, {P2(P(r,2*q))}, {P2(V2+2*r)}")
        for e in range(8): a(f"v_cvt_pk_bf16_f32 v{176 + 8*p + e}, v{P(2*p,e)}, v{P(2*p+1,e)}")
        a(f"ds_write_b128 v11, {vr(176 + 8*p, 4)} offset:{2048*p}")
        a(f"ds_write_b128 v11, {vr(180 + 8*p, 4)} offset:{2048*p + 16}")
    stamp(a, 'p1c')
    hbar(a, 8, 4)
    for dh in range(2):
        for cc in range(2):
            for hh in range(2):
                o = 32 * cc + 16 * hh + 4 * dh
                a(f"ds_read2st64_b32 {vr(136 + 8*dh + 4*cc + 2*hh, 2)}, v4 offset0:{o} offset1:{o+8}")
    for dh in range(2):
        for cc in range(2):
            a(f"s_add_u32 s71, s70, {dh * (1 << 20) + cc * 65536}")
            a(f"buffer_store_dwordx4 {vr(136 + 8*dh + 4*cc, 4)}, v3, {S4(SWS)}, s71 offen {ST}")
    stamp(a, 'p1st')
    lds_inc(a, 11)
    tag_ready(a)
    if not WJOBH:
        arrive(a, 0, [72], 0, 4)
        return
    a("v_bfe_u32 v7, v0, 2, 6")
    a("v_and_b32 v6, 3, v2")
    a("v_lshlrev_b32 v8, 13, v7")
    a("v_lshl_add_u32 v8, v6, 4, v8")
    a(f"v_mov_b32 v12, {CNT + 40}")
    wait_word(a, 12, 4, sleep=0)
    w_relayout(a, WR=176, WI=192, flagbase=F_H)
    arrive(a, 0, [72], 5, 4)
    arrive(a, 3, [69], 0, 4)

def lds_inc(a, cnt, t=(12, 13)):
    a(f"v_mov_b32 v{t[0]}, {CNT + 4*cnt}")
    a(f"v_mov_b32 v{t[1]}, 1")
    a("s_mov_b64 exec, 1")
    a(f"ds_add_u32 v{t[0]}, v{t[1]}")
    a("s_mov_b64 exec, -1")
def touch_w1(a, t=(12, 13)):
    if TBIT == 9:
        a(f"v_lshrrev_b32 v{t[0]}, 3, v2")
        a(f"v_and_b32 v{t[1]}, 7, v2")
        a(f"v_mul_u32_u24 v{t[0]}, 3584, v{t[0]}")
        a(f"v_lshl_add_u32 v{t[0]}, v{t[1]}, 7, v{t[0]}")
        a(f"s_lshl_b32 s70, s{sIDX}, 2")
        a(f"s_add_u32 s70, s70, s{sWAVE}")
        a("s_lshl_b32 s70, s70, 1")
        a(f"s_and_b32 s71, s{sXCD}, 1")
        a("s_add_u32 s70, s70, s71")
        a(f"s_mul_i32 s70, s70, {8*3584}")
        a(f"s_lshr_b32 s71, s{sXCD}, 1")
        a("s_lshl_b32 s72, s71, 10")
        a("s_cmp_eq_u32 s71, 3")
        a(f"s_cselect_b32 s72, {22*128}, s72")
        a("s_add_u32 s70, s70, s72")
        a(f"s_cmp_lt_u32 s{sXCD}, 4")
        a(f"s_cselect_b32 s71, 7, 5")
        a(f"v_cmp_ge_u32 s[100:101], s71, v{t[1]}")
        return
    if MAP1 == 18:
        a(f"v_lshrrev_b32 v{t[0]}, 2, v2")
        a(f"v_and_b32 v{t[1]}, 3, v2")
        a(f"v_mul_u32_u24 v{t[0]}, 3584, v{t[0]}")
        a(f"v_lshl_add_u32 v{t[0]}, v{t[1]}, 7, v{t[0]}")
        a(f"s_lshl_b32 s70, s{sIDX}, 2")
        a(f"s_add_u32 s70, s70, s{sWAVE}")
        a(f"s_mul_i32 s70, s70, {16*3584}")
        a(f"s_lshr_b32 s71, s{sXCD}, 1")
        a("s_mul_i32 s71, s71, 896")
        a("s_add_u32 s70, s70, s71")
        a(f"s_and_b32 s71, s{sXCD}, 1")
        a("s_mul_i32 s71, s71, 384")
        a("s_add_u32 s70, s70, s71")
        return
    a(f"v_mul_u32_u24 v{t[0]}, 37, v2")
    a(f"v_lshrrev_b32 v{t[0]}, 8, v{t[0]}")
    a(f"v_mul_u32_u24 v{t[1]}, 7, v{t[0]}")
    a(f"v_sub_u32 v{t[1]}, v2, v{t[1]}")
    a(f"v_mul_u32_u24 v{t[0]}, 3584, v{t[0]}")
    a(f"v_lshl_add_u32 v{t[0]}, v{t[1]}, 7, v{t[0]}")
    a(f"s_lshl_b32 s70, s{sIDX}, 2")
    a(f"s_add_u32 s70, s70, s{sWAVE}")
    a(f"s_mul_i32 s70, s70, {16*3584}")
    a(f"s_lshr_b32 s71, s{sXCD}, 1")
    a("s_mul_i32 s71, s71, 896")
    a("s_add_u32 s70, s70, s71")
    a(f"s_and_b32 s71, s{sXCD}, 1")
    a(f"s_mul_i32 s71, s71, {8*3584}")
    a("s_add_u32 s70, s70, s71")
    a(f"s_xor_b32 s71, s71, {8*3584}")
    a("s_add_u32 s71, s71, s70")
    a(f"s_and_b32 s72, s{sXCD}, 1")
    a(f"s_mul_i32 s72, s72, {8*3584}")
    a("s_sub_u32 s71, s71, s72")
def touch_w1_issue(a, t=(150, 151), gemm=True):
    if EDMA and gemm:
        if ETOUCH: touch_w1_issue(a, t, gemm=False)
        for sg in range(EDMA): _g1e[0].emit_w(sg)
        return
    if TBIT == 9:
        a("s_mov_b64 exec, s[100:101]")
        a(f"buffer_load_dword v250, v{t[0]}, {S4(SW1)}, s70 offen")
        a("s_mov_b64 exec, -1")
        return
    if MAP1 == 24: a("s_mov_b32 exec_hi, 0x00ffffff")
    a(f"buffer_load_dword v250, v{t[0]}, {S4(SW1)}, s70 offen")
    if not HALF_T and MAP1 == 24: a(f"buffer_load_dword v251, v{t[0]}, {S4(SW1)}, s71 offen")
    a("s_mov_b32 exec_hi, -1")
def touch_w2(a, t=12, dst=(250, 251)):
    if MAP2 == 18:
        a(f"v_lshrrev_b32 v{t}, 2, v2")
        a(f"v_lshlrev_b32 v{t}, 12, v{t}")
        a(f"v_and_b32 v{t+1}, 3, v2")
        a(f"v_lshl_add_u32 v{t}, v{t+1}, 7, v{t}")
        a(f"s_lshl_b32 s70, s{sIDX}, 2")
        a(f"s_and_b32 s71, s{sWAVE}, 3")
        a("s_add_u32 s70, s70, s71")
        a(f"s_mul_i32 s70, s70, {14*4096}")
        a(f"s_lshl_b32 s71, s{sXCD}, 9")
        a("s_add_u32 s70, s70, s71")
        a("s_mov_b32 exec_hi, 0x00ffffff")
        a(f"buffer_load_dword v{dst[0]}, v{t}, {S4(SW2)}, s70 offen")
        a("s_mov_b32 exec_hi, -1")
        return
    a(f"v_lshrrev_b32 v{t}, 3, v2")
    a(f"v_lshlrev_b32 v{t}, 12, v{t}")
    a(f"v_and_b32 v{t+1}, 7, v2")
    a(f"v_lshl_add_u32 v{t}, v{t+1}, 7, v{t}")
    a(f"s_lshl_b32 s70, s{sIDX}, 2")
    a(f"s_and_b32 s71, s{sWAVE}, 3")
    a("s_add_u32 s70, s70, s71")
    a(f"s_mul_i32 s70, s70, {14*4096}")
    a(f"s_lshr_b32 s71, s{sXCD}, 1")
    a("s_lshl_b32 s71, s71, 10")
    a("s_add_u32 s70, s70, s71")
    a(f"s_add_u32 s71, s70, {8*4096}")
    a(f"buffer_load_dword v{dst[0]}, v{t}, {S4(SW2)}, s70 offen")
    a("s_mov_b32 exec_hi, 0x0000ffff")
    a(f"buffer_load_dword v{dst[1]}, v{t}, {S4(SW2)}, s71 offen")
    a("s_mov_b32 exec_hi, -1")
def touch_w2_8(a):
    if W2T == 'fft':
        a("v_lshrrev_b32 v15, 2, v2")
        a("v_lshlrev_b32 v15, 12, v15")
        a("v_and_b32 v7, 3, v2")
        a("v_lshl_add_u32 v15, v7, 7, v15")
        a("s_and_b32 s70, s63, 31")
        a(f"s_mul_i32 s70, s70, {14*4096}")
        a(f"s_lshl_b32 s71, s{sXCD}, 9")
        a("s_add_u32 s70, s70, s71")
        a("s_mov_b32 exec_hi, 0x00ffffff")
        for i in range(4):
            a.raw(f"    buffer_load_dword v1, v15, {S4(SW2)}, s70 offen")
            if i < 3: a(f"s_add_u32 s70, s70, {448*4096}")
        a("s_mov_b32 exec_hi, -1")
        return
    if MAP2 == 18:
        a("v_lshrrev_b32 v15, 2, v2")
        a("v_lshlrev_b32 v15, 12, v15")
        a("v_and_b32 v7, 3, v2")
        a("v_lshl_add_u32 v15, v7, 7, v15")
        a(f"s_lshl_b32 s70, s{sIDX}, 3")
        a(f"s_add_u32 s70, s70, s{sWAVE}")
        a(f"s_mul_i32 s70, s70, {7*4096}")
        a(f"s_lshl_b32 s71, s{sXCD}, 9")
        a("s_add_u32 s70, s70, s71")
        a("s_mov_b64 exec, 0x0fffffff")
        a(f"buffer_load_dword v1, v15, {S4(SW2)}, s70 offen")
        a("s_mov_b64 exec, -1")
        return
    a("v_lshrrev_b32 v15, 3, v2")
    a("v_lshlrev_b32 v15, 12, v15")
    a("v_and_b32 v7, 7, v2")
    a("v_lshl_add_u32 v15, v7, 7, v15")
    a(f"s_lshl_b32 s70, s{sIDX}, 3")
    a(f"s_add_u32 s70, s70, s{sWAVE}")
    a(f"s_mul_i32 s70, s70, {7*4096}")
    a(f"s_lshr_b32 s71, s{sXCD}, 1")
    a("s_lshl_b32 s71, s71, 10")
    a("s_add_u32 s70, s70, s71")
    a("s_mov_b32 exec_hi, 0x00ffffff")
    a(f"buffer_load_dword v1, v15, {S4(SW2)}, s70 offen")
    a("s_mov_b32 exec_hi, -1")
def tag_ready(a):
    a("s_waitcnt lgkmcnt(0)")
    a(f"s_add_u32 s{sTAG}, s{sTAG}, 0x9e3779b9")

def gate(a):
    L = uid("nogate")
    a(f"s_bitcmp1_b32 s{TREG}, {TB_}")
    a.fence()
    a(f"s_cbranch_scc1 {L}")
    snap = a.snapshot()
    F = lambda r, e: LF + 8 * r + e
    P = lambda r, e: LP + 8 * r + e
    G, S_ = 16, 100
    R = range(4)
    for q in range(4): unpack(a, G + 2*q, G + 2*q + 1, LGW + q)
    for e in range(8):
        for r in R: a(f"v_mul_f32 v{P(r,e)}, v{F(r,e)}, v{G+e}")
    for p in range(2):
        for e in range(8):
            t = 24 + (e & 3)
            a(f"v_cvt_pk_bf16_f32 v{t}, v{P(2*p,e)}, v{P(2*p+1,e)}")
            unpack(a, P(2*p, e), P(2*p+1, e), t)
    for r in R: a(f"v_add_f32 v{S_+r}, v{P(r,0)}, v{P(r,1)}")
    for e in range(2, 8):
        for r in R: a(f"v_add_f32 v{S_+r}, v{S_+r}, v{P(r,e)}")
    dpp_reduce(a, [S_ + r for r in R])
    def rnd4(X):
        for p in range(2): a(f"v_cvt_pk_bf16_f32 v{104+p}, v{X+2*p}, v{X+2*p+1}")
        for p in range(2): unpack(a, X + 2*p, X + 2*p + 1, 104 + p)
    rnd4(S_)
    for r in R: a(f"v_mul_f32 v{S_+r}, 0xbfb8aa3b, v{S_+r}")
    for r in R: a(f"v_exp_f32 v{S_+r}, v{S_+r}")
    for r in R: a(f"v_add_f32 v{S_+r}, 1.0, v{S_+r}")
    for r in R: a(f"v_rcp_f32 v{S_+r}, v{S_+r}")
    rnd4(S_)
    a(f"s_lshl_b32 s73, s{sC2}, 6")
    a(f"s_add_u32 s73, s73, s{sN2}")
    a("s_lshl_b32 s73, s73, 6")
    a(f"s_and_b32 s79, s{sWAVE}, 3")
    a("s_lshl_b32 s79, s79, 4")
    a("s_add_u32 s78, s73, s79")
    a(f"s_add_u32 s78, s78, {WS_G}")
    a(f"s_add_u32 s73, s73, {F_G}")
    a("v_mov_b32 v104, 0")
    a("s_mov_b32 exec_lo, 0")
    a("s_mov_b32 exec_hi, 0x80000000")
    a(f"buffer_store_dwordx4 {vr(S_,4)}, v104, {S4(SWS)}, s78 offen {ST}")
    a("s_mov_b64 exec, -1")
    arrive(a, 2, [73], 0, 4, lowprio=True)
    a.fence()
    a.label(L)
    a.restore(snap)

def arrive(a, cnt, flags, nvm, nw, t=(12, 13), st=78, lowprio=False):
    L = uid("arr")
    a(f"s_waitcnt vmcnt({nvm})")
    stamp(a, f'arr{cnt}')
    a(f"v_mov_b32 v{t[0]}, {CNT + 4*cnt}")
    a(f"v_mov_b32 v{t[1]}, 1")
    a("s_mov_b64 exec, 1")
    a(f"ds_add_rtn_u32 v{t[1]}, v{t[0]}, v{t[1]}")
    a("s_mov_b64 exec, -1")
    a("s_waitcnt lgkmcnt(0)")
    a(f"v_readfirstlane_b32 s{st}, v{t[1]}")
    a(f"s_cmp_lg_u32 s{st}, {nw-1}")
    a(f"s_cbranch_scc1 {L}")
    snap = a.snapshot()
    if lowprio: a("s_setprio 3")
    a(f"v_mov_b32 v{t[1]}, s{sTAG}")
    a(f"v_lshlrev_b32 v{t[0]}, 17, v2")
    a(f"v_add_u32 v{t[0]}, {WS_FLG}, v{t[0]}")
    a(f"s_mov_b64 exec, {(1 << NREP) - 1}")
    for f in flags: a(f"buffer_store_dword v{t[1]}, v{t[0]}, {S4(SWS)}, s{f} offen {PM}")
    a("s_mov_b64 exec, -1")
    if lowprio: a("s_setprio 0")
    a.fence()
    a.label(L)
    a.restore(snap)
def wait_word(a, vaddr, val, tv=13, st=78, sleep=2):
    L, Ld = uid("wc"), uid("wcd")
    a("s_mov_b32 s79, 200000")
    a.wait_all(vm=False); a.fence()
    a.label(L)
    a.auto_wait = False
    a(f"ds_read_b32 v{tv}, v{vaddr}")
    a("s_waitcnt lgkmcnt(0)")
    a(f"v_readfirstlane_b32 s{st}, v{tv}")
    a(f"s_cmp_ge_u32 s{st}, {val}")
    a(f"s_cbranch_scc1 {Ld}")
    a("s_sub_u32 s79, s79, 1")
    a(f"s_cbranch_scc1 {Ld}")
    if sleep: a(f"s_sleep {sleep}")
    a(f"s_branch {L}")
    a.label(Ld)
    a.auto_wait = True

def phase1_fft(a, ti):
    M = "v_mfma_f32_16x16x32_bf16"
    a(f"s_and_b32 s65, s{sWAVE}, 3")
    a("s_lshl_b32 s66, s65, 10")
    for j in range(3):
        a(f"s_add_u32 s67, s66, {4096*j}")
        if j == 2: a("s_min_u32 s67, s67, 9216")
        a(f"s_add_u32 m0, s67, {P1_TB}")
        a(f"s_add_u32 s67, s67, TABLES-{NAME}")
        d2 = a(f"buffer_load_dwordx4 v3, {S4(STB)}, s67 offen lds")
    a("v_and_b32 v9, 15, v2")
    stamp(a, 'ea0')
    a("s_barrier")
    a("v_lshrrev_b32 v4, 4, v2")
    a("v_lshlrev_b32 v5, 9, v4")
    a("v_lshlrev_b32 v4, 8, v4")
    a("v_lshl_add_u32 v4, v9, 3, v4")
    a("v_add_u32 v4, s64, v4")
    a("v_lshl_add_u32 v5, v9, 2, v5")
    a("v_add_u32 v5, s64, v5")
    a(f"v_add_u32 v14, {P1_TB}, v3")
    a("v_bfe_u32 v7, v0, 2, 6")
    a("v_and_b32 v6, 3, v2")
    a("v_and_b32 v15, 1, v2")
    a("v_cmp_eq_u32 vcc, 1, v15")
    a("v_bfe_u32 v10, v2, 1, 1")
    a("v_lshlrev_b32 v10, 13, v10")
    a(f"v_add_u32 v10, {P1_EX}, v10")
    for z in range(4):
        a(f"v_add_u32 v11, {64*z}, v7")
        a(f"v_sub_u32 v12, {512 - 64*z}, v7")
        if z == 0:
            a("v_mov_b32 v13, 256")
            a("v_cmp_eq_u32 s[76:77], 0, v7")
            a("v_cndmask_b32 v12, v12, v13, s[76:77]")
        a("v_cndmask_b32 v11, v11, v12, vcc")
        a(f"v_lshl_add_u32 v{136+z}, v11, 2, v10")
    a("v_lshlrev_b32 v8, 13, v7")
    a("v_lshl_add_u32 v8, v6, 4, v8")
    a(f"s_lshl_b32 s72, s{sC2}, 6")
    a(f"s_add_u32 s72, s72, s{sN2}")
    a("s_lshl_b32 s72, s72, 6")
    a(f"s_add_u32 s70, s72, {WS_Z}")
    a(f"s_add_u32 s72, s72, {F_Z}")
    a.wait_tok(d2)
    stamp(a, 'xin')
    hbar(a, 9, 4)
    AF_ = lambda p, r: 56 + 8 * p + 4 * r
    for p in range(2):
        for r in range(2):
            for u in range(2):
                a(f"ds_read_b64_tr_b16 {vr(AF_(p, r) + 2*u, 2)}, v4 offset:{2048*p + 1024*r + 128*u}")
        if p == 0:
            T = {}
            for n in ['COS0', 'NSIN0', 'SIN0', 'COS1', 'NSIN1', 'SIN1']:
                idx = ti[n]; r_ = 16 + 4 * idx; T[n] = r_
                a(f"ds_read_b128 {vr(r_,4)}, v14 offset:{idx*1024}")
    for n in ['TW0', 'TW1', 'ARE', 'AIM']:
        idx = ti[n]; r_ = 16 + 4 * idx; T[n] = r_
        a(f"ds_read_b128 {vr(r_,4)}, v14 offset:{idx*1024}")
    TR = lambda p, jh, x: 72 + 16 * p + 8 * jh + (0 if x == 're' else 4)
    for p in range(2):
        for jh in range(2):
            a(f"{M} {vr(TR(p,jh,'re'),4)}, {vr(AF_(p,0),4)}, {vr(T[f'COS{jh}'],4)}, 0")
            a(f"{M} {vr(TR(p,jh,'im'),4)}, {vr(AF_(p,0),4)}, {vr(T[f'NSIN{jh}'],4)}, 0")
            a(f"{M} {vr(TR(p,jh,'re'),4)}, {vr(AF_(p,1),4)}, {vr(T[f'SIN{jh}'],4)}, {vr(TR(p,jh,'re'),4)}")
            a(f"{M} {vr(TR(p,jh,'im'),4)}, {vr(AF_(p,1),4)}, {vr(T[f'COS{jh}'],4)}, {vr(TR(p,jh,'im'),4)}")
    for p in range(2):
        for jh in range(2):
            o = 120 + 8 * jh
            for i in range(4):
                tw = T[f'TW{jh}'] + i; re = TR(p, jh, 're') + i; im = TR(p, jh, 'im') + i
                a(f"v_fma_mix_f32 v{o+i}, v{re}, v{tw}, 0 {MIXC}")
                a(f"v_fma_mix_f32 v{o+4+i}, v{im}, v{tw}, 0 {MIXC}")
                a(f"v_fma_mix_f32 v{o+i}, v{im}, v{tw}, v{o+i} {MIXS}")
                a(f"v_fma_mix_f32 v{o+4+i}, -v{re}, v{tw}, v{o+4+i} {MIXS}")
            B = 104 + 8 * p + 4 * jh
            for q in range(4): a(f"v_cvt_pk_bf16_f32 v{B+q}, v{o+2*q}, v{o+2*q+1}")
            a(f"{M} {vr(TR(p,jh,'re'),4)}, {vr(T['ARE'],4)}, {vr(B,4)}, 0")
            a(f"{M} {vr(TR(p,jh,'im'),4)}, {vr(T['AIM'],4)}, {vr(B,4)}, 0")
    for p in range(2):
        for jh in range(2):
            for i in range(4):
                r = 56 + 8 * p + 4 * jh + i
                a(f"v_cvt_pk_bf16_f32 v{r}, v{TR(p,jh,'re')+i}, v{TR(p,jh,'im')+i}")
                a(f"ds_write_b32 v5, v{r} offset:{2048*p + (16*jh + 32*i) * 4}")
    stamp(a, 'p1c')
    hbar(a, 8, 4)
    for z in range(4):
        for hh in range(2):
            a(f"ds_read2st64_b32 {vr(96 + 4*z + 2*hh, 2)}, v{136+z} offset0:{16*hh} offset1:{16*hh+8}")
    for z in range(4):
        a(f"buffer_store_dwordx4 {vr(96 + 4*z, 4)}, v8, {S4(SWS)}, s70 offen {ST}")
        if z < 3: a(f"s_add_u32 s70, s70, {64*8192}")
    stamp(a, 'p1st')
    lds_inc(a, 11)
    tag_ready(a)
    arrive(a, 0, [72], 0, 4)

def g_prologue(a):
    L1, L2 = uid("gw"), uid("gw")
    a(f"s_bitcmp{0 if WJOB_FR else 1}_b32 s{TREG}, {TB_}")
    a.fence()
    a(f"s_cbranch_scc1 {L1}")
    a("s_lshr_b32 s66, s62, 10")
    a("s_mul_i32 s67, s66, 514")
    a("s_and_b32 s67, s67, 0xfffffff0")
    a(f"s_mul_i32 s69, s{sWAVE}, 2112")
    a("s_mov_b32 exec_hi, 1")
    for r in range(4):
        for (srd_, base) in ((SWR, P1_WR), (SWI, P1_WI)):
            a(f"s_add_u32 m0, s69, {base + 528*r}")
            a(f"buffer_load_dwordx4 v3, {S4(srd_)}, s67 offen lds")
        if r < 3: a(f"s_add_u32 s67, s67, {64*514}")
    a("s_mov_b32 exec_hi, -1")
    if WJOBH:
        touch_w1_issue(a)
        a("s_waitcnt vmcnt(1)")
        lds_inc(a, 10)
        tag_ready(a)
        a("s_waitcnt vmcnt(0)")
        a.fence()
        a(f"s_branch {L2}")
    a("v_and_b32 v9, 15, v2")
    w_special_pre(a)
    a("v_bfe_u32 v7, v0, 2, 6")
    a("v_and_b32 v6, 3, v2")
    a("v_lshlrev_b32 v8, 13, v7")
    a("v_lshl_add_u32 v8, v6, 4, v8")
    a(f"s_lshl_b32 s72, s{sC2}, 6")
    a(f"s_add_u32 s72, s72, s{sN2}")
    a("s_lshl_b32 s72, s72, 6")
    a(f"s_add_u32 s72, s72, {F_Z}")
    a("s_mov_b64 s[64:65], s[70:71]")
    if TOUCH_FR == 2:
        touch_w1_issue(a)
        a(f"s_waitcnt vmcnt({(ETOUCH + 4 * EDMA) if EDMA else (1 if (HALF_T or MAP1 == 18) else 2)})")
    else: a("s_waitcnt vmcnt(0)")
    hbar(a, 10, 4)
    w_relayout(a)
    tag_ready(a)
    if TOUCH_FR == 0:
        a("s_mov_b64 s[70:71], s[64:65]")
        touch_w1_issue(a)
    hbar(a, 10, 8)
    a.fence()
    a(f"s_branch {L2}")
    a.label(L1)
    a.reset_state()
    touch_w1_issue(a)
    if TOUCH_FR == 1:
        a(f"s_sub_u32 s70, s70, {64*3584*(1 << TBIT)}")
        touch_w1_issue(a)
    if CODEPF:
        a(f"s_cmp_lg_u32 s{sIDX}, 1")
        a("s_cbranch_scc1 L_nocpf")
        a("v_lshlrev_b32 v152, 7, v2")
        a(f"s_lshl_b32 s73, s{sWAVE}, 13")
        for j in range(2):
            a(f"buffer_load_dword v153, v152, {S4(STB)}, s73 offen")
            if j < 1: a("s_add_u32 s73, s73, 32768")
        a.fence()
        a.label("L_nocpf")
        a.reset_state()
    tag_ready(a)
    if not NOTW: a("s_waitcnt vmcnt(0)")
    a.fence()
    a.label(L2)
    a.reset_state()
    stamp(a, 'ea1')
    if W2T == 'early': touch_w2(a, dst=(1, 1))
    if not NOWAIT:
        a(f"v_mov_b32 v12, {CNT + 44}")
        wait_word(a, 12, 4)

def w_arrive(a, nvm):
    L = uid("nowa")
    a(f"s_bitcmp{0 if WJOB_FR else 1}_b32 s{TREG}, {TB_}")
    a.fence()
    a(f"s_cbranch_scc1 {L}")
    snap = a.snapshot()
    arrive(a, 3, [69], nvm, 4)
    a.fence()
    a.label(L)
    a.restore(snap)
def w_special_pre(a):
    SP = SPB
    a(f"s_lshl_b32 s66, s{sC2}, 10")
    a(f"s_add_u32 s66, s66, s{sN2}")
    a("v_lshlrev_b32 v10, 6, v9")
    a("v_add_u32 v10, s66, v10")
    a("v_sub_u32 v11, 2048, v10")
    a("v_and_b32 v11, 2047, v11")
    a(f"v_bfe_u32 v{SPB+4}, v2, 4, 1")
    a(f"v_lshlrev_b32 v{SPB+5}, 9, v{SPB+4}")
    a("s_movk_i32 s68, 514")
    a(f"v_mad_u32_u24 v11, v11, s68, v{SPB+5}")
    for i in range(4): a(f"v_mov_b32 v{SP+i}, 0")
    a(f"s_cmp_eq_u32 s{sWAVE}, {4 if WJOBH else 0}")
    a("s_cselect_b32 s68, 0, 0x7fffffff")
    a("s_mov_b32 exec_hi, 0")
    a(f"buffer_load_short_d16_hi v{SP+2}, v11, {S4(SWR)}, s68 offen")
    a(f"buffer_load_short_d16_hi v{SP+3}, v11, {S4(SWI)}, s68 offen")
    a("s_mov_b32 exec_hi, -1")
def w_relayout(a, WR=16, WI=32, flagbase=None):
    SP = SPB
    if flagbase is None: flagbase = F_Z
    a(f"s_lshl_b32 s67, s{sN2}, 1")
    a("s_and_b32 s67, s67, 15")
    a("v_mul_u32_u24 v14, 2112, v6")
    a("v_lshl_add_u32 v14, v7, 1, v14")
    a("v_add_u32 v14, s67, v14")
    a("v_mul_u32_u24 v10, 528, v9")
    a(f"v_add_u32 v10, v10, v{SPB+5}")
    a("v_add_u32 v10, s67, v10")
    for i in range(16): a(f"v_mov_b32 v{WI+i}, 0")
    for z in range(4):
        for e in range(4):
            a(f"ds_read_u16 v{WR+4*z+e}, v14 offset:{P1_WR + e*528 + 128*z}")
            a(f"ds_read_u16_d16_hi v{WI+4*z+e}, v14 offset:{P1_WI + e*528 + 128*z}")
    a(f"ds_read_u16_d16_hi v{SP}, v10 offset:{P1_WR}")
    a(f"ds_read_u16_d16_hi v{SP+1}, v10 offset:{P1_WI}")
    a(f"s_sub_u32 s69, s72, {flagbase}")
    a(f"s_add_u32 s70, s69, {WS_WT}")
    a(f"s_add_u32 s69, s69, {F_W}")
    for i in range(16): a(f"v_or_b32 v{WR+i}, v{WR+i}, v{WI+i}")
    if WJOBH:
        a.wait_all(vm=False)
        lds_inc(a, 9, t=(13, 15))
    for z in (1, 2, 3):
        a(f"s_add_u32 s71, s70, {z*64*8192}")
        a(f"buffer_store_dwordx4 {vr(WR+4*z,4)}, v8, {S4(SWS)}, s71 offen {ST}")
    a("v_cmp_ne_u32 vcc, 0, v7")
    a("s_and_saveexec_b64 s[76:77], vcc")
    a(f"buffer_store_dwordx4 {vr(WR,4)}, v8, {S4(SWS)}, s70 offen {ST}")
    a("s_mov_b64 exec, s[76:77]")
    a(f"v_add_f32 v{SP}, v{SP}, v{SP+2}")
    a(f"v_sub_f32 v{SP+1}, v{SP+1}, v{SP+3}")
    a(f"ds_swizzle_b32 v{SP+2}, v{SP} offset:0x401F")
    a(f"ds_swizzle_b32 v{SP+3}, v{SP+1} offset:0x401F")
    a(f"v_lshlrev_b32 v15, 31, v{SPB+4}")
    a(f"v_xor_b32 v{SP}, v15, v{SP}")
    a(f"v_xor_b32 v{SP+1}, v15, v{SP+1}")
    a(f"v_add_f32 v{SP}, v{SP}, v{SP+2}")
    a(f"v_add_f32 v{SP+1}, v{SP+1}, v{SP+3}")
    a(f"v_mul_f32 v{SP}, 0x3e800000, v{SP}")
    a(f"v_mul_f32 v{SP+1}, 0x3e800000, v{SP+1}")
    a(f"v_cvt_pk_bf16_f32 v{SP+2}, v{SP}, v{SP+1}")
    a(f"v_lshlrev_b32 v14, 21, v{SPB+4}")
    a("v_lshl_add_u32 v14, v9, 2, v14")
    a("s_add_u32 s68, s68, s70")
    a("s_mov_b32 exec_hi, 0")
    a(f"buffer_store_dword v{SP+2}, v14, {S4(SWS)}, s68 offen {ST}")
    a("s_mov_b32 exec_hi, -1")

def wait_vm_untracked(a, toks):
    a.wait_tok(*toks)

def part_write(a, base_v0, base_v1, off0):
    pass

def flag_g(a):
    a(f"s_lshl_b32 s73, s{sC2}, 6")
    a(f"s_add_u32 s73, s73, s{sN2}")
    a("s_lshl_b32 s73, s73, 6")
    a(f"s_and_b32 s78, s{sIDX}, 1")
    a("s_lshl_b32 s78, s78, 13")
    a("s_add_u32 s73, s73, s78")
    a(f"s_add_u32 s73, s73, {F_G}")

def gen(a):
    tb1, ti1 = table_dwords(1); tb2, ti2 = table_dwords(2)
    TB2OFF = len(tb1) * 4
    a.raw(f".globl {NAME}\n.p2align 8\n.type {NAME},@function\n{NAME}:")
    a("s_cmp_ge_u32 s2, 256")
    a("s_cbranch_scc1 L_end")
    if STAMPS:
        for i in range(11): a(f"s_mov_b64 s[{80+2*i}:{81+2*i}], 0")
        stamp(a, 'start')
    a("s_load_dwordx16 s[64:79], s[0:1], 0")
    a("s_load_dwordx4 s[4:7], s[0:1], 64")
    a("s_load_dwordx2 s[60:61], s[0:1], 88")
    a(f"s_getpc_b64 s[{STB}:{STB+1}]")
    a.raw("Lpc0:")
    a(f"s_sub_u32 s{STB}, s{STB}, Lpc0-{NAME}")
    a(f"s_subb_u32 s{STB+1}, s{STB+1}, 0")
    a(f"s_and_b32 s{STB+1}, s{STB+1}, 0xffff")
    a(f"s_mov_b32 s{STB+2}, TABLES-{NAME}+{(len(tb1) + len(tb2)) * 4}")
    a(f"s_mov_b32 s{STB+3}, 0x00020000")
    a("v_lshrrev_b32 v1, 6, v0")
    a("v_and_b32 v2, 63, v0")
    a(f"v_readfirstlane_b32 s{sWAVE}, v1")
    a("v_lshlrev_b32 v3, 4, v2")
    for r in range(4, 16): a(f"v_mov_b32 v{r}, 0")
    if XSW: a(f"s_xor_b32 s2, s2, {XSW}")
    a(f"s_and_b32 s{sXCD}, s2, 7")
    a(f"s_lshr_b32 s{sIDX}, s2, 3")
    a(f"s_lshl_b32 s{sN2}, s{sXCD}, 3")
    if TBIT == 0:
        a("s_bfe_u32 s3, s2, 0x30004")
        a(f"s_lshr_b32 s{sC2}, s2, 7")
    elif TBIT in (9, 10):
        a(f"s_and_b32 s{sN2}, s{sXCD}, 3")
        a(f"s_lshl_b32 s{sN2}, s{sN2}, 4")
        a(f"s_and_b32 s3, s{sIDX}, 15")
        a(f"s_lshr_b32 s{sC2}, s{sIDX}, 4")
    else:
        a("s_bfe_u32 s3, s2, 0x30003")
        a(f"s_bfe_u32 s{sC2}, s2, 0x10006")
    a(f"s_add_u32 s{sN2}, s{sN2}, s3")
    if TBIT == 9:
        a(f"s_max_u32 s3, s{sIDX}, 8")
        a("s_sub_u32 s3, s3, 8")
        a(f"s_cmp_lt_u32 s{sXCD}, 4")
        a(f"s_cselect_b32 s3, s{sIDX}, s3")
        a(f"s_and_b32 s{sDT1}, s3, 3")
        a(f"s_lshr_b32 s{sFT1}, s3, 2")
        a(f"s_mul_i32 s58, s{sDT1}, {4 * ROT}")
        a(f"s_and_b32 s3, s{sXCD}, 1")
        a("s_lshl_b32 s3, s3, 2")
        a(f"s_add_u32 s{sDT1}, s{sDT1}, s3")
        a(f"s_lshr_b32 s3, s{sXCD}, 1")
        a("s_lshl_b32 s59, s3, 3")
        a("s_cmp_eq_u32 s3, 3")
        a("s_cselect_b32 s59, 22, s59")
        a(f"s_add_u32 s{sFT1}, s{sFT1}, s59")
    else:
        a(f"s_sub_u32 s3, s{sIDX}, 4")
        if TBIT in (0, 10):
            a(f"s_lshr_b32 s59, s{sIDX}, 1")
            a(f"s_cmp_lt_u32 s{sIDX}, 8")
            a("s_cselect_b32 s3, s59, s3")
        else:
            a(f"s_cmp_lt_u32 s{sIDX}, 16")
            a(f"s_cselect_b32 s3, s{sIDX}, s3")
        if MAP1 == 24:
            a(f"s_mul_i32 s{sDT1}, s3, 37")
            a(f"s_lshr_b32 s{sDT1}, s{sDT1}, 8")
            a(f"s_mul_i32 s{sFT1}, s{sDT1}, 7")
            a(f"s_sub_u32 s{sFT1}, s3, s{sFT1}")
            a(f"s_lshl_b32 s58, s{sDT1}, 1")
            a(f"s_mul_i32 s59, s{sFT1}, {ROT2}")
            a("s_add_u32 s58, s58, s59")
            a(f"s_mul_i32 s58, s58, {2 * ROT}")
            a(f"s_and_b32 s3, s{sXCD}, 1")
            a("s_lshl_b32 s3, s3, 2")
            a(f"s_add_u32 s{sDT1}, s{sDT1}, s3")
        else:
            a(f"s_and_b32 s59, s{sXCD}, 1")
            a("s_lshl_b32 s59, s59, 2")
            a("s_lshr_b32 s58, s3, 3")
            a(f"s_add_u32 s{sFT1}, s58, s59")
            a(f"s_and_b32 s{sDT1}, s3, 7")
            a(f"s_add_u32 s59, s59, s{sDT1}")
            a("s_cmp_ge_u32 s3, 24")
            a(f"s_cselect_b32 s{sFT1}, 3, s{sFT1}")
            a(f"s_cselect_b32 s{sDT1}, s59, s{sDT1}")
            a("s_lshl_b32 s58, s58, 1")
            a(f"s_add_u32 s58, s58, s{sDT1}")
            a(f"s_mul_i32 s58, s58, {2 * ROT}")
        a(f"s_lshr_b32 s3, s{sXCD}, 1")
        a("s_mul_i32 s3, s3, 7")
        a(f"s_add_u32 s{sFT1}, s{sFT1}, s3")
    if MAP2 == 24:
        a(f"s_and_b32 s3, s{sXCD}, 1")
        a("s_lshl_b32 s3, s3, 2")
        a(f"s_lshr_b32 s{sDT2}, s{sIDX}, 3")
        a(f"s_add_u32 s{sDT2}, s{sDT2}, s3")
        a(f"s_lshr_b32 s3, s{sXCD}, 1")
        a(f"s_lshl_b32 s{sST2}, s3, 3")
        a(f"s_and_b32 s3, s{sIDX}, 7")
        a(f"s_add_u32 s{sST2}, s{sST2}, s3")
    else:
        a(f"s_and_b32 s{sDT2}, s{sIDX}, 7")
        a(f"s_lshl_b32 s{sST2}, s{sXCD}, 2")
        a(f"s_lshr_b32 s3, s{sIDX}, 3")
        a(f"s_add_u32 s{sST2}, s{sST2}, s3")
    if TBIT in (0, 10): a(f"s_and_b32 s3, s{sIDX}, 0x19")
    elif TBIT == 9:
        a("s_and_b32 s3, s2, 0xc4")
        a("s_lshr_b32 s3, s3, 2")
    else:
        a(f"s_lshr_b32 s3, s{sIDX}, 2")
        a("s_sub_u32 s3, s3, 3")
    a(f"s_lshl_b32 s62, s{sC2}, 10")
    a(f"s_add_u32 s62, s62, s{sN2}")
    a(f"s_and_b32 s59, s{sWAVE}, 3")
    a("s_lshl_b32 s63, s59, 8")
    a("s_add_u32 s62, s62, s63")
    a("s_lshl_b32 s62, s62, 10")
    a("s_lshl_b32 s59, s59, 12")
    a(f"s_add_u32 s59, s59, {P1_XR}")
    srd(a, SX, 64, S * D * 2)
    a(f"s_cmp_lt_u32 s{sWAVE}, 4")
    a("s_cbranch_scc1 L_xdone")
    a("s_setprio 3")
    a(f"s_bitcmp1_b32 s{TREG}, {TB_}")
    a("s_cbranch_scc1 L_xdma")
    for r in range(4):
        a(f"s_add_u32 s63, s62, {65536*r}")
        a(f"buffer_load_dwordx4 {vr(LX + 4*r, 4)}, v3, {S4(SX)}, s63 offen")
    a("s_branch L_xdone")
    snapx = a.snapshot()
    a.label("L_xdma")
    for r in range(4):
        a(f"s_add_u32 s63, s62, {65536*r}")
        a(f"s_add_u32 m0, s59, {1024*r}")
        a(f"buffer_load_dwordx4 v3, {S4(SX)}, s63 offen lds")
    a.label("L_xdone")
    a.restore(snapx)
    srd(a, SGW, 4, 1024)
    srd(a, SWR, 66, S * 514)
    srd(a, SWI, 68, S * 514)
    srd(a, SW1, 72, S * F * 2)
    srd(a, SW2, 76, S * F * 2)
    srd(a, SB2, 78, S * 2)
    srd(a, SOUT, 6, S * D * 2)
    srd(a, SWS, 60, WS_BYTES)
    a("s_mov_b64 s[4:5], s[74:75]")
    a(f"s_add_u32 s6, s60, {WS_FLG + F_EP}")
    a("s_addc_u32 s7, s61, 0")
    a(f"v_mov_b32 v100, {CNT}")
    for q in range(4): a(f"ds_write_b128 v100, v[4:7] offset:{16*q}")
    a(f"s_and_b32 s{sROT}, s58, 15")
    a("s_mov_b32 s64, s59")
    a(f"s_lshl_b32 s58, s{sFT1}, 7")
    a(f"s_lshl_b32 s63, s{sWAVE}, 4")
    a("s_add_u32 s63, s63, s58")
    a("s_add_u32 s4, s4, s63")
    a("s_addc_u32 s5, s5, 0")
    a.wait_all(vm=False)
    a(f"s_load_dword s{sTAG}, s[6:7], 0")
    a(f"s_and_b32 s5{8}, s2, {NREP - 1}")
    a("s_nop 0")
    a("s_lshl_b32 s6, s58, 17")
    a(f"s_cmp_lt_u32 s{sWAVE}, 4")
    a.fence()
    a("s_cbranch_scc1 L_gwave")
    a(f"s_bitcmp1_b32 s{TREG}, {TB_}")
    a("s_cbranch_scc1 L_p1fft")
    snap = a.snapshot()
    phase1_ln(a)
    a.fence()
    a("s_branch L_p1done")
    a.restore(snap)
    a.label("L_p1fft")
    phase1_fft(a, ti1)
    a.fence()
    a.label("L_p1done")
    a.reset_state()
    a("s_cmp_eq_u32 s3, 1")
    a("s_cbranch_scc1 L_fft")
    a("s_branch L_g1help")
    a.label("L_gwave")
    a.reset_state()
    touch_w1(a, t=(150, 151))
    if EDMA:
        wlane(a, 154, 155, 64 * 3584, 156, 157)
        a(f"s_lshl_b32 s{sRING}, s{sWAVE}, 15")
        a(f"s_mul_i32 s60, s{sWAVE}, {512*3584}")
        a(f"s_lshl_b32 s61, s{sFT1}, 7")
        a("s_add_u32 s60, s60, s61")
        if EDMA == 2 and MAP1 == 24:
            a(f"s_and_b32 s61, s{sXCD}, 1")
            a("s_lshl_b32 s61, s61, 1")
            a(f"s_add_u32 s{sROT}, s{sROT}, s61")
        _g1e.append(Gemm(a, 16, [(x + 4) % 8 for x in range(16)], ['pre'] * 16, SW1, 60, 3584, 4 * 3584, True, vw=(154, 155)))
    stamp(a, 'ea0')
    a("s_barrier")
    a("s_cmp_lg_u32 s3, 1")
    a("s_cbranch_scc1 L_g1")
    if WJOB_FR or TBIT == 10: g_prologue(a)
    elif FFT_T1: touch_w1_issue(a, gemm=False)
    a(f"v_mov_b32 v12, {CNT + TBWAIT}")
    wait_word(a, 12, 4)
    a(f"s_lshl_b32 s72, s{sWAVE}, 10")
    for j in range(15):
        if WJOB_FR and j == 4: arrive(a, 3, [69], 4, 4)
        if TBIT == 10 and j == 4: w_arrive(a, 4)
        if j == 14: a("s_min_u32 s72, s72, 1024")
        a(f"s_add_u32 m0, s72, {FB_TB + j*4096}")
        a(f"s_add_u32 s73, s72, TABLES-{NAME}+{TB2OFF + j*4096}")
        a(f"buffer_load_dwordx4 v3, {S4(STB)}, s73 offen lds")
    if CODEPF2:
        a("v_lshlrev_b32 v152, 7, v2")
        a(f"s_lshl_b32 s73, s{sWAVE}, 13")
        a(f"s_add_u32 s73, s73, L_fft2-{NAME}")
        a(f"buffer_load_dword v153, v152, {S4(STB)}, s73 offen")
    if not (WJOB_FR or TBIT == 10): tag_ready(a)
    a.fence()
    a("s_branch L_fft2")
    a.label("L_g1")
    a.reset_state()
    g_prologue(a)
    a("s_load_dwordx4 s[64:67], s[4:5], 0")
    gemm_lane_consts(a, 64 * 3584)
    a(f"s_mul_i32 s62, s{sWAVE}, {512*3584}")
    a(f"s_lshl_b32 s63, s{sFT1}, 7")
    a("s_add_u32 s62, s62, s63")
    a(f"s_lshl_b32 s{sA0}, s{sDT1}, 18")
    a(f"s_lshl_b32 s63, s{sWAVE}, 16")
    a(f"s_add_u32 s{sA0}, s{sA0}, s63")
    if WS_HT: a(f"s_add_u32 s{sA0}, s{sA0}, {WS_HT}")
    slots1 = [(x + 4) % 8 for x in range(16)]
    NR = min(NREG, NR1)
    kinds1 = ['pre'] * 8 + ['reg'] * NR + ['dma'] * (8 - NR)
    g1 = Gemm(a, 16, slots1, kinds1, SW1, 62, 3584, 4 * 3584, True)
    for sg in range(EDMA, 8 + NR - NB1 - NB2):
        g1.emit_w(sg)
        if sg == EDMA + WARR - 1 and not WJOBH: w_arrive(a, 4 * WARR)
        if sg == 3 and WJOBH:
            L = uid("wfree")
            a(f"s_bitcmp1_b32 s{TREG}, {TB_}")
            a.fence()
            a(f"s_cbranch_scc1 {L}")
            a(f"v_mov_b32 v12, {CNT + 36}")
            wait_word(a, 12, 4)
            a.label(L)
    if COOPH:
        a(f"s_lshr_b32 s72, s{sXCD}, 1")
        a("s_mul_i32 s72, s72, 7")
        a(f"s_sub_u32 s72, s{sFT1}, s72")
        a("v_lshrrev_b32 v18, 3, v2")
        a("v_mul_u32_u24 v18, 7, v18")
        a("v_add_u32 v18, s72, v18")
        a("v_cmp_gt_u32 s[68:69], 8, v18")
        a("v_and_b32 v19, 7, v2")
        a("v_lshlrev_b32 v19, 7, v19")
        a("v_lshl_add_u32 v18, v18, 10, v19")
    stamp(a, 'pre4')
    a(f"s_lshr_b32 s72, s{sWAVE}, 1")
    a("s_lshl_b32 s72, s72, 12")
    a(f"s_add_u32 s72, s72, {WS_FLG + F_H}")
    a.vm = a.vm[-8:]
    g1.tok = {}
    beh = (lambda: [g1.emit_w(sg) for sg in range(8 + NR - NB1 - NB2, 8 + NR - NB2)]) if NB1 else None
    if ENV('SKIPH', 0): pass
    elif HPOLL2:
        a(f"s_bitcmp1_b32 s{sWAVE}, 0")
        a.fence()
        a("s_cbranch_scc1 L_g1odd")
        sn = a.snapshot()
        gpoll(a, [(72, 64)], vt=(12, 13, 16, 17), behind=beh)
        a(f"s_lshl_b32 s72, s{sWAVE}, 1")
        a(f"s_add_u32 s72, s72, {CNT + 48}")
        a("v_mov_b32 v12, s72")
        a("ds_write_b32 v12, v12")
        a.wait_all(vm=False); a.fence()
        a("s_branch L_g1go")
        en = a.snapshot()
        a.restore(sn)
        a.label("L_g1odd")
        if beh: beh()
        a(f"s_lshl_b32 s72, s{sWAVE}, 1")
        a(f"s_add_u32 s72, s72, {CNT + 46}")
        a("v_mov_b32 v12, s72")
        wait_word(a, 12, 1, sleep=1)
        a.fence()
        a.label("L_g1go")
        a.restore(en)
    else:
        gpoll(a, [(72, 64)], vt=(12, 13, 16, 17), behind=beh)
    stamp(a, 'b4')
    if COOPH:
        a(f"buffer_load_dword v1, v18, {S4(SWS)}, s{sA0} offen {LD}")
        a(f"s_add_u32 s72, s{sA0}, {56*1024}")
        a("s_mov_b64 exec, s[68:69]")
        a("s_cbranch_execz L_nocoopb")
        a.raw(f"    buffer_load_dword v1, v18, {S4(SWS)}, s72 offen {LD}")
        a.label("L_nocoopb")
        a("s_mov_b64 exec, -1")
    slots2 = [4, 5, 6, 7, 0, 1, 2, 3, 4, 5, 6, 7, 0, 1]
    kinds2 = ['pre'] * 8 + ['reg'] * NREG + ['dma'] * (6 - NREG)
    g2 = Gemm(a, 14, slots2, kinds2, SW2, 63, 8 * 4096, 32 * 4096, False, vw=(14, 15), rot=77)
    def w2_consts():
        wlane(a, 14, 15, 4096, 12, 13)
        a(f"s_and_b32 s76, s{sWAVE}, 3")
        a(f"s_lshl_b32 s{sRING}, s76, 15")
        a(f"s_mul_i32 s63, s76, {448*4096}")
        a(f"s_lshl_b32 s76, s{sST2}, 7")
        a("s_add_u32 s63, s63, s76")
        a(f"s_and_b32 s77, s{sDT2 if MAP2 == 24 else sST2}, 3")
        a("s_lshl_b32 s77, s77, 1")
        a(f"s_and_b32 s76, s{sST2 if MAP2 == 24 else sDT2}, 7")
        a(f"s_mul_i32 s76, s76, {ROT2}")
        a("s_add_u32 s77, s77, s76")
        a(f"s_mul_i32 s77, s77, {7 * ROT}")
        a("s_lshr_b32 s77, s77, 2")
        a("s_sub_u32 s76, s77, 14")
        a("s_min_u32 s77, s77, s76")
    w2_consts()
    a(f"s_lshl_b32 s76, s{sWAVE}, 2")
    a(f"s_add_u32 s76, s76, {CNT + 16}")
    a("v_mov_b32 v12, s76")
    def extra(sig):
        if SPREAD and sig < NB2: return [(lambda jj=jj: g1.emit_w(8 + NR - NB2 + sig, [jj])) for jj in range(4)]
        o = []
        if sig == W2SIG: o.append(lambda: a("ds_write_b32 v12, v12"))
        if EARLYW2 and sig >= 13:
            for sg in (8 + 2 * (sig - 13), 9 + 2 * (sig - 13)):
                if sg < 8 + NREG: o += [(lambda jj=jj, sg=sg: g2.emit_w(sg, [jj])) for jj in range(4)]
        return o
    g1.run(extra, post=(None if SPREAD else lambda: [g1.emit_w(sg) for sg in range(8 + NR - NB2, 8 + NR)]),
           pwrite=lambda blk: f"ds_write_b128 v7, {vr(ACC + blk*4, 4)} offset:{16384 + blk*1024}")
    stamp(a, 'loop1')
    if EARLYW2:
        for sg in range(4, 8): g2.emit_w(sg)
    a.wait_all(vm=False)
    a.fence()
    a("s_branch L_g1red")
    a.label("L_g1help")
    a.reset_state()
    a("s_load_dwordx4 s[64:67], s[4:5], 0")
    if PFH: prefetch_h(a)
    a("s_setprio 0")
    if W2T == 'mid0': touch_w2(a, dst=(1, 1))
    gate(a)
    if W2T == 'mid': touch_w2(a, dst=(1, 1))
    g_gen(a)
    if W2T == 'mid2': touch_w2(a, dst=(1, 1))
    if W2T == 'late':
        a(f"s_lshl_b32 s76, s{sWAVE}, 2")
        a(f"s_add_u32 s76, s76, {CNT}")
        a("v_mov_b32 v12, s76")
        wait_word(a, 12, 1)
        touch_w2(a)
    a.fence()
    a.label("L_g1red")
    a.reset_state()
    a("s_waitcnt lgkmcnt(0)")
    a("s_barrier")
    stamp(a, 'b5')
    if MF32:
        a(f"s_lshr_b32 s68, s{sWAVE}, 2")
        a("s_lshl_b32 s68, s68, 13")
        a(f"s_and_b32 s69, s{sWAVE}, 3")
        a("s_lshl_b32 s69, s69, 10")
        a("s_add_u32 s68, s68, s69")
        a("v_lshrrev_b32 v12, 5, v2")
        a("v_lshlrev_b32 v12, 12, v12")
        a("v_and_b32 v13, 31, v2")
    else:
        a(f"s_lshr_b32 s68, s{sWAVE}, 1")
        a("s_lshl_b32 s68, s68, 12")
        a(f"s_and_b32 s69, s{sWAVE}, 1")
        a("s_lshl_b32 s69, s69, 9")
        a("s_add_u32 s68, s68, s69")
        a("v_lshrrev_b32 v12, 4, v2")
        a("v_lshlrev_b32 v12, 10, v12")
        a("v_and_b32 v13, 15, v2")
    a("v_lshl_add_u32 v12, v13, 4, v12")
    a("v_add_u32 v12, s68, v12")
    a(f"v_add_u32 v13, {2*RING}, v12")
    E = 16
    for w in range(4):
        for hh in range(2):
            a(f"ds_read_b128 {vr(E + w*8 + hh*4, 4)}, v{12 + (w >> 1)} offset:{(w & 1)*RING + 16384 + hh*(512 if MF32 else 256)}")
    for e in range(4):
        a(f"s_lshl_b32 s{68+2*e}, s{64+e}, 16")
        a(f"s_and_b32 s{69+2*e}, s{64+e}, 0xffff0000")
    P2 = lambda r: f"v[{r}:{r+1}]"
    def pk(op, d, x, y, z=None):
        for q in range(4):
            o = lambda r: (r if isinstance(r, str) else P2(r + 2*q))
            a(f"v_pk_{op}_f32 {P2(d + 2*q)}, {o(x)}, {o(y)}" + (f", {o(z)}" if z is not None else ""))
    pk("add", E, E, E + 8); pk("add", E + 16, E + 16, E + 24); pk("add", E, E, E + 16)
    def rnd(X, T):
        for q in range(4): a(f"v_cvt_pk_bf16_f32 v{T+q}, v{X+2*q}, v{X+2*q+1}")
        for q in range(4): unpack(a, X + 2*q, X + 2*q + 1, T + q)
    rnd(E, E + 8)
    for q in range(4): a(f"v_pk_add_f32 {P2(E + 2*q)}, {P2(E + 2*q)}, s[{68+2*q}:{69+2*q}]")
    c0 = -2.0 * math.log2(math.e) * math.sqrt(2.0 / math.pi); c1 = c0 * 0.044715
    for r, c in ((24, c0), (25, c0), (26, c1), (27, c1), (28, 1.0), (29, 1.0)): a(f"v_mov_b32 v{E+r}, 0x{f2u(c):08x}")
    rnd(E, E + 8)
    pk("mul", E + 8, E, E)
    pk("fma", E + 8, E + 8, P2(E + 26), P2(E + 24))
    pk("mul", E + 8, E + 8, E)
    for e in range(8): a(f"v_exp_f32 v{E+8+e}, v{E+8+e}")
    pk("add", E + 8, E + 8, P2(E + 28))
    for e in range(8): a(f"v_rcp_f32 v{E+8+e}, v{E+8+e}")
    pk("mul", E, E, E + 8)
    for q in range(4): a(f"v_cvt_pk_bf16_f32 v{E+8+q}, v{E+2*q}, v{E+2*q+1}")
    a(f"s_mul_i32 s68, s{sDT1}, {224*1024}")
    a(f"s_lshl_b32 s69, s{sFT1}, 3")
    a(f"s_add_u32 s69, s69, s{sWAVE}")
    a("s_lshl_b32 s69, s69, 10")
    a("s_add_u32 s68, s68, s69")
    a(f"s_add_u32 s68, s68, {WS_UT}")
    a(f"buffer_store_dwordx4 {vr(E+8,4)}, v3, {S4(SWS)}, s68 offen {ST}")
    a(f"s_lshl_b32 s72, s{sDT1}, 5")
    a(f"s_add_u32 s72, s72, s{sFT1}")
    a("s_lshl_b32 s72, s72, 6")
    a(f"s_add_u32 s72, s72, {F_U}")
    stamp(a, 'ust')
    a("s_barrier")
    a.fence()
    a("s_branch L_pub2")
    a.label("L_fft")
    a.reset_state()
    a("s_setprio 0")
    if TBIT == 10: gate(a)
    a.fence()
    a.label("L_fft2")
    a.reset_state()
    fft_block(a, ti2, TB2OFF)
    w2_consts()
    a(f"s_cmp_ge_u32 s{sWAVE}, 4")
    a("s_cbranch_scc1 L_fhelp")
    gemm_lane_consts(a, 4096)
    g2.tok = {}
    for sg in range(8, 10): g2.emit_w(sg)
    arrive(a, 1, [72], 8, 8, lowprio=True)
    for sg in range(10, 8 + NREG): g2.emit_w(sg)
    a(f"v_mov_b32 v12, {CNT + 24}")
    wait_word(a, 12, 8)
    for sg in range(4 if BEH2 else 8): g2.emit_w(sg)
    a.fence()
    a("s_branch L_pub3")
    a.label("L_fhelp")
    arrive(a, 1, [72], 0, 8, lowprio=True)
    if FGEN_LATE:
        fg_poll(a)
        a("s_barrier")
        g_gen(a)
        a.fence()
        a("s_branch L_g2help3")
    else:
        g_gen(a)
        a.fence()
        a("s_branch L_g2help2")
    a.label("L_pub2")
    a.reset_state()
    a(f"s_cmp_ge_u32 s{sWAVE}, 4")
    a("s_cbranch_scc1 L_g2help")
    snap3 = a.snapshot()
    g2.tok = {}
    for sg in range(0, 2): g2.emit_w(sg)
    arrive(a, 1, [72], 8, 8, lowprio=True)
    for sg in range(2, 4 if EARLYW2 else 8 + NREG):
        if not (BEH2 and 4 <= sg < 8): g2.emit_w(sg)
    a.fence()
    a.label("L_pub3")
    a.reset_state()
    g2.tok = {}
    a(f"s_mul_i32 s{sA0}, s{sDT2}, {224*1024}")
    a(f"s_mul_i32 s61, s{sWAVE}, {56*1024}")
    a(f"s_add_u32 s{sA0}, s{sA0}, s61")
    a(f"s_add_u32 s{sA0}, s{sA0}, {WS_UT}")
    stamp(a, 'pre7')
    a("s_barrier")
    a(f"s_lshl_b32 s72, s{sDT2}, 11")
    a(f"s_mul_i32 s73, s{sWAVE}, {7*64}")
    a("s_add_u32 s72, s72, s73")
    a(f"s_add_u32 s72, s72, {WS_FLG + F_U}")
    a.vm = a.vm[-8:]
    if not ENV('SKIPU', 0): gpoll(a, [(72, 7)], vt=(12, 13, 16, 17), need=((1 << STAGE) - 1) if STAGE and not ROT else None, lanes="0x7f",
              behind=(lambda: [g2.emit_w(sg) for sg in range(4, 8)]) if BEH2 else None)
    a("s_mov_b64 s[66:67], s[70:71]")
    def extra2(sig):
        if STAGE and not ROT and sig == 2 * STAGE - PA:
            def late():
                L = uid("late")
                a("s_cmp_eq_u64 s[66:67], 0")
                a.fence()
                a(f"s_cbranch_scc1 {L}")
                sn = a.snapshot()
                gpoll(a, [(72, 7)], vt=(14, 15, 15, 15), lanes="s[66:67]")
                a.fence()
                a.label(L)
                a.restore(sn)
            return [late]
        return []
    if not BEH2: g2.tok = {}
    stamp(a, 'b7')
    if COOPU:
        a("v_lshrrev_b32 v18, 3, v2")
        a("v_and_b32 v19, 7, v2")
        a("v_lshlrev_b32 v19, 7, v19")
        a("v_lshl_add_u32 v18, v18, 13, v19")
        a(f"s_and_b32 s72, s{sST2}, 7")
        a("s_lshl_b32 s72, s72, 10")
        a(f"s_add_u32 s72, s72, s{sA0}")
        a("s_mov_b32 exec_hi, 0x00ffffff")
        a(f"buffer_load_dword v1, v18, {S4(SWS)}, s72 offen {LD}")
        a("s_mov_b32 exec_hi, -1")
    gb_load(a, 12, 13, 16)
    a("v_lshrrev_b32 v4, 5, v2")
    a("v_lshlrev_b32 v4, 6, v4")
    a("v_xor_b32 v4, v4, v7")
    a("v_xor_b32 v5, 128, v4")
    if MF32:
        a("v_xor_b32 v4, 64, v7"); a("v_xor_b32 v5, 128, v7"); a("v_xor_b32 v10, 192, v7")
    g2.run(extra2, post=lambda: [g2.emit_w(sg) for sg in range(8 + NREG - NB4, 8 + NREG)],
           pwrite=lambda blk: f"ds_write_b128 v{(7, 4, 5, 10)[blk & 3] if MF32 else 4 + ((blk >> 2) & 1)}, {vr(ACC + blk*4, 4)} offset:{8192 + blk*1024}")
    stamp(a, 'loop2')
    a("v_mov_b32 v10, v12")
    a("v_mov_b32 v11, v13")
    a.wait_all(vm=False)
    a.fence()
    a("s_branch L_g2red")
    a.restore(snap3)
    a.label("L_g2help")
    a("s_setprio 3")
    if W2T == 'post':
        touch_w2(a, dst=(1, 1))
        arrive(a, 1, [72], 1 if MAP2 == 18 else 2, 8)
    else: arrive(a, 1, [72], 0, 8)
    a.fence()
    a.label("L_g2help2")
    a.reset_state()
    fg_poll(a)
    if PFU:
        a("s_setprio 3")
        prefetch_u(a)
    a(f"s_setprio {DFTPRIO}")
    a("s_barrier")
    a.label("L_g2help3")
    dft_part(a)
    a("s_setprio 0")
    a.fence()
    a.label("L_g2red")
    a.reset_state()
    a("v_lshrrev_b32 v4, 3, v0")
    a(f"s_lshl_b32 s68, s{sST2}, 6")
    a("v_add_u32 v5, s68, v4")
    a("v_and_b32 v6, 7, v0")
    a("v_lshrrev_b32 v7, 1, v6")
    a("v_lshlrev_b32 v7, 12, v7")
    a("v_lshrrev_b32 v8, 4, v4")
    a("v_lshl_add_u32 v7, v8, 10, v7")
    a("v_and_b32 v8, 1, v6")
    a("v_lshl_add_u32 v7, v8, 9, v7")
    a("v_and_b32 v8, 3, v6")
    a("v_lshlrev_b32 v8, 2, v8")
    a("v_and_b32 v9, 15, v4")
    a("v_xor_b32 v8, v8, v9")
    a("v_lshl_add_u32 v7, v8, 4, v7")
    a(f"v_add_u32 v12, {AP}, v7")
    if MF32:
        a("v_lshrrev_b32 v7, 2, v6")
        a("v_lshlrev_b32 v7, 13, v7")
        a("v_lshrrev_b32 v8, 5, v4")
        a("v_lshl_add_u32 v7, v8, 12, v7")
        a("v_and_b32 v8, 3, v6")
        a("v_lshl_add_u32 v7, v8, 10, v7")
        a("v_lshlrev_b32 v8, 2, v8")
        a("v_and_b32 v9, 31, v4")
        a("v_xor_b32 v8, v8, v9")
        a("v_lshl_add_u32 v7, v8, 4, v7")
    a(f"v_add_u32 v8, {2*RING}, v7")
    a("v_lshlrev_b32 v9, 10, v5")
    a("v_lshl_add_u32 v9, v6, 4, v9")
    a(f"s_lshl_b32 s70, s{sDT2}, 7")
    a("s_barrier")
    stamp(a, 'b8')
    B_, A_ = 16, 48
    for w in range(4):
        for hh in range(2):
            a(f"ds_read_b128 {vr(B_ + w*8 + hh*4, 4)}, v{7 + (w >> 1)} offset:{(w & 1)*RING + 8192 + hh*(512 if MF32 else 256)}")
    for w in range(2):
        for hh in range(2):
            a(f"ds_read_b128 {vr(A_ + w*8 + hh*4, 4)}, v12 offset:{w*16384 + hh*256}")
    a("v_sub_f32 v68, 1.0, v10")
    a("v_cvt_pk_bf16_f32 v68, v68, v68")
    a("v_lshlrev_b32 v68, 16, v68")
    a("v_mov_b32 v69, v68")
    a("v_mov_b32 v70, v10"); a("v_mov_b32 v71, v10")
    a("v_mov_b32 v72, v11"); a("v_mov_b32 v73, v11")
    a("v_mov_b32 v74, 0x36000000"); a("v_mov_b32 v75, 0x36000000")
    pk("add", B_, B_, B_ + 8); pk("add", B_ + 16, B_ + 16, B_ + 24); pk("add", B_, B_, B_ + 16)
    pk("add", A_, A_, A_ + 8)
    rnd(B_, B_ + 8)
    pk("mul", A_, A_, P2(74))
    pk("add", B_, B_, P2(72))
    rnd(A_, A_ + 8)
    rnd(B_, B_ + 8)
    pk("mul", A_, A_, P2(70))
    pk("mul", B_, B_, P2(68))
    rnd(A_, A_ + 8)
    rnd(B_, B_ + 8)
    pk("add", A_, A_, B_)
    for q in range(4): a(f"v_cvt_pk_bf16_f32 v{B_+q}, v{A_+2*q}, v{A_+2*q+1}")
    a(f"buffer_store_dwordx4 {vr(B_,4)}, v9, {S4(SOUT)}, s70 offen {OST}")
    a(f"s_or_b32 s71, s2, s{sWAVE}")
    a("s_cmp_lg_u32 s71, 0")
    a("s_cbranch_scc1 L_noep")
    a(f"s_mov_b32 s72, {F_EP}")
    set_flag(a, 72)
    a.fence()
    a.label("L_noep")
    stamp_flush(a)
    a.label("L_end")
    a("s_endpgm")
    return np.concatenate([tb1, tb2])

def fg_off(a, d):
    a(f"s_lshr_b32 s{d}, s{sST2}, 4")
    a(f"s_lshl_b32 s{d}, s{d}, 12")
    a(f"s_add_u32 s{d}, s{d}, {WS_FLG + F_G}")
def fg_poll(a):
    L = uid("nofg")
    a(f"s_cmp_lg_u32 s{sWAVE}, 7")
    a.fence()
    a(f"s_cbranch_scc1 {L}")
    fg_off(a, 62)
    gpoll(a, [(62, 64)], vt=(12, 13, 4, 5))
    a.fence()
    a.label(L)
    a.reset_state()
def gb_load(a, vg, vb, t):
    a(f"v_lshrrev_b32 v{t}, 3, v0")
    a(f"s_lshr_b32 s69, s{sST2}, 4")
    a("s_lshl_b32 s69, s69, 12")
    a(f"s_and_b32 s70, s{sST2}, 15")
    a("s_lshl_b32 s70, s70, 2")
    a("s_add_u32 s69, s69, s70")
    a(f"s_add_u32 s69, s69, {WS_G}")
    a(f"v_lshlrev_b32 v{t+1}, 6, v{t}")
    a(f"buffer_load_dword v{vg}, v{t+1}, {S4(SWS)}, s69 offen {LD}")
    a(f"v_mov_b32 v{vb}, 0")
    a(f"v_lshlrev_b32 v{t}, 1, v{t}")
    a(f"s_lshl_b32 s70, s{sST2}, 7")
    a(f"buffer_load_short_d16_hi v{vb}, v{t}, {S4(SB2)}, s70 offen")
YF, GF, AC = 48, 112, 16
def g_gen(a):
    a(f"s_bfe_u32 s70, s{sWAVE}, 0x10001")
    a(f"s_and_b32 s71, s{sWAVE}, 1")
    a("v_and_b32 v4, 15, v2")
    a("v_lshrrev_b32 v5, 4, v2")
    a(f"s_lshl_b32 s62, s{sDT2}, 6")
    a("v_add_u32 v7, s62, v4")
    a("v_cvt_f32_u32 v8, v7")
    a("v_mul_f32 v8, 0x3b000000, v8")
    for mt in range(1, 4): a(f"v_add_f32 v{8+mt}, 0x3d000000, v{7+mt}")
    a("s_lshl_b32 s62, s70, 7")
    a("v_lshlrev_b32 v12, 2, v5")
    a("v_add_u32 v12, s62, v12")
    a("v_cvt_f32_u32 v12, v12")
    ANG, D13 = 240, 244
    for mt in range(4):
        a(f"v_mul_f32 v{ANG+mt}, v{8+mt}, v12")
        a(f"v_mul_f32 v{D13+mt}, 0x41500000, v{8+mt}")
    for ks in range(8):
        for e in range(4):
            for mt in range(4):
                t0 = 248 + 2 * mt
                a(f"v_cos_f32 v{t0}, v{ANG+mt}")
                a(f"v_sin_f32 v{t0+1}, v{ANG+mt}")
                if not (ks == 7 and e == 3): a(f"v_add_f32 v{ANG+mt}, v{ANG+mt}, v{(D13 if e == 3 else 8) + mt}")
            for mt in range(4):
                t0 = 248 + 2 * mt
                a(f"v_cvt_pk_bf16_f32 v{GF + (ks*4+mt)*4 + e}, v{t0}, -v{t0+1}")
        if ks == 0:
            a("v_and_b32 v13, 1, v2")
            a("v_lshlrev_b32 v13, 31, v13")
            a("v_or_b32 v13, 0x3f003f00, v13")
            a("s_cmp_eq_u32 s70, 0")
            a("s_cselect_b32 s76, 0xffff, 0")
            a("s_mov_b32 s77, 0")
            for mt in range(4): a(f"v_cndmask_b32 v{GF + mt*4}, v{GF + mt*4}, v13, s[76:77]")
def dft_part(a):
    M = "v_mfma_f32_16x16x32_bf16"
    a(f"s_bfe_u32 s64, s{sWAVE}, 0x10001")
    a(f"s_and_b32 s65, s{sWAVE}, 1")
    a("v_and_b32 v4, 15, v2")
    a("v_lshrrev_b32 v5, 4, v2")
    a("v_lshlrev_b32 v6, 15, v5")
    a("v_lshl_add_u32 v6, v4, 4, v6")
    a("s_lshl_b32 s62, s64, 10")
    a(f"s_add_u32 s62, s62, {F_Y}")
    a("s_lshl_b32 s66, s64, 20")
    a(f"s_lshl_b32 s67, s{sST2}, 10")
    a("s_add_u32 s66, s66, s67")
    a("s_lshl_b32 s67, s65, 9")
    a("s_add_u32 s66, s66, s67")
    a(f"s_add_u32 s66, s66, {WS_Y1}")
    a(f"s_add_u32 s62, s62, {WS_FLG}")
    if YSLEEP0: a(f"s_sleep {YSLEEP0}")
    if not ENV('SKIPY', 0): gpoll(a, [(62, 16)], vt=(12, 13, 14, 15), sleep=YSLEEP)
    stamp(a, 'loop2')
    gb_load(a, 10, 11, 12)
    for ks in range(8):
        for t in range(2):
            a(f"buffer_load_dwordx4 {vr(YF + (ks*2+t)*4, 4)}, v6, {S4(SWS)}, s66 offen offset:{t*256} {LD}")
        if ks < 7: a("s_add_u32 s66, s66, 131072")
    for ks in range(8):
        for mt in range(4):
            for t in range(2):
                acc = vr(AC + (mt*2+t)*4, 4)
                a(f"{M} {acc}, {vr(GF + (ks*4+mt)*4, 4)}, {vr(YF + (ks*2+t)*4, 4)}, {'0' if ks == 0 else acc}")
    a("s_lshl_b32 s66, s64, 14")
    a("s_lshl_b32 s67, s65, 11")
    a("s_add_u32 s66, s66, s67")
    a(f"s_add_u32 s66, s66, {AP}")
    a("v_lshrrev_b32 v12, 5, v2")
    a("v_lshlrev_b32 v12, 6, v12")
    a("v_xor_b32 v12, v12, v3")
    a("v_add_u32 v12, s66, v12")
    a("v_xor_b32 v13, 128, v12")
    for mt in range(4):
        for t in range(2):
            a(f"ds_write_b128 v{12 + (mt & 1)}, {vr(AC + (mt*2+t)*4, 4)} offset:{(mt*4+t)*1024}")
    a.wait_all()

def fft_block(a, ti, tboff):
    M = "v_mfma_f32_32x32x16_bf16"
    PK, VA, VB, VT, CF, TMP = 16, 48, 112, 176, 208, 240
    if TBIT == 9:
        a(f"s_and_b32 s62, s{sXCD}, 3")
        a("s_lshl_b32 s62, s62, 3")
        a(f"s_add_u32 s62, s62, s{sIDX}")
    else:
        a(f"s_lshl_b32 s62, s{sXCD}, 2")
        a(f"s_lshr_b32 s63, s{sIDX}, 1" if TBIT in (0, 10) else f"s_and_b32 s63, s{sIDX}, 3")
        a("s_add_u32 s62, s62, s63")
    a("s_lshl_b32 s63, s62, 3")
    a(f"s_add_u32 s63, s63, s{sWAVE}")
    a("v_and_b32 v4, 31, v2")
    a("v_lshrrev_b32 v5, 5, v2")
    a(f"s_lshl_b32 s66, s{sWAVE}, 13")
    a("v_lshrrev_b32 v6, 4, v2")
    a("v_xor_b32 v6, v6, v2")
    a("v_and_b32 v6, 3, v6")
    a("v_lshlrev_b32 v6, 4, v6")
    a("v_lshrrev_b32 v7, 2, v2")
    a("v_lshl_add_u32 v6, v7, 6, v6")
    a("v_bfe_u32 v7, v2, 2, 2")
    a("v_xor_b32 v8, v7, v5")
    a("v_lshlrev_b32 v8, 4, v8")
    a("v_lshl_add_u32 v8, v4, 6, v8")
    a("v_add_u32 v8, s66, v8")
    a("v_xor_b32 v9, 32, v8")
    a(f"v_add_u32 v10, {FB_TB}, v3")
    a("s_cmp_eq_u32 s63, 0")
    a(f"s_cselect_b32 s67, {(ti['P1re0'] - ti['S1re0']) * 1024}, 0")
    a("v_add_u32 v14, s67, v10")
    a("v_lshlrev_b32 v11, 10, v5")
    a("v_lshl_add_u32 v11, v4, 2, v11")
    a("v_add_u32 v11, s66, v11")
    def dma8(base, ks, ldsbase="s66"):
        a(f"s_lshl_b32 s68, s{ks}, 13")
        a(f"s_add_u32 s68, s68, {base}")
        t = []
        for j in range(8):
            a(f"s_add_u32 m0, {ldsbase}, {j*1024}")
            t.append(a(f"buffer_load_dwordx4 v6, {S4(SWS)}, s68 offen {LD} lds"))
            if j < 7: a("s_add_u32 s68, s68, 1024")
        return t
    tab = lambda reg, nm, base=10: f"ds_read_b128 {vr(reg,4)}, v{base} offset:{ti[nm]*1024}"
    TWO = TMP + 14
    a(f"s_cmp_lt_u32 s{sWAVE}, 4")
    a(f"s_cselect_b32 s68, {FB_WG}, 0")
    a("v_add_u32 v12, s68, v8")
    a("v_add_u32 v13, s68, v9")
    a(f"s_cmp_eq_u32 s{sWAVE}, 4")
    a.fence()
    a("s_cbranch_scc1 L_fpollz")
    a(f"s_cmp_eq_u32 s{sWAVE}, 5")
    a("s_cbranch_scc1 L_fpollw")
    a(f"s_cmp_ge_u32 s{sWAVE}, 4")
    a("s_cbranch_scc1 L_fgo")
    a("s_waitcnt vmcnt(0)")
    lds_inc(a, 15, t=(20, 21))
    a.fence()
    a("s_branch L_fgo")
    a.label("L_fpollw")
    a.reset_state()
    a(f"s_mov_b32 s68, {F_W}")
    poll(a, 68, 128, vt=20)
    a(f"v_mov_b32 v20, {CNT}")
    wait_word(a, 20, 4, tv=21)
    lds_inc(a, 13, t=(20, 21))
    for w in range(4):
        a(f"s_sub_u32 s69, s63, {5 - w}")
        a(f"s_mov_b32 s70, {FB_WG + w*8192}")
        dma8(WS_WT, 69, "s70")
    a.fence()
    a("s_branch L_fgo")
    a.label("L_fpollz")
    a.reset_state()
    a(f"s_mov_b32 s68, {F_Z}")
    poll(a, 68, 128, vt=20)
    lds_inc(a, 14, t=(20, 21))
    a.fence()
    a.label("L_fgo")
    a.reset_state()
    stamp(a, 'pre4')
    a(f"v_mov_b32 v20, {CNT + 60}")
    wait_word(a, 20, 4, tv=21, sleep=1)
    a(f"v_mov_b32 v20, {CNT + 56}")
    wait_word(a, 20, 1, tv=21, sleep=1)
    stamp(a, 'b4')
    tz = dma8(WS_Z, 63)
    for c in range(4):
        a(tab(CF + c * 4, f'S1re{c}', 14)); a(tab(CF + 16 + c * 4, f'S1im{c}', 14))
    for mt in range(2):
        for pr in range(4): a(tab(VT + (mt * 4 + pr) * 4, f'F1_{mt}_{pr}'))
    for c in range(4):
        a.wait_tok(*tz[(c >> 1) * 4: (c >> 1) * 4 + 4])
        for mt in range(2):
            a(f"ds_read_b128 {vr(PK + (mt*4+c)*4, 4)}, v{8 + (c & 1)} offset:{(c >> 1)*4096 + mt*2048}")
    a(f"s_cmp_eq_u32 s{sWAVE}, 5")
    a.wait_all(); a.fence()
    a("s_cbranch_scc0 L_fnot5")
    lds_inc(a, 15 - 8, t=(240, 241))
    a.fence()
    a.label("L_fnot5")
    a(f"s_cmp_lt_u32 s{sWAVE}, 4")
    a("s_cbranch_scc1 L_fcomp")
    a(f"v_mov_b32 v240, {CNT + 52}")
    wait_word(a, 240, 1, tv=241, sleep=0)
    dma8(WS_WT, 63)
    a.fence()
    a.label("L_fcomp")
    a.reset_state()
    if FFT_W2 == 2: touch_w2_8(a)
    D = lambda base, x, ri: base + (x * 2 + ri) * 16
    for c in range(4):
        for mt in range(2):
            for ri in range(2):
                acc = vr(D(VA, mt, ri), 16)
                a(f"{M} {acc}, {vr(PK + (mt*4+c)*4, 4)}, {vr(CF + ri*16 + c*4, 4)}, {'0' if c == 0 else acc}")
    PKR = lambda x, ri, u: PK + ((x * 2 + ri) * 2 + u) * 4
    WSL = [[0, 4, 1, 5], [2, 6, 3, 7]]
    Wr = lambda p, i: VT + 4 * WSL[p][i >> 2] + (i & 3)
    P2 = lambda r: f"v[{r}:{r+1}]"
    NEG0 = "neg_lo:[1,0,0] neg_hi:[1,0,0]"; NEG2 = "neg_lo:[0,0,1] neg_hi:[0,0,1]"
    a(f"v_mov_b32 v{TWO}, 2.0"); a(f"v_mov_b32 v{TWO+1}, 2.0")
    G2 = [('E', 0, 0), ('OF', 1, 0), ('E', 0, 1), ('OF', 1, 1)]
    G3 = [('E', 0, 0), ('E', 0, 1), ('OI', 1, 0), ('OI', 1, 1)]
    G4 = G2
    groups = [(g, 2) for g in G2] + [(g, 3) for g in G3] + [(g, 4) for g in G4]
    def cload(k):
        if k >= len(groups): return []
        (t, x, u), st = groups[k]
        return [tab(CF + (k & 1) * 12 + 4 * n, f'{t}{y}{u}') for n, y in enumerate('csn')]
    seen = set()
    def mgroup(k):
        (t, x, u), st = groups[k]
        out = VB if st in (2, 4) else VA
        inv = st != 2
        fr = lambda y: vr(CF + (k & 1) * 12 + 4 * 'csn'.index(y), 4)
        r = []
        for (ro, cx, ri) in ((0, 'c', 0), (1, 's' if inv else 'n', 0), (0, 'n' if inv else 's', 1), (1, 'c', 1)):
            acc = vr(D(out, x, ro), 16); dat = vr(PKR(x, ri, u), 4)
            A_, B_ = (dat, fr(cx)) if st == 3 else (fr(cx), dat)
            c = acc if (st, x, ro) in seen else '0'
            seen.add((st, x, ro))
            r.append(f"{M} {acc}, {A_}, {B_}, {c}")
        return r
    def mix(ks, valu):
        ms = []
        for k in ks: ms += [(m, (k if i == 3 else None)) for i, m in enumerate(mgroup(k))]
        n = len(ms); per = -(-len(valu) // n) if valu else 0
        vi = 0
        for m, k in ms:
            a(m)
            if k is not None:
                for l in cload(k + 2): a(l)
            for l in valu[vi:vi + per]: a(l)
            vi += per
    def pack(base, x, u):
        return [f"v_cvt_pk_bf16_f32 v{PKR(x, ri, u) + q}, v{D(base, x, ri) + 8*u + 2*q}, v{D(base, x, ri) + 8*u + 2*q + 1}"
                for ri in range(2) for q in range(4)]
    def wread1(p, q, off=0): return f"ds_read_b128 {vr(Wr(p, 4*q), 4)}, v{12 + (q & 1)} offset:{off + (q >> 1)*4096 + p*2048}"
    def twx(u, inv, refill):
        o = []
        sg = lambda fwd: (NEG0 if (fwd != inv) else "")
        for pr in range(4):
            i = 8 * u + 2 * pr
            t0r, t0i, t1r, t1i = (P2(D(VA, x, ri) + i) for x in range(2) for ri in range(2))
            if inv: s0 = s1 = Wr(u, 4 * pr)
            else: s0, s1 = VT + 4 * pr, VT + 16 + 4 * pr
            c0, sn0, c1, sn1 = P2(s0), P2(s0 + 2), P2(s1), P2(s1 + 2)
            A, B = P2(TMP + 4 * (pr & 1)), P2(TMP + 4 * (pr & 1) + 2)
            o += [f"v_pk_mul_f32 {A}, {t0r}, {c0}", f"v_pk_mul_f32 {B}, {t0i}, {c0}",
                  f"v_pk_fma_f32 {A}, {t0i}, {sn0}, {A} {sg(False)}", f"v_pk_fma_f32 {B}, {t0r}, {sn0}, {B} {sg(True)}",
                  f"v_pk_fma_f32 {t0r}, {t1r}, {c1}, {A}", f"v_pk_fma_f32 {t0i}, {t1i}, {c1}, {B}",
                  f"v_pk_fma_f32 {t0r}, {t1i}, {sn1}, {t0r} {sg(False)}", f"v_pk_fma_f32 {t0i}, {t1r}, {sn1}, {t0i} {sg(True)}",
                  f"v_pk_fma_f32 {t1r}, {A}, {P2(TWO)}, {t0r} {NEG2}", f"v_pk_fma_f32 {t1i}, {B}, {P2(TWO)}, {t0i} {NEG2}"]
            o += refill(pr)
            o += [f"v_cvt_pk_bf16_f32 v{PKR(x, ri, u) + pr}, v{D(VA, x, ri) + i}, v{D(VA, x, ri) + i + 1}" for x in range(2) for ri in range(2)]
        return o
    def tw1(u):
        if u == 0: return twx(0, False, lambda pr: [tab(VT + (mt * 4 + pr) * 4, f'F1_{mt}_{4 + pr}') for mt in range(2)])
        return twx(1, False, lambda pr: [])
    def tw2(u): return twx(u, True, lambda pr: [])
    def xw(p, t2=True, packit=True):
        o = []
        for pr in range(8):
            i = 2 * pr
            xr, xi, w = P2(D(VB, p, 0) + i), P2(D(VB, p, 1) + i), Wr(p, i)
            b = TMP + 6 * (pr & 1)
            wr, wi, t = P2(b), P2(b + 2), P2(b + 4)
            o += [f"v_lshlrev_b32 v{b}, 16, v{w}", f"v_lshlrev_b32 v{b+1}, 16, v{w+1}",
                  f"v_and_b32 v{b+2}, 0xffff0000, v{w}", f"v_and_b32 v{b+3}, 0xffff0000, v{w+1}",
                  f"v_pk_mul_f32 {t}, {xr}, {wi}", f"v_pk_mul_f32 {xr}, {xr}, {wr}",
                  f"v_pk_fma_f32 {xr}, {xi}, {wi}, {xr} {NEG0}", f"v_pk_fma_f32 {xi}, {xi}, {wr}, {t}"]
            if t2 and (pr & 1): o.append(tab(Wr(p, i & ~3), f'F2_{4 * p + (pr >> 1)}'))
            if packit:
                o += [f"v_cvt_pk_bf16_f32 v{PKR(p, ri, pr >> 2) + (pr & 3)}, v{D(VB, p, ri) + i}, v{D(VB, p, ri) + i + 1}" for ri in range(2)]
        return o
    def wread(p): return [wread1(p, q) for q in range(4)]
    for l in cload(0) + cload(1): a(l)
    stamp(a, 'zin')
    for l in tw1(0): a(l)
    mix([0, 1], tw1(1))
    a("s_waitcnt vmcnt(0)")
    a(f"v_mov_b32 v15, {CNT + 28}")
    wait_word(a, 15, 1, tv=7, sleep=0)
    stamp(a, 'win')
    for l in wread(0) + wread(1): a(l)
    if FFT_W2 == 1:
        touch_w2_8(a)
    a("s_cmp_lg_u32 s67, 0")
    a.wait_all(vm=False); a.fence()
    a("s_cbranch_scc1 L_fspecial")
    snap = a.snapshot(); seen0 = set(seen)
    x0 = xw(0)
    mix([2], [])
    mix([3], x0[:24])
    for l in x0[24:]: a(l)
    stamp(a, 'loop1')
    mix([4, 5], xw(1))
    mix([6, 7], [])
    a.wait_all(vm=False); a.fence()
    a("s_branch L_fjoin")
    a.restore(snap); seen.clear(); seen.update(seen0)
    a.label("L_fspecial")
    a("s_movk_i32 s71, 256")
    a(f"s_mov_b32 s72, {FB_WG}")
    dma8(WS_WT, 71, "s72")
    mix([2, 3], [])
    a("v_lshlrev_b32 v15, 8, v5")
    a("v_add_u32 v15, v15, v4")
    a("v_lshlrev_b32 v15, 2, v15")
    joff = lambda p, i: (32 * p + 64 * (8 * (i >> 2) + (i & 3))) * 4
    MAXO = joff(1, 15)
    a(f"v_sub_u32 v7, {8192 - MAXO}, v15")
    a("v_cmp_eq_u32 vcc, 0, v2")
    for ri in range(2):
        for p in range(2):
            for i in range(16): a(f"ds_write_b32 v15, v{D(VB,p,ri)+i} offset:{joff(p, i)}")
        a.wait_all(vm=False)
        for p in range(2):
            for i in range(16): a(f"ds_read_b32 v{D(VA,p,ri)+i}, v7 offset:{MAXO - joff(p, i)}")
        a.wait_all(vm=False)
        a(f"v_cndmask_b32 v{D(VA,0,ri)}, v{D(VA,0,ri)}, v{D(VB,0,ri)}, vcc")
    for l in xw(0, False, False) + xw(1, False, False): a(l)
    a("s_waitcnt vmcnt(0)")
    for l in wread(0) + wread(1): a(l)
    for p in range(2):
        for pr in range(8):
            i = 2 * pr
            vr_, vi_, w = P2(D(VB, p, 0) + i), P2(D(VB, p, 1) + i), Wr(p, i)
            mr, mi = P2(D(VA, p, 0) + i), P2(D(VA, p, 1) + i)
            b = TMP + 4 * (pr & 1)
            wr, wi = P2(b), P2(b + 2)
            for l in [f"v_lshlrev_b32 v{b}, 16, v{w}", f"v_lshlrev_b32 v{b+1}, 16, v{w+1}",
                      f"v_and_b32 v{b+2}, 0xffff0000, v{w}", f"v_and_b32 v{b+3}, 0xffff0000, v{w+1}",
                      f"v_pk_fma_f32 {vr_}, {mr}, {wr}, {vr_}", f"v_pk_fma_f32 {vi_}, {mr}, {wi}, {vi_}",
                      f"v_pk_fma_f32 {vr_}, {mi}, {wi}, {vr_}", f"v_pk_fma_f32 {vi_}, {mi}, {wr}, {vi_} {NEG0}"]: a(l)
            if pr & 1: a(tab(Wr(p, i & ~3), f'F2_{4 * p + (pr >> 1)}'))
    for x in range(2):
        for u in range(2):
            for l in pack(VB, x, u): a(l)
    stamp(a, 'loop1')
    mix([4, 5, 6, 7], [])
    a.wait_all(vm=False); a.fence()
    a.label("L_fjoin")
    a.reset_state()
    for l in tw2(0): a(l)
    mix([8, 9], tw2(1))
    a("v_add_u32 v15, 128, v11")
    def outp(nt):
        o = []
        for i in range(0, 16, 2):
            r = TMP + (i & 7); off = 8 * (i >> 2) + (i & 3)
            o += [f"v_cvt_pk_bf16_f32 v{r}, v{D(VB,nt,0)+i}, v{D(VB,nt,1)+i}",
                  f"v_cvt_pk_bf16_f32 v{r+1}, v{D(VB,nt,0)+i+1}, v{D(VB,nt,1)+i+1}",
                  f"ds_write2st64_b32 v{15 if nt else 11}, v{r}, v{r+1} offset0:{off} offset1:{off+1}"]
        return o
    mix([10], [])
    o0 = outp(0)
    mix([11], o0[:12])
    for l in o0[12:] + outp(1): a(l)
    a.wait_all(vm=False)
    stamp(a, 'f2')
    a(f"s_lshr_b32 s69, s{sWAVE}, 2")
    a("s_lshl_b32 s70, s69, 2")
    a(f"s_add_u32 s70, s70, {CNT + 16}")
    a("v_mov_b32 v12, s70")
    a("v_mov_b32 v13, 1")
    a("s_mov_b64 exec, 1")
    a("ds_add_u32 v12, v13")
    a("s_mov_b64 exec, -1")
    a("v_and_b32 v14, 255, v0")
    a("s_lshl_b32 s70, s69, 15")
    a("v_lshlrev_b32 v15, 4, v14")
    a("v_lshlrev_b32 v14, 2, v14")
    a("v_add_u32 v14, s70, v14")
    a("s_lshl_b32 s68, s62, 16")
    a("s_add_u32 s68, s68, s70")
    a(f"s_add_u32 s68, s68, {WS_Y1}")
    a("s_setprio 3")
    wait_word(a, 12, 4, sleep=0)
    for z in range(8):
        o = z * 4
        a(f"ds_read2st64_b32 {vr(64 + z*4, 2)}, v14 offset0:{o} offset1:{o+32}")
        a(f"ds_read2st64_b32 {vr(66 + z*4, 2)}, v14 offset0:{o+64} offset1:{o+96}")
    for z in range(8):
        a(f"buffer_store_dwordx4 {vr(64 + z*4, 4)}, v15, {S4(SWS)}, s68 offen {ST}")
        if z < 7: a("s_add_u32 s68, s68, 4096")
    a("s_setprio 0")
    lds_inc(a, 6)
    a("s_lshl_b32 s72, s62, 6")
    a(f"s_add_u32 s72, s72, {F_Y}")
    stamp(a, 'ust')
    a.fence()

def build():
    a = Asm()
    head = HEADER + ("; CFG " + os.environ.get("CFG", "") + "\n" if os.environ.get("CFG") else "") + (f"; STK {','.join(STK)}\n" if STAMPS else "") + f"; @launch grid=(256,1,1) block=(512,1,1) lds={LDS_TOTAL}\n"
    head += '.amdgcn_target "amdgcn-amd-amdhsa--gfx950"\n.text\n'
    tb = gen(a)
    body = a.text() + ".p2align 8\nTABLES:\n"
    for i in range(0, len(tb), 8):
        body += ".long " + ",".join(f"0x{x:x}" for x in tb[i:i+8]) + "\n"
    body += f""".section .rodata,"a"
.p2align 6
.amdhsa_kernel {NAME}
  .amdhsa_next_free_vgpr 256
  .amdhsa_next_free_sgpr 102
  .amdhsa_accum_offset 256
  .amdhsa_group_segment_fixed_size 0
  .amdhsa_kernarg_size 96
  .amdhsa_user_sgpr_count 2
  .amdhsa_user_sgpr_kernarg_segment_ptr 1
  .amdhsa_system_sgpr_workgroup_id_x 1
.end_amdhsa_kernel
"""
    return head + body, a.stats
if __name__ == "__main__":
    t, st = build()
    open(sys.argv[1], "w").write(t)
    print(len(t), "bytes", st)
```

```python
import sys, os, math, struct
sys.path.insert(0, "work")
from asmlib import *
from design import *

NAME = "gated_mix__spectral_gfnet__mixer_token_mlp__prompt_kernel"
HEADER = open("gated_mix__spectral_gfnet__mixer_token_mlp__prompt.s.ref").read().split("; @launch")[0]
ENV = lambda k, d: type(d)(os.environ.get(k, d))
STAMPS = ENV("STAMPS", 0)
ST = ENV("STMOD", "sc1").replace("_", " ")
LD = ENV("LDMOD", "sc1").replace("_", " ")
PA = ENV("PA", 3)
NREG = 9 - PA
W2_EARLY = ENV("W2_EARLY", 1)
POLL_MAX = 50000
EARLYW2 = ENV('EARLYW2', 0)
COOPH = ENV('COOPH', 0)
COOPU = ENV('COOPU', 0)
MF32 = ENV('MF32', 0)
STAGE = ENV('STAGE', 0)
TN = ENV('TN', '')
TN2 = ENV('TN2', '')
XN = ENV('XN', '')
BEH2 = ENV('BEH2', 1)
ETOUCH = ENV('ETOUCH', 1)
FGEN_LATE = ENV('FGEN_LATE', 1)
WARR = ENV('WARR', 2)
EDMA = ENV('EDMA', 0)
_g1e = []
W2T = ENV('W2T', 'late')
NOWAIT = ENV('NOWAIT', 0)
NOTW = ENV('NOTW', 0)
WJOB_FR = ENV('WJOB_FR', 0)
XSW = ENV('XSW', 0)
CODEPF2 = ENV('CODEPF2', 1)
WJOBH = ENV('WJOBH', 0)
SPB = 208
HPOLL2 = ENV('HPOLL2', 1)
NREP = ENV('NREP', 8)
OST = ENV('OST', '').replace('_', ' ')
TBIT = ENV('TBIT', 0)
SPREAD = ENV('SPREAD', 0)
PFH = ENV('PFH', 0)
PFU = ENV('PFU', 0)
HSLEEP = ENV('HSLEEP', 12)
USLEEP = ENV('USLEEP', 12)
TBWAIT = ENV('TBWAIT', 0)
FFT_T1 = ENV('FFT_T1', 1)
MAP1 = ENV('MAP1', 18)
MAP2 = ENV('MAP2', 18)
YSLEEP0 = ENV('YSLEEP0', 0)
TOUCH_FR = ENV('TOUCH_FR', 2)
DRY = ENV('DRY', 4)
ZLD = ENV('ZLD', ' ')
CODEPF = ENV('CODEPF', 0)
HALF_T = ENV('HALF_T', 1)
W_AFTER = ENV('W_AFTER', 1)
YSLEEP = ENV('YSLEEP', 40)
FFT_W2 = ENV('FFT_W2', 1)
PM = ENV('PM', 'sc1').replace('_', ' ')
PSLEEP = ENV('PSLEEP', 2)
DFTPRIO = ENV('DFTPRIO', 0)
W2SIG = ENV('W2SIG', 13)
NB1 = ENV('NB1', 0)
NB2 = ENV('NB2', 0)
NB3 = 0
NB4 = 0
EARLY2 = ENV('EARLY2', 1)
NR1 = ENV('NR1', 99)
FFT_PUB_FIRST = ENV('FFT_PUB_FIRST', 0)
WS_FLG = 0xC00000
F_H, F_Z, F_U, F_Y, F_EP, F_W, F_G, F_X = 0, 8192, 16384, 32768, 40960, 49152, 57344, 65536
WS_DBG = 0x8000000
WS_BYTES = 0x10000000
MIXC = "op_sel_hi:[0,1,0]"
MIXS = "op_sel:[0,1,0] op_sel_hi:[0,1,0]"
f2u = lambda f: struct.unpack("<I", struct.pack("<f", f))[0]
SX, SWR, SWI, SGW, SWS, STB, SW1, SW2, SOUT, SB2 = 8, 12, 16, 20, 24, 28, 32, 36, 40, 44
sWAVE, sXCD, sIDX, sTAG, sN2, sC2, sDT1, sFT1, sDT2, sST2 = 48, 49, 50, 51, 52, 53, 54, 55, 56, 57
RING = 32768
TREG, TB_ = (sXCD, 2) if TBIT in (9, 10) else (sIDX, TBIT)
AP = 4 * RING
LDS_TOTAL = 163840
FB_TB, FB_WG = 65536, 65536 + 59392

def srd(a, d, base, nbytes):
    a(f"s_mov_b32 s{d}, s{base}")
    a(f"s_and_b32 s{d+1}, s{base+1}, 0xffff")
    a(f"s_mov_b32 s{d+2}, {nbytes}")
    a(f"s_mov_b32 s{d+3}, 0x00020000")
def S4(d): return f"s[{d}:{d+3}]"
STK = ENV("STK", "start,xin,p1c,p1st,pre4,b4,loop1,ust,pre7,loop2,end").split(",")
def stamp(a, n):
    if STAMPS and n in STK:
        i = STK.index(n)
        a(f"s_memrealtime s[{80+2*i}:{81+2*i}]")
def stamp_flush(a):
    if not STAMPS: return
    a("s_waitcnt vmcnt(0)")
    stamp(a, 'end')
    a("s_waitcnt lgkmcnt(0)")
    for i in range(11): a(f"v_mov_b32 v{240+i}, s{80+2*i}")
    a("s_lshl_b32 s60, s2, 3")
    a(f"s_add_u32 s60, s60, s{sWAVE}")
    a("s_lshl_b32 s60, s60, 6")
    a(f"s_add_u32 s60, s60, {WS_DBG}")
    a("v_mov_b32 v239, 0")
    if ENV("DBG", 0):
        a("s_load_dwordx2 s[64:65], s[0:1], 80")
        a("s_waitcnt lgkmcnt(0)")
        srd(a, 68, 64, 256)
        a("v_not_b32 v238, v240")
        a("s_mov_b64 exec, 1")
        a(f"buffer_atomic_umax v238, v239, s[68:71], 0 offen")
        for i in range(1, 11): a(f"buffer_atomic_umax v{240+i}, v239, s[68:71], 0 offen offset:{4*i}")
        a(f"buffer_atomic_umax v240, v239, s[68:71], 0 offen offset:44")
        a("s_mov_b64 exec, -1")
        return
    a("s_mov_b64 exec, 1")
    for q in range(3): a(f"buffer_store_dwordx4 v[{240+4*q}:{243+4*q}], v239, {S4(SWS)}, s60 offen offset:{16*q}")
    a("s_mov_b64 exec, -1")
def dpp_reduce(a, regs):
    for mod in ("quad_perm:[1,0,3,2] row_mask:0xf bank_mask:0xf", "quad_perm:[2,3,0,1] row_mask:0xf bank_mask:0xf",
                "row_half_mirror row_mask:0xf bank_mask:0xf", "row_mirror row_mask:0xf bank_mask:0xf",
                "row_bcast:15 row_mask:0xa bank_mask:0xf", "row_bcast:31 row_mask:0xc bank_mask:0xf"):
        for r in regs: a(f"v_add_f32_dpp v{r}, v{r}, v{r} {mod}")
def unpack(a, lo, hi, src):
    a(f"v_lshlrev_b32 v{lo}, 16, v{src}")
    a(f"v_and_b32 v{hi}, 0xffff0000, v{src}")
_uid = [0]
def uid(p): _uid[0] += 1; return f"L_{p}_{_uid[0]}"

def set_flag(a, off_s):
    a(f"s_add_u32 s{off_s}, s{off_s}, {WS_FLG}")
    a(f"v_mov_b32 v13, s{sTAG}")
    a("v_mov_b32 v14, 0")
    a("s_mov_b64 exec, 1")
    a(f"buffer_store_dword v13, v14, {S4(SWS)}, s{off_s} offen {PM}")
    a("s_mov_b64 exec, -1")

def poll(a, off_s, nflags, vt=13):
    L, Ld = uid("poll"), uid("polld")
    a(f"s_add_u32 s{off_s}, s{off_s}, {WS_FLG}")
    n1 = min(nflags, 64)
    a(f"v_min_u32 v{vt}, {n1-1}, v2")
    a(f"v_lshlrev_b32 v{vt}, 6, v{vt}")
    a(f"v_add_u32 v{vt}, s6, v{vt}")
    a(f"s_mov_b32 s79, {POLL_MAX}")
    if nflags > 64: a(f"s_add_u32 s78, s{off_s}, 4096")
    a.wait_all(vm=False); a.fence()
    snap_vm = list(a.vm)
    a.label(L)
    a.auto_wait = False
    a(f"buffer_load_dword v{vt+1}, v{vt}, {S4(SWS)}, s{off_s} offen {PM}")
    if nflags > 64: a(f"buffer_load_dword v{vt+2}, v{vt}, {S4(SWS)}, s78 offen {PM}")
    a("s_sub_u32 s79, s79, 1")
    a("s_waitcnt vmcnt(0)")
    a(f"v_cmp_ne_u32 vcc, s{sTAG}, v{vt+1}")
    if nflags > 64:
        a(f"v_cmp_ne_u32 s[76:77], s{sTAG}, v{vt+2}")
        a("s_nop 1")
        a("s_or_b64 vcc, vcc, s[76:77]")
    else:
        a("s_nop 1")
    a("s_cmp_eq_u64 vcc, 0")
    a(f"s_cbranch_scc1 {Ld}")
    a("s_cmp_eq_u32 s79, 0")
    a(f"s_cbranch_scc1 {Ld}")
    a(f"s_sleep {PSLEEP}")
    a(f"s_branch {L}")
    a.label(Ld)
    a.auto_wait = True
    a.reset_state()

vW0, vW1, vA, vT, vL16 = 4, 5, 6, 8, 3
ACC, WF, AF, RS = 16, 80, 112, 112 + 16 * PA
sRING, sW, sA0, sA, sROT, sSL = 58, 59, 60, 61, 74, 75
ROT = ENV('ROT', 0)
ROT2 = ENV('ROT2', 0)

def poll_pre(a, off, vt):
    a(f"v_lshlrev_b32 v{vt}, 6, v2")
    a(f"s_mov_b32 s78, {WS_FLG + off}")
    a(f"s_mov_b32 s79, {WS_FLG + off + 4096}")
    a(f"buffer_load_dword v{vt+1}, v{vt}, {S4(SWS)}, s78 offen {PM}")
    a(f"buffer_load_dword v{vt+2}, v{vt}, {S4(SWS)}, s79 offen {PM}")
def poll_fin(a, off, vt, off_s):
    L = uid("pf")
    a(f"v_cmp_ne_u32 vcc, s{sTAG}, v{vt+1}")
    a(f"v_cmp_ne_u32 s[76:77], s{sTAG}, v{vt+2}")
    a("s_or_b64 vcc, vcc, s[76:77]")
    a("s_cmp_eq_u64 vcc, 0")
    a.wait_all(); a.fence()
    a(f"s_cbranch_scc1 {L}")
    a(f"s_mov_b32 s{off_s}, {off}")
    poll(a, off_s, 128, vt=vt)
    a.label(L)
    a.reset_state()

def gpoll(a, groups, vt=(12, 13, 250, 251), sleep=None, behind=None, need=None, lanes=None):
    L, Ld = uid("gp"), uid("gpd")
    for k, (so, n) in enumerate(groups):
        a(f"v_min_u32 v{vt[k]}, {n-1}, v2")
        a(f"v_lshlrev_b32 v{vt[k]}, 6, v{vt[k]}")
        a(f"v_add_u32 v{vt[k]}, s6, v{vt[k]}")
    L2 = uid("gpc")
    after = []
    if behind:
        for k, (so, n) in enumerate(groups):
            a(f"buffer_load_dword v{vt[2+k]}, v{vt[k]}, {S4(SWS)}, s{so} offen {PM}")
        n0 = len(a.vm)
        behind()
        after = a.vm[n0:] if len(a.vm) < 63 else None
        assert after is not None
        a(f"s_waitcnt vmcnt({len(after)})")
        a(f"s_mov_b32 s79, {POLL_MAX}")
        a.wait_all(vm=False); a.fence()
        a(f"s_branch {L2}")
    else:
        a(f"s_mov_b32 s79, {POLL_MAX}")
        a.wait_all(vm=False); a.fence()
    if lanes: a(f"s_mov_b64 exec, {lanes}")
    a.label(L)
    a.auto_wait = False
    for k, (so, n) in enumerate(groups):
        a(f"buffer_load_dword v{vt[2+k]}, v{vt[k]}, {S4(SWS)}, s{so} offen {PM}")
    a("s_sub_u32 s79, s79, 1")
    a("s_waitcnt vmcnt(0)")
    a.label(L2)
    a(f"v_cmp_ne_u32 vcc, s{sTAG}, v{vt[2]}")
    if len(groups) > 1:
        a(f"v_cmp_ne_u32 s[70:71], s{sTAG}, v{vt[3]}")
        a("s_nop 1")
        a("s_or_b64 vcc, vcc, s[70:71]")
    else:
        a("s_nop 1")
    if need:
        a("s_mov_b64 s[70:71], vcc")
        a(f"s_and_b32 s78, vcc_lo, {need}")
        a(f"s_cbranch_scc0 {Ld}")
    else:
        a("s_cmp_eq_u64 vcc, 0")
        a(f"s_cbranch_scc1 {Ld}")
    a("s_cmp_eq_u32 s79, 0")
    a(f"s_cbranch_scc1 {Ld}")
    a("s_mov_b64 exec, vcc")
    a(f"s_sleep {PSLEEP if sleep is None else sleep}")
    a(f"s_branch {L}")
    a.label(Ld)
    a("s_mov_b64 exec, -1")
    a.auto_wait = True
    a.reset_state()
    a.vm = list(after)

def prefetch_loop(a, groups, sleep):
    L, Ld = uid("pl"), uid("pld")
    a(f"s_mov_b32 s79, {POLL_MAX}")
    a.wait_all(vm=False); a.fence()
    a.label(L)
    a.auto_wait = False
    for k, (pd, vf, sf, vd, sd) in enumerate(groups):
        Ls = uid("pls")
        a(f"s_mov_b64 exec, s[{pd}:{pd+1}]")
        a(f"s_cbranch_execz {Ls}")
        a(f"buffer_load_dword v{14+k}, v{vf}, {S4(SWS)}, s{sf} offen {PM}")
        a.label(Ls)
    a("s_waitcnt vmcnt(0)")
    for k, (pd, vf, sf, vd, sd) in enumerate(groups):
        Ls = uid("pls")
        a(f"s_mov_b64 exec, s[{pd}:{pd+1}]")
        a(f"v_cmp_eq_u32 vcc, s{sTAG}, v{14+k}")
        a("s_nop 1")
        a(f"s_andn2_b64 s[{pd}:{pd+1}], s[{pd}:{pd+1}], vcc")
        a("s_mov_b64 exec, vcc")
        a(f"s_cbranch_execz {Ls}")
        a(f"buffer_load_dword v1, v{vd}, {S4(SWS)}, s{sd} offen")
        a.label(Ls)
    a("s_mov_b64 exec, -1")
    if len(groups) > 1: a(f"s_or_b64 vcc, s[{groups[0][0]}:{groups[0][0]+1}], s[{groups[1][0]}:{groups[1][0]+1}]")
    else: a(f"s_mov_b64 vcc, s[{groups[0][0]}:{groups[0][0]+1}]")
    a("s_cmp_eq_u64 vcc, 0")
    a(f"s_cbranch_scc1 {Ld}")
    a("s_sub_u32 s79, s79, 1")
    a(f"s_cbranch_scc1 {Ld}")
    a(f"s_sleep {sleep}")
    a(f"s_branch {L}")
    a.label(Ld)
    a.auto_wait = True
    a.reset_state()

def prefetch_h(a):
    a(f"s_lshr_b32 s62, s{sXCD}, 1")
    a("s_mul_i32 s62, s62, 7")
    a(f"s_sub_u32 s62, s{sFT1}, s62")
    a("v_lshrrev_b32 v4, 3, v2")
    a("v_mul_u32_u24 v4, 7, v4")
    a("v_add_u32 v4, s62, v4")
    a("v_and_b32 v5, 7, v2")
    a("v_lshlrev_b32 v5, 7, v5")
    a("v_lshlrev_b32 v6, 6, v4")
    a("v_lshl_add_u32 v7, v4, 10, v5")
    a("v_cmp_gt_u32 vcc, 8, v4")
    a("s_mov_b64 s[70:71], -1")
    a("s_mov_b64 s[72:73], vcc")
    a(f"s_bfe_u32 s63, s{sWAVE}, 0x10001")
    a("s_lshl_b32 s63, s63, 12")
    a(f"s_add_u32 s63, s63, {WS_FLG + F_H}")
    a(f"s_add_u32 s68, s63, {56*64}")
    a(f"s_lshl_b32 s69, s{sDT1}, 18")
    a(f"s_and_b32 s76, s{sWAVE}, 3")
    a("s_lshl_b32 s76, s76, 16")
    a("s_add_u32 s69, s69, s76")
    if WS_HT: a(f"s_add_u32 s69, s69, {WS_HT}")
    a(f"s_add_u32 s76, s69, {56*1024}")
    prefetch_loop(a, [(70, 6, 63, 7, 69), (72, 6, 68, 7, 76)], HSLEEP)

def prefetch_u(a):
    a("v_lshrrev_b32 v4, 3, v2")
    a("v_and_b32 v5, 7, v2")
    a("v_lshlrev_b32 v5, 7, v5")
    a("v_lshlrev_b32 v6, 6, v4")
    a("v_lshl_add_u32 v7, v4, 13, v5")
    a("s_mov_b32 s70, -1")
    a("s_mov_b32 s71, 0x00ffffff")
    a(f"s_and_b32 s76, s{sWAVE}, 3")
    a(f"s_lshl_b32 s63, s{sDT2}, 11")
    a(f"s_mul_i32 s68, s76, {7*64}")
    a("s_add_u32 s63, s63, s68")
    a(f"s_add_u32 s63, s63, {WS_FLG + F_U}")
    a(f"s_mul_i32 s69, s{sDT2}, {224*1024}")
    a(f"s_mul_i32 s68, s76, {56*1024}")
    a("s_add_u32 s69, s69, s68")
    a(f"s_and_b32 s68, s{sST2}, 7")
    a("s_lshl_b32 s68, s68, 10")
    a("s_add_u32 s69, s69, s68")
    a(f"s_add_u32 s69, s69, {WS_UT}")
    prefetch_loop(a, [(70, 6, 63, 7, 69)], USLEEP)

def wlane(a, r0, r1, rowstride, t0, t1):
    a(f"v_lshrrev_b32 v{t0}, 3, v2")
    a(f"s_mov_b32 s79, {rowstride}")
    a(f"v_mul_lo_u32 v{r0}, v{t0}, s79")
    if MF32:
        a(f"v_lshlrev_b32 v{t0}, 4, v2")
        a(f"v_and_b32 v{t0}, 0x70, v{t0}")
        a(f"v_lshlrev_b32 v{t1}, 2, v2")
        a(f"v_and_b32 v{t1}, 64, v{t1}")
        a(f"v_xor_b32 v{t0}, v{t0}, v{t1}")
        a(f"v_add_u32 v{r0}, v{r0}, v{t0}")
        a(f"v_mov_b32 v{r1}, v{r0}")
        return
    a(f"v_bfe_u32 v{t0}, v2, 1, 2")
    a(f"v_bfe_u32 v{t1}, v2, 4, 1")
    a(f"v_xor_b32 v{t0}, v{t0}, v{t1}")
    a(f"v_lshl_add_u32 v{r0}, v{t0}, 5, v{r0}")
    a(f"v_and_b32 v{t0}, 1, v2")
    a(f"v_lshl_add_u32 v{r0}, v{t0}, 4, v{r0}")
    a(f"v_xor_b32 v{r1}, 64, v{r0}")
def gemm_lane_consts(a, rowstride):
    t0, t1 = 12, 13
    a(f"s_lshl_b32 s{sRING}, s{sWAVE}, 15")
    wlane(a, vW0, vW1, rowstride, t0, t1)
    if MF32:
        a(f"v_lshrrev_b32 v{t1}, 5, v2")
        a(f"v_lshlrev_b32 v{vA}, 10, v{t1}")
        a(f"v_and_b32 v{t0}, 31, v2")
        a(f"v_lshl_add_u32 v{vA}, v{t0}, 4, v{vA}")
        a(f"v_lshlrev_b32 v{vT}, 10, v{t1}")
        a(f"v_bfe_u32 v{t0}, v2, 2, 2")
        a(f"v_lshl_add_u32 v{vT}, v{t0}, 7, v{vT}")
        a(f"v_bfe_u32 v{t0}, v2, 3, 1")
        a(f"v_lshl_add_u32 v{vT}, v{t0}, 6, v{vT}")
        a(f"v_bfe_u32 v{t0}, v2, 4, 1")
        a(f"v_lshl_add_u32 v{vT}, v{t0}, 5, v{vT}")
        a(f"v_and_b32 v{t0}, 3, v2")
        a(f"v_lshl_add_u32 v{vT}, v{t0}, 3, v{vT}")
        a(f"v_add_u32 v{vT}, s{sRING}, v{vT}")
        a(f"v_xor_b32 v{vT+1}, 64, v{vT}")
        a(f"v_add_u32 v7, s{sRING}, v{vL16}")
        return
    a(f"v_lshrrev_b32 v{t1}, 4, v2")
    a(f"v_lshlrev_b32 v{vA}, 10, v{t1}")
    a(f"v_and_b32 v{t0}, 15, v2")
    a(f"v_lshl_add_u32 v{vA}, v{t0}, 4, v{vA}")
    a(f"v_lshlrev_b32 v{vT}, 10, v{t1}")
    a(f"v_bfe_u32 v{t0}, v2, 2, 2")
    a(f"v_lshl_add_u32 v{vT}, v{t0}, 7, v{vT}")
    a(f"v_bfe_u32 v{t0}, v2, 3, 2")
    a(f"v_lshl_add_u32 v{vT}, v{t0}, 5, v{vT}")
    a(f"v_and_b32 v{t0}, 3, v2")
    a(f"v_lshl_add_u32 v{vT}, v{t0}, 3, v{vT}")
    a(f"v_add_u32 v{vT}, s{sRING}, v{vT}")
    for t in range(1, 4): a(f"v_xor_b32 v{vT+t}, {32*t}, v{vT}")
    a(f"v_add_u32 v7, s{sRING}, v{vL16}")

class Gemm:
    def __init__(s, a, nslab, slots, kinds, srdW, wbase_s, jstep, sstep, w_is_A, vw=(4, 5), rot=74):
        s.vw, s.rot = vw, rot
        s.a, s.n, s.slots, s.kinds, s.srdW, s.wb, s.jstep, s.sstep, s.w_is_A = a, nslab, slots, kinds, srdW, wbase_s, jstep, sstep, w_is_A
        s.tok = {}
        s.regidx = {sg: i for i, sg in enumerate([x for x in range(nslab) if kinds[x] == 'reg'])}
    def wload(s, sig, jj):
        v = s.vw[jj % 2]
        o = []
        if jj == 0:
            o += s.actual(sig, sSL, sW) + [f"s_mul_i32 s{sSL}, s{sSL}, {s.sstep}", f"s_add_u32 s{sSL}, s{sSL}, s{s.wb}"]
        o.append(f"s_add_u32 s{sW}, s{sSL}, {jj * s.jstep}")
        if s.kinds[sig] == 'reg':
            r = RS + s.regidx[sig] * 16 + jj * 4
            o.append(f"buffer_load_dwordx4 {vr(r,4)}, v{v}, {S4(s.srdW)}, s{sW} offen")
        else:
            o.append(f"s_add_u32 m0, s{sRING}, {s.slots[sig]*4096 + jj*1024}")
            o.append(f"buffer_load_dwordx4 v{v}, {S4(s.srdW)}, s{sW} offen lds")
        return o
    def actual(s, sig, d, tmp):
        o = [f"s_add_u32 s{d}, s{s.rot}, {sig}"]
        if s.n == 16: o.append(f"s_and_b32 s{d}, s{d}, 15")
        else: o += [f"s_sub_u32 s{tmp}, s{d}, {s.n}", f"s_min_u32 s{d}, s{d}, s{tmp}"]
        return o
    def emit_w(s, sig, jjs=range(4)):
        if s.w_is_A: stamp(s.a, f"w{sig}")
        for jj in jjs:
            for l in s.wload(sig, jj):
                ins = s.a(l)
                if 'lds' in l and 'buffer' in l: s.tok.setdefault(sig, []).append(ins)
    def aload(s, sig, mt):
        r = AF + (sig % PA) * 16 + mt * 4
        o = []
        if mt == 0: o += s.actual(sig, sA, 73) + [f"s_lshl_b32 s{sA}, s{sA}, 12", f"s_add_u32 s{sA}, s{sA}, s{sA0}"]
        o.append(f"buffer_load_dwordx4 {vr(r,4)}, v{vA}, {S4(SWS)}, s{sA} offen offset:{(mt >> 1) * 2048 + (mt & 1) * 512 if MF32 else mt*256} {LD}")
        return o
    def trreads(s, sig):
        out = []
        for t in range(4):
            for u in range(2):
                r = WF + (sig & 1) * 16 + t * 4 + 2 * u
                if MF32:
                    out.append(f"ds_read_b64_tr_b16 {vr(r,2)}, v{vT + (t & 1)} offset:{s.slots[sig]*4096 + (t >> 1)*2048 + u*512}")
                    continue
                out.append(f"ds_read_b64_tr_b16 {vr(r,2)}, v{vT+t} offset:{s.slots[sig]*4096 + u*512}")
        return out
    def run(s, extra=None, drain_first=False, post=None, pwrite=None):
        a = s.a; M = "v_mfma_f32_16x16x32_bf16"
        for sig in range(min(PA, s.n)):
            for mt in range(4):
                for l in s.aload(sig, mt): a(l)
        if post: post()
        if drain_first: a.wait_tok(a.vm[0])
        a.wait_tok(*s.tok.get(0, []))
        rt = {0: [a(l) for l in s.trreads(0)]}
        wr = {}; done = []
        for sig in range(s.n):
            stamp(a, f"g{1 if s.w_is_A else 2}_{sig}")
            nxt = [x for x in range(sig + 1, s.n) if s.slots[x] == s.slots[sig] and s.kinds[x] != 'pre']
            fill = nxt[0] if nxt else None
            groups = [[] for _ in range(16)]
            trn = s.trreads(sig + 1) if sig + 1 < s.n else []
            for i, l in enumerate(trn): groups[6 + i].append(('tr', l))
            if fill is not None:
                for jj in range(4):
                    if s.kinds[fill] == 'reg':
                        r = RS + s.regidx[fill] * 16 + jj * 4
                        groups[jj].append(('wr', f"ds_write_b128 v7, {vr(r,4)} offset:{s.slots[fill]*4096 + jj*1024}"))
                    else:
                        groups[jj].append(('dma', jj))
            if sig + PA < s.n:
                for mt in range(4): groups[12 + mt].append(('act', mt))
            ex = extra(sig) if extra else []
            for i, g in enumerate(ex): groups[min(15, 1 + i * 14 // max(1, len(ex)))].append(('ex', g))
            if fill is not None or ex: a.wait_tok(*rt[sig])
            rt[sig + 1] = []
            if MF32:
                def do(grp):
                    for kind, x in grp:
                        if kind == 'tr':
                            if not rt[sig + 1]: a.wait_tok(*s.tok.get(sig + 1, []), *wr.get(sig + 1, []))
                            rt[sig + 1].append(a(x))
                        elif kind == 'wr': wr.setdefault(fill, []).append(a(x))
                        elif kind == 'dma': s.emit_w(fill, [x])
                        elif kind == 'act':
                            for l in s.aload(sig + PA, x): a(l)
                        elif kind == 'ex': x()
                g8 = [[] for _ in range(8)]
                for gi_, g in enumerate(groups):
                    for kind, x in g:
                        if kind == 'tr': g8[3 + (gi_ - 6) * 5 // 8].append((kind, x))
                        elif kind == 'act': g8[4 + x].append((kind, x))
                        elif kind in ('wr', 'dma'): g8[gi_].append((kind, x))
                        else: g8[gi_ // 2].append((kind, x))
                order = [(ks, t, mt) for ks in range(2) for t in range(2) for mt in range(2)]
                last = pwrite and sig == s.n - 1
                if last: order = [(ks, t, mt) for t in range(2) for mt in range(2) for ks in range(2)]
                for k, (ks, t, mt) in enumerate(order):
                    wf = vr(WF + (sig & 1) * 16 + (ks * 2 + t) * 4, 4); af = vr(AF + (sig % PA) * 16 + (ks * 2 + mt) * 4, 4)
                    bi = (t * 2 + mt) if s.w_is_A else (mt * 2 + t)
                    acc = vr(ACC + bi * 16, 16)
                    A_, B_ = (wf, af) if s.w_is_A else (af, wf)
                    a(f"v_mfma_f32_32x32x16_bf16 {acc}, {A_}, {B_}, {'0' if (sig == 0 and ks == 0) else acc}")
                    do(g8[k])
                    if last and ks == 1: done.append(bi)
                    if last and k in (6, 7):
                        for q in range(4): a(pwrite(done[k - 6] * 4 + q))
                if last:
                    for bi in done[2:]:
                        for q in range(4): a(pwrite(bi * 4 + q))
                    done = []
                continue
            k = 0
            for t in range(4):
                for mt in range(4):
                    wf = vr(WF + (sig & 1) * 16 + t * 4, 4); af = vr(AF + (sig % PA) * 16 + mt * 4, 4)
                    if s.w_is_A: acc = vr(ACC + (t * 4 + mt) * 4, 4); A_, B_ = wf, af
                    else:        acc = vr(ACC + (mt * 4 + t) * 4, 4); A_, B_ = af, wf
                    a(f"{M} {acc}, {A_}, {B_}, {'0' if sig == 0 else acc}")
                    for kind, x in groups[k]:
                        if kind == 'tr':
                            if not rt[sig + 1]: a.wait_tok(*s.tok.get(sig + 1, []), *wr.get(sig + 1, []))
                            rt[sig + 1].append(a(x))
                        elif kind == 'wr': wr.setdefault(fill, []).append(a(x))
                        elif kind == 'dma': s.emit_w(fill, [x])
                        elif kind == 'act':
                            for l in s.aload(sig + PA, x): a(l)
                        elif kind == 'ex': x()
                    if pwrite and sig == s.n - 1:
                        done.append((t * 4 + mt) if s.w_is_A else (mt * 4 + t))
                        if k >= 8: a(pwrite(done[k - 8]))
                    k += 1
        if pwrite:
            for b in done[8:]: a(pwrite(b))

P1_EX, P1_GX, CNT, P1_TB = AP, AP + 16384, LDS_TOTAL - 64, AP + 21504
P1_XR = P1_EX
P1_WR, P1_WI = 0, 32768
LX, LF, LP, LGW = 16, 32, 64, 96
def hbar(a, cnt, target):
    a.wait_all(vm=False)
    a(f"v_mov_b32 v12, {CNT + 4*cnt}")
    a("v_mov_b32 v13, 1")
    a("s_mov_b64 exec, 1")
    a("ds_add_u32 v12, v13")
    a("s_mov_b64 exec, -1")
    wait_word(a, 12, target, sleep=0)

def phase1_ln(a):
    F = lambda r, e: LF + 8 * r + e
    P = lambda r, e: LP + 8 * r + e
    R = range(4)
    a(f"buffer_load_dwordx4 {vr(LGW,4)}, v3, {S4(SGW)}, 0 offen")
    if WJOBH:
        a("v_and_b32 v9, 15, v2")
        w_special_pre(a)
    stamp(a, 'ea0')
    a("s_barrier")
    a("v_mov_b32 v108, 0x3b000000")
    a("v_lshlrev_b32 v11, 5, v2")
    a("v_add_u32 v11, s64, v11")
    a("v_and_b32 v4, 255, v0")
    a("v_lshlrev_b32 v4, 2, v4")
    a(f"v_add_u32 v4, {P1_EX}, v4")
    a(f"s_lshl_b32 s72, s{sC2}, 6")
    a(f"s_add_u32 s72, s72, s{sN2}")
    a("s_lshl_b32 s72, s72, 6")
    a("s_lshl_b32 s70, s72, 4")
    a(f"s_lshl_b32 s71, s{sC2}, 16")
    a("s_add_u32 s70, s70, s71")
    a(f"s_and_b32 s71, s{sWAVE}, 3")
    a(f"s_lshl_b32 s71, s71, 18")
    a("s_add_u32 s70, s70, s71")
    if WS_HT: a(f"s_add_u32 s70, s70, {WS_HT}")
    if F_H: a(f"s_add_u32 s72, s72, {F_H}")
    S_, T_, M_, V_, M2, V2 = 100, 104, 112, 116, 152, 160
    P2 = lambda r: f"v[{r}:{r+1}]"
    NEG1 = "neg_lo:[0,1] neg_hi:[0,1]"
    SP_ = 168
    for r in R:
        for q in range(4): unpack(a, F(r, 2*q), F(r, 2*q+1), LX + 4*r + q)
        if r == 0: stamp(a, 'xin')
        a(f"v_pk_add_f32 {P2(SP_+4*r)}, {P2(F(r,0))}, {P2(F(r,2))}")
        a(f"v_pk_add_f32 {P2(SP_+4*r+2)}, {P2(F(r,4))}, {P2(F(r,6))}")
        a(f"v_pk_add_f32 {P2(SP_+4*r)}, {P2(SP_+4*r)}, {P2(SP_+4*r+2)}")
        a(f"v_add_f32 v{S_+r}, v{SP_+4*r}, v{SP_+4*r+1}")
    dpp_reduce(a, [S_ + r for r in R])
    for r in R: a(f"v_readlane_b32 s{64+r}, v{S_+r}, 63")
    for r in R:
        a(f"v_mul_f32 v{M2+2*r}, s{64+r}, v108"); a(f"v_mul_f32 v{M2+2*r+1}, s{64+r}, v108")
    for q in range(4):
        for r in R: a(f"v_pk_add_f32 {P2(P(r,2*q))}, {P2(F(r,2*q))}, {P2(M2+2*r)} {NEG1}")
        for r in R:
            if q == 0: a(f"v_pk_mul_f32 {P2(SP_+2*r)}, {P2(P(r,0))}, {P2(P(r,0))}")
            else: a(f"v_pk_fma_f32 {P2(SP_+2*r)}, {P2(P(r,2*q))}, {P2(P(r,2*q))}, {P2(SP_+2*r)}")
    for r in R: a(f"v_add_f32 v{S_+r}, v{SP_+2*r}, v{SP_+2*r+1}")
    for r in R:
        a(f"v_cvt_pk_bf16_f32 v{T_+r}, v{M2+2*r}, v{M2+2*r}")
    for r in R: unpack(a, M2 + 2*r, M2 + 2*r + 1, T_ + r)
    dpp_reduce(a, [S_ + r for r in R])
    for r in R: a(f"v_readlane_b32 s{64+r}, v{S_+r}, 63")
    def rnd4(X):
        for p in range(2): a(f"v_cvt_pk_bf16_f32 v{T_+p}, v{X+2*p}, v{X+2*p+1}")
        for p in range(2): unpack(a, X + 2*p, X + 2*p + 1, T_ + p)
    sub = [f"v_pk_add_f32 {P2(P(r,2*q))}, {P2(F(r,2*q))}, {P2(M2+2*r)} {NEG1}" for q in range(4) for r in R]
    cv = [f"v_cvt_pk_bf16_f32 v{120 + 4*r + q}, v{P(r,2*q)}, v{P(r,2*q+1)}" for q in range(4) for r in R]
    for l in sub[:4]: a(l)
    for r in R: a(f"v_mul_f32 v{V_+r}, s{64+r}, v108")
    rnd4(V_)
    for r in R: a(f"v_add_f32 v{V_+r}, 0x3727c5ac, v{V_+r}")
    rnd4(V_)
    for r in R: a(f"v_sqrt_f32 v{V_+r}, v{V_+r}")
    for l in sub[4:8]: a(l)
    rnd4(V_)
    for r in R:
        a(f"v_rcp_f32 v{V2+2*r}, v{V_+r}"); a(f"v_rcp_f32 v{V2+2*r+1}, v{V_+r}")
    for l in sub[8:]: a(l)
    for l in cv: a(l)
    for p in range(2):
        for r in (2*p, 2*p+1):
            for q in range(4): unpack(a, P(r, 2*q), P(r, 2*q+1), 120 + 4*r + q)
            for q in range(4): a(f"v_pk_mul_f32 {P2(P(r,2*q))}, {P2(P(r,2*q))}, {P2(V2+2*r)}")
        for e in range(8): a(f"v_cvt_pk_bf16_f32 v{176 + 8*p + e}, v{P(2*p,e)}, v{P(2*p+1,e)}")
        a(f"ds_write_b128 v11, {vr(176 + 8*p, 4)} offset:{2048*p}")
        a(f"ds_write_b128 v11, {vr(180 + 8*p, 4)} offset:{2048*p + 16}")
    stamp(a, 'p1c')
    hbar(a, 8, 4)
    for dh in range(2):
        for cc in range(2):
            for hh in range(2):
                o = 32 * cc + 16 * hh + 4 * dh
                a(f"ds_read2st64_b32 {vr(136 + 8*dh + 4*cc + 2*hh, 2)}, v4 offset0:{o} offset1:{o+8}")
    for dh in range(2):
        for cc in range(2):
            a(f"s_add_u32 s71, s70, {dh * (1 << 20) + cc * 65536}")
            a(f"buffer_store_dwordx4 {vr(136 + 8*dh + 4*cc, 4)}, v3, {S4(SWS)}, s71 offen {ST}")
    stamp(a, 'p1st')
    lds_inc(a, 11)
    tag_ready(a)
    if not WJOBH:
        arrive(a, 0, [72], 0, 4)
        return
    a("v_bfe_u32 v7, v0, 2, 6")
    a("v_and_b32 v6, 3, v2")
    a("v_lshlrev_b32 v8, 13, v7")
    a("v_lshl_add_u32 v8, v6, 4, v8")
    a(f"v_mov_b32 v12, {CNT + 40}")
    wait_word(a, 12, 4, sleep=0)
    w_relayout(a, WR=176, WI=192, flagbase=F_H)
    arrive(a, 0, [72], 5, 4)
    arrive(a, 3, [69], 0, 4)

def lds_inc(a, cnt, t=(12, 13)):
    a(f"v_mov_b32 v{t[0]}, {CNT + 4*cnt}")
    a(f"v_mov_b32 v{t[1]}, 1")
    a("s_mov_b64 exec, 1")
    a(f"ds_add_u32 v{t[0]}, v{t[1]}")
    a("s_mov_b64 exec, -1")
def touch_w1(a, t=(12, 13)):
    if TBIT == 9:
        a(f"v_lshrrev_b32 v{t[0]}, 3, v2")
        a(f"v_and_b32 v{t[1]}, 7, v2")
        a(f"v_mul_u32_u24 v{t[0]}, 3584, v{t[0]}")
        a(f"v_lshl_add_u32 v{t[0]}, v{t[1]}, 7, v{t[0]}")
        a(f"s_lshl_b32 s70, s{sIDX}, 2")
        a(f"s_add_u32 s70, s70, s{sWAVE}")
        a("s_lshl_b32 s70, s70, 1")
        a(f"s_and_b32 s71, s{sXCD}, 1")
        a("s_add_u32 s70, s70, s71")
        a(f"s_mul_i32 s70, s70, {8*3584}")
        a(f"s_lshr_b32 s71, s{sXCD}, 1")
        a("s_lshl_b32 s72, s71, 10")
        a("s_cmp_eq_u32 s71, 3")
        a(f"s_cselect_b32 s72, {22*128}, s72")
        a("s_add_u32 s70, s70, s72")
        a(f"s_cmp_lt_u32 s{sXCD}, 4")
        a(f"s_cselect_b32 s71, 7, 5")
        a(f"v_cmp_ge_u32 s[100:101], s71, v{t[1]}")
        return
    if MAP1 == 18:
        a(f"v_lshrrev_b32 v{t[0]}, 2, v2")
        a(f"v_and_b32 v{t[1]}, 3, v2")
        a(f"v_mul_u32_u24 v{t[0]}, 3584, v{t[0]}")
        a(f"v_lshl_add_u32 v{t[0]}, v{t[1]}, 7, v{t[0]}")
        a(f"s_lshl_b32 s70, s{sIDX}, 2")
        a(f"s_add_u32 s70, s70, s{sWAVE}")
        a(f"s_mul_i32 s70, s70, {16*3584}")
        a(f"s_lshr_b32 s71, s{sXCD}, 1")
        a("s_mul_i32 s71, s71, 896")
        a("s_add_u32 s70, s70, s71")
        a(f"s_and_b32 s71, s{sXCD}, 1")
        a("s_mul_i32 s71, s71, 384")
        a("s_add_u32 s70, s70, s71")
        return
    a(f"v_mul_u32_u24 v{t[0]}, 37, v2")
    a(f"v_lshrrev_b32 v{t[0]}, 8, v{t[0]}")
    a(f"v_mul_u32_u24 v{t[1]}, 7, v{t[0]}")
    a(f"v_sub_u32 v{t[1]}, v2, v{t[1]}")
    a(f"v_mul_u32_u24 v{t[0]}, 3584, v{t[0]}")
    a(f"v_lshl_add_u32 v{t[0]}, v{t[1]}, 7, v{t[0]}")
    a(f"s_lshl_b32 s70, s{sIDX}, 2")
    a(f"s_add_u32 s70, s70, s{sWAVE}")
    a(f"s_mul_i32 s70, s70, {16*3584}")
    a(f"s_lshr_b32 s71, s{sXCD}, 1")
    a("s_mul_i32 s71, s71, 896")
    a("s_add_u32 s70, s70, s71")
    a(f"s_and_b32 s71, s{sXCD}, 1")
    a(f"s_mul_i32 s71, s71, {8*3584}")
    a("s_add_u32 s70, s70, s71")
    a(f"s_xor_b32 s71, s71, {8*3584}")
    a("s_add_u32 s71, s71, s70")
    a(f"s_and_b32 s72, s{sXCD}, 1")
    a(f"s_mul_i32 s72, s72, {8*3584}")
    a("s_sub_u32 s71, s71, s72")
def touch_w1_issue(a, t=(150, 151), gemm=True):
    if EDMA and gemm:
        if ETOUCH: touch_w1_issue(a, t, gemm=False)
        for sg in range(EDMA): _g1e[0].emit_w(sg)
        return
    if TBIT == 9:
        a("s_mov_b64 exec, s[100:101]")
        a(f"buffer_load_dword v250, v{t[0]}, {S4(SW1)}, s70 offen {TN}")
        a("s_mov_b64 exec, -1")
        return
    if MAP1 == 24: a("s_mov_b32 exec_hi, 0x00ffffff")
    a(f"buffer_load_dword v250, v{t[0]}, {S4(SW1)}, s70 offen {TN}")
    if not HALF_T and MAP1 == 24: a(f"buffer_load_dword v251, v{t[0]}, {S4(SW1)}, s71 offen {TN}")
    a("s_mov_b32 exec_hi, -1")
def touch_w2(a, t=12, dst=(250, 251)):
    if MAP2 == 18:
        a(f"v_lshrrev_b32 v{t}, 2, v2")
        a(f"v_lshlrev_b32 v{t}, 12, v{t}")
        a(f"v_and_b32 v{t+1}, 3, v2")
        a(f"v_lshl_add_u32 v{t}, v{t+1}, 7, v{t}")
        a(f"s_lshl_b32 s70, s{sIDX}, 2")
        a(f"s_and_b32 s71, s{sWAVE}, 3")
        a("s_add_u32 s70, s70, s71")
        a(f"s_mul_i32 s70, s70, {14*4096}")
        a(f"s_lshl_b32 s71, s{sXCD}, 9")
        a("s_add_u32 s70, s70, s71")
        a("s_mov_b32 exec_hi, 0x00ffffff")
        a(f"buffer_load_dword v{dst[0]}, v{t}, {S4(SW2)}, s70 offen {TN2}")
        a("s_mov_b32 exec_hi, -1")
        return
    a(f"v_lshrrev_b32 v{t}, 3, v2")
    a(f"v_lshlrev_b32 v{t}, 12, v{t}")
    a(f"v_and_b32 v{t+1}, 7, v2")
    a(f"v_lshl_add_u32 v{t}, v{t+1}, 7, v{t}")
    a(f"s_lshl_b32 s70, s{sIDX}, 2")
    a(f"s_and_b32 s71, s{sWAVE}, 3")
    a("s_add_u32 s70, s70, s71")
    a(f"s_mul_i32 s70, s70, {14*4096}")
    a(f"s_lshr_b32 s71, s{sXCD}, 1")
    a("s_lshl_b32 s71, s71, 10")
    a("s_add_u32 s70, s70, s71")
    a(f"s_add_u32 s71, s70, {8*4096}")
    a(f"buffer_load_dword v{dst[0]}, v{t}, {S4(SW2)}, s70 offen {TN2}")
    a("s_mov_b32 exec_hi, 0x0000ffff")
    a(f"buffer_load_dword v{dst[1]}, v{t}, {S4(SW2)}, s71 offen {TN2}")
    a("s_mov_b32 exec_hi, -1")
def touch_w2_8(a):
    if W2T == 'fft':
        a("v_lshrrev_b32 v15, 2, v2")
        a("v_lshlrev_b32 v15, 12, v15")
        a("v_and_b32 v7, 3, v2")
        a("v_lshl_add_u32 v15, v7, 7, v15")
        a("s_and_b32 s70, s63, 31")
        a(f"s_mul_i32 s70, s70, {14*4096}")
        a(f"s_lshl_b32 s71, s{sXCD}, 9")
        a("s_add_u32 s70, s70, s71")
        a("s_mov_b32 exec_hi, 0x00ffffff")
        for i in range(4):
            a.raw(f"    buffer_load_dword v1, v15, {S4(SW2)}, s70 offen {TN2}")
            if i < 3: a(f"s_add_u32 s70, s70, {448*4096}")
        a("s_mov_b32 exec_hi, -1")
        return
    if MAP2 == 18:
        a("v_lshrrev_b32 v15, 2, v2")
        a("v_lshlrev_b32 v15, 12, v15")
        a("v_and_b32 v7, 3, v2")
        a("v_lshl_add_u32 v15, v7, 7, v15")
        a(f"s_lshl_b32 s70, s{sIDX}, 3")
        a(f"s_add_u32 s70, s70, s{sWAVE}")
        a(f"s_mul_i32 s70, s70, {7*4096}")
        a(f"s_lshl_b32 s71, s{sXCD}, 9")
        a("s_add_u32 s70, s70, s71")
        a("s_mov_b64 exec, 0x0fffffff")
        a(f"buffer_load_dword v1, v15, {S4(SW2)}, s70 offen {TN2}")
        a("s_mov_b64 exec, -1")
        return
    a("v_lshrrev_b32 v15, 3, v2")
    a("v_lshlrev_b32 v15, 12, v15")
    a("v_and_b32 v7, 7, v2")
    a("v_lshl_add_u32 v15, v7, 7, v15")
    a(f"s_lshl_b32 s70, s{sIDX}, 3")
    a(f"s_add_u32 s70, s70, s{sWAVE}")
    a(f"s_mul_i32 s70, s70, {7*4096}")
    a(f"s_lshr_b32 s71, s{sXCD}, 1")
    a("s_lshl_b32 s71, s71, 10")
    a("s_add_u32 s70, s70, s71")
    a("s_mov_b32 exec_hi, 0x00ffffff")
    a(f"buffer_load_dword v1, v15, {S4(SW2)}, s70 offen {TN2}")
    a("s_mov_b32 exec_hi, -1")
def tag_ready(a):
    a("s_waitcnt lgkmcnt(0)")
    a(f"s_add_u32 s{sTAG}, s{sTAG}, 0x9e3779b9")

def gate(a):
    L = uid("nogate")
    a(f"s_bitcmp1_b32 s{TREG}, {TB_}")
    a.fence()
    a(f"s_cbranch_scc1 {L}")
    snap = a.snapshot()
    F = lambda r, e: LF + 8 * r + e
    P = lambda r, e: LP + 8 * r + e
    G, S_ = 16, 100
    R = range(4)
    for q in range(4): unpack(a, G + 2*q, G + 2*q + 1, LGW + q)
    for e in range(8):
        for r in R: a(f"v_mul_f32 v{P(r,e)}, v{F(r,e)}, v{G+e}")
    for p in range(2):
        for e in range(8):
            t = 24 + (e & 3)
            a(f"v_cvt_pk_bf16_f32 v{t}, v{P(2*p,e)}, v{P(2*p+1,e)}")
            unpack(a, P(2*p, e), P(2*p+1, e), t)
    for r in R: a(f"v_add_f32 v{S_+r}, v{P(r,0)}, v{P(r,1)}")
    for e in range(2, 8):
        for r in R: a(f"v_add_f32 v{S_+r}, v{S_+r}, v{P(r,e)}")
    dpp_reduce(a, [S_ + r for r in R])
    def rnd4(X):
        for p in range(2): a(f"v_cvt_pk_bf16_f32 v{104+p}, v{X+2*p}, v{X+2*p+1}")
        for p in range(2): unpack(a, X + 2*p, X + 2*p + 1, 104 + p)
    rnd4(S_)
    for r in R: a(f"v_mul_f32 v{S_+r}, 0xbfb8aa3b, v{S_+r}")
    for r in R: a(f"v_exp_f32 v{S_+r}, v{S_+r}")
    for r in R: a(f"v_add_f32 v{S_+r}, 1.0, v{S_+r}")
    for r in R: a(f"v_rcp_f32 v{S_+r}, v{S_+r}")
    rnd4(S_)
    a(f"s_lshl_b32 s73, s{sC2}, 6")
    a(f"s_add_u32 s73, s73, s{sN2}")
    a("s_lshl_b32 s73, s73, 6")
    a(f"s_and_b32 s79, s{sWAVE}, 3")
    a("s_lshl_b32 s79, s79, 4")
    a("s_add_u32 s78, s73, s79")
    a(f"s_add_u32 s78, s78, {WS_G}")
    a(f"s_add_u32 s73, s73, {F_G}")
    a("v_mov_b32 v104, 0")
    a("s_mov_b32 exec_lo, 0")
    a("s_mov_b32 exec_hi, 0x80000000")
    a(f"buffer_store_dwordx4 {vr(S_,4)}, v104, {S4(SWS)}, s78 offen {ST}")
    a("s_mov_b64 exec, -1")
    arrive(a, 2, [73], 0, 4, lowprio=True)
    a.fence()
    a.label(L)
    a.restore(snap)

def arrive(a, cnt, flags, nvm, nw, t=(12, 13), st=78, lowprio=False):
    L = uid("arr")
    a(f"s_waitcnt vmcnt({nvm})")
    stamp(a, f'arr{cnt}')
    a(f"v_mov_b32 v{t[0]}, {CNT + 4*cnt}")
    a(f"v_mov_b32 v{t[1]}, 1")
    a("s_mov_b64 exec, 1")
    a(f"ds_add_rtn_u32 v{t[1]}, v{t[0]}, v{t[1]}")
    a("s_mov_b64 exec, -1")
    a("s_waitcnt lgkmcnt(0)")
    a(f"v_readfirstlane_b32 s{st}, v{t[1]}")
    a(f"s_cmp_lg_u32 s{st}, {nw-1}")
    a(f"s_cbranch_scc1 {L}")
    snap = a.snapshot()
    if lowprio: a("s_setprio 3")
    a(f"v_mov_b32 v{t[1]}, s{sTAG}")
    a(f"v_lshlrev_b32 v{t[0]}, 17, v2")
    a(f"v_add_u32 v{t[0]}, {WS_FLG}, v{t[0]}")
    a(f"s_mov_b64 exec, {(1 << NREP) - 1}")
    for f in flags: a(f"buffer_store_dword v{t[1]}, v{t[0]}, {S4(SWS)}, s{f} offen {PM}")
    a("s_mov_b64 exec, -1")
    if lowprio: a("s_setprio 0")
    a.fence()
    a.label(L)
    a.restore(snap)
def wait_word(a, vaddr, val, tv=13, st=78, sleep=2):
    L, Ld = uid("wc"), uid("wcd")
    a("s_mov_b32 s79, 200000")
    a.wait_all(vm=False); a.fence()
    a.label(L)
    a.auto_wait = False
    a(f"ds_read_b32 v{tv}, v{vaddr}")
    a("s_waitcnt lgkmcnt(0)")
    a(f"v_readfirstlane_b32 s{st}, v{tv}")
    a(f"s_cmp_ge_u32 s{st}, {val}")
    a(f"s_cbranch_scc1 {Ld}")
    a("s_sub_u32 s79, s79, 1")
    a(f"s_cbranch_scc1 {Ld}")
    if sleep: a(f"s_sleep {sleep}")
    a(f"s_branch {L}")
    a.label(Ld)
    a.auto_wait = True

def phase1_fft(a, ti):
    M = "v_mfma_f32_16x16x32_bf16"
    a(f"s_and_b32 s65, s{sWAVE}, 3")
    a("s_lshl_b32 s66, s65, 10")
    for j in range(3):
        a(f"s_add_u32 s67, s66, {4096*j}")
        if j == 2: a("s_min_u32 s67, s67, 9216")
        a(f"s_add_u32 m0, s67, {P1_TB}")
        a(f"s_add_u32 s67, s67, TABLES-{NAME}")
        d2 = a(f"buffer_load_dwordx4 v3, {S4(STB)}, s67 offen lds")
    a("v_and_b32 v9, 15, v2")
    stamp(a, 'ea0')
    a("s_barrier")
    a("v_lshrrev_b32 v4, 4, v2")
    a("v_lshlrev_b32 v5, 9, v4")
    a("v_lshlrev_b32 v4, 8, v4")
    a("v_lshl_add_u32 v4, v9, 3, v4")
    a("v_add_u32 v4, s64, v4")
    a("v_lshl_add_u32 v5, v9, 2, v5")
    a("v_add_u32 v5, s64, v5")
    a(f"v_add_u32 v14, {P1_TB}, v3")
    a("v_bfe_u32 v7, v0, 2, 6")
    a("v_and_b32 v6, 3, v2")
    a("v_and_b32 v15, 1, v2")
    a("v_cmp_eq_u32 vcc, 1, v15")
    a("v_bfe_u32 v10, v2, 1, 1")
    a("v_lshlrev_b32 v10, 13, v10")
    a(f"v_add_u32 v10, {P1_EX}, v10")
    for z in range(4):
        a(f"v_add_u32 v11, {64*z}, v7")
        a(f"v_sub_u32 v12, {512 - 64*z}, v7")
        if z == 0:
            a("v_mov_b32 v13, 256")
            a("v_cmp_eq_u32 s[76:77], 0, v7")
            a("v_cndmask_b32 v12, v12, v13, s[76:77]")
        a("v_cndmask_b32 v11, v11, v12, vcc")
        a(f"v_lshl_add_u32 v{136+z}, v11, 2, v10")
    a("v_lshlrev_b32 v8, 13, v7")
    a("v_lshl_add_u32 v8, v6, 4, v8")
    a(f"s_lshl_b32 s72, s{sC2}, 6")
    a(f"s_add_u32 s72, s72, s{sN2}")
    a("s_lshl_b32 s72, s72, 6")
    a(f"s_add_u32 s70, s72, {WS_Z}")
    a(f"s_add_u32 s72, s72, {F_Z}")
    a.wait_tok(d2)
    stamp(a, 'xin')
    hbar(a, 9, 4)
    AF_ = lambda p, r: 56 + 8 * p + 4 * r
    for p in range(2):
        for r in range(2):
            for u in range(2):
                a(f"ds_read_b64_tr_b16 {vr(AF_(p, r) + 2*u, 2)}, v4 offset:{2048*p + 1024*r + 128*u}")
        if p == 0:
            T = {}
            for n in ['COS0', 'NSIN0', 'SIN0', 'COS1', 'NSIN1', 'SIN1']:
                idx = ti[n]; r_ = 16 + 4 * idx; T[n] = r_
                a(f"ds_read_b128 {vr(r_,4)}, v14 offset:{idx*1024}")
    for n in ['TW0', 'TW1', 'ARE', 'AIM']:
        idx = ti[n]; r_ = 16 + 4 * idx; T[n] = r_
        a(f"ds_read_b128 {vr(r_,4)}, v14 offset:{idx*1024}")
    TR = lambda p, jh, x: 72 + 16 * p + 8 * jh + (0 if x == 're' else 4)
    for p in range(2):
        for jh in range(2):
            a(f"{M} {vr(TR(p,jh,'re'),4)}, {vr(AF_(p,0),4)}, {vr(T[f'COS{jh}'],4)}, 0")
            a(f"{M} {vr(TR(p,jh,'im'),4)}, {vr(AF_(p,0),4)}, {vr(T[f'NSIN{jh}'],4)}, 0")
            a(f"{M} {vr(TR(p,jh,'re'),4)}, {vr(AF_(p,1),4)}, {vr(T[f'SIN{jh}'],4)}, {vr(TR(p,jh,'re'),4)}")
            a(f"{M} {vr(TR(p,jh,'im'),4)}, {vr(AF_(p,1),4)}, {vr(T[f'COS{jh}'],4)}, {vr(TR(p,jh,'im'),4)}")
    for p in range(2):
        for jh in range(2):
            o = 120 + 8 * jh
            for i in range(4):
                tw = T[f'TW{jh}'] + i; re = TR(p, jh, 're') + i; im = TR(p, jh, 'im') + i
                a(f"v_fma_mix_f32 v{o+i}, v{re}, v{tw}, 0 {MIXC}")
                a(f"v_fma_mix_f32 v{o+4+i}, v{im}, v{tw}, 0 {MIXC}")
                a(f"v_fma_mix_f32 v{o+i}, v{im}, v{tw}, v{o+i} {MIXS}")
                a(f"v_fma_mix_f32 v{o+4+i}, -v{re}, v{tw}, v{o+4+i} {MIXS}")
            B = 104 + 8 * p + 4 * jh
            for q in range(4): a(f"v_cvt_pk_bf16_f32 v{B+q}, v{o+2*q}, v{o+2*q+1}")
            a(f"{M} {vr(TR(p,jh,'re'),4)}, {vr(T['ARE'],4)}, {vr(B,4)}, 0")
            a(f"{M} {vr(TR(p,jh,'im'),4)}, {vr(T['AIM'],4)}, {vr(B,4)}, 0")
    for p in range(2):
        for jh in range(2):
            for i in range(4):
                r = 56 + 8 * p + 4 * jh + i
                a(f"v_cvt_pk_bf16_f32 v{r}, v{TR(p,jh,'re')+i}, v{TR(p,jh,'im')+i}")
                a(f"ds_write_b32 v5, v{r} offset:{2048*p + (16*jh + 32*i) * 4}")
    stamp(a, 'p1c')
    hbar(a, 8, 4)
    for z in range(4):
        for hh in range(2):
            a(f"ds_read2st64_b32 {vr(96 + 4*z + 2*hh, 2)}, v{136+z} offset0:{16*hh} offset1:{16*hh+8}")
    for z in range(4):
        a(f"buffer_store_dwordx4 {vr(96 + 4*z, 4)}, v8, {S4(SWS)}, s70 offen {ST}")
        if z < 3: a(f"s_add_u32 s70, s70, {64*8192}")
    stamp(a, 'p1st')
    lds_inc(a, 11)
    tag_ready(a)
    arrive(a, 0, [72], 0, 4)

def g_prologue(a):
    L1, L2 = uid("gw"), uid("gw")
    a(f"s_bitcmp{0 if WJOB_FR else 1}_b32 s{TREG}, {TB_}")
    a.fence()
    a(f"s_cbranch_scc1 {L1}")
    a("s_lshr_b32 s66, s62, 10")
    a("s_mul_i32 s67, s66, 514")
    a("s_and_b32 s67, s67, 0xfffffff0")
    a(f"s_mul_i32 s69, s{sWAVE}, 2112")
    a("s_mov_b32 exec_hi, 1")
    for r in range(4):
        for (srd_, base) in ((SWR, P1_WR), (SWI, P1_WI)):
            a(f"s_add_u32 m0, s69, {base + 528*r}")
            a(f"buffer_load_dwordx4 v3, {S4(srd_)}, s67 offen {XN} lds")
        if r < 3: a(f"s_add_u32 s67, s67, {64*514}")
    a("s_mov_b32 exec_hi, -1")
    if WJOBH:
        touch_w1_issue(a)
        a("s_waitcnt vmcnt(1)")
        lds_inc(a, 10)
        tag_ready(a)
        a("s_waitcnt vmcnt(0)")
        a.fence()
        a(f"s_branch {L2}")
    a("v_and_b32 v9, 15, v2")
    w_special_pre(a)
    a("v_bfe_u32 v7, v0, 2, 6")
    a("v_and_b32 v6, 3, v2")
    a("v_lshlrev_b32 v8, 13, v7")
    a("v_lshl_add_u32 v8, v6, 4, v8")
    a(f"s_lshl_b32 s72, s{sC2}, 6")
    a(f"s_add_u32 s72, s72, s{sN2}")
    a("s_lshl_b32 s72, s72, 6")
    a(f"s_add_u32 s72, s72, {F_Z}")
    a("s_mov_b64 s[64:65], s[70:71]")
    if TOUCH_FR == 2:
        touch_w1_issue(a)
        a(f"s_waitcnt vmcnt({(ETOUCH + 4 * EDMA) if EDMA else (1 if (HALF_T or MAP1 == 18) else 2)})")
    else: a("s_waitcnt vmcnt(0)")
    hbar(a, 10, 4)
    w_relayout(a)
    tag_ready(a)
    if TOUCH_FR == 0:
        a("s_mov_b64 s[70:71], s[64:65]")
        touch_w1_issue(a)
    hbar(a, 10, 8)
    a.fence()
    a(f"s_branch {L2}")
    a.label(L1)
    a.reset_state()
    touch_w1_issue(a)
    if TOUCH_FR == 1:
        a(f"s_sub_u32 s70, s70, {64*3584*(1 << TBIT)}")
        touch_w1_issue(a)
    if CODEPF:
        a(f"s_cmp_lg_u32 s{sIDX}, 1")
        a("s_cbranch_scc1 L_nocpf")
        a("v_lshlrev_b32 v152, 7, v2")
        a(f"s_lshl_b32 s73, s{sWAVE}, 13")
        for j in range(2):
            a(f"buffer_load_dword v153, v152, {S4(STB)}, s73 offen")
            if j < 1: a("s_add_u32 s73, s73, 32768")
        a.fence()
        a.label("L_nocpf")
        a.reset_state()
    tag_ready(a)
    if not NOTW: a("s_waitcnt vmcnt(0)")
    a.fence()
    a.label(L2)
    a.reset_state()
    stamp(a, 'ea1')
    if W2T == 'early': touch_w2(a, dst=(1, 1))
    if not NOWAIT:
        a(f"v_mov_b32 v12, {CNT + 44}")
        wait_word(a, 12, 4)

def w_arrive(a, nvm):
    L = uid("nowa")
    a(f"s_bitcmp{0 if WJOB_FR else 1}_b32 s{TREG}, {TB_}")
    a.fence()
    a(f"s_cbranch_scc1 {L}")
    snap = a.snapshot()
    arrive(a, 3, [69], nvm, 4)
    a.fence()
    a.label(L)
    a.restore(snap)
def w_special_pre(a):
    SP = SPB
    a(f"s_lshl_b32 s66, s{sC2}, 10")
    a(f"s_add_u32 s66, s66, s{sN2}")
    a("v_lshlrev_b32 v10, 6, v9")
    a("v_add_u32 v10, s66, v10")
    a("v_sub_u32 v11, 2048, v10")
    a("v_and_b32 v11, 2047, v11")
    a(f"v_bfe_u32 v{SPB+4}, v2, 4, 1")
    a(f"v_lshlrev_b32 v{SPB+5}, 9, v{SPB+4}")
    a("s_movk_i32 s68, 514")
    a(f"v_mad_u32_u24 v11, v11, s68, v{SPB+5}")
    for i in range(4): a(f"v_mov_b32 v{SP+i}, 0")
    a(f"s_cmp_eq_u32 s{sWAVE}, {4 if WJOBH else 0}")
    a("s_cselect_b32 s68, 0, 0x7fffffff")
    a("s_mov_b32 exec_hi, 0")
    a(f"buffer_load_short_d16_hi v{SP+2}, v11, {S4(SWR)}, s68 offen")
    a(f"buffer_load_short_d16_hi v{SP+3}, v11, {S4(SWI)}, s68 offen")
    a("s_mov_b32 exec_hi, -1")
def w_relayout(a, WR=16, WI=32, flagbase=None):
    SP = SPB
    if flagbase is None: flagbase = F_Z
    a(f"s_lshl_b32 s67, s{sN2}, 1")
    a("s_and_b32 s67, s67, 15")
    a("v_mul_u32_u24 v14, 2112, v6")
    a("v_lshl_add_u32 v14, v7, 1, v14")
    a("v_add_u32 v14, s67, v14")
    a("v_mul_u32_u24 v10, 528, v9")
    a(f"v_add_u32 v10, v10, v{SPB+5}")
    a("v_add_u32 v10, s67, v10")
    for i in range(16): a(f"v_mov_b32 v{WI+i}, 0")
    for z in range(4):
        for e in range(4):
            a(f"ds_read_u16 v{WR+4*z+e}, v14 offset:{P1_WR + e*528 + 128*z}")
            a(f"ds_read_u16_d16_hi v{WI+4*z+e}, v14 offset:{P1_WI + e*528 + 128*z}")
    a(f"ds_read_u16_d16_hi v{SP}, v10 offset:{P1_WR}")
    a(f"ds_read_u16_d16_hi v{SP+1}, v10 offset:{P1_WI}")
    a(f"s_sub_u32 s69, s72, {flagbase}")
    a(f"s_add_u32 s70, s69, {WS_WT}")
    a(f"s_add_u32 s69, s69, {F_W}")
    for i in range(16): a(f"v_or_b32 v{WR+i}, v{WR+i}, v{WI+i}")
    if WJOBH:
        a.wait_all(vm=False)
        lds_inc(a, 9, t=(13, 15))
    for z in (1, 2, 3):
        a(f"s_add_u32 s71, s70, {z*64*8192}")
        a(f"buffer_store_dwordx4 {vr(WR+4*z,4)}, v8, {S4(SWS)}, s71 offen {ST}")
    a("v_cmp_ne_u32 vcc, 0, v7")
    a("s_and_saveexec_b64 s[76:77], vcc")
    a(f"buffer_store_dwordx4 {vr(WR,4)}, v8, {S4(SWS)}, s70 offen {ST}")
    a("s_mov_b64 exec, s[76:77]")
    a(f"v_add_f32 v{SP}, v{SP}, v{SP+2}")
    a(f"v_sub_f32 v{SP+1}, v{SP+1}, v{SP+3}")
    a(f"ds_swizzle_b32 v{SP+2}, v{SP} offset:0x401F")
    a(f"ds_swizzle_b32 v{SP+3}, v{SP+1} offset:0x401F")
    a(f"v_lshlrev_b32 v15, 31, v{SPB+4}")
    a(f"v_xor_b32 v{SP}, v15, v{SP}")
    a(f"v_xor_b32 v{SP+1}, v15, v{SP+1}")
    a(f"v_add_f32 v{SP}, v{SP}, v{SP+2}")
    a(f"v_add_f32 v{SP+1}, v{SP+1}, v{SP+3}")
    a(f"v_mul_f32 v{SP}, 0x3e800000, v{SP}")
    a(f"v_mul_f32 v{SP+1}, 0x3e800000, v{SP+1}")
    a(f"v_cvt_pk_bf16_f32 v{SP+2}, v{SP}, v{SP+1}")
    a(f"v_lshlrev_b32 v14, 21, v{SPB+4}")
    a("v_lshl_add_u32 v14, v9, 2, v14")
    a("s_add_u32 s68, s68, s70")
    a("s_mov_b32 exec_hi, 0")
    a(f"buffer_store_dword v{SP+2}, v14, {S4(SWS)}, s68 offen {ST}")
    a("s_mov_b32 exec_hi, -1")

def wait_vm_untracked(a, toks):
    a.wait_tok(*toks)

def part_write(a, base_v0, base_v1, off0):
    pass

def flag_g(a):
    a(f"s_lshl_b32 s73, s{sC2}, 6")
    a(f"s_add_u32 s73, s73, s{sN2}")
    a("s_lshl_b32 s73, s73, 6")
    a(f"s_and_b32 s78, s{sIDX}, 1")
    a("s_lshl_b32 s78, s78, 13")
    a("s_add_u32 s73, s73, s78")
    a(f"s_add_u32 s73, s73, {F_G}")

def gen(a):
    tb1, ti1 = table_dwords(1); tb2, ti2 = table_dwords(2)
    TB2OFF = len(tb1) * 4
    a.raw(f".globl {NAME}\n.p2align 8\n.type {NAME},@function\n{NAME}:")
    a("s_cmp_ge_u32 s2, 256")
    a("s_cbranch_scc1 L_end")
    if STAMPS:
        for i in range(11): a(f"s_mov_b64 s[{80+2*i}:{81+2*i}], 0")
        stamp(a, 'start')
    a("s_load_dwordx16 s[64:79], s[0:1], 0")
    a("s_load_dwordx4 s[4:7], s[0:1], 64")
    a("s_load_dwordx2 s[60:61], s[0:1], 88")
    a(f"s_getpc_b64 s[{STB}:{STB+1}]")
    a.raw("Lpc0:")
    a(f"s_sub_u32 s{STB}, s{STB}, Lpc0-{NAME}")
    a(f"s_subb_u32 s{STB+1}, s{STB+1}, 0")
    a(f"s_and_b32 s{STB+1}, s{STB+1}, 0xffff")
    a(f"s_mov_b32 s{STB+2}, TABLES-{NAME}+{(len(tb1) + len(tb2)) * 4}")
    a(f"s_mov_b32 s{STB+3}, 0x00020000")
    a("v_lshrrev_b32 v1, 6, v0")
    a("v_and_b32 v2, 63, v0")
    a(f"v_readfirstlane_b32 s{sWAVE}, v1")
    a("v_lshlrev_b32 v3, 4, v2")
    for r in range(4, 16): a(f"v_mov_b32 v{r}, 0")
    if XSW: a(f"s_xor_b32 s2, s2, {XSW}")
    a(f"s_and_b32 s{sXCD}, s2, 7")
    a(f"s_lshr_b32 s{sIDX}, s2, 3")
    a(f"s_lshl_b32 s{sN2}, s{sXCD}, 3")
    if TBIT == 0:
        a("s_bfe_u32 s3, s2, 0x30004")
        a(f"s_lshr_b32 s{sC2}, s2, 7")
    elif TBIT in (9, 10):
        a(f"s_and_b32 s{sN2}, s{sXCD}, 3")
        a(f"s_lshl_b32 s{sN2}, s{sN2}, 4")
        a(f"s_and_b32 s3, s{sIDX}, 15")
        a(f"s_lshr_b32 s{sC2}, s{sIDX}, 4")
    else:
        a("s_bfe_u32 s3, s2, 0x30003")
        a(f"s_bfe_u32 s{sC2}, s2, 0x10006")
    a(f"s_add_u32 s{sN2}, s{sN2}, s3")
    if TBIT == 9:
        a(f"s_max_u32 s3, s{sIDX}, 8")
        a("s_sub_u32 s3, s3, 8")
        a(f"s_cmp_lt_u32 s{sXCD}, 4")
        a(f"s_cselect_b32 s3, s{sIDX}, s3")
        a(f"s_and_b32 s{sDT1}, s3, 3")
        a(f"s_lshr_b32 s{sFT1}, s3, 2")
        a(f"s_mul_i32 s58, s{sDT1}, {4 * ROT}")
        a(f"s_and_b32 s3, s{sXCD}, 1")
        a("s_lshl_b32 s3, s3, 2")
        a(f"s_add_u32 s{sDT1}, s{sDT1}, s3")
        a(f"s_lshr_b32 s3, s{sXCD}, 1")
        a("s_lshl_b32 s59, s3, 3")
        a("s_cmp_eq_u32 s3, 3")
        a("s_cselect_b32 s59, 22, s59")
        a(f"s_add_u32 s{sFT1}, s{sFT1}, s59")
    else:
        a(f"s_sub_u32 s3, s{sIDX}, 4")
        if TBIT in (0, 10):
            a(f"s_lshr_b32 s59, s{sIDX}, 1")
            a(f"s_cmp_lt_u32 s{sIDX}, 8")
            a("s_cselect_b32 s3, s59, s3")
        else:
            a(f"s_cmp_lt_u32 s{sIDX}, 16")
            a(f"s_cselect_b32 s3, s{sIDX}, s3")
        if MAP1 == 24:
            a(f"s_mul_i32 s{sDT1}, s3, 37")
            a(f"s_lshr_b32 s{sDT1}, s{sDT1}, 8")
            a(f"s_mul_i32 s{sFT1}, s{sDT1}, 7")
            a(f"s_sub_u32 s{sFT1}, s3, s{sFT1}")
            a(f"s_lshl_b32 s58, s{sDT1}, 1")
            a(f"s_mul_i32 s59, s{sFT1}, {ROT2}")
            a("s_add_u32 s58, s58, s59")
            a(f"s_mul_i32 s58, s58, {2 * ROT}")
            a(f"s_and_b32 s3, s{sXCD}, 1")
            a("s_lshl_b32 s3, s3, 2")
            a(f"s_add_u32 s{sDT1}, s{sDT1}, s3")
        else:
            a(f"s_and_b32 s59, s{sXCD}, 1")
            a("s_lshl_b32 s59, s59, 2")
            a("s_lshr_b32 s58, s3, 3")
            a(f"s_add_u32 s{sFT1}, s58, s59")
            a(f"s_and_b32 s{sDT1}, s3, 7")
            a(f"s_add_u32 s59, s59, s{sDT1}")
            a("s_cmp_ge_u32 s3, 24")
            a(f"s_cselect_b32 s{sFT1}, 3, s{sFT1}")
            a(f"s_cselect_b32 s{sDT1}, s59, s{sDT1}")
            a("s_lshl_b32 s58, s58, 1")
            a(f"s_add_u32 s58, s58, s{sDT1}")
            a(f"s_mul_i32 s58, s58, {2 * ROT}")
        a(f"s_lshr_b32 s3, s{sXCD}, 1")
        a("s_mul_i32 s3, s3, 7")
        a(f"s_add_u32 s{sFT1}, s{sFT1}, s3")
    if MAP2 == 24:
        a(f"s_and_b32 s3, s{sXCD}, 1")
        a("s_lshl_b32 s3, s3, 2")
        a(f"s_lshr_b32 s{sDT2}, s{sIDX}, 3")
        a(f"s_add_u32 s{sDT2}, s{sDT2}, s3")
        a(f"s_lshr_b32 s3, s{sXCD}, 1")
        a(f"s_lshl_b32 s{sST2}, s3, 3")
        a(f"s_and_b32 s3, s{sIDX}, 7")
        a(f"s_add_u32 s{sST2}, s{sST2}, s3")
    else:
        a(f"s_and_b32 s{sDT2}, s{sIDX}, 7")
        a(f"s_lshl_b32 s{sST2}, s{sXCD}, 2")
        a(f"s_lshr_b32 s3, s{sIDX}, 3")
        a(f"s_add_u32 s{sST2}, s{sST2}, s3")
    if TBIT in (0, 10): a(f"s_and_b32 s3, s{sIDX}, 0x19")
    elif TBIT == 9:
        a("s_and_b32 s3, s2, 0xc4")
        a("s_lshr_b32 s3, s3, 2")
    else:
        a(f"s_lshr_b32 s3, s{sIDX}, 2")
        a("s_sub_u32 s3, s3, 3")
    a(f"s_lshl_b32 s62, s{sC2}, 10")
    a(f"s_add_u32 s62, s62, s{sN2}")
    a(f"s_and_b32 s59, s{sWAVE}, 3")
    a("s_lshl_b32 s63, s59, 8")
    a("s_add_u32 s62, s62, s63")
    a("s_lshl_b32 s62, s62, 10")
    a("s_lshl_b32 s59, s59, 12")
    a(f"s_add_u32 s59, s59, {P1_XR}")
    srd(a, SX, 64, S * D * 2)
    a(f"s_cmp_lt_u32 s{sWAVE}, 4")
    a("s_cbranch_scc1 L_xdone")
    a("s_setprio 3")
    a(f"s_bitcmp1_b32 s{TREG}, {TB_}")
    a("s_cbranch_scc1 L_xdma")
    for r in range(4):
        a(f"s_add_u32 s63, s62, {65536*r}")
        a(f"buffer_load_dwordx4 {vr(LX + 4*r, 4)}, v3, {S4(SX)}, s63 offen {XN}")
    a("s_branch L_xdone")
    snapx = a.snapshot()
    a.label("L_xdma")
    for r in range(4):
        a(f"s_add_u32 s63, s62, {65536*r}")
        a(f"s_add_u32 m0, s59, {1024*r}")
        a(f"buffer_load_dwordx4 v3, {S4(SX)}, s63 offen {XN} lds")
    a.label("L_xdone")
    a.restore(snapx)
    srd(a, SGW, 4, 1024)
    srd(a, SWR, 66, S * 514)
    srd(a, SWI, 68, S * 514)
    srd(a, SW1, 72, S * F * 2)
    srd(a, SW2, 76, S * F * 2)
    srd(a, SB2, 78, S * 2)
    srd(a, SOUT, 6, S * D * 2)
    srd(a, SWS, 60, WS_BYTES)
    a("s_mov_b64 s[4:5], s[74:75]")
    a(f"s_add_u32 s6, s60, {WS_FLG + F_EP}")
    a("s_addc_u32 s7, s61, 0")
    a(f"v_mov_b32 v100, {CNT}")
    for q in range(4): a(f"ds_write_b128 v100, v[4:7] offset:{16*q}")
    a(f"s_and_b32 s{sROT}, s58, 15")
    a("s_mov_b32 s64, s59")
    a(f"s_lshl_b32 s58, s{sFT1}, 7")
    a(f"s_lshl_b32 s63, s{sWAVE}, 4")
    a("s_add_u32 s63, s63, s58")
    a("s_add_u32 s4, s4, s63")
    a("s_addc_u32 s5, s5, 0")
    a.wait_all(vm=False)
    a(f"s_load_dword s{sTAG}, s[6:7], 0")
    a(f"s_and_b32 s5{8}, s2, {NREP - 1}")
    a("s_nop 0")
    a("s_lshl_b32 s6, s58, 17")
    a(f"s_cmp_lt_u32 s{sWAVE}, 4")
    a.fence()
    a("s_cbranch_scc1 L_gwave")
    a(f"s_bitcmp1_b32 s{TREG}, {TB_}")
    a("s_cbranch_scc1 L_p1fft")
    snap = a.snapshot()
    phase1_ln(a)
    a.fence()
    a("s_branch L_p1done")
    a.restore(snap)
    a.label("L_p1fft")
    phase1_fft(a, ti1)
    a.fence()
    a.label("L_p1done")
    a.reset_state()
    a("s_cmp_eq_u32 s3, 1")
    a("s_cbranch_scc1 L_fft")
    a("s_branch L_g1help")
    a.label("L_gwave")
    a.reset_state()
    touch_w1(a, t=(150, 151))
    if EDMA:
        wlane(a, 154, 155, 64 * 3584, 156, 157)
        a(f"s_lshl_b32 s{sRING}, s{sWAVE}, 15")
        a(f"s_mul_i32 s60, s{sWAVE}, {512*3584}")
        a(f"s_lshl_b32 s61, s{sFT1}, 7")
        a("s_add_u32 s60, s60, s61")
        if EDMA == 2 and MAP1 == 24:
            a(f"s_and_b32 s61, s{sXCD}, 1")
            a("s_lshl_b32 s61, s61, 1")
            a(f"s_add_u32 s{sROT}, s{sROT}, s61")
        _g1e.append(Gemm(a, 16, [(x + 4) % 8 for x in range(16)], ['pre'] * 16, SW1, 60, 3584, 4 * 3584, True, vw=(154, 155)))
    stamp(a, 'ea0')
    a("s_barrier")
    a("s_cmp_lg_u32 s3, 1")
    a("s_cbranch_scc1 L_g1")
    if WJOB_FR or TBIT == 10: g_prologue(a)
    elif FFT_T1: touch_w1_issue(a, gemm=False)
    a(f"v_mov_b32 v12, {CNT + TBWAIT}")
    wait_word(a, 12, 4)
    a(f"s_lshl_b32 s72, s{sWAVE}, 10")
    for j in range(15):
        if WJOB_FR and j == 4: arrive(a, 3, [69], 4, 4)
        if TBIT == 10 and j == 4: w_arrive(a, 4)
        if j == 14: a("s_min_u32 s72, s72, 1024")
        a(f"s_add_u32 m0, s72, {FB_TB + j*4096}")
        a(f"s_add_u32 s73, s72, TABLES-{NAME}+{TB2OFF + j*4096}")
        a(f"buffer_load_dwordx4 v3, {S4(STB)}, s73 offen lds")
    if CODEPF2:
        a("v_lshlrev_b32 v152, 7, v2")
        a(f"s_lshl_b32 s73, s{sWAVE}, 13")
        a(f"s_add_u32 s73, s73, L_fft2-{NAME}")
        a(f"buffer_load_dword v153, v152, {S4(STB)}, s73 offen")
    if not (WJOB_FR or TBIT == 10): tag_ready(a)
    a.fence()
    a("s_branch L_fft2")
    a.label("L_g1")
    a.reset_state()
    g_prologue(a)
    a("s_load_dwordx4 s[64:67], s[4:5], 0")
    gemm_lane_consts(a, 64 * 3584)
    a(f"s_mul_i32 s62, s{sWAVE}, {512*3584}")
    a(f"s_lshl_b32 s63, s{sFT1}, 7")
    a("s_add_u32 s62, s62, s63")
    a(f"s_lshl_b32 s{sA0}, s{sDT1}, 18")
    a(f"s_lshl_b32 s63, s{sWAVE}, 16")
    a(f"s_add_u32 s{sA0}, s{sA0}, s63")
    if WS_HT: a(f"s_add_u32 s{sA0}, s{sA0}, {WS_HT}")
    slots1 = [(x + 4) % 8 for x in range(16)]
    NR = min(NREG, NR1)
    kinds1 = ['pre'] * 8 + ['reg'] * NR + ['dma'] * (8 - NR)
    g1 = Gemm(a, 16, slots1, kinds1, SW1, 62, 3584, 4 * 3584, True)
    for sg in range(EDMA, 8 + NR - NB1 - NB2):
        g1.emit_w(sg)
        if sg == EDMA + WARR - 1 and not WJOBH: w_arrive(a, 4 * WARR)
        if sg == 3 and WJOBH:
            L = uid("wfree")
            a(f"s_bitcmp1_b32 s{TREG}, {TB_}")
            a.fence()
            a(f"s_cbranch_scc1 {L}")
            a(f"v_mov_b32 v12, {CNT + 36}")
            wait_word(a, 12, 4)
            a.label(L)
    if COOPH:
        a(f"s_lshr_b32 s72, s{sXCD}, 1")
        a("s_mul_i32 s72, s72, 7")
        a(f"s_sub_u32 s72, s{sFT1}, s72")
        a("v_lshrrev_b32 v18, 3, v2")
        a("v_mul_u32_u24 v18, 7, v18")
        a("v_add_u32 v18, s72, v18")
        a("v_cmp_gt_u32 s[68:69], 8, v18")
        a("v_and_b32 v19, 7, v2")
        a("v_lshlrev_b32 v19, 7, v19")
        a("v_lshl_add_u32 v18, v18, 10, v19")
    stamp(a, 'pre4')
    a(f"s_lshr_b32 s72, s{sWAVE}, 1")
    a("s_lshl_b32 s72, s72, 12")
    a(f"s_add_u32 s72, s72, {WS_FLG + F_H}")
    a.vm = a.vm[-8:]
    g1.tok = {}
    beh = (lambda: [g1.emit_w(sg) for sg in range(8 + NR - NB1 - NB2, 8 + NR - NB2)]) if NB1 else None
    if ENV('SKIPH', 0): pass
    elif HPOLL2:
        a(f"s_bitcmp1_b32 s{sWAVE}, 0")
        a.fence()
        a("s_cbranch_scc1 L_g1odd")
        sn = a.snapshot()
        gpoll(a, [(72, 64)], vt=(12, 13, 16, 17), behind=beh)
        a(f"s_lshl_b32 s72, s{sWAVE}, 1")
        a(f"s_add_u32 s72, s72, {CNT + 48}")
        a("v_mov_b32 v12, s72")
        a("ds_write_b32 v12, v12")
        a.wait_all(vm=False); a.fence()
        a("s_branch L_g1go")
        en = a.snapshot()
        a.restore(sn)
        a.label("L_g1odd")
        if beh: beh()
        a(f"s_lshl_b32 s72, s{sWAVE}, 1")
        a(f"s_add_u32 s72, s72, {CNT + 46}")
        a("v_mov_b32 v12, s72")
        wait_word(a, 12, 1, sleep=1)
        a.fence()
        a.label("L_g1go")
        a.restore(en)
    else:
        gpoll(a, [(72, 64)], vt=(12, 13, 16, 17), behind=beh)
    stamp(a, 'b4')
    if COOPH:
        a(f"buffer_load_dword v1, v18, {S4(SWS)}, s{sA0} offen {LD}")
        a(f"s_add_u32 s72, s{sA0}, {56*1024}")
        a("s_mov_b64 exec, s[68:69]")
        a("s_cbranch_execz L_nocoopb")
        a.raw(f"    buffer_load_dword v1, v18, {S4(SWS)}, s72 offen {LD}")
        a.label("L_nocoopb")
        a("s_mov_b64 exec, -1")
    slots2 = [4, 5, 6, 7, 0, 1, 2, 3, 4, 5, 6, 7, 0, 1]
    kinds2 = ['pre'] * 8 + ['reg'] * min(NREG, 6) + ['dma'] * max(0, 6 - NREG)
    g2 = Gemm(a, 14, slots2, kinds2, SW2, 63, 8 * 4096, 32 * 4096, False, vw=(14, 15), rot=77)
    def w2_consts():
        wlane(a, 14, 15, 4096, 12, 13)
        a(f"s_and_b32 s76, s{sWAVE}, 3")
        a(f"s_lshl_b32 s{sRING}, s76, 15")
        a(f"s_mul_i32 s63, s76, {448*4096}")
        a(f"s_lshl_b32 s76, s{sST2}, 7")
        a("s_add_u32 s63, s63, s76")
        a(f"s_and_b32 s77, s{sDT2 if MAP2 == 24 else sST2}, 3")
        a("s_lshl_b32 s77, s77, 1")
        a(f"s_and_b32 s76, s{sST2 if MAP2 == 24 else sDT2}, 7")
        a(f"s_mul_i32 s76, s76, {ROT2}")
        a("s_add_u32 s77, s77, s76")
        a(f"s_mul_i32 s77, s77, {7 * ROT}")
        a("s_lshr_b32 s77, s77, 2")
        a("s_sub_u32 s76, s77, 14")
        a("s_min_u32 s77, s77, s76")
    w2_consts()
    a(f"s_lshl_b32 s76, s{sWAVE}, 2")
    a(f"s_add_u32 s76, s76, {CNT + 16}")
    a("v_mov_b32 v12, s76")
    def extra(sig):
        if SPREAD and sig < NB2: return [(lambda jj=jj: g1.emit_w(8 + NR - NB2 + sig, [jj])) for jj in range(4)]
        o = []
        if sig == W2SIG: o.append(lambda: a("ds_write_b32 v12, v12"))
        if EARLYW2 and sig >= 13:
            for sg in (8 + 2 * (sig - 13), 9 + 2 * (sig - 13)):
                if sg < 8 + NREG: o += [(lambda jj=jj, sg=sg: g2.emit_w(sg, [jj])) for jj in range(4)]
        return o
    g1.run(extra, post=(None if SPREAD else lambda: [g1.emit_w(sg) for sg in range(8 + NR - NB2, 8 + NR)]),
           pwrite=lambda blk: f"ds_write_b128 v7, {vr(ACC + blk*4, 4)} offset:{16384 + blk*1024}")
    stamp(a, 'loop1')
    if EARLYW2:
        for sg in range(4, 8): g2.emit_w(sg)
    a.wait_all(vm=False)
    a.fence()
    a("s_branch L_g1red")
    a.label("L_g1help")
    a.reset_state()
    a("s_load_dwordx4 s[64:67], s[4:5], 0")
    if PFH: prefetch_h(a)
    a("s_setprio 0")
    if W2T == 'mid0': touch_w2(a, dst=(1, 1))
    gate(a)
    if W2T == 'mid': touch_w2(a, dst=(1, 1))
    g_gen(a)
    if W2T == 'mid2': touch_w2(a, dst=(1, 1))
    if W2T == 'late':
        a(f"s_lshl_b32 s76, s{sWAVE}, 2")
        a(f"s_add_u32 s76, s76, {CNT}")
        a("v_mov_b32 v12, s76")
        wait_word(a, 12, 1)
        touch_w2(a)
    a.fence()
    a.label("L_g1red")
    a.reset_state()
    a("s_waitcnt lgkmcnt(0)")
    a("s_barrier")
    stamp(a, 'b5')
    if MF32:
        a(f"s_lshr_b32 s68, s{sWAVE}, 2")
        a("s_lshl_b32 s68, s68, 13")
        a(f"s_and_b32 s69, s{sWAVE}, 3")
        a("s_lshl_b32 s69, s69, 10")
        a("s_add_u32 s68, s68, s69")
        a("v_lshrrev_b32 v12, 5, v2")
        a("v_lshlrev_b32 v12, 12, v12")
        a("v_and_b32 v13, 31, v2")
    else:
        a(f"s_lshr_b32 s68, s{sWAVE}, 1")
        a("s_lshl_b32 s68, s68, 12")
        a(f"s_and_b32 s69, s{sWAVE}, 1")
        a("s_lshl_b32 s69, s69, 9")
        a("s_add_u32 s68, s68, s69")
        a("v_lshrrev_b32 v12, 4, v2")
        a("v_lshlrev_b32 v12, 10, v12")
        a("v_and_b32 v13, 15, v2")
    a("v_lshl_add_u32 v12, v13, 4, v12")
    a("v_add_u32 v12, s68, v12")
    a(f"v_add_u32 v13, {2*RING}, v12")
    E = 16
    for w in range(4):
        for hh in range(2):
            a(f"ds_read_b128 {vr(E + w*8 + hh*4, 4)}, v{12 + (w >> 1)} offset:{(w & 1)*RING + 16384 + hh*(512 if MF32 else 256)}")
    for e in range(4):
        a(f"s_lshl_b32 s{68+2*e}, s{64+e}, 16")
        a(f"s_and_b32 s{69+2*e}, s{64+e}, 0xffff0000")
    P2 = lambda r: f"v[{r}:{r+1}]"
    def pk(op, d, x, y, z=None):
        for q in range(4):
            o = lambda r: (r if isinstance(r, str) else P2(r + 2*q))
            a(f"v_pk_{op}_f32 {P2(d + 2*q)}, {o(x)}, {o(y)}" + (f", {o(z)}" if z is not None else ""))
    pk("add", E, E, E + 8); pk("add", E + 16, E + 16, E + 24); pk("add", E, E, E + 16)
    def rnd(X, T):
        for q in range(4): a(f"v_cvt_pk_bf16_f32 v{T+q}, v{X+2*q}, v{X+2*q+1}")
        for q in range(4): unpack(a, X + 2*q, X + 2*q + 1, T + q)
    rnd(E, E + 8)
    for q in range(4): a(f"v_pk_add_f32 {P2(E + 2*q)}, {P2(E + 2*q)}, s[{68+2*q}:{69+2*q}]")
    c0 = -2.0 * math.log2(math.e) * math.sqrt(2.0 / math.pi); c1 = c0 * 0.044715
    for r, c in ((24, c0), (25, c0), (26, c1), (27, c1), (28, 1.0), (29, 1.0)): a(f"v_mov_b32 v{E+r}, 0x{f2u(c):08x}")
    rnd(E, E + 8)
    pk("mul", E + 8, E, E)
    pk("fma", E + 8, E + 8, P2(E + 26), P2(E + 24))
    pk("mul", E + 8, E + 8, E)
    for e in range(8): a(f"v_exp_f32 v{E+8+e}, v{E+8+e}")
    pk("add", E + 8, E + 8, P2(E + 28))
    for e in range(8): a(f"v_rcp_f32 v{E+8+e}, v{E+8+e}")
    pk("mul", E, E, E + 8)
    for q in range(4): a(f"v_cvt_pk_bf16_f32 v{E+8+q}, v{E+2*q}, v{E+2*q+1}")
    a(f"s_mul_i32 s68, s{sDT1}, {224*1024}")
    a(f"s_lshl_b32 s69, s{sFT1}, 3")
    a(f"s_add_u32 s69, s69, s{sWAVE}")
    a("s_lshl_b32 s69, s69, 10")
    a("s_add_u32 s68, s68, s69")
    a(f"s_add_u32 s68, s68, {WS_UT}")
    a(f"buffer_store_dwordx4 {vr(E+8,4)}, v3, {S4(SWS)}, s68 offen {ST}")
    a(f"s_lshl_b32 s72, s{sDT1}, 5")
    a(f"s_add_u32 s72, s72, s{sFT1}")
    a("s_lshl_b32 s72, s72, 6")
    a(f"s_add_u32 s72, s72, {F_U}")
    stamp(a, 'ust')
    a("s_barrier")
    a.fence()
    a("s_branch L_pub2")
    a.label("L_fft")
    a.reset_state()
    a("s_setprio 0")
    if TBIT == 10: gate(a)
    a.fence()
    a.label("L_fft2")
    a.reset_state()
    fft_block(a, ti2, TB2OFF)
    w2_consts()
    a(f"s_cmp_ge_u32 s{sWAVE}, 4")
    a("s_cbranch_scc1 L_fhelp")
    gemm_lane_consts(a, 4096)
    g2.tok = {}
    for sg in range(8, 10): g2.emit_w(sg)
    arrive(a, 1, [72], 8, 8, lowprio=True)
    for sg in range(10, min(14, 8 + NREG)): g2.emit_w(sg)
    a(f"v_mov_b32 v12, {CNT + 24}")
    wait_word(a, 12, 8)
    for sg in range(4 if BEH2 else 8): g2.emit_w(sg)
    a.fence()
    a("s_branch L_pub3")
    a.label("L_fhelp")
    arrive(a, 1, [72], 0, 8, lowprio=True)
    if FGEN_LATE:
        fg_poll(a)
        a("s_barrier")
        g_gen(a)
        a.fence()
        a("s_branch L_g2help3")
    else:
        g_gen(a)
        a.fence()
        a("s_branch L_g2help2")
    a.label("L_pub2")
    a.reset_state()
    a(f"s_cmp_ge_u32 s{sWAVE}, 4")
    a("s_cbranch_scc1 L_g2help")
    snap3 = a.snapshot()
    g2.tok = {}
    for sg in range(0, 2): g2.emit_w(sg)
    arrive(a, 1, [72], 8, 8, lowprio=True)
    for sg in range(2, 4 if EARLYW2 else min(14, 8 + NREG)):
        if not (BEH2 and 4 <= sg < 8): g2.emit_w(sg)
    a.fence()
    a.label("L_pub3")
    a.reset_state()
    g2.tok = {}
    a(f"s_mul_i32 s{sA0}, s{sDT2}, {224*1024}")
    a(f"s_mul_i32 s61, s{sWAVE}, {56*1024}")
    a(f"s_add_u32 s{sA0}, s{sA0}, s61")
    a(f"s_add_u32 s{sA0}, s{sA0}, {WS_UT}")
    stamp(a, 'pre7')
    a("s_barrier")
    a(f"s_lshl_b32 s72, s{sDT2}, 11")
    a(f"s_mul_i32 s73, s{sWAVE}, {7*64}")
    a("s_add_u32 s72, s72, s73")
    a(f"s_add_u32 s72, s72, {WS_FLG + F_U}")
    a.vm = a.vm[-8:]
    if not ENV('SKIPU', 0): gpoll(a, [(72, 7)], vt=(12, 13, 16, 17), need=((1 << STAGE) - 1) if STAGE and not ROT else None, lanes="0x7f",
              behind=(lambda: [g2.emit_w(sg) for sg in range(4, 8)]) if BEH2 else None)
    a("s_mov_b64 s[66:67], s[70:71]")
    def extra2(sig):
        if STAGE and not ROT and sig == 2 * STAGE - PA:
            def late():
                L = uid("late")
                a("s_cmp_eq_u64 s[66:67], 0")
                a.fence()
                a(f"s_cbranch_scc1 {L}")
                sn = a.snapshot()
                gpoll(a, [(72, 7)], vt=(14, 15, 15, 15), lanes="s[66:67]")
                a.fence()
                a.label(L)
                a.restore(sn)
            return [late]
        return []
    if not BEH2: g2.tok = {}
    stamp(a, 'b7')
    if COOPU:
        a("v_lshrrev_b32 v18, 3, v2")
        a("v_and_b32 v19, 7, v2")
        a("v_lshlrev_b32 v19, 7, v19")
        a("v_lshl_add_u32 v18, v18, 13, v19")
        a(f"s_and_b32 s72, s{sST2}, 7")
        a("s_lshl_b32 s72, s72, 10")
        a(f"s_add_u32 s72, s72, s{sA0}")
        a("s_mov_b32 exec_hi, 0x00ffffff")
        a(f"buffer_load_dword v1, v18, {S4(SWS)}, s72 offen {LD}")
        a("s_mov_b32 exec_hi, -1")
    gb_load(a, 12, 13, 16)
    a("v_lshrrev_b32 v4, 5, v2")
    a("v_lshlrev_b32 v4, 6, v4")
    a("v_xor_b32 v4, v4, v7")
    a("v_xor_b32 v5, 128, v4")
    if MF32:
        a("v_xor_b32 v4, 64, v7"); a("v_xor_b32 v5, 128, v7"); a("v_xor_b32 v10, 192, v7")
    g2.run(extra2, post=lambda: [g2.emit_w(sg) for sg in range(8 + NREG - NB4, 8 + NREG)],
           pwrite=lambda blk: f"ds_write_b128 v{(7, 4, 5, 10)[blk & 3] if MF32 else 4 + ((blk >> 2) & 1)}, {vr(ACC + blk*4, 4)} offset:{8192 + blk*1024}")
    stamp(a, 'loop2')
    a("v_mov_b32 v10, v12")
    a("v_mov_b32 v11, v13")
    a.wait_all(vm=False)
    a.fence()
    a("s_branch L_g2red")
    a.restore(snap3)
    a.label("L_g2help")
    a("s_setprio 3")
    if W2T == 'post':
        touch_w2(a, dst=(1, 1))
        arrive(a, 1, [72], 1 if MAP2 == 18 else 2, 8)
    else: arrive(a, 1, [72], 0, 8)
    a.fence()
    a.label("L_g2help2")
    a.reset_state()
    fg_poll(a)
    if PFU:
        a("s_setprio 3")
        prefetch_u(a)
    a(f"s_setprio {DFTPRIO}")
    a("s_barrier")
    a.label("L_g2help3")
    dft_part(a)
    a("s_setprio 0")
    a.fence()
    a.label("L_g2red")
    a.reset_state()
    a("v_lshrrev_b32 v4, 3, v0")
    a(f"s_lshl_b32 s68, s{sST2}, 6")
    a("v_add_u32 v5, s68, v4")
    a("v_and_b32 v6, 7, v0")
    a("v_lshrrev_b32 v7, 1, v6")
    a("v_lshlrev_b32 v7, 12, v7")
    a("v_lshrrev_b32 v8, 4, v4")
    a("v_lshl_add_u32 v7, v8, 10, v7")
    a("v_and_b32 v8, 1, v6")
    a("v_lshl_add_u32 v7, v8, 9, v7")
    a("v_and_b32 v8, 3, v6")
    a("v_lshlrev_b32 v8, 2, v8")
    a("v_and_b32 v9, 15, v4")
    a("v_xor_b32 v8, v8, v9")
    a("v_lshl_add_u32 v7, v8, 4, v7")
    a(f"v_add_u32 v12, {AP}, v7")
    if MF32:
        a("v_lshrrev_b32 v7, 2, v6")
        a("v_lshlrev_b32 v7, 13, v7")
        a("v_lshrrev_b32 v8, 5, v4")
        a("v_lshl_add_u32 v7, v8, 12, v7")
        a("v_and_b32 v8, 3, v6")
        a("v_lshl_add_u32 v7, v8, 10, v7")
        a("v_lshlrev_b32 v8, 2, v8")
        a("v_and_b32 v9, 31, v4")
        a("v_xor_b32 v8, v8, v9")
        a("v_lshl_add_u32 v7, v8, 4, v7")
    a(f"v_add_u32 v8, {2*RING}, v7")
    a("v_lshlrev_b32 v9, 10, v5")
    a("v_lshl_add_u32 v9, v6, 4, v9")
    a(f"s_lshl_b32 s70, s{sDT2}, 7")
    a("s_barrier")
    stamp(a, 'b8')
    B_, A_ = 16, 48
    for w in range(4):
        for hh in range(2):
            a(f"ds_read_b128 {vr(B_ + w*8 + hh*4, 4)}, v{7 + (w >> 1)} offset:{(w & 1)*RING + 8192 + hh*(512 if MF32 else 256)}")
    for w in range(2):
        for hh in range(2):
            a(f"ds_read_b128 {vr(A_ + w*8 + hh*4, 4)}, v12 offset:{w*16384 + hh*256}")
    a("v_sub_f32 v68, 1.0, v10")
    a("v_cvt_pk_bf16_f32 v68, v68, v68")
    a("v_lshlrev_b32 v68, 16, v68")
    a("v_mov_b32 v69, v68")
    a("v_mov_b32 v70, v10"); a("v_mov_b32 v71, v10")
    a("v_mov_b32 v72, v11"); a("v_mov_b32 v73, v11")
    a("v_mov_b32 v74, 0x36000000"); a("v_mov_b32 v75, 0x36000000")
    pk("add", B_, B_, B_ + 8); pk("add", B_ + 16, B_ + 16, B_ + 24); pk("add", B_, B_, B_ + 16)
    pk("add", A_, A_, A_ + 8)
    rnd(B_, B_ + 8)
    pk("mul", A_, A_, P2(74))
    pk("add", B_, B_, P2(72))
    rnd(A_, A_ + 8)
    rnd(B_, B_ + 8)
    pk("mul", A_, A_, P2(70))
    pk("mul", B_, B_, P2(68))
    rnd(A_, A_ + 8)
    rnd(B_, B_ + 8)
    pk("add", A_, A_, B_)
    for q in range(4): a(f"v_cvt_pk_bf16_f32 v{B_+q}, v{A_+2*q}, v{A_+2*q+1}")
    a(f"buffer_store_dwordx4 {vr(B_,4)}, v9, {S4(SOUT)}, s70 offen {OST}")
    a(f"s_or_b32 s71, s2, s{sWAVE}")
    a("s_cmp_lg_u32 s71, 0")
    a("s_cbranch_scc1 L_noep")
    a(f"s_mov_b32 s72, {F_EP}")
    set_flag(a, 72)
    a.fence()
    a.label("L_noep")
    stamp_flush(a)
    a.label("L_end")
    a("s_endpgm")
    return np.concatenate([tb1, tb2])

def fg_off(a, d):
    a(f"s_lshr_b32 s{d}, s{sST2}, 4")
    a(f"s_lshl_b32 s{d}, s{d}, 12")
    a(f"s_add_u32 s{d}, s{d}, {WS_FLG + F_G}")
def fg_poll(a):
    L = uid("nofg")
    a(f"s_cmp_lg_u32 s{sWAVE}, 7")
    a.fence()
    a(f"s_cbranch_scc1 {L}")
    fg_off(a, 62)
    gpoll(a, [(62, 64)], vt=(12, 13, 4, 5))
    a.fence()
    a.label(L)
    a.reset_state()
def gb_load(a, vg, vb, t):
    a(f"v_lshrrev_b32 v{t}, 3, v0")
    a(f"s_lshr_b32 s69, s{sST2}, 4")
    a("s_lshl_b32 s69, s69, 12")
    a(f"s_and_b32 s70, s{sST2}, 15")
    a("s_lshl_b32 s70, s70, 2")
    a("s_add_u32 s69, s69, s70")
    a(f"s_add_u32 s69, s69, {WS_G}")
    a(f"v_lshlrev_b32 v{t+1}, 6, v{t}")
    a(f"buffer_load_dword v{vg}, v{t+1}, {S4(SWS)}, s69 offen {LD}")
    a(f"v_mov_b32 v{vb}, 0")
    a(f"v_lshlrev_b32 v{t}, 1, v{t}")
    a(f"s_lshl_b32 s70, s{sST2}, 7")
    a(f"buffer_load_short_d16_hi v{vb}, v{t}, {S4(SB2)}, s70 offen")
YF, GF, AC = 48, 112, 16
def g_gen(a):
    a(f"s_bfe_u32 s70, s{sWAVE}, 0x10001")
    a(f"s_and_b32 s71, s{sWAVE}, 1")
    a("v_and_b32 v4, 15, v2")
    a("v_lshrrev_b32 v5, 4, v2")
    a(f"s_lshl_b32 s62, s{sDT2}, 6")
    a("v_add_u32 v7, s62, v4")
    a("v_cvt_f32_u32 v8, v7")
    a("v_mul_f32 v8, 0x3b000000, v8")
    for mt in range(1, 4): a(f"v_add_f32 v{8+mt}, 0x3d000000, v{7+mt}")
    a("s_lshl_b32 s62, s70, 7")
    a("v_lshlrev_b32 v12, 2, v5")
    a("v_add_u32 v12, s62, v12")
    a("v_cvt_f32_u32 v12, v12")
    ANG, D13 = 240, 244
    for mt in range(4):
        a(f"v_mul_f32 v{ANG+mt}, v{8+mt}, v12")
        a(f"v_mul_f32 v{D13+mt}, 0x41500000, v{8+mt}")
    for ks in range(8):
        for e in range(4):
            for mt in range(4):
                t0 = 248 + 2 * mt
                a(f"v_cos_f32 v{t0}, v{ANG+mt}")
                a(f"v_sin_f32 v{t0+1}, v{ANG+mt}")
                if not (ks == 7 and e == 3): a(f"v_add_f32 v{ANG+mt}, v{ANG+mt}, v{(D13 if e == 3 else 8) + mt}")
            for mt in range(4):
                t0 = 248 + 2 * mt
                a(f"v_cvt_pk_bf16_f32 v{GF + (ks*4+mt)*4 + e}, v{t0}, -v{t0+1}")
        if ks == 0:
            a("v_and_b32 v13, 1, v2")
            a("v_lshlrev_b32 v13, 31, v13")
            a("v_or_b32 v13, 0x3f003f00, v13")
            a("s_cmp_eq_u32 s70, 0")
            a("s_cselect_b32 s76, 0xffff, 0")
            a("s_mov_b32 s77, 0")
            for mt in range(4): a(f"v_cndmask_b32 v{GF + mt*4}, v{GF + mt*4}, v13, s[76:77]")
def dft_part(a):
    M = "v_mfma_f32_16x16x32_bf16"
    a(f"s_bfe_u32 s64, s{sWAVE}, 0x10001")
    a(f"s_and_b32 s65, s{sWAVE}, 1")
    a("v_and_b32 v4, 15, v2")
    a("v_lshrrev_b32 v5, 4, v2")
    a("v_lshlrev_b32 v6, 15, v5")
    a("v_lshl_add_u32 v6, v4, 4, v6")
    a("s_lshl_b32 s62, s64, 10")
    a(f"s_add_u32 s62, s62, {F_Y}")
    a("s_lshl_b32 s66, s64, 20")
    a(f"s_lshl_b32 s67, s{sST2}, 10")
    a("s_add_u32 s66, s66, s67")
    a("s_lshl_b32 s67, s65, 9")
    a("s_add_u32 s66, s66, s67")
    a(f"s_add_u32 s66, s66, {WS_Y1}")
    a(f"s_add_u32 s62, s62, {WS_FLG}")
    if YSLEEP0: a(f"s_sleep {YSLEEP0}")
    if not ENV('SKIPY', 0): gpoll(a, [(62, 16)], vt=(12, 13, 14, 15), sleep=YSLEEP)
    stamp(a, 'loop2')
    gb_load(a, 10, 11, 12)
    for ks in range(8):
        for t in range(2):
            a(f"buffer_load_dwordx4 {vr(YF + (ks*2+t)*4, 4)}, v6, {S4(SWS)}, s66 offen offset:{t*256} {LD}")
        if ks < 7: a("s_add_u32 s66, s66, 131072")
    for ks in range(8):
        for mt in range(4):
            for t in range(2):
                acc = vr(AC + (mt*2+t)*4, 4)
                a(f"{M} {acc}, {vr(GF + (ks*4+mt)*4, 4)}, {vr(YF + (ks*2+t)*4, 4)}, {'0' if ks == 0 else acc}")
    a("s_lshl_b32 s66, s64, 14")
    a("s_lshl_b32 s67, s65, 11")
    a("s_add_u32 s66, s66, s67")
    a(f"s_add_u32 s66, s66, {AP}")
    a("v_lshrrev_b32 v12, 5, v2")
    a("v_lshlrev_b32 v12, 6, v12")
    a("v_xor_b32 v12, v12, v3")
    a("v_add_u32 v12, s66, v12")
    a("v_xor_b32 v13, 128, v12")
    for mt in range(4):
        for t in range(2):
            a(f"ds_write_b128 v{12 + (mt & 1)}, {vr(AC + (mt*2+t)*4, 4)} offset:{(mt*4+t)*1024}")
    a.wait_all()

def fft_block(a, ti, tboff):
    M = "v_mfma_f32_32x32x16_bf16"
    PK, VA, VB, VT, CF, TMP = 16, 48, 112, 176, 208, 240
    if TBIT == 9:
        a(f"s_and_b32 s62, s{sXCD}, 3")
        a("s_lshl_b32 s62, s62, 3")
        a(f"s_add_u32 s62, s62, s{sIDX}")
    else:
        a(f"s_lshl_b32 s62, s{sXCD}, 2")
        a(f"s_lshr_b32 s63, s{sIDX}, 1" if TBIT in (0, 10) else f"s_and_b32 s63, s{sIDX}, 3")
        a("s_add_u32 s62, s62, s63")
    a("s_lshl_b32 s63, s62, 3")
    a(f"s_add_u32 s63, s63, s{sWAVE}")
    a("v_and_b32 v4, 31, v2")
    a("v_lshrrev_b32 v5, 5, v2")
    a(f"s_lshl_b32 s66, s{sWAVE}, 13")
    a("v_lshrrev_b32 v6, 4, v2")
    a("v_xor_b32 v6, v6, v2")
    a("v_and_b32 v6, 3, v6")
    a("v_lshlrev_b32 v6, 4, v6")
    a("v_lshrrev_b32 v7, 2, v2")
    a("v_lshl_add_u32 v6, v7, 6, v6")
    a("v_bfe_u32 v7, v2, 2, 2")
    a("v_xor_b32 v8, v7, v5")
    a("v_lshlrev_b32 v8, 4, v8")
    a("v_lshl_add_u32 v8, v4, 6, v8")
    a("v_add_u32 v8, s66, v8")
    a("v_xor_b32 v9, 32, v8")
    a(f"v_add_u32 v10, {FB_TB}, v3")
    a("s_cmp_eq_u32 s63, 0")
    a(f"s_cselect_b32 s67, {(ti['P1re0'] - ti['S1re0']) * 1024}, 0")
    a("v_add_u32 v14, s67, v10")
    a("v_lshlrev_b32 v11, 10, v5")
    a("v_lshl_add_u32 v11, v4, 2, v11")
    a("v_add_u32 v11, s66, v11")
    def dma8(base, ks, ldsbase="s66"):
        a(f"s_lshl_b32 s68, s{ks}, 13")
        a(f"s_add_u32 s68, s68, {base}")
        t = []
        for j in range(8):
            a(f"s_add_u32 m0, {ldsbase}, {j*1024}")
            t.append(a(f"buffer_load_dwordx4 v6, {S4(SWS)}, s68 offen {LD} lds"))
            if j < 7: a("s_add_u32 s68, s68, 1024")
        return t
    tab = lambda reg, nm, base=10: f"ds_read_b128 {vr(reg,4)}, v{base} offset:{ti[nm]*1024}"
    TWO = TMP + 14
    a(f"s_cmp_lt_u32 s{sWAVE}, 4")
    a(f"s_cselect_b32 s68, {FB_WG}, 0")
    a("v_add_u32 v12, s68, v8")
    a("v_add_u32 v13, s68, v9")
    a(f"s_cmp_eq_u32 s{sWAVE}, 4")
    a.fence()
    a("s_cbranch_scc1 L_fpollz")
    a(f"s_cmp_eq_u32 s{sWAVE}, 5")
    a("s_cbranch_scc1 L_fpollw")
    a(f"s_cmp_ge_u32 s{sWAVE}, 4")
    a("s_cbranch_scc1 L_fgo")
    a("s_waitcnt vmcnt(0)")
    lds_inc(a, 15, t=(20, 21))
    a.fence()
    a("s_branch L_fgo")
    a.label("L_fpollw")
    a.reset_state()
    a(f"s_mov_b32 s68, {F_W}")
    poll(a, 68, 128, vt=20)
    a(f"v_mov_b32 v20, {CNT}")
    wait_word(a, 20, 4, tv=21)
    lds_inc(a, 13, t=(20, 21))
    for w in range(4):
        a(f"s_sub_u32 s69, s63, {5 - w}")
        a(f"s_mov_b32 s70, {FB_WG + w*8192}")
        dma8(WS_WT, 69, "s70")
    a.fence()
    a("s_branch L_fgo")
    a.label("L_fpollz")
    a.reset_state()
    a(f"s_mov_b32 s68, {F_Z}")
    poll(a, 68, 128, vt=20)
    lds_inc(a, 14, t=(20, 21))
    a.fence()
    a.label("L_fgo")
    a.reset_state()
    stamp(a, 'pre4')
    a(f"v_mov_b32 v20, {CNT + 60}")
    wait_word(a, 20, 4, tv=21, sleep=1)
    a(f"v_mov_b32 v20, {CNT + 56}")
    wait_word(a, 20, 1, tv=21, sleep=1)
    stamp(a, 'b4')
    tz = dma8(WS_Z, 63)
    for c in range(4):
        a(tab(CF + c * 4, f'S1re{c}', 14)); a(tab(CF + 16 + c * 4, f'S1im{c}', 14))
    for mt in range(2):
        for pr in range(4): a(tab(VT + (mt * 4 + pr) * 4, f'F1_{mt}_{pr}'))
    for c in range(4):
        a.wait_tok(*tz[(c >> 1) * 4: (c >> 1) * 4 + 4])
        for mt in range(2):
            a(f"ds_read_b128 {vr(PK + (mt*4+c)*4, 4)}, v{8 + (c & 1)} offset:{(c >> 1)*4096 + mt*2048}")
    a(f"s_cmp_eq_u32 s{sWAVE}, 5")
    a.wait_all(); a.fence()
    a("s_cbranch_scc0 L_fnot5")
    lds_inc(a, 15 - 8, t=(240, 241))
    a.fence()
    a.label("L_fnot5")
    a(f"s_cmp_lt_u32 s{sWAVE}, 4")
    a("s_cbranch_scc1 L_fcomp")
    a(f"v_mov_b32 v240, {CNT + 52}")
    wait_word(a, 240, 1, tv=241, sleep=0)
    dma8(WS_WT, 63)
    a.fence()
    a.label("L_fcomp")
    a.reset_state()
    if FFT_W2 == 2: touch_w2_8(a)
    D = lambda base, x, ri: base + (x * 2 + ri) * 16
    for c in range(4):
        for mt in range(2):
            for ri in range(2):
                acc = vr(D(VA, mt, ri), 16)
                a(f"{M} {acc}, {vr(PK + (mt*4+c)*4, 4)}, {vr(CF + ri*16 + c*4, 4)}, {'0' if c == 0 else acc}")
    PKR = lambda x, ri, u: PK + ((x * 2 + ri) * 2 + u) * 4
    WSL = [[0, 4, 1, 5], [2, 6, 3, 7]]
    Wr = lambda p, i: VT + 4 * WSL[p][i >> 2] + (i & 3)
    P2 = lambda r: f"v[{r}:{r+1}]"
    NEG0 = "neg_lo:[1,0,0] neg_hi:[1,0,0]"; NEG2 = "neg_lo:[0,0,1] neg_hi:[0,0,1]"
    a(f"v_mov_b32 v{TWO}, 2.0"); a(f"v_mov_b32 v{TWO+1}, 2.0")
    G2 = [('E', 0, 0), ('OF', 1, 0), ('E', 0, 1), ('OF', 1, 1)]
    G3 = [('E', 0, 0), ('E', 0, 1), ('OI', 1, 0), ('OI', 1, 1)]
    G4 = G2
    groups = [(g, 2) for g in G2] + [(g, 3) for g in G3] + [(g, 4) for g in G4]
    def cload(k):
        if k >= len(groups): return []
        (t, x, u), st = groups[k]
        return [tab(CF + (k & 1) * 12 + 4 * n, f'{t}{y}{u}') for n, y in enumerate('csn')]
    seen = set()
    def mgroup(k):
        (t, x, u), st = groups[k]
        out = VB if st in (2, 4) else VA
        inv = st != 2
        fr = lambda y: vr(CF + (k & 1) * 12 + 4 * 'csn'.index(y), 4)
        r = []
        for (ro, cx, ri) in ((0, 'c', 0), (1, 's' if inv else 'n', 0), (0, 'n' if inv else 's', 1), (1, 'c', 1)):
            acc = vr(D(out, x, ro), 16); dat = vr(PKR(x, ri, u), 4)
            A_, B_ = (dat, fr(cx)) if st == 3 else (fr(cx), dat)
            c = acc if (st, x, ro) in seen else '0'
            seen.add((st, x, ro))
            r.append(f"{M} {acc}, {A_}, {B_}, {c}")
        return r
    def mix(ks, valu):
        ms = []
        for k in ks: ms += [(m, (k if i == 3 else None)) for i, m in enumerate(mgroup(k))]
        n = len(ms); per = -(-len(valu) // n) if valu else 0
        vi = 0
        for m, k in ms:
            a(m)
            if k is not None:
                for l in cload(k + 2): a(l)
            for l in valu[vi:vi + per]: a(l)
            vi += per
    def pack(base, x, u):
        return [f"v_cvt_pk_bf16_f32 v{PKR(x, ri, u) + q}, v{D(base, x, ri) + 8*u + 2*q}, v{D(base, x, ri) + 8*u + 2*q + 1}"
                for ri in range(2) for q in range(4)]
    def wread1(p, q, off=0): return f"ds_read_b128 {vr(Wr(p, 4*q), 4)}, v{12 + (q & 1)} offset:{off + (q >> 1)*4096 + p*2048}"
    def twx(u, inv, refill):
        o = []
        sg = lambda fwd: (NEG0 if (fwd != inv) else "")
        for pr in range(4):
            i = 8 * u + 2 * pr
            t0r, t0i, t1r, t1i = (P2(D(VA, x, ri) + i) for x in range(2) for ri in range(2))
            if inv: s0 = s1 = Wr(u, 4 * pr)
            else: s0, s1 = VT + 4 * pr, VT + 16 + 4 * pr
            c0, sn0, c1, sn1 = P2(s0), P2(s0 + 2), P2(s1), P2(s1 + 2)
            A, B = P2(TMP + 4 * (pr & 1)), P2(TMP + 4 * (pr & 1) + 2)
            o += [f"v_pk_mul_f32 {A}, {t0r}, {c0}", f"v_pk_mul_f32 {B}, {t0i}, {c0}",
                  f"v_pk_fma_f32 {A}, {t0i}, {sn0}, {A} {sg(False)}", f"v_pk_fma_f32 {B}, {t0r}, {sn0}, {B} {sg(True)}",
                  f"v_pk_fma_f32 {t0r}, {t1r}, {c1}, {A}", f"v_pk_fma_f32 {t0i}, {t1i}, {c1}, {B}",
                  f"v_pk_fma_f32 {t0r}, {t1i}, {sn1}, {t0r} {sg(False)}", f"v_pk_fma_f32 {t0i}, {t1r}, {sn1}, {t0i} {sg(True)}",
                  f"v_pk_fma_f32 {t1r}, {A}, {P2(TWO)}, {t0r} {NEG2}", f"v_pk_fma_f32 {t1i}, {B}, {P2(TWO)}, {t0i} {NEG2}"]
            o += refill(pr)
            o += [f"v_cvt_pk_bf16_f32 v{PKR(x, ri, u) + pr}, v{D(VA, x, ri) + i}, v{D(VA, x, ri) + i + 1}" for x in range(2) for ri in range(2)]
        return o
    def tw1(u):
        if u == 0: return twx(0, False, lambda pr: [tab(VT + (mt * 4 + pr) * 4, f'F1_{mt}_{4 + pr}') for mt in range(2)])
        return twx(1, False, lambda pr: [])
    def tw2(u): return twx(u, True, lambda pr: [])
    def xw(p, t2=True, packit=True):
        o = []
        for pr in range(8):
            i = 2 * pr
            xr, xi, w = P2(D(VB, p, 0) + i), P2(D(VB, p, 1) + i), Wr(p, i)
            b = TMP + 6 * (pr & 1)
            wr, wi, t = P2(b), P2(b + 2), P2(b + 4)
            o += [f"v_lshlrev_b32 v{b}, 16, v{w}", f"v_lshlrev_b32 v{b+1}, 16, v{w+1}",
                  f"v_and_b32 v{b+2}, 0xffff0000, v{w}", f"v_and_b32 v{b+3}, 0xffff0000, v{w+1}",
                  f"v_pk_mul_f32 {t}, {xr}, {wi}", f"v_pk_mul_f32 {xr}, {xr}, {wr}",
                  f"v_pk_fma_f32 {xr}, {xi}, {wi}, {xr} {NEG0}", f"v_pk_fma_f32 {xi}, {xi}, {wr}, {t}"]
            if t2 and (pr & 1): o.append(tab(Wr(p, i & ~3), f'F2_{4 * p + (pr >> 1)}'))
            if packit:
                o += [f"v_cvt_pk_bf16_f32 v{PKR(p, ri, pr >> 2) + (pr & 3)}, v{D(VB, p, ri) + i}, v{D(VB, p, ri) + i + 1}" for ri in range(2)]
        return o
    def wread(p): return [wread1(p, q) for q in range(4)]
    for l in cload(0) + cload(1): a(l)
    stamp(a, 'zin')
    for l in tw1(0): a(l)
    mix([0, 1], tw1(1))
    a("s_waitcnt vmcnt(0)")
    a(f"v_mov_b32 v15, {CNT + 28}")
    wait_word(a, 15, 1, tv=7, sleep=0)
    stamp(a, 'win')
    for l in wread(0) + wread(1): a(l)
    if FFT_W2 == 1:
        touch_w2_8(a)
    a("s_cmp_lg_u32 s67, 0")
    a.wait_all(vm=False); a.fence()
    a("s_cbranch_scc1 L_fspecial")
    snap = a.snapshot(); seen0 = set(seen)
    x0 = xw(0)
    mix([2], [])
    mix([3], x0[:24])
    for l in x0[24:]: a(l)
    stamp(a, 'loop1')
    mix([4, 5], xw(1))
    mix([6, 7], [])
    a.wait_all(vm=False); a.fence()
    a("s_branch L_fjoin")
    a.restore(snap); seen.clear(); seen.update(seen0)
    a.label("L_fspecial")
    a("s_movk_i32 s71, 256")
    a(f"s_mov_b32 s72, {FB_WG}")
    dma8(WS_WT, 71, "s72")
    mix([2, 3], [])
    a("v_lshlrev_b32 v15, 8, v5")
    a("v_add_u32 v15, v15, v4")
    a("v_lshlrev_b32 v15, 2, v15")
    joff = lambda p, i: (32 * p + 64 * (8 * (i >> 2) + (i & 3))) * 4
    MAXO = joff(1, 15)
    a(f"v_sub_u32 v7, {8192 - MAXO}, v15")
    a("v_cmp_eq_u32 vcc, 0, v2")
    for ri in range(2):
        for p in range(2):
            for i in range(16): a(f"ds_write_b32 v15, v{D(VB,p,ri)+i} offset:{joff(p, i)}")
        a.wait_all(vm=False)
        for p in range(2):
            for i in range(16): a(f"ds_read_b32 v{D(VA,p,ri)+i}, v7 offset:{MAXO - joff(p, i)}")
        a.wait_all(vm=False)
        a(f"v_cndmask_b32 v{D(VA,0,ri)}, v{D(VA,0,ri)}, v{D(VB,0,ri)}, vcc")
    for l in xw(0, False, False) + xw(1, False, False): a(l)
    a("s_waitcnt vmcnt(0)")
    for l in wread(0) + wread(1): a(l)
    for p in range(2):
        for pr in range(8):
            i = 2 * pr
            vr_, vi_, w = P2(D(VB, p, 0) + i), P2(D(VB, p, 1) + i), Wr(p, i)
            mr, mi = P2(D(VA, p, 0) + i), P2(D(VA, p, 1) + i)
            b = TMP + 4 * (pr & 1)
            wr, wi = P2(b), P2(b + 2)
            for l in [f"v_lshlrev_b32 v{b}, 16, v{w}", f"v_lshlrev_b32 v{b+1}, 16, v{w+1}",
                      f"v_and_b32 v{b+2}, 0xffff0000, v{w}", f"v_and_b32 v{b+3}, 0xffff0000, v{w+1}",
                      f"v_pk_fma_f32 {vr_}, {mr}, {wr}, {vr_}", f"v_pk_fma_f32 {vi_}, {mr}, {wi}, {vi_}",
                      f"v_pk_fma_f32 {vr_}, {mi}, {wi}, {vr_}", f"v_pk_fma_f32 {vi_}, {mi}, {wr}, {vi_} {NEG0}"]: a(l)
            if pr & 1: a(tab(Wr(p, i & ~3), f'F2_{4 * p + (pr >> 1)}'))
    for x in range(2):
        for u in range(2):
            for l in pack(VB, x, u): a(l)
    stamp(a, 'loop1')
    mix([4, 5, 6, 7], [])
    a.wait_all(vm=False); a.fence()
    a.label("L_fjoin")
    a.reset_state()
    for l in tw2(0): a(l)
    mix([8, 9], tw2(1))
    a("v_add_u32 v15, 128, v11")
    def outp(nt):
        o = []
        for i in range(0, 16, 2):
            r = TMP + (i & 7); off = 8 * (i >> 2) + (i & 3)
            o += [f"v_cvt_pk_bf16_f32 v{r}, v{D(VB,nt,0)+i}, v{D(VB,nt,1)+i}",
                  f"v_cvt_pk_bf16_f32 v{r+1}, v{D(VB,nt,0)+i+1}, v{D(VB,nt,1)+i+1}",
                  f"ds_write2st64_b32 v{15 if nt else 11}, v{r}, v{r+1} offset0:{off} offset1:{off+1}"]
        return o
    mix([10], [])
    o0 = outp(0)
    mix([11], o0[:12])
    for l in o0[12:] + outp(1): a(l)
    a.wait_all(vm=False)
    stamp(a, 'f2')
    a(f"s_lshr_b32 s69, s{sWAVE}, 2")
    a("s_lshl_b32 s70, s69, 2")
    a(f"s_add_u32 s70, s70, {CNT + 16}")
    a("v_mov_b32 v12, s70")
    a("v_mov_b32 v13, 1")
    a("s_mov_b64 exec, 1")
    a("ds_add_u32 v12, v13")
    a("s_mov_b64 exec, -1")
    a("v_and_b32 v14, 255, v0")
    a("s_lshl_b32 s70, s69, 15")
    a("v_lshlrev_b32 v15, 4, v14")
    a("v_lshlrev_b32 v14, 2, v14")
    a("v_add_u32 v14, s70, v14")
    a("s_lshl_b32 s68, s62, 16")
    a("s_add_u32 s68, s68, s70")
    a(f"s_add_u32 s68, s68, {WS_Y1}")
    a("s_setprio 3")
    wait_word(a, 12, 4, sleep=0)
    for z in range(8):
        o = z * 4
        a(f"ds_read2st64_b32 {vr(64 + z*4, 2)}, v14 offset0:{o} offset1:{o+32}")
        a(f"ds_read2st64_b32 {vr(66 + z*4, 2)}, v14 offset0:{o+64} offset1:{o+96}")
    for z in range(8):
        a(f"buffer_store_dwordx4 {vr(64 + z*4, 4)}, v15, {S4(SWS)}, s68 offen {ST}")
        if z < 7: a("s_add_u32 s68, s68, 4096")
    a("s_setprio 0")
    lds_inc(a, 6)
    a("s_lshl_b32 s72, s62, 6")
    a(f"s_add_u32 s72, s72, {F_Y}")
    stamp(a, 'ust')
    a.fence()

def build():
    a = Asm()
    head = HEADER + ("; CFG " + os.environ.get("CFG", "") + "\n" if os.environ.get("CFG") else "") + (f"; STK {','.join(STK)}\n" if STAMPS else "") + f"; @launch grid=(256,1,1) block=(512,1,1) lds={LDS_TOTAL}\n"
    head += '.amdgcn_target "amdgcn-amd-amdhsa--gfx950"\n.text\n'
    tb = gen(a)
    body = a.text() + ".p2align 8\nTABLES:\n"
    for i in range(0, len(tb), 8):
        body += ".long " + ",".join(f"0x{x:x}" for x in tb[i:i+8]) + "\n"
    body += f""".section .rodata,"a"
.p2align 6
.amdhsa_kernel {NAME}
  .amdhsa_next_free_vgpr 256
  .amdhsa_next_free_sgpr 102
  .amdhsa_accum_offset 256
  .amdhsa_group_segment_fixed_size 0
  .amdhsa_kernarg_size 96
  .amdhsa_user_sgpr_count 2
  .amdhsa_user_sgpr_kernarg_segment_ptr 1
  .amdhsa_system_sgpr_workgroup_id_x 1
.end_amdhsa_kernel
"""
    return head + body, a.stats
if __name__ == "__main__":
    t, st = build()
    open(sys.argv[1], "w").write(t)
    print(len(t), "bytes", st)
```
